```python
import torch

def _softmax(x, axis=-1):
    return torch.softmax(x, dim=axis)

def _gelu(x):
    return torch.nn.functional.gelu(x, approximate='tanh')

def _silu(x):
    return torch.nn.functional.silu(x)

def _sigmoid(x):
    return torch.sigmoid(x)

def _layernorm(x, axis=-1, eps=1e-05):
    m = x.mean(dim=axis, keepdim=True)
    v = x.var(dim=axis, keepdim=True, unbiased=False)
    return (x - m) / torch.sqrt(v + eps)

def _scatter_add(tgt, idx, src, axis=0):
    return tgt.clone().index_add_(axis, idx, src)

def _segment_sum(src, seg, n):
    out = torch.zeros((n,) + src.shape[1:], dtype=src.dtype)
    return out.index_add_(0, seg, src)

def _pad(x, pw):
    flat = tuple((v for pair in reversed(pw) for v in pair))
    return torch.nn.functional.pad(x, flat)
kernel_name = 'standalone__conformer_family_branchformer__speech'

def setup_inputs():

    _w = lambda a: (lambda t: t.to(torch.bfloat16) if t.is_floating_point() else t)(torch.as_tensor(a))
    B, T, D, K = (2, 4000, 512, 5)
    s = float(D) ** (-0.5)
    return {'x': _w((lambda *s: torch.randn(*s, dtype=torch.bfloat16) * 0.05)(B, T, D)), 'w_q': _w((lambda *s: torch.randn(*s, dtype=torch.bfloat16) * 1.6)(D, D) * s), 'w_k': _w((lambda *s: torch.randn(*s, dtype=torch.bfloat16) * 1.6)(D, D) * s), 'w_v': _w((lambda *s: torch.randn(*s, dtype=torch.bfloat16) * 0.4)(D, D) * s), 'w_ao': _w((lambda *s: torch.randn(*s, dtype=torch.bfloat16) * 0.4)(D, D) * s), 'w_up': _w((lambda *s: torch.randn(*s, dtype=torch.bfloat16) * 0.8)(D, 2 * D) * s), 'dw': _w((lambda *s: torch.randn(*s, dtype=torch.bfloat16) * 0.8)(K, D) * (1.0 / K)), 'w_dn': _w((lambda *s: torch.randn(*s, dtype=torch.bfloat16) * 0.4)(D, D) * s), 'w_merge': _w((lambda *s: torch.randn(*s, dtype=torch.bfloat16) * 0.4)(2 * D, D) * s)}

def reference(x, w_q, w_k, w_v, w_ao, w_up, dw, w_dn, w_merge):
    B, T, D = x.shape
    K = dw.shape[0]
    xa = _layernorm(x, axis=-1)
    q = torch.einsum('btd,de->bte', xa, w_q)
    k = torch.einsum('btd,de->bte', xa, w_k)
    v = torch.einsum('btd,de->bte', xa, w_v)
    logits = torch.einsum('btd,bsd->bts', q, k) * float(D) ** (-0.5)
    attn = _softmax(logits, axis=-1)
    ya = torch.einsum('bts,bsd->btd', attn, v)
    ya = torch.einsum('btd,de->bte', ya, w_ao)
    xc = _layernorm(x, axis=-1)
    h = _gelu(torch.einsum('btd,de->bte', xc, w_up))
    u = h[..., :D].clone()
    g = _layernorm(h[..., D:], axis=-1)
    pad = K // 2
    gp = _pad(g, ((0, 0), (pad, pad), (0, 0)))
    conv = torch.zeros_like(g)
    for i in range(K):
        conv = conv + gp[:, i:i + T, :] * dw[i][None, None, :]
    yc = torch.einsum('btd,de->bte', u * conv, w_dn)
    merged = torch.concatenate([ya, yc], axis=-1)
    out = torch.einsum('btf,fd->btd', merged, w_merge)
    return x + out
```

```python
class Asm:
    def __init__(self):
        self.lines = []
    def __call__(self, s, *a):
        if a: s = s % a
        for l in s.split('\n'):
            self.lines.append(l)
    def label(self, n): self.lines.append(n + ':')
    def text(self): return '\n'.join(self.lines) + '\n'

def kernel_header(a, name):
    a('.text')
    a('.globl %s', name)
    a('.p2align 8')
    a('.type %s,@function', name)
    a.label(name)

def kernel_desc(a, name, vgpr, accum, sgpr=102):
    a('.section .rodata,"a"')
    a('.p2align 6')
    a('.amdhsa_kernel %s', name)
    a('  .amdhsa_next_free_vgpr %d', vgpr)
    a('  .amdhsa_next_free_sgpr %d', sgpr)
    a('  .amdhsa_accum_offset %d', accum)
    a('  .amdhsa_group_segment_fixed_size 0')
    a('  .amdhsa_kernarg_size 96')
    a('  .amdhsa_user_sgpr_count 2')
    a('  .amdhsa_user_sgpr_kernarg_segment_ptr 1')
    a('  .amdhsa_system_sgpr_workgroup_id_x 1')
    a('  .amdhsa_float_denorm_mode_32 3')
    a('.end_amdhsa_kernel')

def vr(b, n=1): return 'v%d' % b if n == 1 else 'v[%d:%d]' % (b, b + n - 1)
def ar(b, n=1): return 'a%d' % b if n == 1 else 'a[%d:%d]' % (b, b + n - 1)
def sr(b, n=1): return 's%d' % b if n == 1 else 's[%d:%d]' % (b, b + n - 1)

import struct
def f2u(x): return struct.unpack('<I', struct.pack('<f', x))[0]

class Op:
    def __init__(self, text, prod=None, need=None, lds=None, extra=''):
        self.text = text; self.prod = prod; self.need = need or []
        self.lds = lds if lds is not None else (text or '').startswith('ds_')
        self.extra = extra
def resolve(a, ops, history):
    seq = []; done = -1
    for o in history:
        for t in o.need:
            c = [i for i in range(len(seq)) if seq[i].prod == t]
            if c: done = max(done, c[-1])
        if o.lds: seq.append(o)
    for o in ops:
        if isinstance(o, str): o = Op(o)
        if o.need or (o.text is None):
            idx = -1
            for t in o.need:
                c = [i for i in range(len(seq)) if seq[i].prod == t]
                assert c, ('missing producer', t)
                idx = max(idx, c[-1])
            w = []
            if o.extra: w.append(o.extra)
            if idx > done:
                cnt = min(15, len(seq)-1-idx)
                w.append('lgkmcnt(%d)' % cnt); done = len(seq)-1-cnt
            if w: a('s_waitcnt ' + ' '.join(w))
        if o.text is not None: a(o.text)
        if o.lds: seq.append(o)
def oplist(x):
    return [o if isinstance(o, Op) else Op(o) for o in x]

OKPAT = {'', 'E','V','VV','S','SS','SSS','SE','SV','SVV','R','RV','SR','RS','D','W','B','X','SSV'}
ORDER = {'S':0,'R':1,'D':1,'W':1,'X':1,'B':1,'E':2,'V':2}
class Task:
    def __init__(self, kind, ops, deps=(), lo=0, name=None):
        self.kind = kind; self.ops = ops if isinstance(ops, list) else [ops]
        self.deps = list(deps)
        self.lo = lo; self.gap = None; self.name = name
class Gaps:
    def __init__(self, n):
        self.n = n; self.g = [[] for _ in range(n)]
    def pat(self, i, extra=''):
        k = [t.kind for t in self.g[i]] + list(extra)
        return ''.join(sorted(''.join(k), key=lambda c: ORDER[c]))
    def fits(self, i, kind): return self.pat(i, kind) in OKPAT
    def put(self, t, i, force=False):
        assert force or self.fits(i, t.kind), (i, self.pat(i), t.kind, t.ops)
        t.gap = i; self.g[i].append(t); return t
    def asap(self, t, hi=None):
        lo = t.lo
        for d, dist in t.deps: lo = max(lo, d.gap + dist)
        for i in range(lo, hi or self.n):
            if self.fits(i, t.kind): return self.put(t, i)
        raise AssertionError(('no room', t.kind, t.ops, lo))
    def listsched(self, tasks, g0=0):
        todo = list(tasks)
        for i in range(g0, self.n):
            prog = True
            while prog:
                prog = False
                for t in todo:
                    if t.lo > i: continue
                    if any(d.gap is None or d.gap + dist > i for d, dist in t.deps): continue
                    if self.fits(i, t.kind):
                        self.put(t, i); todo.remove(t); prog = True; break
            if not todo: return
        raise AssertionError(('unscheduled', [t.ops for t in todo]))
    def ops(self, i):
        out = []
        for t in sorted(self.g[i], key=lambda t: ORDER[t.kind[0]]): out += oplist(t.ops)
        return out
    def show(self): return ' '.join(self.pat(i) or '.' for i in range(self.n))

def stamp_begin(a, s=90):
    a('s_memrealtime s[%d:%d]', s, s+1)
def stamp_mid(a, i, s=90):
    a('s_memrealtime s[%d:%d]', s+2*i, s+2*i+1); a('s_waitcnt lgkmcnt(0)')
def stamp_end(a, base, swave, srd=8, s=90):
    a('s_waitcnt vmcnt(0)'); a('s_memrealtime s[%d:%d]', s+6, s+7); a('s_waitcnt lgkmcnt(0)')
    for i in range(4): a('v_mov_b32 v%d, s%d', 4+i, s+2*i)
    a('s_lshl_b32 s%d, s2, 2', s+8); a('s_add_u32 s%d, s%d, s%d', s+8, s+8, swave); a('s_lshl_b32 s%d, s%d, 4', s+8, s+8)
    a('s_add_u32 s%d, s%d, 0x%x', s+8, s+8, base); a('v_mov_b32 v3, 0')
    a('buffer_store_dwordx4 v[4:7], v3, s[%d:%d], s%d offen', srd, srd+3, s+8)

def is_vm(o): return o.text is not None and o.text.startswith('buffer_')
class Trace:
    def __init__(self):
        self.l = []; self.v = []; self.dl = -1; self.dv = -1
        self.static = {}
        self.lp = {}; self.vp = {}
    def run(self, key, ops):
        ops = oplist(ops)
        if key not in self.static: self.static[key] = (ops, [[None, None] for _ in ops])
        sops, waits = self.static[key]
        assert [o.text for o in sops] == [o.text for o in ops], ('segment text differs', key)
        for i, o in enumerate(ops):
            il = iv = -1
            for t in o.need:
                if t == 'ALLV': iv = len(self.v)-1; continue
                if t == 'ALLL': il = len(self.l)-1; continue
                assert t in self.lp or t in self.vp, ('missing producer', t, key)
                if t in self.lp: il = max(il, self.lp[t])
                if t in self.vp: iv = max(iv, self.vp[t])
            if iv > self.dv:
                c = min(63, len(self.v)-1-iv); self.dv = len(self.v)-1-c
                waits[i][0] = c if waits[i][0] is None else min(c, waits[i][0])
            if il > self.dl:
                c = min(15, len(self.l)-1-il); self.dl = len(self.l)-1-c
                waits[i][1] = c if waits[i][1] is None else min(c, waits[i][1])
            if o.lds:
                self.l.append(o)
                if o.prod is not None: self.lp[o.prod] = len(self.l)-1
            elif is_vm(o):
                self.v.append(o)
                assert len(self.v)-1-self.dv <= 63, ('vmcnt overflow', key, o.text)
                if o.prod is not None: self.vp[o.prod] = len(self.v)-1
    def emit(self, a, key):
        ops, waits = self.static[key]
        for o, (v, l) in zip(ops, waits):
            w = []
            if v is not None: w.append('vmcnt(%d)' % v)
            if l is not None: w.append('lgkmcnt(%d)' % l)
            if w: a('s_waitcnt ' + ' '.join(w))
            if o.text is not None: a(o.text)
def kind_of(o):
    t = o.text
    if t is None: return 'S'
    if t.endswith(':'): return ''
    if t.startswith('ds_read'): return 'R'
    if t.startswith('ds_write'): return 'W'
    if t.startswith('buffer_'): return 'D'
    if t.startswith('s_barrier'): return 'X'
    if t.startswith('s_cbranch'): return 'B'
    if t.startswith('s_'): return 'S'
    if t.startswith('v_mfma'): return 'M'
    if t.split()[0] in ('v_exp_f32','v_rcp_f32','v_rsq_f32','v_log_f32'): return 'E'
    return 'V'
def spread(fixed, stream, n, g0=0, g1=None):
    g1 = n if g1 is None else g1
    stream = oplist(stream)
    cost = {'V':4,'E':8,'R':8,'W':16,'D':12,'S':4,'M':16,'X':8,'':0,'B':8}
    def cap(g):
        k = ''.join(kind_of(o) for o in oplist(fixed[g]))
        if 'D' in k or 'W' in k or 'X' in k: return 0
        if 'R' in k: return 4
        return 8
    caps = [cap(g) for g in range(g0, g1)]
    vc = {'V':4,'E':8,'R':4,'W':8,'D':8,'S':0,'M':0,'X':8,'':0,'B':8}
    total = sum(vc[kind_of(o)] for o in stream)
    scale = max(1.0, total/float(sum(caps)))
    out = [list(oplist(f)) for f in fixed]
    i = 0; budget = 0.0
    for gi, g in enumerate(range(g0, g1)):
        budget += caps[gi]*scale
        if caps[gi] == 0: continue
        placed_v = False
        while i < len(stream):
            k = kind_of(stream[i]); c = vc[k]
            if k in 'RWD' and k and (placed_v or any(kind_of(o) in ('R','W','D') for o in out[g])): break
            if c > budget + 1e-6: break
            out[g].append(stream[i]); budget -= c; i += 1
            if k in ('V','E'): placed_v = True
            if k == 'M': placed_v = False
        if scale == 1.0: budget = 0.0
    out[g1-1] += stream[i:]
    return out
```

```python
import sys
from asmlib import *
from layout import *
import gen_k0, gen_k2
def gen(fn, kernels='023', stamp=False, **cfg):
    a = Asm()
    if '3' in kernels: import gen_k3
    if '0' in kernels: a('; @launch kernel=prep_kernel ' + gen_k0.K0_LAUNCH)
    if '2' in kernels: a('; @launch kernel=main_kernel ' + gen_k2.K2_LAUNCH)
    if '3' in kernels: a('; @launch kernel=final_kernel ' + gen_k3.K3_LAUNCH)
    a('.amdgcn_target "amdgcn-amd-amdhsa--gfx950"')
    if '0' in kernels: gen_k0.gen_k0(a, stamp=WS_STAMP if stamp else 0)
    if '2' in kernels: gen_k2.gen_k2(a, dict(cfg, stamp=WS_STAMP+0x10000 if stamp else 0))
    if '3' in kernels: gen_k3.gen_k3(a, dict(cfg, stamp=WS_STAMP+0x20000 if stamp else 0))
    if '0' in kernels: gen_k0.k0_desc(a)
    if '2' in kernels: gen_k2.k2_desc(a)
    if '3' in kernels: gen_k3.k3_desc(a)
    open(fn, 'w').write(a.text())
if __name__ == '__main__':
    gen('all.s', kernels=sys.argv[1] if len(sys.argv) > 1 else '023', stamp=True)
```

```python
from asmlib import *
from layout import *
from gen_k0 import srd, h_frag_addr

S_WS=8
S_W=20; S_J=21; S_B=23; S_SP=24; S_QT=25; S_N=26; S_T=27
S_SRC=28; S_DST=29; S_END=30; S_SRCV=31
S_T0=34; S_T1=35; S_T2=36; S_T3=37; S_RET=38; S_RB=39; S_THR=41; S_NV=42
S_STAMP=44
L_ST=65536; L_P=131072; L_X=147456; L_FLAG=159744
MF='v_mfma_f32_16x16x32_bf16'

class Attn:
    def __init__(self, a, cfg):
        self.a = a; self.cfg = cfg
        self.NQ = NQ = cfg['NQ']; self.NS = cfg['NS']
        self.vb = 256 - max(0, 64*NQ - 256)
        self.n = 16*NQ
        self.V_L16=1; self.V_A=2; self.V_PA=3; self.V_XA=4; self.V_F=5; self.V_FA=6; self.V_T=7
        r = 8
        self.V_E=r; r+=8
        self.V_PK=r; r+=4
        self.V_NEGM=r; r+=4*NQ
        self.V_S=r; r+=8*NQ
        self.RQ = cfg['ringq']; self.V_RQ=r; r+=4*self.RQ
        self.V_L=r; r+=NQ
        self.V_TS=r; r+=NQ
        assert r <= self.vb, r
        r = 8
        self.V_PP=r; r+=8*NQ
        self.RP = cfg['ringp']; self.V_RP=r; r+=4*self.RP
        self.V_PX=r; r+=32
        self.V_A2=r; r+=1
        assert r <= self.vb, r
    def R(self, i, n=1):
        return ar(i, n) if i < 256 else vr(self.vb + i - 256, n)
    def dma(self, d0, cnt):
        g = []
        for x in range(cnt):
            d = d0 + x; pre = []
            if d % 4 == 0 or x == 0:
                pre = ['s_add_u32 m0, s%d, %d' % (S_DST, (d//4)*4096), 's_add_u32 s%d, s%d, %d' % (S_T0, S_SRCV, (d//4)*4096)]
            g.append((pre, 'buffer_load_dwordx4 v%d, s[%d:%d], s%d offen offset:%d lds' % (self.V_L16, S_WS, S_WS+3, S_T0, (d%4)*1024)))
        return g
    def dma_adv(self):
        return [['s_add_u32 s%d, s%d, 32768' % (S_SRC, S_SRC), 's_add_u32 s%d, s%d, 32768' % (S_DST, S_DST)],
                ['s_and_b32 s%d, s%d, 0x1ffff' % (S_DST, S_DST)],
                ['s_cmp_lt_u32 s%d, s%d' % (S_SRC, S_END), 's_cselect_b32 s%d, s%d, 0x%x' % (S_SRCV, S_SRC, WS_SIZE)]]
    def place_dma(self, G, d0, cnt, g0, g1):
        if cnt == 0: return []
        prev = None; lst = self.dma(d0, cnt)
        for i, (pre, ins) in enumerate(lst):
            lo = g0 + (i*(g1-g0))//cnt
            if pre:
                t1 = G.asap(Task('S', pre[0], [(prev,1)] if prev else [], lo=max(g0, lo-2) if prev is None else g0))
                t2 = G.asap(Task('S', pre[1], [(t1,0)]))
                prev = t2
            prev = G.asap(Task('D', ins, [(prev,1)], lo=lo))
        self.last_dma = prev.gap
        adv = self.dma_adv()
        for x in adv[0] + adv[1]: prev = G.asap(Task('S', x, [(prev, 1 if prev.kind == 'D' else 0)]))
        return [(G.asap(Task('SS', adv[2], [(prev,1)])), 1)]
    def kread(self, kk, par):
        return Op('ds_read_b128 %s, v%d offset:%d' % (vr(self.V_RQ+4*(kk % self.RQ),4), self.V_A, par*32768 + kk*1024), prod=('K', par, kk))
    def qk_mfma(self, g, par, first=False):
        NQ = self.NQ
        G = g//(2*NQ); w = g % (2*NQ); qb = w//2; kk = 2*G + (w & 1)
        D = vr(self.V_S + 4*NQ*par + 4*qb, 4)
        C = D if kk else ('0' if first else vr(self.V_NEGM+4*qb,4))
        need = [('K', par, kk)] if w < 2 else []
        return Op('%s %s, %s, %s, %s' % (MF, D, vr(self.V_RQ+4*(kk % self.RQ),4), self.R(4*(kk*NQ+qb),4), C), need=need)
    def softmax_groups(self, sp):
        NQ = self.NQ; E = self.V_E; out = []
        for qb in range(NQ):
            S = self.V_S + 4*NQ*sp + 4*qb; PK = self.V_PK + 2*(qb & 1); TS = self.V_TS+qb
            for r in range(4): out.append(['v_exp_f32 v%d, v%d' % (E+r, S+r)])
            out.append(['v_add_f32 v%d, v%d, v%d' % (TS, E, E+1), 'v_cvt_pk_bf16_f32 v%d, v%d, v%d' % (PK, E, E+1)])
            out.append(['v_add_f32 v%d, v%d, v%d' % (self.V_T, E+2, E+3), 'v_cvt_pk_bf16_f32 v%d, v%d, v%d' % (PK+1, E+2, E+3)])
            out.append(['v_add_f32 v%d, v%d, v%d' % (TS, TS, self.V_T),
                        Op('ds_write_b64 v%d, %s offset:%d' % (self.V_PA, vr(PK,2), (sp*NQ+qb)*1024), prod=('PW', sp, qb))])
        return out
    def check_groups(self, tag):
        NQ = self.NQ; TS = self.V_TS; T = self.V_T
        m = ['v_max3_f32 v%d, v%d, v%d, v%d' % (T, TS, TS+1, TS+2)]
        i = 3
        while i < NQ:
            if i+1 < NQ: m.append('v_max3_f32 v%d, v%d, v%d, v%d' % (T, T, TS+i, TS+i+1)); i += 2
            else: m.append('v_max_f32 v%d, v%d, v%d' % (T, T, TS+i)); i += 1
        m.append('v_cmp_lt_f32 vcc, s%d, v%d' % (S_THR, T))
        out = [m[i:i+2] for i in range(0, len(m), 2)]
        out.append(['s_cbranch_vccnz L_setflag%s' % tag, 'L_flagset%s:' % tag])
        return out
    def flag_read(self, par): return Op('ds_read_b32 v%d, v%d' % (self.V_F, self.V_FA), prod=('F', par))
    def softmax_tasks(self, sp):
        NQ = self.NQ; cfg = self.cfg; tasks = []; hist = []
        for qb in range(NQ):
            E = self.V_E + 4*(qb & 1)
            S = self.V_S + 4*NQ*sp + 4*qb; PK = self.V_PK + 2*(qb & 1); TS = self.V_TS+qb
            old = hist[qb-2] if qb >= 2 else None
            e = []
            for r in range(4):
                dep = [(e[-1],1)] if e else ([(hist[-1]['e'],1)] if hist else [])
                if old: dep += [(old['a01' if r < 2 else 'af'],1), (old['c01' if r < 2 else 'c23'],1)]
                e.append(Task('E', 'v_exp_f32 v%d, v%d' % (E+r, S+r), dep))
            a01 = Task('V', 'v_add_f32 v%d, v%d, v%d' % (TS, E, E+1), [(e[1],1)])
            c01 = Task('V', 'v_cvt_pk_bf16_f32 v%d, v%d, v%d' % (PK, E, E+1), [(e[1],1)] + ([(old['w'],1)] if old else []))
            a2 = Task('V', 'v_add_f32 v%d, v%d, v%d' % (TS, TS, E+2), [(e[2],1),(a01,0)])
            c23 = Task('V', 'v_cvt_pk_bf16_f32 v%d, v%d, v%d' % (PK+1, E+2, E+3), [(e[3],1)] + ([(old['w'],1)] if old else []))
            af = Task('V', 'v_add_f32 v%d, v%d, v%d' % (TS, TS, E+3), [(e[3],1),(a2,0)])
            off = (sp*NQ+qb)*1024
            if cfg.get('w32', 1):
                w0 = Task('W', Op('ds_write_b32 v%d, v%d offset:%d' % (self.V_PA, PK, off), prod=('PW0', sp, qb)), [(c01,1)] + ([(hist[-1]['w'],1)] if hist else []))
                w = Task('W', Op('ds_write_b32 v%d, v%d offset:%d' % (self.V_PA, PK+1, off+4), prod=('PW', sp, qb)), [(c23,1),(w0,1)])
                ws = [w0, w]
            else:
                w = Task('W', Op('ds_write_b64 v%d, %s offset:%d' % (self.V_PA, vr(PK,2), off), prod=('PW', sp, qb)), [(c01,1),(c23,1)] + ([(hist[-1]['w'],1)] if hist else []))
                ws = [w]
            hist.append(dict(e=e[3], a01=a01, c01=c01, c23=c23, af=af, w=w))
            tasks.append((e, [a01, c01, a2, c23, af], ws))
        return tasks, hist
    def qk_body(self, par, first=False):
        NQ = self.NQ; n = self.n; cfg = self.cfg
        G = Gaps(n)
        LA = min(self.RQ//2 - 1, cfg['laq'])
        for gi in range(8):
            G2 = gi + LA; p2 = par; pos = 2*NQ*gi
            if G2 >= 8: G2 -= 8; p2 = par ^ 1
            if G2 == 0 and par == 1: G.put(Task('V', 'v_xor_b32 v%d, 0x10000, v%d' % (self.V_A, self.V_A)), pos-1)
            G.put(Task('R', self.kread(2*G2, p2)), pos); G.put(Task('R', self.kread(2*G2+1, p2)), pos+cfg.get('kd',1))
            g1 = (gi+1) % 8
            if not (first and gi == 7):
                G.put(Task('S', Op(None, need=[('K', par if gi < 7 else par^1, 2*g1+1)])), pos+2*NQ-1)
        if not first:
            tk, hist = self.softmax_tasks(par ^ 1)
            order = []
            for q in range(NQ):
                order += tk[q][0][:2]
                if q: order += tk[q-1][1][2:] + tk[q-1][2][-1:]
                order += tk[q][0][2:] + tk[q][1][:2] + tk[q][2][:-1]
            order += tk[NQ-1][1][2:] + tk[NQ-1][2][-1:]
            ck = self.check_groups(str(par))
            flat = [x for it in ck[:-1] for x in it]
            prev = None; cks = []
            for i, x in enumerate(flat):
                dep = [(hist[q]['af'],0) for q in range(min(NQ-1, 2+2*i)+1)] + ([(prev,0)] if prev else [])
                prev = Task('V', x, dep); cks.append(prev)
            br = Task('B', ck[-1], [(prev, 2)])
            G.listsched(order[:-1] + cks + order[-1:] + [br])
            bar = G.asap(Task('X', [Op(None, need=[('PW', par^1, NQ-1)], extra='vmcnt(0)' if cfg['dq'] else ''), 's_barrier'], [(br,1),(hist[-1]['w'], cfg['bq'])]))
            assert bar.gap < 2*NQ*(8-LA-(cfg['dv']+1)//2), (bar.gap, LA)
            fr = G.asap(Task('R', self.flag_read(par), [(bar,1)]))
            fw = G.asap(Task('SV', [Op(None, need=[('F', par)]), 'v_cmp_eq_u32 vcc, s%d, v%d' % (S_T, self.V_F)], [(fr, cfg['fq'])]))
            b2 = G.asap(Task('B', ['s_cbranch_vccnz L_qrec%d' % par, 'L_qback%d:' % par], [(fw,2)]))
            for q in range(NQ): G.asap(Task('V', 'v_add_f32 v%d, v%d, v%d' % (self.V_L+q, self.V_L+q, self.V_TS+q), [(b2,1)]))
            dd = self.place_dma(G, 0, cfg['dq'], bar.gap+1, n-cfg['dqe'])
            inc = G.asap(Task('SS', ['s_add_u32 s%d, s%d, 1' % (S_T, S_T), ('s_cmp_eq_u32 s%d, s%d' if par else 's_cmp_lg_u32 s%d, s%d') % (S_T, S_N)], [(b2,1)]+dd, lo=n-3))
            if cfg.get('show'): print('QK', par, G.show())
        ops = []
        for g in range(n):
            ops.append(self.qk_mfma(g, par, first)); ops += G.ops(g)
        return ops
    def rowmax_exchange(self, sp):
        a = self.a; NQ = self.NQ; T = self.V_T
        for qb in range(NQ):
            S = self.V_S + 4*NQ*sp + 4*qb; M = self.V_TS+qb
            a('v_max3_f32 v%d, v%d, v%d, v%d', M, S, S+1, S+2); a('v_max_f32 v%d, v%d, v%d', M, M, S+3)
            for ins in ['v_permlane16_swap_b32', 'v_permlane32_swap_b32']:
                a('v_mov_b32 v%d, v%d', T, M); a('s_nop 1'); a('%s v%d, v%d', ins, T, M); a('v_max_f32 v%d, v%d, v%d', M, M, T)
            a('ds_write_b32 v%d, v%d offset:%d', self.V_XA, M, qb*512)
    def read_x(self, dst):
        a = self.a
        a('v_and_b32 v%d, 0xfffffffb, v%d', self.V_T, self.V_XA)
        for qb in range(self.NQ): a('ds_read_b64 %s, v%d offset:%d', vr(dst+2*qb,2), self.V_T, qb*512)
        a('s_waitcnt lgkmcnt(0)')
    def emit_flat(self, groups):
        for it in groups:
            for o in oplist(it): self.a(o.text)
            if it and not isinstance(it[0], Op) and it[0].startswith('v_exp'): pass
    def qk_path(self):
        a = self.a; NQ = self.NQ; cfg = self.cfg; T = self.V_T
        h_frag_addr(a, self.V_A, T)
        a('s_lshl_b32 s%d, s%d, 14', S_T2, S_J); a('v_add_u32 v%d, s%d, v%d', self.V_A, S_T2, self.V_A)
        QA = self.V_E
        a('v_add_u32 v%d, %d, v%d', QA, L_ST, self.V_L16); a('v_add_u32 v%d, %d, v%d', QA+1, L_ST+65536, self.V_L16)
        LA = min(self.RQ//2 - 1, cfg['laq'])
        def qread(g):
            G = g//(2*NQ); w = g % (2*NQ); qb = w//2; kk = 2*G + (w & 1); off = qb*16384 + kk*1024
            return Op('ds_read_b128 %s, v%d offset:%d' % (self.R(4*(kk*NQ+qb),4), QA + off//65536, off % 65536), prod=('Q', g))
        PRE = 10
        ops = [self.kread(kk, 0) for kk in range(2*LA)] + [qread(g) for g in range(PRE)]
        ops += ['s_lshl_b32 s%d, s%d, 3' % (S_T2, S_J), 's_add_u32 s%d, s%d, %d' % (S_T2, S_T2, L_P), 'v_add_u32 v%d, s%d, v%d' % (self.V_PA, S_T2, self.V_L16)]
        ops += ['v_mov_b32 v%d, 0' % (self.V_L+q) for q in range(NQ)]
        g = 0
        for o in self.qk_body(0, first=True):
            if o.text and o.text.startswith(MF):
                if g % 2 == 0: o.need = o.need + [('Q', g+1)]
                ops.append(o)
                if g + PRE < self.n: ops.append(qread(g+PRE))
                g += 1
            else: ops.append(o)
        resolve(a, oplist(ops), [])
        a('s_nop 7')
        self.rowmax_exchange(0)
        a('s_waitcnt lgkmcnt(0)'); a('s_barrier')
        X = self.V_S + 4*NQ
        self.read_x(X)
        for qb in range(NQ):
            a('v_max_f32 v%d, v%d, v%d', T, X+2*qb, X+2*qb+1)
            for r in range(4):
                a('v_sub_f32 v%d, v%d, v%d', self.V_S+4*qb+r, self.V_S+4*qb+r, T)
                a('v_sub_f32 v%d, 0, v%d', self.V_NEGM+4*qb+r, T)
        a('s_mov_b32 s%d, 1', S_T)
        b0 = self.qk_body(0); b1 = self.qk_body(1)
        a('.p2align 6') if cfg.get('align',1) else None
        a.label('L_qloop')
        resolve(a, b1, b0)
        a('s_cbranch_scc1 L_qfin0')
        resolve(a, b0, b1)
        a('s_cbranch_scc1 L_qloop')
        for par in (1, 0):
            a.label('L_qfin%d' % par)
            a('s_nop 3')
            for it in self.softmax_groups(par ^ 1) + self.check_groups('f%d' % par):
                for o in oplist(it): a(o.text)
            a('s_waitcnt vmcnt(0) lgkmcnt(0)'); a('s_barrier')
            a(self.flag_read(par).text); a('s_waitcnt lgkmcnt(0)')
            a('v_cmp_eq_u32 vcc, s%d, v%d', S_T, self.V_F)
            a('s_cbranch_vccnz L_qrecf%d', par); a.label('L_qbackf%d' % par)
            if par == 1: a('s_branch L_qend')
        a.label('L_qend')
        for qb in range(NQ):
            M = self.V_L+qb
            a('v_add_f32 v%d, v%d, v%d', M, M, self.V_TS+qb)
            for ins in ['v_permlane16_swap_b32', 'v_permlane32_swap_b32']:
                a('v_mov_b32 v%d, v%d', T, M); a('s_nop 1'); a('%s v%d, v%d', ins, T, M); a('v_add_f32 v%d, v%d, v%d', M, M, T)
            a('ds_write_b32 v%d, v%d offset:%d', self.V_XA, M, qb*512)
        a('s_waitcnt lgkmcnt(0)'); a('s_barrier')
        if cfg.get('stamp'): stamp_mid(a, 2)
        a('s_cmp_lg_u32 s%d, 0', S_J); a('s_cbranch_scc1 L_k2_fin')
        X = self.V_S
        self.read_x(X)
        a('s_mul_i32 s%d, s%d, 500', S_T0, S_SP); a('s_add_u32 s%d, s%d, s%d', S_T0, S_T0, S_RB)
        a('s_lshl_b32 s%d, s%d, 6', S_T0, S_T0); a('s_add_u32 s%d, s%d, %d', S_T0, S_T0, WS_LSE)
        a('v_and_b32 v%d, 15, v0', self.V_F); a('v_lshlrev_b32 v%d, 2, v%d', self.V_F, self.V_F)
        for qb in range(NQ):
            a('s_cmp_gt_u32 %d, s%d', qb, S_NV); a('s_cbranch_scc1 L_k2_fin')
            a('v_add_f32 v%d, v%d, v%d', T, X+2*qb, X+2*qb+1); a('v_log_f32 v%d, v%d', T, T); a('s_nop 0')
            a('v_sub_f32 v%d, v%d, v%d', X+2*qb, T, self.V_NEGM+4*qb)
            a('buffer_store_dword v%d, v%d, s[%d:%d], s%d offen offset:%d', X+2*qb, self.V_F, S_WS, S_WS+3, S_T0, qb*64)
        a('s_branch L_k2_fin')
        for tag in ['0', '1', 'f0', 'f1']:
            a.label('L_setflag%s' % tag)
            a('v_mov_b32 v%d, s%d', T, S_T); a('ds_write_b32 v%d, v%d', self.V_FA, T); a('s_waitcnt lgkmcnt(0)')
            a('s_branch L_flagset%s', tag)
        for par in (0, 1):
            sp = par ^ 1
            a.label('L_qrecf%d' % par); a('s_mov_b32 s%d, 1', S_RET); a('s_branch L_qrecx%d', par)
            a.label('L_qrec%d' % par); a('s_mov_b32 s%d, 0', S_RET)
            a.label('L_qrecx%d' % par)
            a('s_nop 15')
            self.rowmax_exchange(sp)
            a('s_waitcnt lgkmcnt(0)'); a('s_barrier')
            a('v_and_b32 v%d, 0xfffffffb, v%d', self.V_F, self.V_XA)
            for qb in range(NQ):
                E = self.V_E
                a('ds_read_b64 %s, v%d offset:%d', vr(E,2), self.V_F, qb*512); a('s_waitcnt lgkmcnt(0)')
                a('v_max3_f32 v%d, v%d, v%d, 0', T, E, E+1)
                a('v_sub_f32 v%d, 0, v%d', E, T); a('v_exp_f32 v%d, v%d', E, E)
                for r in range(4):
                    for base in (self.V_S, self.V_S+4*NQ, self.V_NEGM):
                        a('v_sub_f32 v%d, v%d, v%d', base+4*qb+r, base+4*qb+r, T)
                a('v_mul_f32 v%d, v%d, v%d', self.V_L+qb, self.V_L+qb, E)
            for it in self.softmax_groups(sp):
                for o in oplist(it): a(o.text)
            a('s_waitcnt lgkmcnt(0)'); a('s_barrier')
            a('s_cmp_eq_u32 s%d, 0', S_RET); a('s_cbranch_scc1 L_qback%d', par); a('s_branch L_qbackf%d', par)
    def vread(self, db, par):
        return [Op('ds_read_b64_tr_b16 %s, v%d offset:%d' % (vr(self.V_RP+4*(db % self.RP)+2*jj,2), self.V_A2 if db & 1 else self.V_A, par*32768 + jj*16384 + (db >> 1)*1024), prod=('V', par, db)) for jj in range(2)]
    def pread(self, qb, par):
        return Op('ds_read_b128 %s, v%d offset:%d' % (vr(self.V_PP+4*self.NQ*par+4*qb,4), self.V_PA, (par*self.NQ+qb)*1024), prod=('P', par, qb))
    def pv_body(self, par):
        NQ = self.NQ; n = self.n; cfg = self.cfg
        G = Gaps(n)
        LA = min(self.RP - 1, cfg['lap']); W = cfg['pw']
        for db in range(16):
            d2 = db + LA; p2 = par
            if d2 >= 16: d2 -= 16; p2 ^= 1
            if d2 == 0 and par == 1: G.put(Task('V', 'v_xor_b32 v%d, 0x10000, v%d' % (self.V_A, self.V_A)), NQ*(db-1)+1)
            if d2 == 1 and par == 1: G.put(Task('V', 'v_xor_b32 v%d, 0x10000, v%d' % (self.V_A2, self.V_A2)), NQ*(db-1)+1)
            r = self.vread(d2, p2)
            G.put(Task('R', r[0]), NQ*db); G.put(Task('R', r[1]), NQ*db+1)
            if (db+1) % W == 0 and db < 15:
                G.put(Task('S', Op(None, need=[('V', par, db+W)])), NQ*db)
        gb = n - cfg['bp']
        while not G.fits(gb, 'X'): gb -= 1
        assert gb > NQ*(15-LA)+1, (gb, LA)
        bar = G.put(Task('X', [Op(None, need=[('V', par, 15)], extra='vmcnt(%d)' % cfg['dv'] if cfg['dq'] < 16 else ''), 's_barrier']), gb)
        prev = fr = G.asap(Task('R', self.flag_read(par), [(bar,1)]))
        for qb in range(NQ): prev = G.asap(Task('R', self.pread(qb, par ^ 1), [(prev,1)]))
        fw = G.put(Task('SV', [Op(None, need=[('F', par)]), 'v_cmp_eq_u32 vcc, s%d, v%d' % (S_T, self.V_F)]), n-3)
        G.put(Task('SSS', ['s_add_u32 s%d, s%d, 1' % (S_T, S_T), ('s_cmp_lg_u32 s%d, s%d' if par else 's_cmp_eq_u32 s%d, s%d') % (S_T, S_N),
                           Op(None, need=[('P', par^1, NQ-1), ('V', par^1, W-1)])]), n-2)
        G.put(Task('B', ['s_cbranch_vccnz L_prec%d' % par, 'L_pback%d:' % par]), n-1)
        dd = self.place_dma(G, cfg['dq'], 16-cfg['dq'], cfg['dp0'], cfg['dpend'])
        assert all(t.gap < gb for t, _ in dd)
        if cfg.get('show'): print('PV', par, G.show())
        ops = []
        for g in range(n):
            db, qb = g//NQ, g % NQ
            need = []
            if qb == 0: need.append(('V', par, db))
            if g < NQ: need.append(('P', par, qb))
            D = self.R(4*g, 4)
            ops.append(Op('%s %s, %s, %s, %s' % (MF, D, vr(self.V_RP+4*(db % self.RP),4), vr(self.V_PP+4*NQ*par+4*qb,4), D), need=need))
            ops += G.ops(g)
        return ops
    def pv_path(self):
        a = self.a; NQ = self.NQ; cfg = self.cfg; T = self.V_T
        F = self.V_F
        a('v_lshrrev_b32 v%d, 4, v0', T); a('v_sub_u32 v%d, 0, v%d', T, T); a('v_bfe_u32 v%d, v0, 1, 1', F)
        a('v_xor_b32 v%d, v%d, v%d', T, T, F); a('v_and_b32 v%d, 3, v%d', T, T); a('v_lshlrev_b32 v%d, 4, v%d', T, T)
        a('v_lshrrev_b32 v%d, 2, v0', F); a('v_lshl_add_u32 v%d, v%d, 6, v%d', T, F, T)
        a('v_and_b32 v%d, 1, v0', F); a('v_lshl_add_u32 v%d, v%d, 3, v%d', T, F, T)
        a('s_lshl_b32 s%d, s%d, 13', S_T2, S_J); a('v_add_u32 v%d, s%d, v%d', self.V_A, S_T2, T)
        a('v_xor_b32 v%d, 32, v%d', self.V_A2, self.V_A)
        a('v_add_u32 v%d, %d, v%d', self.V_PA, L_P, self.V_L16)
        for r in range(64*NQ):
            a('v_accvgpr_write_b32 a%d, 0' % r if r < 256 else 'v_mov_b32 %s, 0' % self.R(r))
        a('s_barrier')
        for pre, ins in self.dma(0, 16):
            for x in pre: a(x)
            a(ins)
        for it in self.dma_adv():
            for x in it: a(x)
        for db in range(min(self.RP-1, cfg['lap'])):
            for o in self.vread(db, 0): a(o.text)
        a('s_waitcnt vmcnt(%d)', cfg['dv']); a('s_barrier')
        for qb in range(NQ): a(self.pread(qb, 0).text)
        a('s_mov_b32 s%d, 2', S_T); a('s_add_u32 s%d, s%d, 2', S_N, S_N)
        a('s_waitcnt lgkmcnt(0)')
        b0 = self.pv_body(0); b1 = self.pv_body(1)
        a('.p2align 6') if cfg.get('align',1) else None
        a.label('L_ploop')
        resolve(a, b0, b1)
        a('s_cbranch_scc1 L_pend')
        resolve(a, b1, b0)
        a('s_cbranch_scc1 L_ploop')
        a.label('L_pend')
        if cfg.get('stamp'): stamp_mid(a, 2)
        a('s_waitcnt lgkmcnt(0)')
        X = self.V_PP
        self.read_x(X)
        for qb in range(NQ):
            a('v_add_f32 v%d, v%d, v%d', X+2*qb, X+2*qb, X+2*qb+1); a('v_rcp_f32 v%d, v%d', X+2*qb, X+2*qb)
        a('s_mul_i32 s%d, s%d, 500', S_T0, S_SP); a('s_add_u32 s%d, s%d, s%d', S_T0, S_T0, S_RB)
        a('s_lshl_b32 s%d, s%d, 14', S_T0, S_T0); a('s_lshl_b32 s%d, s%d, 13', S_T1, S_J)
        a('s_add_u32 s%d, s%d, s%d', S_T0, S_T0, S_T1); a('s_add_u32 s%d, s%d, %d', S_T0, S_T0, WS_PART)
        c = 0
        for qb in range(NQ):
            a('s_cmp_gt_u32 %d, s%d', qb, S_NV); a('s_cbranch_scc1 L_k2_fin')
            for k2 in range(8):
                tb = self.V_PX + 8*(c % 2); ob = self.V_PX + 16 + 4*(c % 4); c += 1
                for t in range(2):
                    i = 4*((2*k2+t)*NQ + qb)
                    if i < 256:
                        for r in range(4): a('v_accvgpr_read_b32 v%d, a%d', tb+4*t+r, i+r)
                for t in range(2):
                    i = 4*((2*k2+t)*NQ + qb)
                    for r in range(2):
                        src = vr(tb+4*t+2*r,2) if i < 256 else self.R(i+2*r,2)
                        a('v_pk_mul_f32 %s, %s, %s op_sel_hi:[1,0]', vr(tb+4*t+2*r,2), src, vr(X+2*qb,2))
                for r in range(4): a('v_cvt_pk_bf16_f32 v%d, v%d, v%d', ob+r, tb+2*r, tb+2*r+1)
                if k2 == 4: a('s_add_u32 s%d, s%d, 4096', S_T0, S_T0)
                a('buffer_store_dwordx4 %s, v%d, s[%d:%d], s%d offen offset:%d', vr(ob,4), self.V_L16, S_WS, S_WS+3, S_T0, (k2%4)*1024)
            a('s_add_u32 s%d, s%d, %d', S_T0, S_T0, 16384-4096)
        a('s_branch L_k2_fin')
        a.label('L_prec0'); a('s_mov_b32 s%d, 0', S_RET); a('s_branch L_precx')
        a.label('L_prec1'); a('s_mov_b32 s%d, 1', S_RET)
        a.label('L_precx')
        a('s_waitcnt lgkmcnt(0)'); a('s_barrier')
        X = self.V_PX
        self.read_x(X)
        for qb in range(NQ):
            a('v_max3_f32 v%d, v%d, v%d, 0', X+2*qb, X+2*qb, X+2*qb+1)
            a('v_sub_f32 v%d, 0, v%d', X+2*qb, X+2*qb); a('v_exp_f32 v%d, v%d', X+2*qb, X+2*qb)
        a('s_nop 7')
        E = self.V_PX + 16
        for g in range(16*NQ):
            qb = g % NQ; i = 4*g
            if i < 256:
                for r in range(4): a('v_accvgpr_read_b32 v%d, a%d', E+r, i+r)
                for r in range(4): a('v_mul_f32 v%d, v%d, v%d', E+r, E+r, X+2*qb)
                for r in range(4): a('v_accvgpr_write_b32 a%d, v%d', i+r, E+r)
            else:
                for r in range(4): a('v_mul_f32 %s, %s, v%d', self.R(i+r), self.R(i+r), X+2*qb)
        a('s_barrier')
        a('s_cmp_eq_u32 s%d, 0', S_RET); a('s_cbranch_scc0 L_precy')
        for qb in range(NQ): a(self.pread(qb, 1).text)
        a('s_waitcnt lgkmcnt(0)'); a('s_cmp_eq_u32 s%d, s%d', S_T, S_N); a('s_branch L_pback0')
        a.label('L_precy')
        for qb in range(NQ): a(self.pread(qb, 0).text)
        a('s_waitcnt lgkmcnt(0)'); a('s_cmp_lg_u32 s%d, s%d', S_T, S_N); a('s_branch L_pback1')
    def qprime(self):
        a = self.a; NQ = self.NQ; n = self.n; T = self.V_T
        assert NQ == 5
        RA = 64; DD = 16; PK = 8; BA = 2; WA = 56; S_AP = S_T3; S_X = S_T1
        tr = Trace(); ops = []
        ops += ['s_mul_i32 s%d, s%d, 20480' % (S_T2, S_W), 's_lshl_b32 s%d, s%d, 14' % (S_X, S_RB), 's_add_u32 s%d, s%d, s%d' % (S_X, S_X, S_T2)]
        for d in range(20):
            if d % 4 == 0: ops += ['s_add_u32 m0, s%d, %d' % (S_T2, L_ST + d*1024), 's_add_u32 s%d, s%d, %d' % (S_T0, S_X, d*1024)]
            ops.append(Op('buffer_load_dwordx4 v%d, s[%d:%d], s%d offen offset:%d lds' % (self.V_L16, S_WS, S_WS+3, S_T0, (d%4)*1024), prod='XS'))
        ops += ['s_lshl_b32 s%d, s%d, 17' % (S_AP, S_W), 's_add_u32 s%d, s%d, 0x%x' % (S_AP, S_AP, WS_MF)]
        def aload(f):
            o = [Op('buffer_load_dwordx4 %s, v%d, s[%d:%d], s%d offen offset:%d' % (vr(RA+4*(f % 32),4), self.V_L16, S_WS, S_WS+3, S_AP, (f%4)*1024), prod=('A', f))]
            return o, (['s_add_u32 s%d, s%d, 4096' % (S_AP, S_AP)] if f % 4 == 3 else [])
        for f in range(30):
            o, s_ = aload(f); ops += o + s_
        tr.run('pre', ops); tr.emit(a, 'pre')
        h_frag_addr(a, BA, T); a('v_add_u32 v%d, %d, v%d', BA, L_ST, BA); a('v_add_u32 v%d, 0x10000, v%d', BA+1, BA)
        a('s_lshl_b32 s%d, s%d, 12', S_T2, S_W); a('s_add_u32 s%d, s%d, %d', S_T2, S_T2, L_ST)
        a('v_add_u32 v%d, s%d, v%d', WA, S_T2, self.V_L16); a('v_add_u32 v%d, 0x10000, v%d', WA+1, WA)
        a('v_mov_b32 v%d, -1', T); a('ds_write_b32 v%d, v%d', self.V_FA, T); a('s_waitcnt lgkmcnt(0)')
        a('s_lshl_b32 s%d, s%d, 14', S_T2, S_W); a('s_add_u32 s%d, s%d, s%d', S_X, S_SRC, S_T2)
        def pos(g):
            G = g//(2*NQ); w = g % (2*NQ); return w//2, 2*G + (w & 1)
        def bread(g):
            qb, kk = pos(g); off = qb*16384 + kk*1024
            return Op('ds_read_b128 %s, v%d offset:%d' % (self.R(4*(kk*NQ+qb),4), BA + off//65536, off % 65536), prod=('B', g))
        def ep(i):
            o = []
            for qb in range(NQ):
                D = DD + 20*(i & 1) + 4*qb; P = PK + 2*(qb % 4); off = qb*16384 + (i >> 1)*1024 + 8*(i & 1)
                o += ['v_cvt_pk_bf16_f32 v%d, v%d, v%d' % (P, D, D+1), 'v_cvt_pk_bf16_f32 v%d, v%d, v%d' % (P+1, D+2, D+3),
                      'ds_write_b64 v%d, %s offset:%d' % (WA + off//65536, vr(P,2), off % 65536)]
            return o
        PRE = 10
        ops = [Op('s_barrier', need=['XS'])] + [bread(g) for g in range(PRE)]
        for i in range(8):
            fx = [[] for _ in range(n)]
            for G in range(8):
                for h in range(2):
                    f = 16*i + 30 + 2*G + h; gp = 2*NQ*G + 5*h
                    if f < 128:
                        o, s_ = aload(f); fx[gp] += o; fx[gp+1] += s_
                    elif f - 128 < 16:
                        d = f - 128
                        if d % 4 == 0: fx[gp-1] += ['s_add_u32 m0, s%d, %d' % (S_T2, d*1024), 's_add_u32 s%d, s%d, %d' % (S_T0, S_X, d*1024)]
                        fx[gp].append('buffer_load_dwordx4 v%d, s[%d:%d], s%d offen offset:%d lds' % (self.V_L16, S_WS, S_WS+3, S_T0, (d%4)*1024))
                nxt = 16*i + 2*G + 3
                if nxt < 128: fx[2*NQ*G + 8].append(Op(None, need=[('A', nxt)]))
            if i == 0:
                for g in range(n - PRE): fx[g].insert(0, bread(g+PRE))
            if i == 1: fx[2].append('s_barrier')
            if i: fx = spread(fx, ep(i-1), n, 3)
            for g in range(n):
                qb, kk = pos(g); D = vr(DD + 20*(i & 1) + 4*qb, 4)
                need = [('A', 16*i+kk)] + ([('B', g | 1)] if i == 0 else [])
                ops.append(Op('%s %s, %s, %s, %s' % (MF, D, vr(RA+4*((16*i+kk) % 32),4), self.R(4*(kk*NQ+qb),4), D if kk else '0'), need=need))
                ops += oplist(fx[g])
        ops += ep(7) + [Op('s_barrier', need=['ALLV', 'ALLL'])]
        tr.run('main', ops); tr.emit(a, 'main')
    def gen_body(self):
        a = self.a; cfg = self.cfg; NQ = self.NQ; NS = self.NS; T = self.V_T
        a('s_and_b32 s%d, s2, 1', S_B); a('s_bfe_u32 s%d, s2, 0x10001', S_SP); a('s_lshr_b32 s%d, s2, 2', S_QT)
        a('s_mul_i32 s%d, s%d, %d', S_RB, S_QT, NQ); a('s_sub_u32 s%d, 249, s%d', S_NV, S_RB)
        a('s_mul_i32 s%d, s%d, 250', S_T0, S_B); a('s_add_u32 s%d, s%d, s%d', S_RB, S_RB, S_T0)
        per = -(-125//NS)
        a('s_mul_i32 s%d, s%d, %d', S_T1, S_SP, per); a('s_sub_u32 s%d, 125, s%d', S_N, S_T1); a('s_min_u32 s%d, s%d, %d', S_N, S_N, per)
        a('s_mul_i32 s%d, s%d, 125', S_T0, S_B); a('s_add_u32 s%d, s%d, s%d', S_T1, S_T1, S_T0)
        a('s_lshr_b32 s%d, s%d, 1', S_J, S_W)
        a('s_lshl_b32 s%d, s%d, 15', S_SRC, S_T1); a('s_add_u32 s%d, s%d, s%d', S_T1, S_T1, S_N); a('s_lshl_b32 s%d, s%d, 15', S_END, S_T1)
        assert WS_XA == 0
        a('s_mov_b32 s%d, 0x%x', S_THR, f2u(2.0**cfg.get('thr', 40)))
        a('v_mov_b32 v%d, %d', self.V_FA, L_FLAG)
        a('s_lshl_b32 s%d, s%d, 2', S_T2, S_J); a('s_add_u32 s%d, s%d, %d', S_T2, S_T2, L_X); a('v_lshl_add_u32 v%d, v0, 3, s%d', self.V_XA, S_T2)
        self.qprime()
        if cfg.get('stamp'): stamp_mid(a, 1)
        a('s_lshl_b32 s%d, s%d, 14', S_DST, S_J); a('s_add_u32 s%d, s%d, %d', S_DST, S_DST, 2*32768)
        a('s_add_u32 s%d, s%d, s%d', S_SRC, S_SRC, S_DST); a('s_mov_b32 s%d, s%d', S_SRCV, S_SRC)
        a('s_bitcmp1_b32 s%d, 0', S_W); a('s_cbranch_scc1 L_pv')
        a('s_add_u32 s%d, s%d, 32768', S_SRC, S_SRC); a('s_add_u32 s%d, s%d, 32768', S_DST, S_DST); a('s_mov_b32 s%d, s%d', S_SRCV, S_SRC)
        self.qk_path()
        a.label('L_pv')
        self.pv_path()

DEFCFG = dict(NQ=5, NS=2, ringq=8, ringp=8, bq=4, fq=5, dq=6, bp=16, pw=2, dpend=50, laq=1, lap=5, dv=4, dp0=0, dqe=8, w32=0)
```

```python
from asmlib import *
from layout import *
from gen_k0 import srd, h_frag_addr
MF='v_mfma_f32_16x16x32_bf16'
S_WS=8; S_W=20
C1 = 2*0.7978845608028654*1.4426950408889634; C2 = C1*0.044715
L_DW=81920; L_SX=92160; L_DUM=96256
NQ=5; n=80
def R(i, k=1): return ar(i, k) if i < 256 else vr(192 + i - 256, k)
def pos(g):
    G = g//10; w = g % 10; return w//2, 2*G + (w & 1)

class Conv:
    L16=1; HA=2; PA=4; GA=6; DA=11; XA=12; RS=17; SH=22; KC2=27; U0=28; U1=48; U2=68; DD=88; RA=128
    S_C=21; S_R0=22; S_TB=23; S_AP=24; S_CNT=25; S_T0=26; S_T1=27; S_T2=28; S_OUT=29; S_JMP=30; S_TILE=31
    S_PG=32; S_PU=33; S_PZ=34; S_M=36
    def __init__(self, a, cfg): self.a = a; self.cfg = cfg
    def aload(self, kk, blk):
        return Op('buffer_load_dwordx4 %s, v%d, s[%d:%d], s%d offen offset:%d' % (vr(self.RA+4*kk,4), self.L16, S_WS, S_WS+3, self.S_AP, (kk%4)*1024), prod=('A', blk, kk))
    def block(self, blk, par, stream=(), bread=None, jump=None, extra=None, g0=2, tail=()):
        fx = [[] for _ in range(n)]
        for G in range(8):
            for h in range(2):
                kk = (2*G + h - 2) % 16; gp = 10*G + 5*h
                fx[gp].append(self.aload(kk, blk if G == 0 else blk+1))
                if kk % 4 == 3:
                    fx[gp+1] += (jump if (kk == 15 and jump) else ['s_add_u32 s%d, s%d, 4096' % (self.S_AP, self.S_AP)])
            fx[10*G+8].append(Op(None, need=[('A', blk if G < 7 else blk+1, (2*G+3) % 16)]))
        if extra:
            for g, o in extra: fx[g] += oplist(o)
        ops = []
        PRE = 10
        if bread is not None:
            def rd(g):
                qb, kk = pos(g); off = qb*16384 + kk*1024
                return Op('ds_read_b128 %s, v%d offset:%d' % (R(4*(kk*NQ+qb),4), bread + off//65536, off % 65536), prod=('B', blk, g))
            ops += [rd(g) for g in range(PRE)]
            for g in range(n-PRE): fx[g].insert(0, rd(g+PRE))
        if stream: fx = spread(fx, stream, n, g0)
        for g in range(n):
            qb, kk = pos(g); D = vr(self.DD + 20*par + 4*qb, 4)
            need = [('A', blk, kk)] + ([('B', blk, g | 1)] if bread is not None else [])
            ops.append(Op('%s %s, %s, %s, %s' % (MF, D, vr(self.RA+4*kk,4), R(4*(kk*NQ+qb),4), D if kk else '0'), need=need))
            ops += oplist(fx[g])
        return ops + oplist(list(tail))
    def gelu(self, D, T):
        o = []
        for r in range(4): o.append('v_mul_f32 v%d, v%d, v%d' % (T+r, D+r, D+r))
        for r in range(4): o.append('v_fmaak_f32 v%d, v%d, v%d, 0x%x' % (T+r, self.KC2, T+r, f2u(-C1)))
        for r in range(4): o.append('v_mul_f32 v%d, v%d, v%d' % (T+r, T+r, D+r))
        for r in range(4): o.append('v_exp_f32 v%d, v%d' % (T+r, T+r))
        for r in range(4): o.append('v_add_f32 v%d, 1.0, v%d' % (T+r, T+r))
        for r in range(4): o.append('v_rcp_f32 v%d, v%d' % (T+r, T+r))
        for r in range(4): o.append('v_mul_f32 v%d, v%d, v%d' % (D+r, T+r, D+r))
        return o
    def adv_g(self, d): return ['v_add_u32 v%d, %d, v%d' % (self.GA+q, d, self.GA+q) for q in range(NQ)]
    def ep_g(self, t):
        o = []; PK = self.U0; S1 = self.U1; S2 = self.U2
        for qb in range(NQ):
            D = self.DD + 20*t + 4*qb; P = PK + 4*qb + 2*t
            o += self.gelu(D, self.RS)
            o += ['v_cvt_pk_bf16_f32 v%d, v%d, v%d' % (P, D, D+1), 'v_cvt_pk_bf16_f32 v%d, v%d, v%d' % (P+1, D+2, D+3),
                  'ds_write_b64 v%d, %s offset:%d' % (self.GA+qb, vr(P,2), 8*t)]
            if t:
                F = vr(PK+4*qb,4)
                o += ['v_add_u32 v%d, 1024, v%d' % (self.GA+qb, self.GA+qb),
                      '%s %s, %s, %s, %s' % (MF, vr(S1+4*qb,4), vr(self.XA,4), F, vr(S1+4*qb,4)),
                      '%s %s, %s, %s, %s' % (MF, vr(S2+4*qb,4), F, F, vr(S2+4*qb,4))]
        return o
    def ep_u(self, t, blk):
        GN = self.U0; DW = self.U1; RAW = self.U2; T = self.U2+10; CV = self.U2+14; PK = self.U2+18
        rd = [Op('ds_read_b64 %s, v%d offset:%d' % (vr(RAW+2*q,2), self.GA+q, 8*t), prod=('G', blk, q)) for q in range(NQ)]
        rd += [Op('ds_read_b128 %s, v%d offset:%d' % (vr(DW+4*k,4), self.DA, k*2048 + 16*t), prod=('DW', blk, k)) for k in range(5)]
        g0 = self.gelu(self.DD + 20*t, T)
        o = []
        for i, x in enumerate(rd): o += [x] + g0[2*i:2*i+2]
        o += g0[20:]
        o.append(Op(None, need=[('DW', blk, 4)]))
        for q in range(NQ):
            for h in range(2):
                o += ['v_lshlrev_b32 v%d, 16, v%d' % (GN+4*q+2*h, RAW+2*q+h), 'v_and_b32 v%d, s%d, v%d' % (GN+4*q+2*h+1, self.S_T2, RAW+2*q+h)]
            for r in range(4): o.append('v_fma_f32 v%d, v%d, v%d, v%d' % (GN+4*q+r, GN+4*q+r, self.RS+q, self.SH+q))
        for qb in range(NQ):
            D = self.DD + 20*t + 4*qb
            if qb: o += self.gelu(D, T)
            for r in range(4): o.append('v_mul_f32 v%d, v%d, v%d' % (CV+r, GN+4*qb+r, DW+8+r))
            for k in (3, 4, 1, 0):
                q2 = qb + k - 2; dpp = ''
                if q2 < 0: q2 += 5; dpp = ' row_shr:1 row_mask:0xf bank_mask:0xf bound_ctrl:0'
                elif q2 > 4: q2 -= 5; dpp = ' row_shl:1 row_mask:0xf bank_mask:0xf bound_ctrl:0'
                for r in range(4): o.append('v_fmac_f32%s v%d, v%d, v%d%s' % ('_dpp' if dpp else '', CV+r, GN+4*q2+r, DW+4*k+r, dpp))
            for r in range(4): o.append('v_mul_f32 v%d, v%d, v%d' % (CV+r, CV+r, D+r))
            o += ['v_cvt_pk_bf16_f32 v%d, v%d, v%d' % (PK, CV, CV+1), 'v_cvt_pk_bf16_f32 v%d, v%d, v%d' % (PK+1, CV+2, CV+3),
                  'ds_write_b64 v%d, %s offset:%d' % (self.GA+qb, vr(PK,2), 8*t)]
            if t: o.append('v_add_u32 v%d, 1024, v%d' % (self.GA+qb, self.GA+qb))
        if t: o.append('v_add_u32 v%d, 128, v%d' % (self.DA, self.DA))
        return o
    def ep_z(self, t):
        o = []; PK = self.U0; OA = self.U1
        for qb in range(NQ):
            D = self.DD + 20*t + 4*qb; P = PK + 4*qb + 2*t
            o += ['v_cvt_pk_bf16_f32 v%d, v%d, v%d' % (P, D, D+1), 'v_cvt_pk_bf16_f32 v%d, v%d, v%d' % (P+1, D+2, D+3)]
            if t: o.append('buffer_store_dwordx4 %s, v%d, s[%d:%d], s%d offen' % (vr(PK+4*qb,4), OA+qb, S_WS, S_WS+3, self.S_OUT))
        if t: o.append('s_add_u32 s%d, s%d, 1024' % (self.S_OUT, self.S_OUT))
        return o
    def stage_addr(self, sbase):
        o = []; T = self.U2
        o += ['v_lshrrev_b32 v%d, 2, v0' % T, 'v_mul_u32_u24 v%d, 5, v%d' % (T, T), 'v_add_u32 v%d, s%d, v%d' % (T, self.S_R0, T),
              'v_lshrrev_b32 v%d, 4, v0' % (T+1), 'v_sub_u32 v%d, 0, v%d' % (T+1, T+1), 'v_xor_b32 v%d, v%d, v0' % (T+1, T+1)]
        for q in range(NQ):
            X = self.XA+q
            o += ['v_add_u32 v%d, %d, v%d' % (T+2, q, T), 'v_max_i32 v%d, 0, v%d' % (T+2, T+2), 'v_min_i32 v%d, 0xf9f, v%d' % (T+2, T+2),
                  'v_add_u32 v%d, s%d, v%d' % (T+2, sbase, T+2),
                  'v_lshrrev_b32 v%d, 2, v%d' % (T+3, T+2), 'v_sub_u32 v%d, 0, v%d' % (T+3, T+3), 'v_xor_b32 v%d, v%d, v%d' % (T+3, T+3, T+1),
                  'v_and_b32 v%d, 3, v%d' % (T+3, T+3), 'v_lshlrev_b32 v%d, 4, v%d' % (T+3, T+3),
                  'v_and_b32 v%d, 15, v%d' % (X, T+2), 'v_lshl_add_u32 v%d, v%d, 6, v%d' % (T+3, X, T+3),
                  'v_lshrrev_b32 v%d, 4, v%d' % (X, T+2), 'v_lshl_add_u32 v%d, v%d, 14, v%d' % (X, X, T+3)]
        return o
    def stage_dma(self, tag):
        g = []
        for q in range(NQ):
            for k in range(4):
                pre = ['s_add_u32 m0, s%d, %d' % (self.S_T1, q*16384)] if k == 0 else []
                g.append((pre, Op('buffer_load_dwordx4 v%d, s[%d:%d], s%d offen offset:%d lds' % (self.XA+q, S_WS, S_WS+3, self.S_T0, k*1024), prod=tag)))
        return g
    def out_addr(self):
        o = []; T = self.U2+8; OA = self.U1
        o += ['v_and_b32 v%d, 15, v0' % T, 'v_lshrrev_b32 v%d, 4, v0' % (T+1), 'v_lshlrev_b32 v%d, 8, v%d' % (T+1, T+1), 'v_mov_b32 v%d, 0x40000000' % (T+4)]
        for q in range(NQ):
            o += ['v_add_u32 v%d, %d, v%d' % (T+2, 16*q, T), 'v_add_u32 v%d, s%d, v%d' % (T+3, self.S_R0, T+2),
                  'v_add_u32 v%d, -2, v%d' % (T+2, T+2), 'v_cmp_gt_u32 vcc, 76, v%d' % (T+2),
                  'v_cndmask_b32 v%d, v%d, v%d, vcc' % (T+3, T+4, T+3), 'v_cmp_gt_u32 vcc, 0xfa0, v%d' % (T+3),
                  'v_add_u32 v%d, s%d, v%d' % (T+3, self.S_TB, T+3), 'v_and_b32 v%d, 15, v%d' % (T+2, T+3),
                  'v_lshl_add_u32 v%d, v%d, 4, v%d' % (T+2, T+2, T+1), 'v_lshrrev_b32 v%d, 4, v%d' % (T+3, T+3),
                  'v_lshl_add_u32 v%d, v%d, 14, v%d' % (T+2, T+3, T+2), 'v_cndmask_b32 v%d, v%d, v%d, vcc' % (OA+q, T+4, T+2)]
            o.insert(len(o)-8, 's_nop 1')
        return o
    def stats(self, tile):
        S1 = self.U1; S2 = self.U2; T = self.U0; M = self.S_M
        o = ['s_nop 7']
        o += ['v_and_b32 v%d, 15, v0' % T, 'v_lshrrev_b32 v%d, 2, v%d' % (T+1, T), 'v_lshrrev_b32 v%d, 4, v0' % (T+2),
              'v_cmp_eq_u32 vcc, v%d, v%d' % (T+1, T+2), 'v_lshlrev_b32 v%d, 5, v%d' % (T+1, T), 'v_add_u32 v%d, %d, v%d' % (T+1, L_SX, T+1),
              's_lshl_b32 s%d, s%d, 3' % (self.S_T0, S_W), 'v_add_u32 v%d, s%d, v%d' % (T+2, self.S_T0, T+1), 'v_mov_b32 v%d, %d' % (T+3, L_DUM),
              'v_cndmask_b32 v%d, v%d, v%d, vcc' % (T+2, T+3, T+2)]
        for q in range(NQ):
            d = S1+4*q+1
            o += ['v_cndmask_b32 v%d, v%d, v%d, s[%d:%d]' % (d, S2+4*q, S2+4*q+1, M, M+1),
                  'v_cndmask_b32 v%d, v%d, v%d, s[%d:%d]' % (d, d, S2+4*q+2, M+2, M+3),
                  'v_cndmask_b32 v%d, v%d, v%d, s[%d:%d]' % (d, d, S2+4*q+3, M+4, M+5),
                  'ds_write_b64 v%d, %s offset:%d' % (T+2, vr(S1+4*q,2), q*512)]
        o.append(Op('s_barrier', need=['ALLL']))
        for q in range(NQ):
            o += [Op('ds_read_b128 %s, v%d offset:%d' % (vr(S1+4*q,4), T+1, q*512), prod=('SA', tile, q)),
                  Op('ds_read_b128 %s, v%d offset:%d' % (vr(S2+4*q,4), T+1, q*512+16), prod=('SB', tile, q))]
        o += self.adv_g(-4096)
        o += ['v_mul_u32_u24 v%d, 5, v%d' % (T, T), 'v_add_u32 v%d, s%d, v%d' % (T, self.S_R0, T), 'v_mov_b32 v%d, 0x%x' % (T+4, f2u(1e-5))]
        for q in range(NQ):
            A = S1+4*q; B = S2+4*q
            o += [Op('v_add_f32 v%d, v%d, v%d' % (A, A, A+2), need=[('SB', tile, q)]), 'v_add_f32 v%d, v%d, v%d' % (B, B, B+2),
                  'v_add_f32 v%d, v%d, v%d' % (A+1, A+1, A+3), 'v_add_f32 v%d, v%d, v%d' % (B+1, B+1, B+3),
                  'v_add_f32 v%d, v%d, v%d' % (A, A, B), 'v_add_f32 v%d, v%d, v%d' % (A+1, A+1, B+1),
                  'v_mul_f32 v%d, 0x%x, v%d' % (A, f2u(1/512.), A), 'v_mul_f32 v%d, 0x%x, v%d' % (A+1, f2u(1/512.), A+1),
                  'v_fma_f32 v%d, -v%d, v%d, v%d' % (A+1, A, A, A+1), 'v_max_f32 v%d, 0, v%d' % (A+1, A+1), 'v_add_f32 v%d, v%d, v%d' % (A+1, T+4, A+1),
                  'v_add_u32 v%d, %d, v%d' % (T+2, q, T), 'v_cmp_gt_u32 vcc, 0xfa0, v%d' % (T+2), 'v_rsq_f32 v%d, v%d' % (A+1, A+1), 's_nop 0',
                  'v_cndmask_b32 v%d, 0, v%d, vcc' % (self.RS+q, A+1), 'v_mul_f32 v%d, v%d, v%d' % (A, A, self.RS+q), 'v_sub_f32 v%d, 0, v%d' % (self.SH+q, A)]
        return o
    def gen(self):
        a = self.a; cfg = self.cfg; T = self.U2
        tr = Trace()
        S = self
        pre = ['s_sub_u32 s%d, s2, 200' % S.S_C, 's_mul_i32 s%d, s%d, 76' % (S.S_R0, S.S_C), 's_sub_u32 s%d, s%d, 2' % (S.S_R0, S.S_R0),
               's_mov_b32 s%d, 0' % S.S_TB, 's_mov_b32 s%d, 0' % S.S_TILE, 's_lshl_b32 s%d, s%d, 12' % (S.S_T1, S_W), 's_mov_b32 s%d, s%d' % (S.S_T0, S.S_T1)]
        pre += S.stage_addr(S.S_TB)
        for p, o in S.stage_dma(('XS', 0)): pre += p + (['s_nop 0'] if p else []) + [o]
        pre += ['s_lshl_b32 s%d, s%d, 17' % (S.S_PU, S_W), 's_add_u32 s%d, s%d, 0x%x' % (S.S_PZ, S.S_PU, WS_WDMF),
                's_add_u32 s%d, s%d, 0x%x' % (S.S_PU, S.S_PU, WS_WUPF), 's_add_u32 s%d, s%d, 0x80000' % (S.S_PG, S.S_PU), 's_mov_b32 s%d, s%d' % (S.S_AP, S.S_PG)]
        pre += ['s_lshl_b32 s%d, s%d, 8' % (S.S_T2, S_W), 'v_lshl_add_u32 v%d, v0, 2, s%d' % (T, S.S_T2)]
        for k in range(5): pre.append(Op('buffer_load_dword v%d, v%d, s[12:15], %s offen offset:%d' % (S.U0+k, T, '0' if k < 4 else 's%d' % S.S_JMP, (k%4)*1024), prod=('DWL', k)))
        pre.insert(len(pre)-5, 's_mov_b32 s%d, 4096' % S.S_JMP)
        for kk in range(14):
            pre.append(S.aload(kk, 0))
            if kk % 4 == 3: pre.append('s_add_u32 s%d, s%d, 4096' % (S.S_AP, S.S_AP))
        pre += ['v_lshlrev_b32 v%d, 1, v%d' % (T, T), 'v_add_u32 v%d, %d, v%d' % (T, L_DW, T), 's_mov_b32 s%d, 0xffff0000' % S.S_T2]
        tmp = Asm(); h_frag_addr(tmp, S.HA, T+1); pre += tmp.lines
        pre += ['v_add_u32 v%d, 0x10000, v%d' % (S.HA+1, S.HA), 'v_mov_b32 v%d, v%d' % (S.PA, S.L16), 'v_add_u32 v%d, 0x10000, v%d' % (S.PA+1, S.L16),
                'v_mov_b32 v%d, 0x%x' % (S.KC2, f2u(-C2))]
        pre += ['v_and_b32 v%d, 15, v0' % (T+1), 'v_mul_u32_u24 v%d, 5, v%d' % (T+1, T+1), 'v_lshrrev_b32 v%d, 4, v0' % (T+2),
                'v_lshl_add_u32 v%d, v%d, 8, s%d' % (T+3, T+2, S.S_T1), 's_lshr_b32 s%d, s%d, 3' % (S.S_JMP, S.S_T1), 's_add_u32 s%d, s%d, %d' % (S.S_JMP, S.S_JMP, L_DW),
                'v_lshl_add_u32 v%d, v%d, 5, s%d' % (S.DA, T+2, S.S_JMP)]
        for q in range(NQ):
            pre += ['v_add_u32 v%d, %d, v%d' % (T+2, q, T+1), 'v_and_b32 v%d, 15, v%d' % (T+4, T+2), 'v_lshl_add_u32 v%d, v%d, 4, v%d' % (T+4, T+4, T+3),
                    'v_lshrrev_b32 v%d, 4, v%d' % (T+2, T+2), 'v_lshl_add_u32 v%d, v%d, 14, v%d' % (S.GA+q, T+2, T+4)]
        pre += ['v_and_b32 v%d, 3, v0' % (T+1)] + ['v_cmp_eq_u32 s[%d:%d], %d, v%d' % (S.S_M+2*i, S.S_M+2*i+1, i+1, T+1) for i in range(3)]
        for k in range(5):
            pre += [Op('v_lshlrev_b32 v%d, 16, v%d' % (S.U1+2*k, S.U0+k), need=[('DWL', k)]), 'v_and_b32 v%d, s%d, v%d' % (S.U1+2*k+1, S.S_T2, S.U0+k),
                    'ds_write_b64 v%d, %s offset:%d' % (T, vr(S.U1+2*k,2), k*2048)]
        tr.run('pre', pre)
        sel = lambda tgt: ['s_add_u32 s%d, s%d, 4096' % (S.S_AP, S.S_AP), 's_cmp_eq_u32 s%d, 3' % S.S_CNT, 's_cselect_b32 s%d, s%d, s%d' % (S.S_AP, tgt, S.S_AP)]
        blk = 0
        for tile in range(2):
            init = ['v_mov_b32 v%d, 0x3f803f80' % (S.XA+r) for r in range(4)] + ['v_mov_b32 v%d, 0' % (S.U1+r) for r in range(40)]
            tr.run('g0', [Op('s_barrier', need=[('XS', tile), 'ALLL']), 's_mov_b32 s%d, 0' % S.S_CNT] + S.block(blk, 0, stream=init, bread=S.HA, tail=['s_barrier'])); blk += 1
            for it in range(4):
                tr.run('g1', S.block(blk, 1, stream=S.ep_g(0), jump=sel(S.S_PU))); blk += 1
                tr.run('g2', S.block(blk, 0, stream=S.ep_g(1), tail=['s_add_u32 s%d, s%d, 1' % (S.S_CNT, S.S_CNT), 's_cmp_lt_u32 s%d, 4' % S.S_CNT])); blk += 1
            tr.run('stats', S.stats(tile) + ['s_mov_b32 s%d, 0' % S.S_CNT])
            for it in range(4):
                tr.run('u1', S.block(blk, 1, stream=S.ep_u(0, blk), jump=sel(S.S_PZ), g0=1, tail=['s_cmp_eq_u32 s%d, 3' % S.S_CNT])); blk += 1
                if it < 3: tr.run('u2', S.block(blk, 0, stream=S.ep_u(1, blk), g0=1, tail=['s_add_u32 s%d, s%d, 1' % (S.S_CNT, S.S_CNT)])); blk += 1
            tr.run('u3', S.ep_u(1, ('e', tile)) + S.adv_g(-4096) + ['v_add_u32 v%d, -512, v%d' % (S.DA, S.DA)])
            z0s = S.out_addr() + ['s_mov_b32 s%d, 4000' % S.S_JMP] + S.stage_addr(S.S_JMP)
            tr.run('z0', [Op('s_barrier', need=['ALLL']), 's_mov_b32 s%d, 0' % S.S_CNT, 's_add_u32 s%d, s%d, 0x%x' % (S.S_OUT, S.S_T1, WS_BASE),
                          's_cmp_eq_u32 s%d, 0' % S.S_TILE, 's_cselect_b32 s%d, s%d, 0x%x' % (S.S_T0, S.S_T1, WS_SIZE)]
                   + S.block(blk, 0, stream=z0s, bread=S.PA, tail=['s_barrier'])); blk += 1
            dm = S.stage_dma(('XS', tile+1))
            ex = []
            for i, (p, o) in enumerate(dm):
                gp = [2, 7, 13][i % 3] + 10*(i//3) if False else 3 + 4*i - (1 if (3+4*i) % 5 == 0 else 0)
                gp = min(gp, 79)
                if p: ex.append((gp-1, p))
                ex.append((gp, [o]))
            tr.run('z1a', S.block(blk, 1, stream=S.ep_z(0), extra=ex)); blk += 1
            for it in range(3):
                tr.run('z2', S.block(blk, 0, stream=S.ep_z(1), tail=['s_add_u32 s%d, s%d, 1' % (S.S_CNT, S.S_CNT)])); blk += 1
                tr.run('z1', S.block(blk, 1, stream=S.ep_z(0), jump=sel(S.S_PG), tail=['s_cmp_lt_u32 s%d, 3' % S.S_CNT])); blk += 1
            tr.run('z3', ['s_nop 1'] + S.ep_z(1) + ['s_mov_b32 s%d, 4000' % S.S_TB, 's_add_u32 s%d, s%d, 1' % (S.S_TILE, S.S_TILE), 's_cmp_lt_u32 s%d, 2' % S.S_TILE])
        E = lambda k: tr.emit(a, k)
        E('pre')
        a.label('L_c_tile'); E('g0')
        a.label('L_c_g'); E('g1'); E('g2'); a('s_cbranch_scc1 L_c_g')
        E('stats')
        a.label('L_c_u'); E('u1'); a('s_cbranch_scc1 L_c_u3'); E('u2'); a('s_branch L_c_u')
        a.label('L_c_u3'); E('u3'); E('z0'); E('z1a')
        a.label('L_c_z'); E('z2'); E('z1'); a('s_cbranch_scc1 L_c_z')
        E('z3')
        if cfg.get('stamp'):
            a('s_cbranch_scc0 L_c_st'); stamp_mid(a, 1); a.label('L_c_st')
        a('s_cbranch_scc1 L_c_tile')
        a('s_branch L_k2_fin')

def gen_wvo(a):
    tr = Trace(); o = []
    o += ['s_sub_u32 s21, s2, 253', 's_lshl_b32 s21, s21, 2', 's_add_u32 s21, s21, s20', 's_lshl_b32 s22, s21, 16',
          'v_and_b32 v2, 15, v0', 'v_lshlrev_b32 v2, 10, v2', 'v_lshrrev_b32 v3, 4, v0', 'v_lshl_add_u32 v2, v3, 4, v2',
          's_mov_b32 s24, 0x%x' % WS_T1F, 's_lshl_b32 s25, s21, 11', 's_add_u32 s25, s25, 0x%x' % WS_WVOF, 's_mov_b32 s26, 0']
    for rb in range(4):
        for e in range(16):
            o.append(Op('buffer_load_dwordx4 %s, v2, s[12:15], s22 offen offset:%d' % (ar(64*rb+4*e,4), e*64), need=['ALLV'] if (rb, e) in ((2, 0), (3, 8)) else []))
        o.append('s_add_u32 s22, s22, 16384')
    def bl(par, nb):
        r = []
        for e in range(16):
            r.append(Op('buffer_load_dwordx4 %s, v1, s[8:11], s24 offen offset:%d' % (vr(64+64*par+4*e,4), (e%4)*1024), prod=('B', nb, e)))
            if e % 4 == 3: r.append('s_add_u32 s24, s24, 4096')
        return r
    o += bl(0, 0)
    tr.run('pre', o)
    for nb in range(32):
        par = nb & 1; o = bl(par ^ 1, nb+1)
        for e in range(16):
            for rb in range(4):
                D = vr(16+4*rb,4)
                o.append(Op('%s %s, %s, %s, %s' % (MF, D, ar(64*rb+4*e,4), vr(64+64*par+4*e,4), D if e else '0'), need=[('B', nb, e | 3)]))
        o.append('s_nop 7')
        P = 32 + 8*par
        for r in range(8): o.append('v_cvt_pk_bf16_f32 v%d, v%d, v%d' % (P+r, 16+2*r, 17+2*r))
        o += ['buffer_store_dwordx4 %s, v1, s[8:11], s25 offen' % vr(P,4), 'buffer_store_dwordx4 %s, v1, s[8:11], s25 offen offset:1024' % vr(P+4,4), 's_add_u32 s25, s25, 16384']
        if par: o += ['s_add_u32 s26, s26, 1', 's_cmp_lt_u32 s26, 16']
        tr.run('b%d' % par, o)
    tr.emit(a, 'pre'); a.label('L_wvo'); tr.emit(a, 'b0'); tr.emit(a, 'b1'); a('s_cbranch_scc1 L_wvo')
    a('s_branch L_k2_fin')
```

```python
from asmlib import *
from layout import *
MF='v_mfma_f32_16x16x32_bf16'
QSCALE = 512.0**-0.5 * 1.4426950408889634

def srd(a, s, lo, hi, size):
    a('s_mov_b32 s%d, s%d', s, lo); a('s_and_b32 s%d, s%d, 0xffff', s+1, hi); a('s_mov_b32 s%d, 0x%x', s+2, size); a('s_mov_b32 s%d, 0x20000', s+3)
def h_frag_addr(a, dst, t):
    a('v_bfe_u32 v%d, v0, 2, 2', t); a('v_sub_u32 v%d, 0, v%d', t, t); a('v_lshrrev_b32 v%d, 4, v0', dst)
    a('v_xor_b32 v%d, v%d, v%d', t, t, dst); a('v_and_b32 v%d, 3, v%d', t, t)
    a('v_and_b32 v%d, 15, v0', dst); a('v_lshl_add_u32 v%d, v%d, 2, v%d', dst, dst, t); a('v_lshlrev_b32 v%d, 4, v%d', dst, dst)

def gen_k0(a, name='prep_kernel', stamp=0):
    kernel_header(a, name)
    a('s_cmp_ge_u32 s2, 256'); a('s_cbranch_scc1 L_k0_end')
    if stamp: stamp_begin(a); a('s_mov_b64 s[92:93], 0'); a('s_mov_b64 s[94:95], 0')
    a('s_load_dwordx16 s[36:51], s[0:1], 0')
    a('s_load_dwordx2 s[52:53], s[0:1], 64')
    a('s_load_dwordx2 s[54:55], s[0:1], 88')
    a('v_lshrrev_b32 v1, 6, v0'); a('v_and_b32 v0, 63, v0'); a('v_readfirstlane_b32 s20, v1')
    a('v_lshlrev_b32 v1, 4, v0')
    a('s_and_b32 s21, s20, 1'); a('s_lshl_b32 s21, s21, 1')
    a('v_bfe_u32 v2, v0, 4, 1'); a('v_add_u32 v2, s21, v2'); a('v_sub_u32 v2, 0, v2'); a('v_xor_b32 v2, v2, v0'); a('v_and_b32 v2, 3, v2')
    a('v_bfe_u32 v3, v0, 2, 3'); a('v_lshlrev_b32 v3, 10, v3'); a('v_lshl_add_u32 v3, v2, 4, v3')
    a('v_lshrrev_b32 v2, 5, v0'); a('v_lshl_add_u32 v3, v2, 6, v3')
    a('v_and_b32 v7, 31, v0'); a('v_lshlrev_b32 v7, 4, v7'); a('v_lshl_add_u32 v7, v2, 10, v7')
    a('s_lshl_b32 s22, s2, 2'); a('s_add_u32 s22, s22, s20'); a('s_lshl_b32 s30, s22, 13')
    a('s_lshr_b32 s31, s22, 1'); a('s_lshl_b32 s31, s31, 14'); a('s_lshl_b32 s21, s21, 8'); a('s_add_u32 s31, s31, s21')
    a('s_waitcnt lgkmcnt(0)')
    srd(a, 56, 36, 37, 8192000); srd(a, 8, 54, 55, WS_SIZE); srd(a, 60, 54, 55, 8192000)
    assert WS_XA == 0
    for k in range(8): a('buffer_load_dwordx4 %s, v3, s[56:59], s30 offen offset:%d', vr(8+4*k,4), k*128)
    a('v_lshrrev_b32 v2, 4, v0'); a('v_sub_u32 v4, 0, v2'); a('v_xor_b32 v4, v4, v0'); a('v_and_b32 v4, 3, v4'); a('v_lshlrev_b32 v4, 4, v4')
    a('v_lshl_add_u32 v4, v2, 13, v4'); a('v_bfe_u32 v5, v0, 2, 2'); a('v_lshl_add_u32 v4, v5, 10, v4')
    a('s_lshl_b32 s32, s20, 15')
    a('s_lshr_b32 s21, s2, 6'); a('s_and_b32 s22, s2, 7'); a('s_bfe_u32 s23, s2, 0x30003')
    a('s_cmp_eq_u32 s21, 3'); a('s_cbranch_scc1 L_tr')
    a('s_lshl_b32 s24, s23, 16'); a('s_lshl_b32 s27, s20, 8'); a('s_add_u32 s24, s24, s27')
    def stageA(e, sr, sb, lds):
        for rb in range(4):
            a('s_add_u32 m0, s32, %d', lds + (e*4+rb)*1024); a('s_add_u32 s27, s%d, %d', sb, (rb >> 1)*32768 + (rb & 1)*4096 + e*64)
            a('buffer_load_dwordx4 v4, s[%d:%d], s27 offen lds', sr, sr+3)
    def layernorm(nlater):
        X = 40
        for k in range(8):
            a('s_waitcnt vmcnt(%d)', nlater + 7-k)
            for r in range(4):
                a('v_lshlrev_b32 v%d, 16, v%d', X+8*k+2*r, 8+4*k+r); a('v_and_b32 v%d, 0xffff0000, v%d', X+1+8*k+2*r, 8+4*k+r)
            for r in range(4):
                p = vr(X+8*k+2*r,2)
                if k == 0 and r == 0: continue
                a('v_pk_add_f32 v[104:105], %s, %s', vr(X,2) if (k == 0 and r == 1) else 'v[104:105]', p)
        def red(v):
            a('v_add_f32 v%d, v%d, v%d', v, v, v+1); a('s_nop 1')
            a('v_add_f32_dpp v%d, v%d, v%d quad_perm:[1,0,3,2] row_mask:0xf bank_mask:0xf', v, v, v); a('s_nop 1')
            a('v_add_f32_dpp v%d, v%d, v%d quad_perm:[2,3,0,1] row_mask:0xf bank_mask:0xf', v, v, v)
            a('v_mov_b32 v%d, v%d', v+1, v); a('s_nop 1'); a('v_permlane32_swap_b32 v%d, v%d', v+1, v); a('v_add_f32 v%d, v%d, v%d', v, v, v+1)
        red(104)
        a('v_mul_f32 v104, 0x%x, v104', f2u(1/512.0))
        for r in range(32): a('v_pk_add_f32 %s, %s, v[104:105] op_sel_hi:[1,0] neg_lo:[0,1] neg_hi:[0,1]', vr(X+2*r,2), vr(X+2*r,2))
        a('v_pk_mul_f32 v[106:107], %s, %s', vr(X,2), vr(X,2)); a('v_pk_mul_f32 v[108:109], %s, %s', vr(X+2,2), vr(X+2,2))
        for r in range(2,32): a('v_pk_fma_f32 %s, %s, %s, %s', vr(106+2*(r&1),2), vr(X+2*r,2), vr(X+2*r,2), vr(106+2*(r&1),2))
        a('v_pk_add_f32 v[106:107], v[106:107], v[108:109]')
        red(106)
        a('v_mov_b32 v104, 0x%x', f2u(1e-5)); a('v_fmac_f32 v104, 0x%x, v106', f2u(1/512.0)); a('v_rsq_f32 v104, v104'); a('s_nop 0')
        for k in range(8):
            for r in range(4): a('v_pk_mul_f32 %s, %s, v[104:105] op_sel_hi:[1,0]', vr(X+8*k+2*r,2), vr(X+8*k+2*r,2))
            for r in range(4): a('v_cvt_pk_bf16_f32 v%d, v%d, v%d', 8+4*k+r, X+8*k+2*r, X+1+8*k+2*r)
            if k and k % 2 == 0: a('s_add_u32 s31, s31, 4096')
            a('buffer_store_dwordx4 %s, v7, s[60:63], s31 offen offset:%d', vr(8+4*k,4), (k%2)*2048)
        if stamp: stamp_mid(a, 1)
    def core(tr):
        layernorm(32)
        h_frag_addr(a, 2, 3); a('v_add_u32 v2, s32, v2')
        for e in range(4):
            a('s_waitcnt vmcnt(%d)', 8 + 24-8*e)
            F = 112 + 32*(e & 1)
            for rb in range(4): a('ds_read_b128 %s, v2 offset:%d', vr(F+4*rb,4), (e*4+rb)*1024)
            for nb in range(4):
                if tr:
                    for jj in range(2): a('ds_read_b64_tr_b16 %s, v6 offset:%d', vr(F+16+4*nb+2*jj,2), 16384 + e*4096 + (nb >> 1)*1024 + jj*256 + (nb & 1)*8)
                else: a('ds_read_b128 %s, v2 offset:%d', vr(F+16+4*nb,4), 16384 + (e*4+nb)*1024)
            for nb in range(4):
                a('s_waitcnt lgkmcnt(%d)', (3-nb)*(2 if tr else 1))
                for rb in range(4):
                    D = vr(40 + 16*((rb >> 1) + 2*(nb >> 1)) + 8*(nb & 1) + 4*(rb & 1), 4)
                    a('%s %s, %s, %s, %s', MF, D, vr(F+4*rb,4), vr(F+16+4*nb,4), D if e else '0')
    def nat_addr(rowshift):
        a('v_lshrrev_b32 v5, 2, v0'); a('v_lshlrev_b32 v5, %d, v5', rowshift); a('v_and_b32 v6, 3, v0'); a('v_lshl_add_u32 v5, v6, 4, v5')
    a('s_cmp_eq_u32 s21, 0'); a('s_cbranch_scc0 L_prod_t')
    srd(a, 12, 38, 39, 524288); srd(a, 16, 40, 41, 524288)
    a('s_lshl_b32 s25, s22, 16'); a('s_lshl_b32 s27, s20, 8'); a('s_add_u32 s25, s25, s27')
    for e in range(4): stageA(e, 12, 24, 0); stageA(e, 16, 25, 16384)
    a('s_mov_b32 s28, 0x%x', WS_MF); a('s_mov_b32 s29, 0x%x', f2u(QSCALE))
    core(False)
    a('s_branch L_prod_out')
    a.label('L_prod_t')
    srd(a, 16, 52, 53, 1048576)
    a('s_cmp_eq_u32 s21, 1'); a('s_cbranch_scc0 L_prod_dm')
    srd(a, 12, 44, 45, 524288); a('s_mov_b32 s25, 0'); a('s_mov_b32 s28, 0x%x', WS_T1F); a('s_branch L_prod_t2')
    a.label('L_prod_dm')
    srd(a, 12, 50, 51, 524288); a('s_mov_b32 s25, 524288'); a('s_mov_b32 s28, 0x%x', WS_WDMF)
    a.label('L_prod_t2')
    a('s_mov_b32 s29, 1.0')
    nat_addr(10)
    a('s_lshl_b32 s27, s22, 7'); a('s_add_u32 s25, s25, s27'); a('s_lshl_b32 s27, s20, 17'); a('s_add_u32 s25, s25, s27')
    for e in range(4):
        stageA(e, 12, 24, 0)
        for b in range(4):
            a('s_add_u32 m0, s32, %d', 16384 + (e*4+b)*1024); a('s_add_u32 s27, s25, %d', (e*32 + (b >> 1)*16)*1024 + (b & 1)*64)
            a('buffer_load_dwordx4 v5, s[16:19], s27 offen lds')
    a('v_and_b32 v6, 15, v0'); a('v_lshlrev_b32 v6, 4, v6'); a('v_bfe_u32 v2, v0, 4, 1'); a('v_lshl_add_u32 v6, v2, 9, v6')
    a('v_lshrrev_b32 v2, 5, v0'); a('v_lshl_add_u32 v6, v2, 11, v6'); a('v_add_u32 v6, s32, v6')
    core(True)
    a.label('L_prod_out')
    if stamp: stamp_mid(a, 2)
    a('v_add_u32 v2, s32, v1'); a('s_lshl_b32 s27, s20, 12'); a('v_add_u32 v3, s27, v1'); a('v_add_u32 v4, 0x10000, v3')
    a('s_nop 4')
    for c in range(16): a('ds_write_b128 v2, %s offset:%d', vr(40+4*c,4), c*1024)
    a('s_lshl_b32 s26, s22, 16'); a('s_lshr_b32 s27, s20, 1'); a('s_lshl_b32 s27, s27, 15'); a('s_add_u32 s26, s26, s27')
    a('s_lshl_b32 s27, s23, 11'); a('s_add_u32 s26, s26, s27'); a('s_and_b32 s27, s20, 1'); a('s_lshl_b32 s27, s27, 10'); a('s_add_u32 s26, s26, s27')
    a('s_add_u32 s26, s26, s28'); a('s_add_u32 s27, s26, 16384')
    a('s_waitcnt lgkmcnt(0)'); a('s_barrier')
    for w in range(4):
        for c in range(4): a('ds_read_b128 %s, v%d offset:%d', vr(40+16*w+4*c,4), 3 + (w >> 1), (w & 1)*32768 + c*1024)
    a('v_mov_b32 v6, s29')
    a('s_waitcnt lgkmcnt(8)')
    for r in range(8): a('v_pk_add_f32 %s, %s, %s', vr(40+2*r,2), vr(40+2*r,2), vr(56+2*r,2))
    a('s_waitcnt lgkmcnt(0)')
    for r in range(8): a('v_pk_add_f32 %s, %s, %s', vr(72+2*r,2), vr(72+2*r,2), vr(88+2*r,2))
    for r in range(8): a('v_pk_add_f32 %s, %s, %s', vr(40+2*r,2), vr(40+2*r,2), vr(72+2*r,2))
    for r in range(8): a('v_pk_mul_f32 %s, %s, v[6:7] op_sel_hi:[1,0]', vr(40+2*r,2), vr(40+2*r,2))
    for r in range(8): a('v_cvt_pk_bf16_f32 v%d, v%d, v%d', 112+r, 40+2*r, 41+2*r)
    a('buffer_store_dwordx4 v[112:115], v1, s[8:11], s26 offen'); a('buffer_store_dwordx4 v[116:119], v1, s[8:11], s27 offen')
    if stamp: stamp_end(a, stamp, 20)
    a('s_endpgm')
    a.label('L_tr')
    srd(a, 16, 46, 47, 1048576)
    nat_addr(11)
    a('s_and_b32 s22, s2, 31'); a('s_bfe_u32 s23, s2, 0x10005'); a('s_lshl_b32 s23, s23, 2'); a('s_add_u32 s23, s23, s20')
    a('s_lshl_b32 s25, s22, 6'); a('s_lshl_b32 s27, s23, 17'); a('s_add_u32 s25, s25, s27')
    for b in range(4):
        a('s_add_u32 m0, s32, %d', b*1024); a('s_add_u32 s27, s25, %d', b*16*2048)
        a('buffer_load_dwordx4 v5, s[16:19], s27 offen lds')
    layernorm(4)
    a('v_and_b32 v6, 15, v0'); a('v_lshlrev_b32 v6, 4, v6'); a('v_lshrrev_b32 v2, 4, v0'); a('v_lshl_add_u32 v6, v2, 9, v6'); a('v_add_u32 v6, s32, v6')
    a('s_lshl_b32 s26, s22, 15'); a('s_lshl_b32 s27, s23, 11'); a('s_add_u32 s26, s26, s27'); a('s_add_u32 s26, s26, 0x%x', WS_WUPF); a('s_add_u32 s27, s26, 16384')
    a('s_waitcnt vmcnt(8)')
    for e in range(2):
        for t2 in range(2):
            for jj in range(2): a('ds_read_b64_tr_b16 %s, v6 offset:%d', vr(112+8*e+4*t2+2*jj,2), e*2048 + jj*256 + t2*8)
    a('s_waitcnt lgkmcnt(0)')
    for e in range(2):
        for t2 in range(2): a('buffer_store_dwordx4 %s, v1, s[8:11], s%d offen offset:%d', vr(112+8*e+4*t2,4), 26+t2, e*1024)
    if stamp: stamp_end(a, stamp, 20)
    a.label('L_k0_end')
    a('s_endpgm')
K0_LAUNCH = 'grid=(256,1,1) block=(256,1,1) lds=131072'
def k0_desc(a, name='prep_kernel'): kernel_desc(a, name, 176, 176, 102)
if __name__ == '__main__':
    a = Asm()
    a('; @launch kernel=prep_kernel ' + K0_LAUNCH)
    a('.amdgcn_target "amdgcn-amd-amdhsa--gfx950"')
    gen_k0(a, stamp=WS_STAMP); k0_desc(a)
    open('k0.s', 'w').write(a.text())
```

```python
from asmlib import *
from layout import *
from gen_k0 import srd
import gen_attn3, gen_conv
def gen_k2(a, cfg, name='main_kernel'):
    c = dict(gen_attn3.DEFCFG); c.update(cfg); cfg = c
    kernel_header(a, name)
    a('s_cmp_lt_u32 s2, 255'); a('s_cbranch_scc1 L_k2_go'); a('s_endpgm'); a.label('L_k2_go')
    if cfg.get('stamp'): stamp_begin(a); a('s_mov_b64 s[92:93], 0'); a('s_mov_b64 s[94:95], 0')
    a('s_load_dwordx2 s[4:5], s[0:1], 88'); a('s_load_dwordx2 s[6:7], s[0:1], 48'); a('s_load_dwordx2 s[16:17], s[0:1], 24')
    a('v_lshrrev_b32 v1, 6, v0'); a('v_and_b32 v0, 63, v0'); a('v_readfirstlane_b32 s20, v1'); a('v_lshlrev_b32 v1, 4, v0')
    a('s_waitcnt lgkmcnt(0)')
    srd(a, 8, 4, 5, WS_SIZE)
    a('s_cmp_lt_u32 s2, 200'); a('s_cbranch_scc1 L_k2_attn')
    a('s_cmp_lt_u32 s2, 253'); a('s_cbranch_scc1 L_k2_conv')
    srd(a, 12, 16, 17, 524288)
    if cfg.get('no_wvo'): a('s_endpgm')
    gen_conv.gen_wvo(a)
    a.label('L_k2_conv')
    srd(a, 12, 6, 7, 5120)
    if cfg.get('no_conv'): a('s_endpgm')
    gen_conv.Conv(a, cfg).gen()
    a.label('L_k2_fin')
    if cfg.get('stamp'): stamp_end(a, cfg['stamp'], 20)
    a('s_endpgm')
    a.label('L_k2_attn')
    if cfg.get('no_attn'): a('s_endpgm')
    gen_attn3.Attn(a, cfg).gen_body()
K2_LAUNCH = 'grid=(255,1,1) block=(256,1,1) lds=163840'
def k2_desc(a, name='main_kernel'): kernel_desc(a, name, 512, 256, 102)
```

```python
import numpy as np
WS_XA   = 0x0000000
WS_QP   = 0x0800000
WS_PART = 0x1000000
WS_LSE  = 0x2800000
WS_STAMP= 0x7000000
WS_SIZE = 0x10000000

def slotF(h, i, p):
    a = i >> 2; r = i & 3
    return (2*h + (a >> 2))*16 + 4*((a + 2*p + h) & 3) + r

def to_F(mat):
    nt = mat.shape[0]//32
    out = np.empty((nt, 32, 64, 8), mat.dtype)
    m = mat.reshape(nt, 32, 32, 2, 8)
    for i in range(32):
        for h in range(2):
            for p in range(2):
                out[:, p::2, slotF(h, i, p), :] = m[:, i, p::2, h, :]
    return out
def from_F(f):
    nt = f.shape[0]
    m = np.empty((nt, 32, 32, 2, 8), f.dtype)
    for i in range(32):
        for h in range(2):
            for p in range(2):
                m[:, i, p::2, h, :] = f[:, p::2, slotF(h, i, p), :]
    return m.reshape(nt*32, 512)
def to_frag(mat):
    nt = mat.shape[0]//32; nk = mat.shape[1]//16
    m = mat.reshape(nt, 32, nk, 2, 8)
    return np.ascontiguousarray(m.transpose(0, 2, 3, 1, 4)).reshape(nt, nk, 64, 8)
def from_frag(f):
    nt, nk = f.shape[0], f.shape[1]
    return np.ascontiguousarray(f.reshape(nt, nk, 2, 32, 8).transpose(0, 3, 1, 2, 4)).reshape(nt*32, nk*16)

def slotG(g, key): return g*16 + (key ^ (12*(g & 1)))
def to_G(mat):
    nb = mat.shape[0]//16
    m = mat.reshape(nb, 16, 16, 4, 8)
    out = np.empty((nb, 16, 64, 8), mat.dtype)
    for key in range(16):
        for g in range(4):
            out[:, :, slotG(g, key), :] = m[:, key, :, g, :]
    return out
def from_G(f):
    nb = f.shape[0]
    m = np.empty((nb, 16, 16, 4, 8), f.dtype)
    for key in range(16):
        for g in range(4):
            m[:, key, :, g, :] = f[:, :, slotG(g, key), :]
    return m.reshape(nb*16, 512)
def to_frag16(mat):
    nb = mat.shape[0]//16; nk = mat.shape[1]//32
    m = mat.reshape(nb, 16, nk, 4, 8)
    return np.ascontiguousarray(m.transpose(0, 2, 3, 1, 4)).reshape(nb, nk, 64, 8)
def from_frag16(f):
    nb, nk = f.shape[0], f.shape[1]
    return np.ascontiguousarray(f.reshape(nb, nk, 4, 16, 8).transpose(0, 3, 1, 2, 4)).reshape(nb*16, nk*32)
def from_fragO(f):
    nb, nk = f.shape[0], f.shape[1]
    return np.ascontiguousarray(f.reshape(nb, nk, 4, 16, 2, 4).transpose(0, 3, 1, 4, 2, 5)).reshape(nb*16, nk*32)

WS_MF   = 0x3000000
WS_WDMF = 0x3080000
WS_T1F  = 0x3100000
WS_WVOF = 0x3180000
WS_WUPF = 0x3200000
WS_BASE = 0x3800000
def nu(nb, col): return 32*(nb >> 1) + 8*(col >> 2) + 4*(nb & 1) + (col & 3)
def kap_nat(kk, g, j): return 32*kk + 8*g + j
def kap_O(kk, g, j): return 32*kk + 16*(j >> 2) + 4*g + (j & 3)
def to_WF(W, kap=kap_nat):
    K, N = W.shape
    nb = np.arange(N//16)[:, None, None, None]; kk = np.arange(K//32)[None, :, None, None]
    l = np.arange(64)[None, None, :, None]; j = np.arange(8)[None, None, None, :]
    return W[kap(kk, l >> 4, j), nu(nb, l & 15)]

def slotH(g, key): return 4*key + (g ^ ((-(key >> 2)) & 3))
def to_H(mat):
    nb = mat.shape[0]//16
    m = mat.reshape(nb, 16, 16, 4, 8)
    out = np.empty((nb, 16, 64, 8), mat.dtype)
    for key in range(16):
        for g in range(4): out[:, :, slotH(g, key), :] = m[:, key, :, g, :]
    return out
def from_H(f):
    nb = f.shape[0]
    m = np.empty((nb, 16, 16, 4, 8), f.dtype)
    for key in range(16):
        for g in range(4): m[:, key, :, g, :] = f[:, :, slotH(g, key), :]
    return m.reshape(nb*16, 512)
```

```python
import sys, gen_all
HDR = open('standalone__conformer_family_branchformer__speech.s.ref').read().split('; Override launch')[0]
def mk(fn, **cfg):
    gen_all.gen('tmp_final.s', stamp=False, **cfg)
    s = open('tmp_final.s').read()
    if cfg.get('one', 1) and not cfg.get('aslist'):
        s = s.replace('; @launch kernel=main_kernel ', '; @launch ').replace('main_kernel', 'standalone__conformer_family_branchformer__speech_kernel')
    open(fn, 'w').write(HDR + s)
if __name__ == '__main__':
    cfg = eval(sys.argv[2]) if len(sys.argv) > 2 else {}
    mk(sys.argv[1] if len(sys.argv) > 1 else 'standalone__conformer_family_branchformer__speech.s', **cfg)
```

```python
import sys, mkfinal
def add_empty(src, dst, nstart, nend):
    s = open(src).read()
    L = '; @launch kernel=empty_kernel grid=(1,1,1) block=(64,1,1) lds=0\n'
    s = s.replace('; @launch kernel=prep_kernel', L*nstart + '; @launch kernel=prep_kernel')
    s = s.replace('.amdgcn_target', L*nend + '.amdgcn_target')
    from asmlib import Asm, kernel_header, kernel_desc
    a = Asm(); kernel_header(a, 'empty_kernel'); a('s_endpgm'); kernel_desc(a, 'empty_kernel', 8, 8, 16)
    open(dst, 'w').write(s + a.text())
mkfinal.mk('v0.s')
add_empty('v0.s', 'v1.s', 0, 1); add_empty('v0.s', 'v2.s', 0, 4); add_empty('v0.s', 'v3.s', 1, 0); add_empty('v0.s', 'v4.s', 4, 0)
```

```python
class Asm:
    def __init__(self):
        self.lines = []
    def __call__(self, s, *a):
        if a: s = s % a
        for l in s.split('\n'):
            self.lines.append(l)
    def label(self, n): self.lines.append(n + ':')
    def text(self): return '\n'.join(self.lines) + '\n'

def kernel_header(a, name):
    a('.text')
    a('.globl %s', name)
    a('.p2align 8')
    a('.type %s,@function', name)
    a.label(name)

def kernel_desc(a, name, vgpr, accum, sgpr=102):
    a('.section .rodata,"a"')
    a('.p2align 6')
    a('.amdhsa_kernel %s', name)
    a('  .amdhsa_next_free_vgpr %d', vgpr)
    a('  .amdhsa_next_free_sgpr %d', sgpr)
    a('  .amdhsa_accum_offset %d', accum)
    a('  .amdhsa_group_segment_fixed_size 0')
    a('  .amdhsa_kernarg_size 96')
    a('  .amdhsa_user_sgpr_count 2')
    a('  .amdhsa_user_sgpr_kernarg_segment_ptr 1')
    a('  .amdhsa_system_sgpr_workgroup_id_x 1')
    a('  .amdhsa_float_denorm_mode_32 3')
    a('.end_amdhsa_kernel')

def vr(b, n=1): return 'v%d' % b if n == 1 else 'v[%d:%d]' % (b, b + n - 1)
def ar(b, n=1): return 'a%d' % b if n == 1 else 'a[%d:%d]' % (b, b + n - 1)
def sr(b, n=1): return 's%d' % b if n == 1 else 's[%d:%d]' % (b, b + n - 1)

import struct
def f2u(x): return struct.unpack('<I', struct.pack('<f', x))[0]

class Op:
    def __init__(self, text, prod=None, need=None, lds=None, extra=''):
        self.text = text; self.prod = prod; self.need = need or []
        self.lds = lds if lds is not None else (text or '').startswith('ds_')
        self.extra = extra
def resolve(a, ops, history):
    seq = []; done = -1
    for o in history:
        for t in o.need:
            c = [i for i in range(len(seq)) if seq[i].prod == t]
            if c: done = max(done, c[-1])
        if o.lds: seq.append(o)
    for o in ops:
        if isinstance(o, str): o = Op(o)
        if o.need or (o.text is None):
            idx = -1
            for t in o.need:
                c = [i for i in range(len(seq)) if seq[i].prod == t]
                assert c, ('missing producer', t)
                idx = max(idx, c[-1])
            w = []
            if o.extra: w.append(o.extra)
            if idx > done:
                cnt = min(15, len(seq)-1-idx)
                w.append('lgkmcnt(%d)' % cnt); done = len(seq)-1-cnt
            if w: a('s_waitcnt ' + ' '.join(w))
        if o.text is not None: a(o.text)
        if o.lds: seq.append(o)
def oplist(x):
    return [o if isinstance(o, Op) else Op(o) for o in x]

OKPAT = {'', 'E','V','VV','S','SS','SSS','SE','SV','SVV','R','RV','SR','RS','D','W','B','X','SSV'}
ORDER = {'S':0,'R':1,'D':1,'W':1,'X':1,'B':1,'E':2,'V':2}
class Task:
    def __init__(self, kind, ops, deps=(), lo=0, name=None):
        self.kind = kind; self.ops = ops if isinstance(ops, list) else [ops]
        self.deps = list(deps)
        self.lo = lo; self.gap = None; self.name = name
class Gaps:
    def __init__(self, n):
        self.n = n; self.g = [[] for _ in range(n)]
    def pat(self, i, extra=''):
        k = [t.kind for t in self.g[i]] + list(extra)
        return ''.join(sorted(''.join(k), key=lambda c: ORDER[c]))
    def fits(self, i, kind): return self.pat(i, kind) in OKPAT
    def put(self, t, i, force=False):
        assert force or self.fits(i, t.kind), (i, self.pat(i), t.kind, t.ops)
        t.gap = i; self.g[i].append(t); return t
    def asap(self, t, hi=None):
        lo = t.lo
        for d, dist in t.deps: lo = max(lo, d.gap + dist)
        for i in range(lo, hi or self.n):
            if self.fits(i, t.kind): return self.put(t, i)
        raise AssertionError(('no room', t.kind, t.ops, lo))
    def listsched(self, tasks, g0=0):
        todo = list(tasks)
        for i in range(g0, self.n):
            prog = True
            while prog:
                prog = False
                for t in todo:
                    if t.lo > i: continue
                    if any(d.gap is None or d.gap + dist > i for d, dist in t.deps): continue
                    if self.fits(i, t.kind):
                        self.put(t, i); todo.remove(t); prog = True; break
            if not todo: return
        raise AssertionError(('unscheduled', [t.ops for t in todo]))
    def ops(self, i):
        out = []
        for t in sorted(self.g[i], key=lambda t: ORDER[t.kind[0]]): out += oplist(t.ops)
        return out
    def show(self): return ' '.join(self.pat(i) or '.' for i in range(self.n))

SB = 76
def stamp_begin(a):
    for i in range(1, 12): a('s_mov_b32 s%d, 0', SB+2*i)
    a('s_memrealtime s[%d:%d]', SB, SB+1)
def stamp_op(i): return 's_memrealtime s[%d:%d]' % (SB+2*i, SB+2*i+1)
def stamp_mid(a, i): a(stamp_op(i))
def stamp_end(a, base, swave, srd=8):
    a('s_waitcnt vmcnt(0)'); a(stamp_op(11)); a('s_waitcnt lgkmcnt(0)')
    for i in range(12): a('v_mov_b32 v%d, s%d', 4+i, SB+2*i)
    a('s_lshl_b32 s100, s2, 2'); a('s_add_u32 s100, s100, s%d', swave); a('s_lshl_b32 s100, s100, 6')
    a('s_add_u32 s100, s100, 0x%x', base); a('v_mov_b32 v3, 0')
    for i in range(3): a('buffer_store_dwordx4 v[%d:%d], v3, s[%d:%d], s100 offen offset:%d', 4+4*i, 7+4*i, srd, srd+3, 16*i)

def is_vm(o): return o.text is not None and o.text.startswith('buffer_')
class Trace:
    def __init__(self, static=None, lenient=False):
        self.l = []; self.v = []; self.dl = -1; self.dv = -1; self.lenient = lenient
        self.static = {} if static is None else static
        self.lp = {}; self.vp = {}
    def run(self, key, ops):
        ops = oplist(ops)
        if key not in self.static: self.static[key] = (ops, [[None, None] for _ in ops])
        sops, waits = self.static[key]
        assert [o.text for o in sops] == [o.text for o in ops], ('segment text differs', key)
        for i, o in enumerate(ops):
            il = iv = -1
            for t in o.need:
                if t == 'ALLV': iv = len(self.v)-1; continue
                if t == 'ALLL': il = len(self.l)-1; continue
                assert (self.lenient and t[0] in self.lenient) or t in self.lp or t in self.vp, ('missing producer', t, key)
                if t in self.lp: il = max(il, self.lp[t])
                if t in self.vp: iv = max(iv, self.vp[t])
            if is_vm(o): iv = max(iv, len(self.v)-1-62)
            if iv > self.dv:
                c = min(63, len(self.v)-1-iv); self.dv = len(self.v)-1-c
                waits[i][0] = c if waits[i][0] is None else min(c, waits[i][0])
            if il > self.dl:
                c = min(15, len(self.l)-1-il); self.dl = len(self.l)-1-c
                waits[i][1] = c if waits[i][1] is None else min(c, waits[i][1])
            if o.lds:
                self.l.append(o)
                if o.prod is not None: self.lp[o.prod] = len(self.l)-1
            elif is_vm(o):
                self.v.append(o)
                assert len(self.v)-1-self.dv <= 63, ('vmcnt overflow', key, o.text)
                if o.prod is not None: self.vp[o.prod] = len(self.v)-1
    def emit(self, a, key):
        ops, waits = self.static[key]
        for o, (v, l) in zip(ops, waits):
            w = []
            if v is not None: w.append('vmcnt(%d)' % v)
            if l is not None: w.append('lgkmcnt(%d)' % l)
            if w: a('s_waitcnt ' + ' '.join(w))
            if o.text is not None: a(o.text.replace('buffer_x\n', ''))
def kind_of(o):
    t = o.text
    if t is None: return 'S'
    if t.endswith(':'): return ''
    if t.startswith('ds_read'): return 'R'
    if t.startswith('ds_write'): return 'W'
    if t.startswith('buffer_'): return 'D'
    if t.startswith('s_barrier'): return 'X'
    if t.startswith('s_cbranch'): return 'B'
    if t.startswith('s_'): return 'S'
    if t.startswith('v_mfma'): return 'M'
    if t.startswith('v_pk_'): return 'P'
    if t.split()[0] in ('v_exp_f32','v_rcp_f32','v_rsq_f32','v_log_f32'): return 'E'
    return 'V'
def spread(fixed, stream, n, g0=0, g1=None, smax=99):
    g1 = n if g1 is None else g1
    stream = oplist(stream)
    cost = {'V':4,'E':8,'R':8,'W':16,'D':12,'S':4,'M':16,'X':8,'':0,'B':8}
    def cap(g):
        k = ''.join(kind_of(o) for o in oplist(fixed[g]))
        if 'D' in k or 'W' in k or 'X' in k: return 0
        if 'R' in k: return 4
        return 8
    caps = [cap(g) for g in range(g0, g1)]
    vc = {'V':4,'E':8,'R':4,'W':8,'D':8,'S':0,'M':-8,'X':8,'':0,'B':8,'P':0}
    def attempt(scale):
        out = [list(oplist(f)) for f in fixed]
        i = 0; budget = 0.0
        for gi, g in enumerate(range(g0, g1)):
            budget += caps[gi]*scale
            if caps[gi] == 0: continue
            placed_v = False; placed_p = False
            while i < len(stream):
                k = kind_of(stream[i]); c = vc[k]
                if k in ('R','W','D') and (placed_v or any(kind_of(o) in ('R','W','D') for o in out[g])): break
                if placed_p and k not in ('P','S','M'): break
                if k == 'S' and len(out[g]) >= smax: break
                if c > budget + 1e-6:
                    j = i
                    while j < len(stream) and j-i < 3 and kind_of(stream[j]) == 'V': j += 1
                    if not (j < len(stream) and kind_of(stream[j]) == 'P'): break
                    c = 0
                out[g].append(stream[i]); budget -= c; i += 1
                if k in ('V','E','P'): placed_v = True
                if k == 'P': placed_p = True
                if k == 'M': placed_v = False; placed_p = False; budget = 8.0*scale
            if scale == 1.0: budget = 0.0
            budget = min(budget, 8.0)
        return out, i
    scale = 1.0
    while True:
        out, i = attempt(scale)
        if i >= len(stream) or scale > 8: break
        scale += 0.05
    out[g1-1] += stream[i:]
    return out
```

```python
import sys
from asmlib import *
from layout import *
import gen_k0 as gen_k0a, gen_k0b, gen_k0c, gen_k2
def gen(fn, kernels=None, stamp=False, **cfg):
    if kernels is None: kernels = '2' if cfg.get('one', 1) else ('02' if cfg.get('fuse3', 1) else '023')
    a = Asm()
    gen_k0 = (gen_k0c if cfg.get('dm0', 0) else gen_k0b) if cfg.get('lean', 1) else gen_k0a
    if '3' in kernels: import gen_k3
    if '0' in kernels: a('; @launch kernel=prep_kernel ' + gen_k0.K0_LAUNCH)
    if '2' in kernels: a('; @launch kernel=main_kernel ' + gen_k2.K2_LAUNCH)
    if '3' in kernels: a('; @launch kernel=final_kernel ' + gen_k3.K3_LAUNCH)
    a('.amdgcn_target "amdgcn-amd-amdhsa--gfx950"')
    if '0' in kernels: gen_k0.gen_k0(a, stamp=WS_STAMP if stamp else 0, cfg=cfg)
    if '2' in kernels: gen_k2.gen_k2(a, dict(cfg, stamp=WS_STAMP+0x10000 if stamp else 0))
    if '3' in kernels: gen_k3.gen_k3(a, dict(cfg, stamp=WS_STAMP+0x20000 if stamp else 0))
    if '0' in kernels: gen_k0.k0_desc(a)
    if '2' in kernels: gen_k2.k2_desc(a)
    if '3' in kernels: gen_k3.k3_desc(a)
    t = a.text()
    if cfg.get('cyc'): t = t.replace('s_memrealtime', 's_memtime')
    open(fn, 'w').write(t)
if __name__ == '__main__':
    gen('all.s', stamp=True)
```

```python
from asmlib import *
from layout import *
from gen_k0 import srd, h_frag_addr
from gen_ln import *

S_WS=8
S_W=20; S_J=21; S_B=23; S_SP=24; S_QT=25; S_N=26; S_T=27
S_SRC=28; S_DST=29; S_END=30; S_SRCV=31
S_T0=34; S_T1=35; S_T2=36; S_T3=37; S_RET=38; S_RB=39; S_THR=41; S_NV=42
S_WP=48; S_FO=52; S_PP=53; S_PS=54; S_BS=55; S_OP=56; S_SPIN=57; S_LP=58; S_MK=59; S_SAME=43; S_PP2=45; S_WB=46; S_NR=47
L_X2=151552; L_PAR=81920
L_ST=65536; L_P=131072; L_X=147456; L_FLAG=159744
MF='v_mfma_f32_16x16x32_bf16'

class Attn:
    def __init__(self, a, cfg):
        self.a = a; self.cfg = cfg
        self.NQ = NQ = cfg['NQ']; self.NS = cfg['NS']
        self.vb = 256 - max(0, 64*NQ - 256)
        self.n = 16*NQ; self.SN = cfg.get('snake', 1)
        self.EA = cfg.get('ea', 0) if (cfg.get('hyb', 1) and not cfg.get('two', 0)) else 0
        self.WL = cfg.get('wl', 1) and cfg.get('hyb', 1) and cfg.get('one', 1)
        self.TWP = 0 if self.WL else cfg.get('twp', 10 if (cfg.get('hyb', 1) and cfg.get('two', 0)) else 6)
        self.V_L16=1; self.V_A=2; self.V_PA=3; self.V_XA=4; self.V_F=5; self.V_FA=6; self.V_T=7
        r = 8
        self.V_E=r; r+=8
        self.V_PK=r; r+=4
        self.V_NEGM=r; r+=4*NQ
        self.V_S=r; r+=8*NQ
        self.RQ = cfg['ringq']; self.V_RQ=r; r+=4*self.RQ
        self.V_L=r; r+=NQ
        self.V_TS=r; r+=NQ
        self.V_PF=r; r+=2
        assert r <= self.vb, r
        self.V_A2 = 8; self.V_PX = 10; self.NFV = 28
        r = 8*(8*NQ - self.NFV)
        self.RP = cfg['ringp']; self.A_RP = r; r += 4*self.RP
        self.A_PP = r; r += 8*NQ
        assert r <= 256
    def O(self, f, off=0, n=1):
        return vr(32+8*f+off, n) if f < self.NFV else ar(8*(f-self.NFV)+off, n)
    def R(self, i, n=1):
        return ar(i, n) if i < 256 else vr(self.vb + i - 256, n)
    def dma(self, d0, cnt):
        g = []
        for x in range(cnt):
            d = d0 + x; pre = []
            if d % 4 == 0 or x == 0:
                pre = ['s_add_u32 m0, s%d, %d' % (S_DST, (d//4)*4096), 's_add_u32 s%d, s%d, %d' % (S_T0, S_SRC if self.WL else S_SRCV, (d//4)*4096)]
            g.append((pre, 'buffer_load_dwordx4 v%d, s[%d:%d], s%d offen offset:%d%s lds' % (self.V_L16, S_WS, S_WS+3, S_T0, (d%4)*1024, self.cfg.get('kpol', ' sc1'))))
        return g
    def dma_adv(self):
        return [['s_add_u32 s%d, s%d, 32768' % (S_SRC, S_SRC), 's_add_u32 s%d, s%d, 32768' % (S_DST, S_DST)],
                ['s_and_b32 s%d, s%d, 0x1ffff' % (S_DST, S_DST)],
                ['s_cmp_eq_u32 s%d, s%d' % (S_SRC, S_END), 's_cselect_b32 s%d, s%d, s%d' % (S_SRC, S_WB, S_SRC)] if self.WL else
                ['s_cmp_lt_u32 s%d, s%d' % (S_SRC, S_END), 's_cselect_b32 s%d, s%d, 0x%x' % (S_SRCV, S_SRC, WS_SIZE)]]
    def place_dma(self, G, d0, cnt, g0, g1, pf=False, pfp=None):
        if cnt == 0: return []
        prev = None; lst = self.dma(d0, cnt)
        for i, (pre, ins) in enumerate(lst):
            lo = g0 + (i*(g1-g0))//cnt
            if pre:
                t1 = G.asap(Task('S', pre[0], [(prev,1)] if prev else [], lo=max(g0, lo-2) if prev is None else g0))
                t2 = G.asap(Task('S', pre[1], [(t1,0)]))
                prev = t2
            prev = G.asap(Task('D', ins, [(prev,1)], lo=lo))
            if i == pfp: prev = G.asap(Task('D', 'buffer_load_dword v23, v22, s[%d:%d], s%d offen' % (S_WS, S_WS+3, S_SRCV), [(prev,1)]))
        if pf: prev = G.asap(Task('D', 'buffer_load_dword v%d, v%d, s[%d:%d], s%d offen' % (self.V_PF+1, self.V_PF, S_WS, S_WS+3, S_SRCV), [(prev,1)]))
        self.last_dma = prev.gap
        adv = self.dma_adv()
        for x in adv[0] + adv[1]: prev = G.asap(Task('S', x, [(prev, 1 if prev.kind == 'D' else 0)]))
        return [(G.asap(Task('SS', adv[2], [(prev,1)])), 1)]
    def kread(self, kk, par):
        return Op('ds_read_b128 %s, v%d offset:%d' % (vr(self.V_RQ+4*(kk % self.RQ),4), self.V_A, par*32768 + kk*1024), prod=('K', par, kk))
    def qk_mfma(self, g, par, first=False):
        NQ = self.NQ
        G = g//(2*NQ); w = g % (2*NQ); qb = w//2; kk = 2*G + ((w & 1) ^ (qb & self.SN))
        D = vr(self.V_S + 4*NQ*par + 4*qb, 4)
        C = D if (G or w & 1) else ('0' if first else vr(self.V_NEGM+4*qb,4))
        need = [('K', par, kk)] if w < 2 else []
        return Op('%s %s, %s, %s, %s' % (MF, D, vr(self.V_RQ+4*(kk % self.RQ),4), self.R(4*(kk*NQ+qb),4), C), need=need)
    def softmax_groups(self, sp):
        NQ = self.NQ; E = self.V_E; out = []
        for qb in range(NQ):
            S = self.V_S + 4*NQ*sp + 4*qb; PK = self.V_PK + 2*(qb & 1); TS = self.V_TS+qb
            for r in range(4): out.append(['v_exp_f32 v%d, v%d' % (E+r, S+r)])
            out.append(['v_add_f32 v%d, v%d, v%d' % (TS, E, E+1), 'v_cvt_pk_bf16_f32 v%d, v%d, v%d' % (PK, E, E+1)])
            out.append(['v_add_f32 v%d, v%d, v%d' % (self.V_T, E+2, E+3), 'v_cvt_pk_bf16_f32 v%d, v%d, v%d' % (PK+1, E+2, E+3)])
            out.append(['v_add_f32 v%d, v%d, v%d' % (TS, TS, self.V_T),
                        Op('ds_write_b64 v%d, %s offset:%d' % (self.V_PA, vr(PK,2), (sp*NQ+qb)*1024), prod=('PW', sp, qb))])
        return out
    def check_groups(self, tag):
        NQ = self.NQ; TS = self.V_TS; T = self.V_T
        m = ['v_max3_f32 v%d, v%d, v%d, v%d' % (T, TS, TS+1, TS+2)]
        i = 3
        while i < NQ:
            if i+1 < NQ: m.append('v_max3_f32 v%d, v%d, v%d, v%d' % (T, T, TS+i, TS+i+1)); i += 2
            else: m.append('v_max_f32 v%d, v%d, v%d' % (T, T, TS+i)); i += 1
        m.append('v_cmp_lt_f32 vcc, s%d, v%d' % (S_THR, T))
        out = [m[i:i+2] for i in range(0, len(m), 2)]
        out.append(['s_cbranch_vccnz L_setflag%s' % tag, 'L_flagset%s:' % tag])
        return out
    def flag_read(self, par): return Op('ds_read_b32 v%d, v%d' % (self.V_F, self.V_FA), prod=('F', par))
    def softmax_tasks(self, sp):
        NQ = self.NQ; cfg = self.cfg; tasks = []; hist = []
        for qb in range(NQ):
            E = self.V_E + 4*(qb & 1)
            S = self.V_S + 4*NQ*sp + 4*qb; PK = self.V_PK + 2*(qb & 1); TS = self.V_TS+qb
            old = hist[qb-2] if qb >= 2 else None
            e = []
            for r in range(4):
                dep = [(e[-1],1)] if e else ([(hist[-1]['e'],1)] if hist else [])
                if old: dep += [(old['a01' if r < 2 else 'af'],1), (old['c01' if r < 2 else 'c23'],1)]
                e.append(Task('E', 'v_exp_f32 v%d, v%d' % (E+r, S+r), dep))
            a01 = Task('V', 'v_add_f32 v%d, v%d, v%d' % (TS, E, E+1), [(e[1],1)])
            c01 = Task('V', 'v_cvt_pk_bf16_f32 v%d, v%d, v%d' % (PK, E, E+1), [(e[1],1)] + ([(old['w'],1)] if old else []))
            a2 = Task('V', 'v_add_f32 v%d, v%d, v%d' % (TS, TS, E+2), [(e[2],1),(a01,0)])
            c23 = Task('V', 'v_cvt_pk_bf16_f32 v%d, v%d, v%d' % (PK+1, E+2, E+3), [(e[3],1)] + ([(old['w'],1)] if old else []))
            af = Task('V', 'v_add_f32 v%d, v%d, v%d' % (TS, TS, E+3), [(e[3],1),(a2,0)])
            off = (sp*NQ+qb)*1024
            if cfg.get('w32', 1):
                w0 = Task('W', Op('ds_write_b32 v%d, v%d offset:%d' % (self.V_PA, PK, off), prod=('PW0', sp, qb)), [(c01,1)] + ([(hist[-1]['w'],1)] if hist else []))
                w = Task('W', Op('ds_write_b32 v%d, v%d offset:%d' % (self.V_PA, PK+1, off+4), prod=('PW', sp, qb)), [(c23,1),(w0,1)])
                ws = [w0, w]
            else:
                w = Task('W', Op('ds_write_b64 v%d, %s offset:%d' % (self.V_PA, vr(PK,2), off), prod=('PW', sp, qb)), [(c01,1),(c23,1)] + ([(hist[-1]['w'],1)] if hist else []))
                ws = [w]
            hist.append(dict(e=e[3], a01=a01, c01=c01, c23=c23, af=af, w=w))
            tasks.append((e, [a01, c01, a2, c23, af], ws))
        return tasks, hist
    def qk_body(self, par, first=False):
        NQ = self.NQ; n = self.n; cfg = self.cfg
        G = Gaps(n)
        LA = min(self.RQ//2 - 1, cfg['laq'])
        for gi in range(8):
            G2 = gi + LA; p2 = par; pos = 2*NQ*gi
            if G2 >= 8: G2 -= 8; p2 = par ^ 1
            if G2 == 0 and par == 1: G.put(Task('V', 'v_xor_b32 v%d, 0x10000, v%d' % (self.V_A, self.V_A)), pos-1)
            G.put(Task('R', self.kread(2*G2, p2)), pos); G.put(Task('R', self.kread(2*G2+1, p2)), pos+cfg.get('kd',1))
            g1 = (gi+1) % 8
            if not (first and gi == 7):
                G.put(Task('S', Op(None, need=[('K', par if gi < 7 else par^1, 2*g1+1)])), pos+2*NQ-1)
        if not first:
            tk, hist = self.softmax_tasks(par ^ 1)
            order = []
            for q in range(NQ):
                order += tk[q][0][:2]
                if q: order += tk[q-1][1][2:] + tk[q-1][2][-1:]
                order += tk[q][0][2:] + tk[q][1][:2] + tk[q][2][:-1]
            order += tk[NQ-1][1][2:] + tk[NQ-1][2][-1:]
            ck = self.check_groups(str(par))
            flat = [x for it in ck[:-1] for x in it]
            prev = None; cks = []
            for i, x in enumerate(flat):
                dep = [(hist[q]['af'],0) for q in range(min(NQ-1, 2+2*i)+1)] + ([(prev,0)] if prev else [])
                prev = Task('V', x, dep); cks.append(prev)
            br = Task('B', ck[-1], [(prev, 2)])
            G.listsched(order[:-1] + cks + order[-1:] + [br])
            bar = G.asap(Task('X', [Op(None, need=[('PW', par^1, NQ-1)], extra=('vmcnt(1)' if (cfg.get('kpf', 0) and not cfg.get('kpp', 1)) else 'vmcnt(0)') if cfg['dq'] else ''), 's_barrier'], [(br,1),(hist[-1]['w'], cfg['bq'])]))
            assert bar.gap < 2*NQ*(8-LA-(cfg['dv']+1)//2), (bar.gap, LA)
            fr = G.asap(Task('R', self.flag_read(par), [(bar,1)]))
            fw = G.asap(Task('SV', [Op(None, need=[('F', par)]), 'v_cmp_eq_u32 vcc, s%d, v%d' % (S_T, self.V_F)], [(fr, cfg['fq'])]))
            b2 = G.asap(Task('B', ['s_cbranch_vccnz L_qrec%d' % par, 'L_qback%d:' % par], [(fw,2)]))
            for q in range(NQ): G.asap(Task('V', 'v_add_f32 v%d, v%d, v%d' % (self.V_L+q, self.V_L+q, self.V_TS+q), [(b2,1)]))
            if cfg.get('wpl', 1) and (par or not self.WL): G.asap(Task('D', 'buffer_load_dword v%d, v%d, s[%d:%d], 0 offen sc1' % (self.V_PF+1, self.V_PF, S_WS, S_WS+3), [(b2, cfg.get('wpd', 14))]))
            dd = self.place_dma(G, 0, cfg['dq'], bar.gap+1, n-cfg['dqe'], cfg.get('kpf', 0) and not cfg.get('kpp', 1))
            inc = G.asap(Task('SS', ['s_add_u32 s%d, s%d, 1' % (S_T, S_T), ('s_cmp_eq_u32 s%d, s%d' if par else 's_cmp_lg_u32 s%d, s%d') % (S_T, S_N)], [(b2,1)]+dd, lo=n-3))
            if cfg.get('show'): print('QK', par, G.show())
        ops = []
        for g in range(n):
            ops.append(self.qk_mfma(g, par, first)); ops += G.ops(g)
        return ops
    def rowmax_exchange(self, sp):
        a = self.a; NQ = self.NQ; T = self.V_T
        for qb in range(NQ):
            S = self.V_S + 4*NQ*sp + 4*qb; M = self.V_TS+qb
            a('v_max3_f32 v%d, v%d, v%d, v%d', M, S, S+1, S+2); a('v_max_f32 v%d, v%d, v%d', M, M, S+3)
            for ins in ['v_permlane16_swap_b32', 'v_permlane32_swap_b32']:
                a('v_mov_b32 v%d, v%d', T, M); a('s_nop 1'); a('%s v%d, v%d', ins, T, M); a('v_max_f32 v%d, v%d, v%d', M, M, T)
            a('ds_write_b32 v%d, v%d offset:%d', self.V_XA, M, qb*512)
    def read_x(self, dst):
        a = self.a
        a('v_and_b32 v%d, 0xfffffffb, v%d', self.V_T, self.V_XA)
        for qb in range(self.NQ): a('ds_read_b64 %s, v%d offset:%d', vr(dst+2*qb,2), self.V_T, qb*512)
        a('s_waitcnt lgkmcnt(0)')
    def emit_flat(self, groups):
        for it in groups:
            for o in oplist(it): self.a(o.text)
            if it and not isinstance(it[0], Op) and it[0].startswith('v_exp'): pass
    def qk_path(self):
        a = self.a; NQ = self.NQ; cfg = self.cfg; T = self.V_T
        h_frag_addr(a, self.V_A, T)
        a('s_lshl_b32 s%d, s%d, 14', S_T2, S_J); a('v_add_u32 v%d, s%d, v%d', self.V_A, S_T2, self.V_A)
        QA = self.V_E
        a('v_add_u32 v%d, %d, v%d', QA, L_ST, self.V_L16); a('v_add_u32 v%d, %d, v%d', QA+1, L_ST+65536, self.V_L16)
        LA = min(self.RQ//2 - 1, cfg['laq'])
        def qread(g):
            G = g//(2*NQ); w = g % (2*NQ); qb = w//2; kk = 2*G + ((w & 1) ^ (qb & self.SN)); off = qb*16384 + kk*1024
            return Op('ds_read_b128 %s, v%d offset:%d' % (self.R(4*(kk*NQ+qb),4), QA + off//65536, off % 65536), prod=('Q', g))
        PRE = 10
        ops = [self.kread(kk, 0) for kk in range(2*LA)] + [qread(g) for g in range(PRE)]
        ops += ['s_lshl_b32 s%d, s%d, 3' % (S_T2, S_J), 's_add_u32 s%d, s%d, %d' % (S_T2, S_T2, L_P), 'v_add_u32 v%d, s%d, v%d' % (self.V_PA, S_T2, self.V_L16)]
        ops += ['v_mov_b32 v%d, 0' % (self.V_L+q) for q in range(NQ)]
        ops += ['s_and_b32 s%d, s%d, 7' % (S_T2, S_QT), 's_lshl_b32 s%d, s%d, 11' % (S_T2, S_T2), 's_add_u32 s%d, s%d, %d' % (S_T2, S_T2, 32768*cfg.get('kpf', 0)), 'v_lshl_add_u32 v%d, v0, 5, s%d' % (self.V_PF, S_T2)]
        if cfg.get('wpl', 1):
            assert cfg.get('kpp', 1)
            ops += ['v_lshrrev_b32 v%d, 4, v0' % self.V_PF, 'v_min_u32 v%d, 2, v%d' % (self.V_PF, self.V_PF), 'v_lshlrev_b32 v%d, 7, v%d' % (self.V_PF, self.V_PF), 'v_add_u32 v%d, 0x%x, v%d' % (self.V_PF, WS_FLG + 128*FLG_W, self.V_PF)]
        g = 0; late = []
        for o in self.qk_body(0, first=True):
            if self.T1L and o.prod and o.prod[0] == 'K' and o.prod[1] == 1: late.append(o)
            elif o.text and o.text.startswith(MF):
                if g % 2 == 0: o.need = o.need + [('Q', g+1)]
                ops.append(o)
                if g + PRE < self.n: ops.append(qread(g+PRE))
                g += 1
            else: ops.append(o)
        resolve(a, oplist(ops), [])
        if cfg.get('stamp') and cfg.get('sthead') == 1: stamp_mid(a, 8)
        M = self.V_TS; X = self.V_S + 4*NQ
        a('v_and_b32 v%d, 0xfffffffb, v%d', T, self.V_XA)
        for qb in range(NQ):
            S = self.V_S + 4*qb
            a('v_max3_f32 v%d, v%d, v%d, v%d', M+qb, S, S+1, S+2); a('v_max_f32 v%d, v%d, v%d', M+qb, M+qb, S+3); a('v_mov_b32 v%d, v%d', X+qb, M+qb)
        for qb in range(NQ): a('v_permlane16_swap_b32 v%d, v%d', X+qb, M+qb)
        for qb in range(NQ): a('v_max_f32 v%d, v%d, v%d', M+qb, M+qb, X+qb); a('v_mov_b32 v%d, v%d', X+qb, M+qb)
        for qb in range(NQ): a('v_permlane32_swap_b32 v%d, v%d', X+qb, M+qb)
        for qb in range(NQ): a('v_max_f32 v%d, v%d, v%d', M+qb, M+qb, X+qb)
        for qb in range(NQ): a('ds_write_b32 v%d, v%d offset:%d', self.V_XA, M+qb, qb*512)
        a('s_waitcnt lgkmcnt(0)'); a('s_barrier')
        for qb in range(NQ): a('ds_read_b64 %s, v%d offset:%d', vr(X+2*qb,2), T, qb*512)
        for o in late: a(o.text)
        for qb in range(NQ):
            N_ = self.V_NEGM+4*qb; S = self.V_S+4*qb
            a('s_waitcnt lgkmcnt(%d)', NQ-1-qb+len(late))
            a('v_min_f32 v%d, -v%d, -v%d', N_, X+2*qb, X+2*qb+1); a('v_mov_b32 v%d, v%d', N_+1, N_)
            a('v_pk_mov_b32 %s, %s, %s', vr(N_+2,2), vr(N_,2), vr(N_,2))
            for r in (0, 2): a('v_pk_add_f32 %s, %s, %s', vr(S+r,2), vr(S+r,2), vr(N_,2))
        a('s_waitcnt lgkmcnt(0)')
        if cfg.get('stamp'): stamp_mid(a, 9)
        a('s_mov_b32 s%d, 1', S_T)
        if self.WL: a('s_mov_b32 s%d, s%d', S_NR, S_N); a('s_mov_b32 s%d, %d', S_N, cfg.get('wlt', 57))
        b0 = self.qk_body(0); b1 = self.qk_body(1)
        a('.p2align 6') if cfg.get('align',1) else None
        a.label('L_qloop')
        resolve(a, b1, b0)
        a('s_cbranch_scc1 L_qfin0')
        resolve(a, b0, b1)
        a('s_cbranch_scc1 L_qloop')
        for par in (1, 0):
            a.label('L_qfin%d' % par)
            if self.WL and par == 1: a('s_cmp_lg_u32 s%d, s%d', S_T, S_NR); a('s_cbranch_scc1 L_qmid')
            a('s_nop 3')
            for it in self.softmax_groups(par ^ 1) + self.check_groups('f%d' % par):
                for o in oplist(it): a(o.text)
            a('s_waitcnt vmcnt(0) lgkmcnt(0)'); a('s_barrier')
            a(self.flag_read(par).text); a('s_waitcnt lgkmcnt(0)')
            a('v_cmp_eq_u32 vcc, s%d, v%d', S_T, self.V_F)
            a('s_cbranch_vccnz L_qrecf%d', par); a.label('L_qbackf%d' % par)
            if par == 1: a('s_branch L_qend')
        a.label('L_qend')
        if cfg.get('fuse3', 1): self.qk_tail()
        else: self.qk_tail_old()
        for tag in ['0', '1', 'f0', 'f1']:
            a.label('L_setflag%s' % tag)
            a('v_mov_b32 v%d, s%d', T, S_T); a('ds_write_b32 v%d, v%d', self.V_FA, T); a('s_waitcnt lgkmcnt(0)')
            a('s_branch L_flagset%s', tag)
        for par in (0, 1):
            sp = par ^ 1
            a.label('L_qrecf%d' % par); a('s_mov_b32 s%d, 1', S_RET); a('s_branch L_qrecx%d', par)
            a.label('L_qrec%d' % par); a('s_mov_b32 s%d, 0', S_RET)
            a.label('L_qrecx%d' % par)
            a('s_nop 15')
            self.rowmax_exchange(sp)
            a('s_waitcnt lgkmcnt(0)'); a('s_barrier')
            a('v_and_b32 v%d, 0xfffffffb, v%d', self.V_F, self.V_XA)
            for qb in range(NQ):
                E = self.V_E
                a('ds_read_b64 %s, v%d offset:%d', vr(E,2), self.V_F, qb*512); a('s_waitcnt lgkmcnt(0)')
                a('v_max3_f32 v%d, v%d, v%d, 0', T, E, E+1)
                a('v_sub_f32 v%d, 0, v%d', E, T); a('v_exp_f32 v%d, v%d', E, E)
                for r in range(4):
                    for base in (self.V_S, self.V_S+4*NQ, self.V_NEGM):
                        a('v_sub_f32 v%d, v%d, v%d', base+4*qb+r, base+4*qb+r, T)
                a('v_mul_f32 v%d, v%d, v%d', self.V_L+qb, self.V_L+qb, E)
            for it in self.softmax_groups(sp):
                for o in oplist(it): a(o.text)
            a('s_waitcnt lgkmcnt(0)'); a('s_barrier')
            a('s_cmp_eq_u32 s%d, 0', S_RET); a('s_cbranch_scc1 L_qback%d', par); a('s_branch L_qbackf%d', par)
    def pv_tail_old(self):
        a = self.a; NQ = self.NQ; cfg = self.cfg; T = self.V_T
        a('s_mul_i32 s%d, s%d, 500', S_T0, S_SP); a('s_add_u32 s%d, s%d, s%d', S_T0, S_T0, S_RB)
        a('s_lshl_b32 s%d, s%d, 14', S_T0, S_T0); a('s_lshl_b32 s%d, s%d, 13', S_T1, S_J)
        a('s_add_u32 s%d, s%d, s%d', S_T0, S_T0, S_T1); a('s_add_u32 s%d, s%d, %d', S_T0, S_T0, WS_PART)
        RBK = cfg.get('rb2', 0)
        if RBK: a('v_lshlrev_b32 v%d, 7, v0', self.V_F); a('s_mov_b32 s%d, s%d', S_T2, S_T0)
        for f in range(8*NQ):
            qb, k2 = f//8, f % 8
            if f < self.NFV: b = 32+8*f
            else:
                b = 12 + 8*(f & 1)
                for r in range(8): a('v_accvgpr_read_b32 v%d, %s', b+r, self.O(f, r))
            for r in range(4): a('v_cvt_pk_bf16_f32 v%d, v%d, v%d', b+r, b+2*r, b+2*r+1)
            if k2 == 4: a('s_add_u32 s%d, s%d, 4096', S_T0, S_T0)
            a('buffer_store_dwordx4 %s, v%d, s[%d:%d], s%d offen offset:%d%s', vr(b,4), self.V_L16, S_WS, S_WS+3, S_T0, (k2%4)*1024, ' sc1' if cfg.get('sc2', 1) else '')
            if k2 == 7: a('s_add_u32 s%d, s%d, %d', S_T0, S_T0, 16384-4096)
        if RBK:
            for qb in range(NQ):
                a('s_waitcnt vmcnt(%d)', 8*(NQ-1-qb) + qb)
                a('buffer_load_dword v%d, v%d, s[%d:%d], s%d offen', T, self.V_F, S_WS, S_WS+3, S_T2); a('s_add_u32 s%d, s%d, 16384', S_T2, S_T2)
        a('s_branch L_k2_fin')
    def qk_tail_old(self):
        a = self.a; NQ = self.NQ; cfg = self.cfg; T = self.V_T
        if cfg.get('pf3', 1):
            F = self.V_F; E = self.V_E
            a('v_lshlrev_b32 v%d, 7, v0', F)
            a('s_lshl_b32 s%d, s%d, 1', S_T0, S_SP); a('s_add_u32 s%d, s%d, s%d', S_T0, S_T0, S_J); a('s_mul_i32 s%d, s%d, 20480', S_T0, S_T0)
            a('s_lshl_b32 s%d, s%d, 14', S_T1, S_RB); a('s_add_u32 s%d, s%d, s%d', S_T0, S_T0, S_T1)
            a('s_lshr_b32 s%d, s2, 3', S_T1); a('s_lshl_b32 s%d, s%d, 1', S_T1, S_T1); a('s_add_u32 s%d, s%d, s%d', S_T1, S_T1, S_J)
            a('s_cmp_lt_u32 s%d, 32', S_T1); a('s_cselect_b32 s%d, s%d, 0x4000', S_T1, S_T1)
            a('s_lshl_b32 s%d, s%d, 14', S_T1, S_T1); a('s_add_u32 s%d, s%d, 0x%x', S_T1, S_T1, WS_WVOF)
            for i in range(2):
                a('buffer_load_dword v%d, v%d, s[%d:%d], s%d offen', E+i, F, S_WS, S_WS+3, S_T1); a('s_add_u32 s%d, s%d, 8192', S_T1, S_T1)
            for i in range(3):
                a('buffer_load_dword v%d, v%d, s[12:15], s%d offen', E+2+i, F, S_T0); a('s_add_u32 s%d, s%d, %d', S_T0, S_T0, 8192 if i == 0 else 4096)
        for qb in range(NQ):
            M = self.V_L+qb
            a('v_add_f32 v%d, v%d, v%d', M, M, self.V_TS+qb)
            for ins in ['v_permlane16_swap_b32', 'v_permlane32_swap_b32']:
                a('v_mov_b32 v%d, v%d', T, M); a('s_nop 1'); a('%s v%d, v%d', ins, T, M); a('v_add_f32 v%d, v%d, v%d', M, M, T)
            a('ds_write_b32 v%d, v%d offset:%d', self.V_XA, M, qb*512)
        a('s_waitcnt lgkmcnt(0)'); a('s_barrier')
        if cfg.get('stamp'): stamp_mid(a, 10)
        a('s_cmp_lg_u32 s%d, 0', S_J); a('s_cbranch_scc1 L_k2_fin')
        X = self.V_S
        self.read_x(X)
        a('s_mul_i32 s%d, s%d, 500', S_T0, S_SP); a('s_add_u32 s%d, s%d, s%d', S_T0, S_T0, S_RB)
        a('s_lshl_b32 s%d, s%d, 7', S_T0, S_T0); a('s_add_u32 s%d, s%d, %d', S_T0, S_T0, WS_LSE)
        a('v_and_b32 v%d, 15, v0', self.V_F); a('v_lshlrev_b32 v%d, 3, v%d', self.V_F, self.V_F)
        for qb in range(NQ):
            a('v_add_f32 v%d, v%d, v%d', X+2*qb, X+2*qb, X+2*qb+1); a('v_mov_b32 v%d, v%d', X+2*qb+1, self.V_NEGM+4*qb)
            a('buffer_store_dwordx2 %s, v%d, s[%d:%d], s%d offen offset:%d', vr(X+2*qb,2), self.V_F, S_WS, S_WS+3, S_T0, qb*128)
        a('s_branch L_k2_fin')
    T_ST=10; T_CO=20; T_CP=25; T_A0=32; T_A1=112; T_BR=144; T_BF=176; T_R=216; T_PK=232; T_OT=240
    def wreg(self, kk, nb):
        if self.WL: kk = {8: 10, 9: 11, 10: 8, 11: 9}.get(kk, kk)
        return ar((96 + 16*kk + 4*nb) % 256, 4)
    def wload(self, kk):
        if self.WL:
            return ['s_add_u32 s%d, s%d, %d' % (S_WP+1, S_WP, (kk >> 2)*32768 + (kk & 3)*4096)] + \
                   [Op('buffer_load_dwordx4 %s, v%d, s[%d:%d], s%d offen offset:%d sc1' % (self.wreg(kk, nb), self.V_L16, S_WS, S_WS+3, S_WP+1, nb*1024), prod=('W', kk)) for nb in range(4)]
        r = [Op('buffer_load_dwordx4 %s, v%d, s[%d:%d], s%d offen offset:%d sc1' % (self.wreg(kk, nb), self.V_L16, S_WS, S_WS+3, S_WP+nb, (kk%4)*1024), prod=('W', kk)) for nb in range(4)]
        if kk % 4 == 3: r += ['s_add_u32 s%d, s%d, 4096' % (S_WP+nb, S_WP+nb) for nb in range(4)]
        return r
    def tail_sgprs(self):
        a = self.a
        a('s_lshl_b32 s%d, s%d, 2', S_T0, S_SP); a('s_add_u32 s%d, s%d, s%d', S_T0, S_T0, S_W)
        a('s_lshl_b32 s%d, s%d, 16', S_WP, S_T0); a('s_add_u32 s%d, s%d, 0x%x', S_WP, S_WP, WS_WVOF)
        if self.cfg.get('xp_now'): a('s_mov_b32 s%d, 0x%x', S_WP, WS_SIZE)
        if self.WL:
            assert not self.cfg.get('roles', 0)
            a('s_lshr_b32 s%d, s%d, 1', S_WP, S_T0); a('s_lshl_b32 s%d, s%d, 17', S_WP, S_WP); a('s_lshl_b32 s%d, s%d, 14', S_WB, S_J)
            a('s_add_u32 s%d, s%d, s%d', S_END, S_END, S_WB); a('s_add_u32 s%d, s%d, s%d', S_WP, S_WP, S_WB); a('s_add_u32 s%d, s%d, 0x%x', S_WP, S_WP, WS_WVOF)
            a('s_or_b32 s%d, s%d, 0x20000', S_WB, S_WP)
        for i in range(1, 1 if self.WL else 4): a('s_add_u32 s%d, s%d, %d', S_WP+i, S_WP, i*16384)
        a('s_lshl_b32 s%d, s%d, 14', S_T1, S_RB)
        a('s_lshl_b32 s%d, s%d, 7', S_OP, S_T0); a('s_add_u32 s%d, s%d, s%d', S_OP, S_OP, S_T1)
        CV2 = self.cfg.get('one', 1) and self.cfg.get('cv2', 1)
        if CV2: a('s_mul_i32 s%d, s%d, %d', S_T1, S_B, 53*81920)
        a('s_lshl_b32 s%d, s%d, 11', S_BS, S_T0); a('s_add_u32 s%d, s%d, s%d', S_BS, S_BS, S_T1); a('s_add_u32 s%d, s%d, 0x%x', S_BS, S_BS, WS_BASE)
        a('s_xor_b32 s%d, s%d, 1', S_T0, S_SP); a('s_mul_i32 s%d, s%d, 500', S_T0, S_T0); a('s_add_u32 s%d, s%d, s%d', S_T0, S_T0, S_RB)
        a('s_lshl_b32 s%d, s%d, 7', S_PS, S_T0); a('s_add_u32 s%d, s%d, 0x%x', S_PS, S_PS, WS_LSE)
        a('s_lshl_b32 s%d, s%d, 12', S_LP, S_W)
        a('s_lshl_b32 s%d, s%d, 14', S_PP, S_T0); a('s_add_u32 s%d, s%d, 0x%x', S_PP, S_PP, WS_PART); a('s_mov_b32 s%d, s%d', S_PP2, S_PP)
        a('s_lshl_b32 s%d, s3, 1', S_FO); a('s_add_u32 s%d, s%d, s%d', S_FO, S_FO, S_J); a('s_lshl_b32 s%d, s%d, 7', S_FO, S_FO); a('s_add_u32 s%d, s%d, 0x%x', S_FO, S_FO, WS_FLG)
        a('s_mov_b32 s%d, 0xffff0000', S_MK)
    def poll_load(self, va, tag): return Op('buffer_load_dword v%d, v%d, s[%d:%d], 0 offen sc1' % (self.V_F, va, S_WS, S_WS+3), prod=tag)
    def spin(self, name, va):
        a = self.a
        a.label('L_spin%s' % name); a('s_mov_b32 s%d, 0', S_SPIN)
        a.label('L_spin%s_l' % name)
        a(self.poll_load(va, None).text); a('s_waitcnt vmcnt(0)'); a('v_cmp_ne_u32 vcc, s7, v%d', self.V_F)
        a('s_cbranch_vccz L_ok%s', name)
        a('s_add_u32 s%d, s%d, 1', S_SPIN, S_SPIN); a('s_cmp_lt_u32 s%d, 0x40000', S_SPIN); a('s_cbranch_scc1 L_spin%s_l', name)
        a('s_branch L_ok%s', name)
    def read_stats(self):
        a = self.a; NQ = self.NQ; ST = self.T_ST
        a('v_and_b32 v%d, 0xfffffffb, v%d', self.V_T, self.V_XA)
        for qb in range(NQ):
            a('ds_read_b64 %s, v%d offset:%d', vr(ST+2*qb,2), self.V_T, qb*512); a('ds_read_b32 v%d, v%d offset:%d', self.T_CO+qb, self.V_T, L_X2-L_X + qb*512)
        a('s_waitcnt lgkmcnt(0)')
        for qb in range(NQ):
            a('v_add_f32 v%d, v%d, v%d', ST+2*qb, ST+2*qb, ST+2*qb+1); a('v_mov_b32 v%d, v%d', ST+2*qb+1, self.T_CO+qb)
    def qk_tail(self):
        a = self.a; NQ = self.NQ; cfg = self.cfg; T = self.V_T
        W1 = cfg.get('tw1', 8)
        if cfg.get('wpl', 1):
            WA = self.V_PF
            if not self.WL: a('v_cmp_ne_u32 vcc, s7, v%d', self.V_PF+1); a('s_cbranch_vccnz L_spinW'); a.label('L_okW')
            wq = []
            for kk in range(W1): wq += oplist(self.wload(kk))
            def pop(c):
                for i in range(c):
                    while wq and kind_of(wq[0]) == 'S': a(wq.pop(0).text)
                    if wq: a(wq.pop(0).text)
                    while wq and kind_of(wq[0]) == 'S': a(wq.pop(0).text)
            for qb in range(NQ):
                M = self.V_L+qb
                a('v_add_f32 v%d, v%d, v%d', M, M, self.V_TS+qb)
                for ins in ['v_permlane16_swap_b32', 'v_permlane32_swap_b32']:
                    a('v_mov_b32 v%d, v%d', T, M); a('s_nop 0'); a('s_nop 0') if not wq else pop(2); a('%s v%d, v%d', ins, T, M); a('v_add_f32 v%d, v%d, v%d', M, M, T)
                a('ds_write_b32 v%d, v%d offset:%d', self.V_XA, M, qb*512)
                a('ds_write_b32 v%d, v%d offset:%d', self.V_XA, self.V_NEGM+4*qb, L_X2-L_X + qb*512)
                pop(2)
            pop(64)
        else:
            WA = self.V_E
            a('v_and_b32 v%d, 3, v0', WA); a('v_min_u32 v%d, %d, v%d', WA, 2 if cfg.get('lean', 1) else 1, WA); a('v_lshlrev_b32 v%d, 7, v%d', WA, WA); a('v_add_u32 v%d, 0x%x, v%d', WA, WS_FLG + 128*FLG_W, WA)
            a(self.poll_load(WA, None).text)
            for qb in range(NQ):
                M = self.V_L+qb
                a('v_add_f32 v%d, v%d, v%d', M, M, self.V_TS+qb)
                for ins in ['v_permlane16_swap_b32', 'v_permlane32_swap_b32']:
                    a('v_mov_b32 v%d, v%d', T, M); a('s_nop 1'); a('%s v%d, v%d', ins, T, M); a('v_add_f32 v%d, v%d, v%d', M, M, T)
                a('ds_write_b32 v%d, v%d offset:%d', self.V_XA, M, qb*512)
                a('ds_write_b32 v%d, v%d offset:%d', self.V_XA, self.V_NEGM+4*qb, L_X2-L_X + qb*512)
            a('s_waitcnt vmcnt(0)'); a('v_cmp_ne_u32 vcc, s7, v%d', self.V_F); a('s_cbranch_vccnz L_spinW'); a.label('L_okW')
            W1 = cfg.get('tw1', 8)
            for kk in range(W1):
                for o in oplist(self.wload(kk)): a(o.text)
        a('s_waitcnt lgkmcnt(0)'); a('s_barrier')
        self.read_stats()
        a('s_barrier')
        if cfg.get('stamp') and not cfg.get('sthead'): stamp_mid(a, 1)
        a('s_cmp_lg_u32 s%d, 0', S_J); a('s_cbranch_scc1 L_qt1')
        a('s_mul_i32 s%d, s%d, 500', S_T0, S_SP); a('s_add_u32 s%d, s%d, s%d', S_T0, S_T0, S_RB)
        a('s_lshl_b32 s%d, s%d, 7', S_T0, S_T0); a('s_add_u32 s%d, s%d, %d', S_T0, S_T0, WS_LSE)
        a('v_and_b32 v%d, 15, v0', T); a('v_lshlrev_b32 v%d, 3, v%d', T, T)
        for qb in range(NQ): a('buffer_store_dwordx2 %s, v%d, s[%d:%d], s%d offen offset:%d sc1', vr(self.T_ST+2*qb,2), T, S_WS, S_WS+3, S_T0, qb*128)
        a.label('L_qt1')
        a('s_branch L_tailq')
        if self.WL:
            a.label('L_qmid'); a('v_cmp_ne_u32 vcc, s7, v%d', self.V_PF+1); a('s_mov_b32 s%d, s%d', S_N, S_NR); a('s_cbranch_vccnz L_spinW'); a.label('L_okW'); a('s_branch L_qloop')
        self.spin('W', WA)
        if cfg.get('ln2', 1): self.spin('X', 58)
        if cfg.get('one', 1) and cfg.get('q6', 1): self.spin('Q', 59)
    def pv_tail(self):
        a = self.a; NQ = self.NQ; cfg = self.cfg; T = self.V_T
        if self.WL:
            for i in range(3):
                a('s_add_u32 s%d, s%d, %d', S_T0, S_DST, (i+1)*32768); a('s_and_b32 s%d, s%d, 0x1ffff', S_T0, S_T0); a('v_add_u32 v%d, s%d, v%d', 10+i, S_T0, self.V_L16)
            wr = ['ds_read_b128 %s, v%d offset:%d' % (self.wreg(kk, nb), 10 + (kk >> 2), (kk & 3)*4096 + nb*1024) for kk in list(range(8)) + [10, 11] for nb in range(4)]
        WI = cfg.get('wi', 8) if self.WL else 0
        if self.WL and not WI:
            for i, x in enumerate(wr):
                if i == 32: a('s_waitcnt vmcnt(0)')
                a(x)
        if not WI:
            a('s_waitcnt vmcnt(0) lgkmcnt(0)'); a('s_barrier')
            if cfg.get('stamp') and not cfg.get('sthead'): stamp_mid(a, 1)
        a('s_mul_i32 s%d, s%d, 500', S_T0, S_SP); a('s_add_u32 s%d, s%d, s%d', S_T0, S_T0, S_RB)
        a('s_lshl_b32 s%d, s%d, 14', S_T0, S_T0); a('s_lshl_b32 s%d, s%d, 13', S_T1, S_J)
        a('s_add_u32 s%d, s%d, s%d', S_T0, S_T0, S_T1); a('s_add_u32 s%d, s%d, %d', S_RET, S_T0, WS_PART)
        a('v_add_u32 v2, s%d, v%d', S_T1, self.V_L16); a('v_add_u32 v3, 0x10000, v2')
        tr = self.tr = Trace(); o = []
        if self.WL: tr.run('w0', [Op('buffer_load w', prod=('W', kk)) for kk in list(range(8)) + [10, 11]] + [Op(None, need=['ALLV'])])
        wq = []
        for kk in range(self.TWP): wq += oplist(self.wload(kk))
        WD = cfg.get('twd', 0)
        safe = [10, 11, 12, 13] + list(range(18, 27))
        cand = safe + list(range(self.NFV, 8*NQ))
        H = cfg.get('thold', 0 if cfg.get('hyb', 1) else 8)
        held = set(cand[(i*len(cand))//H] for i in range(H)) if H else set()
        self.held = []; FAST = cfg.get('fast', 0)
        def pstore(f, reg):
            qb, k2 = f//8, f % 8
            return ['s_add_u32 s%d, s%d, %d' % (S_T3, S_RET, qb*16384 + (k2//4)*4096),
                    Op('buffer_store_dwordx4 %s, v%d, s[%d:%d], s%d offen offset:%d%s' % (vr(reg,4), self.V_L16, S_WS, S_WS+3, S_T3, (k2%4)*1024, '' if FAST else ' sc1'), prod=('PS', f))]
        TWO = self.TWO = cfg.get('hyb', 1) and cfg.get('two', 0); pend = []
        if TWO: held = set(range(16, 8*NQ)); slot = {f: 80+4*i for i, f in enumerate([16, 17, 27] + list(range(self.NFV, 8*NQ)))}
        for f in range(8*NQ):
            qb, k2 = f//8, f % 8
            if TWO:
                b = 32 + 8*(f if f < self.NFV else (f - self.NFV) % 6); d = slot.get(f, b)
                if f >= self.NFV:
                    for r in range(8): o.append('v_accvgpr_read_b32 v%d, %s' % (b+r, self.O(f, r)))
            elif f < self.NFV: b = d = 32 + 8*f
            else:
                b = 32 + 8*((f - self.NFV) % 8); d = 32 + 8*safe[f - self.NFV] + 4
                for r in range(8): o.append('v_accvgpr_read_b32 v%d, %s' % (b+r, self.O(f, r)))
            for r in range(4): o.append('v_cvt_pk_bf16_f32 v%d, v%d, v%d' % (d+r, b+2*r, b+2*r+1))
            off = qb*16384 + k2*1024
            dw = Op('ds_write_b128 v%d, %s offset:%d' % (2 + off//65536, vr(d,4), off % 65536), prod=('CVW', f))
            if f < WI:
                pend.append(dw); c = -(-40//WI); o += wr[c*f:c*f+c]
                if f == 0: o.append('s_waitcnt vmcnt(0)')
            else:
                if WI and f == WI: o += [Op('s_barrier', need=['ALLL'])] + ([stamp_op(1)] if (cfg.get('stamp') and not cfg.get('sthead')) else [])
                o.append(dw)
                if pend: o.append(pend.pop(0))
            if TWO and f == 17: o.append(Op('s_barrier', need=[('CVW', 15)]))
            if TWO and f < 16: pass
            elif f in held: self.held += pstore(f, d)
            elif not (cfg.get('xp_nost') and f >= cfg.get('xp_nost')): o += pstore(f, d)
            if self.EA and f == cfg.get('eaf', 26):
                o += ['v_min_u32 v30, 1, v0', 'v_lshlrev_b32 v30, 30, v30', 'v_mov_b32 v31, s7', 's_add_u32 s%d, s%d, %d' % (S_T3, S_FO, 128*FLG_B),
                      Op('buffer_store_dword v31, v30, s[%d:%d], s%d offen sc1' % (S_WS, S_WS+3, S_T3), need=[('PS', 8*self.EA-1)])]
            for rep in range(cfg.get('twr', 1 if TWO else 2)):
                if f >= WD and wq:
                    o.append(wq.pop(0))
                    while wq and kind_of(wq[0]) == 'S': o.append(wq.pop(0))
        o += wq
        tr.run('cv', o); tr.emit(a, 'cv')
        if not cfg.get('hyb', 1): self.read_stats()
    def tail(self):
        a = self.a; NQ = self.NQ; cfg = self.cfg; tr = self.tr; stamp = cfg.get('stamp') and not cfg.get('sthead')
        ST = self.T_ST; CO = self.T_CO; CP = self.T_CP; A0 = self.T_A0; A1 = self.T_A1; BR = self.T_BR; BF = self.T_BF; RR = self.T_R; PK = self.T_PK; OT = self.T_OT
        L16 = self.V_L16; F = self.V_F
        n = 320
        class FX:
            def __init__(s): s.fx = [[] for _ in range(n)]
            def putd(s, lst, g, step=4):
                fx = s.fx
                for x in oplist(lst):
                    if kind_of(x) == 'D':
                        g += 1
                        while (step > 2 and g % step != 2) or (step == 2 and g % 2 == 0) or any(kind_of(y) in ('R','D','B','V') for y in oplist(fx[g])): g += 1
                        fx[g].append(x); g += 1
                    else: fx[g].append(x)
                return g
            def check(s, g, tag, name):
                fx = s.fx
                while fx[g] or fx[g+2]: g += 1
                fx[g] += [Op('v_cmp_ne_u32 vcc, s7, v%d' % F, need=[tag])]; fx[g+2] += ['s_cbranch_vccnz L_spin%s' % name, 'L_ok%s:' % name]
                return g+2
        def rd1(i):
            G, qb, h = i//10, (i % 10)//2, i & 1; off = qb*16384 + (2*G+h)*1024
            return Op('ds_read_b128 %s, v%d offset:%d' % (vr(BR+4*(i % 8),4), 2 if off >= 65536 else L16, off % 65536), prod=('B1', i))
        t = Asm(); h_frag_addr(t, 6, 8)
        su = ['v_add_u32 v3, %d, v%d' % (L_PAR, L16), 'v_add_u32 v4, %d, v%d' % (L_PAR+65536, L16)] + t.lines
        su += ['v_add_u32 v6, s%d, v6' % S_LP, 'v_add_u32 v8, s%d, v%d' % (S_LP, L16),
               'v_lshrrev_b32 v7, 4, v0', 'v_sub_u32 v7, 0, v7', 'v_xor_b32 v7, v7, v0', 'v_and_b32 v7, 3, v7', 'v_lshlrev_b32 v7, 4, v7',
               'v_lshrrev_b32 v9, 2, v0', 'v_lshl_add_u32 v7, v9, 10, v7',
               's_xor_b32 s%d, s3, 2' % S_T1, 's_lshl_b32 s%d, s%d, 8' % (S_T1, S_T1), 's_add_u32 s%d, s%d, 0x%x' % (S_T1, S_T1, WS_FLG),
               'v_and_b32 v9, 1, v0', 'v_lshl_add_u32 v9, v9, 7, s%d' % S_T1,
               'v_and_b32 v252, 15, v0', 'v_lshlrev_b32 v252, 3, v252']
        suq = ['s_mul_i32 s%d, s%d, %d' % (S_T1, S_QT, 80*55189), 's_add_u32 s%d, s%d, %d' % (S_T2, S_T1, 79*55189),
               's_lshr_b32 s%d, s%d, 22' % (S_T1, S_T1), 's_lshr_b32 s%d, s%d, 22' % (S_T2, S_T2),
               'v_and_b32 v250, 3, v0', 'v_add_u32 v250, s%d, v250' % S_T1, 'v_min_u32 v250, s%d, v250' % S_T2,
               's_mul_i32 s%d, s%d, %d' % (S_T1, S_B, 53*128), 's_add_u32 s%d, s%d, 0x%x' % (S_T1, S_T1, WS_FLG + 128*FLG_C),
               'v_lshl_add_u32 v250, v250, 7, s%d' % S_T1, 's_lshl_b32 s%d, s%d, 13' % (S_T2, S_J), 's_add_u32 s%d, s%d, s%d' % (S_PP, S_PP, S_T2)]
        if cfg.get('xp_nodma'): suq.append('s_mov_b32 s%d, 0x%x' % (S_PP, WS_SIZE))
        CV2 = cfg.get('one', 1) and cfg.get('cv2', 1); sub = []; BAR = [249, 251, 253, 254, 255]
        if CV2:
            sub = ['s_mul_i32 s%d, s%d, 80' % (S_SPIN, S_QT), 'v_and_b32 v232, 15, v0', 'v_add_u32 v232, s%d, v232' % S_SPIN, 'v_lshrrev_b32 v233, 4, v0', 'v_lshlrev_b32 v233, 8, v233']
            for q in range(NQ):
                d = BAR[q]
                sub += ['v_add_u32 v234, %d, v232' % (16*q), 'v_mul_u32_u24 v235, 0xd795, v234', 'v_lshrrev_b32 v235, 22, v235', 'v_lshl_add_u32 v234, v235, 2, v234',
                        'v_and_b32 v235, 15, v234', 'v_lshl_add_u32 v235, v235, 4, v233', 'v_lshrrev_b32 v234, 4, v234', 'v_lshl_add_u32 v%d, v234, 14, v235' % d]
        ld = [Op('buffer_load_dwordx2 %s, v252, s[%d:%d], s%d offen offset:%d sc1' % (vr(RR+2*q,2), S_WS, S_WS+3, S_PS, q*128), prod='PST') for q in range(NQ)]
        GC = cfg.get('tgc', 36)
        def gemm1(role):
            X = FX(); o = []
            if role == 'q': o += su + suq + sub
            o += ['v_add_u32 v2, 0x10000, v%d' % L16, Op('s_barrier', need=['ALLL', 'ALLV'] if role == 'q' else ['ALLL'])]
            if stamp: o.append(stamp_op(2))
            o += [rd1(i) for i in range(6)]
            for i in range(6, 80): X.fx[4*(i-6)].append(rd1(i))
            if role == 'p':
                g = X.putd(self.held, 0, cfg.get('ths', 4))
                GF = self.GF = g + cfg.get('tgf', 30); GF += (-GF) % 4
                X.fx[GF-1] += [Op(None, need=['ALLV'])] + ([stamp_op(3)] if stamp else [])
                late = []
                for kk in range(cfg.get('twp', 6), 16): late += self.wload(kk)
                fl = 'buffer_store_dword v31, v30, s[%d:%d], s%d offen' % (S_WS, S_WS+3, S_FO)
                if cfg.get('fast', 0):
                    X.fx[GF-2].append('s_cmp_eq_u32 s%d, 0' % S_SAME)
                    self.flag_text = fl
                    fl = Op('buffer_x\ns_cbranch_scc1 L_rel\n%s%s\nL_rel_back:\ns_nop 0' % (fl, '' if cfg.get('fastflag', 1) else ' sc1'))
                else: fl += ' sc1'
                g = X.putd([fl] + late, GF-1, 2)
                g = X.putd([self.poll_load(9, 'PF')], max(g, cfg.get('tpp', 210)))
                X.fx[1] += ['v_min_u32 v30, 1, v0', 'v_lshlrev_b32 v30, 30, v30', 'v_mov_b32 v31, s7']
                g = X.check(g+GC, 'PF', 'P2')
                X.putd(ld, g, 2); X.fx[n-1].append(Op(None, need=['PST']))
                X.fx = spread(X.fx, su, n, 3, GF-2)
                X.fx = spread(X.fx, sub, n, GF+2, 208)
            else:
                late = []
                for kk in range(cfg.get('tw1', 8), 16): late += self.wload(kk)
                g = X.putd(late, 0, cfg.get('tqs', 2))
                g = X.putd([self.poll_load(9, 'PF')], max(g, self.GF + cfg.get('tgp', 30)))
                g = X.check(g+GC, 'PF', 'P')
                if stamp: X.fx[g].append(stamp_op(3))
                dm = []
                for q in range(NQ):
                    for k in range(8):
                        if k % 4 == 0: dm += ['s_add_u32 m0, s%d, %d' % (S_T2, L_PAR + q*16384 + k*1024), 's_add_u32 s%d, s%d, %d' % (S_T0, S_PP, q*16384 + k*1024)]
                        dm.append(Op('buffer_load_dwordx4 v%d, s[%d:%d], s%d offen offset:%d%s lds' % (L16, S_WS, S_WS+3, S_T0, (k%4)*1024, '' if cfg.get('xp_plainld') else ' sc1'), prod=('PD', q)))
                NP = cfg.get('tnp', 3); ST = cfg.get('tps', 4)
                g = X.putd(dm[:12], g+1, cfg.get('tps0', 2))
                g = X.putd(ld + [self.poll_load(250, 'CF')], g, 2)
                g = X.putd(dm[12:12*NP], g, ST)
                X.check(max(g, n-8), 'CF', 'C')
            for g in range(n):
                G, qb, nb, h = g//40, (g % 40)//8, (g % 8)//2, g & 1
                h ^= nb & self.SN
                i = 10*G + 2*qb + h; kk = 2*G + h; D = vr(A0 + 16*qb + 4*nb, 4)
                o.append(Op('%s %s, %s, %s, %s' % (MF, D, self.wreg(kk, nb), vr(BR+4*(i % 8),4), D if (G or g & 1) else '0'), need=[('B1', i | 1), ('W', kk | 1)]))
                o += oplist(X.fx[g])
                if stamp and cfg.get('stg1') and g in (80, 160, 240): o.append(stamp_op({80:7, 160:9, 240:10}[g]))
            return o
        tr.run('g1p', gemm1('p'))
        trq = Trace(tr.static); trq.run('x', [Op('buffer_load w', prod=('W', kk)) for kk in range(cfg.get('tw1', 8))] + ['ds_x']); trq.run('g1q', gemm1('q'))
        tr.lenient = ('PD',)
        o = []; X = FX(); putd = X.putd
        if stamp: o.append(stamp_op(4))
        o += ['s_add_u32 s%d, s%d, s%d' % (S_WP, S_PP2, S_LP), Op('s_barrier', need=[('PD', 1)])]
        if stamp: o.append(stamp_op(5))
        def rd2(i):
            off = (i//16)*16384 + (i % 16)*1024
            return Op('ds_read_b128 %s, v%d offset:%d' % (vr(BR+4*(i % 8),4), 4 if off >= 65536 else 3, off % 65536), prod=('B2', i))
        fx = X.fx
        o += [rd2(i) for i in range(6)]
        for i in range(6, 80): fx[4*(i-6)].append(rd2(i))
        NP = cfg.get('tnp', 3)
        if NP >= 3: fx[4*26-2].append(Op('s_barrier', need=[('PD', NP-1)]))
        for q in range(max(NP, 2), NQ): fx[4*(16*q-6)-2].append(Op('s_barrier', need=[('PE', q)]))
        bl = []
        for c in range(2*NQ):
            if CV2: bl.append(Op('buffer_load_dwordx4 %s, v%d, s[%d:%d], s%d offen offset:%d sc1' % (vr(BF+4*c,4), BAR[c >> 1], S_WS, S_WS+3, S_BS, (c & 1)*1024), prod=('BF', c)))
            else: bl += ['s_add_u32 s%d, s%d, %d' % (S_T0, S_BS, (c >> 1)*16384), Op('buffer_load_dwordx4 %s, v%d, s[%d:%d], s%d offen offset:%d sc1' % (vr(BF+4*c,4), L16, S_WS, S_WS+3, S_T0, (c & 1)*1024), prod=('BF', c))]
        def pe(q):
            return ['s_add_u32 m0, s%d, %d' % (S_LP, L_PAR + q*16384), 's_add_u32 s%d, s%d, %d' % (S_T0, S_WP, q*16384)] + \
                   [Op('buffer_load_dwordx4 v%d, s[%d:%d], s%d offen offset:%d sc1 lds' % (L16, S_WS, S_WS+3, S_T0, k*1024), prod=('PE', q)) for k in range(4)]
        if NP < NQ:
            assert CV2
            seq = bl[:2]
            for q in range(1, NQ):
                if NP+q-1 < NQ: seq = seq + pe(NP+q-1)
                seq = seq + bl[2*q:2*q+2]
            putd(seq, 0, cfg.get('tp2', 8))
        else: putd(bl, 0)
        wt = []
        for q in range(NQ):
            l0, m0, l1, m1, t0 = ST+2*q, ST+2*q+1, RR+2*q, RR+2*q+1, 248
            wt += [Op('v_min_f32 v%d, v%d, v%d' % (t0, m0, m1), need=['PST']), 'v_sub_f32 v%d, v%d, v%d' % (m0, t0, m0), 'v_sub_f32 v%d, v%d, v%d' % (m1, t0, m1),
                   'v_exp_f32 v%d, v%d' % (m0, m0), 'v_exp_f32 v%d, v%d' % (m1, m1), 'v_mul_f32 v%d, v%d, v%d' % (l0, l0, m0), 'v_fmac_f32 v%d, v%d, v%d' % (l0, l1, m1),
                   'v_rcp_f32 v%d, v%d' % (l0, l0), 's_nop 0', 'v_mul_f32 v%d, v%d, v%d' % (CO+q, m0, l0), 'v_mul_f32 v%d, v%d, v%d' % (CP+q, m1, l0)]
        def ep_a(q):
            r = []
            for p in range(2):
                for x in range(4):
                    r += [Op('v_lshlrev_b32 v%d, 16, v%d' % (RR+8*p+2*x, BF+8*q+4*p+x), need=[('BF', 2*q+p)]), 'v_and_b32 v%d, s%d, v%d' % (RR+8*p+2*x+1, S_MK, BF+8*q+4*p+x)]
            return r + ['v_fmac_f32 v%d, v%d, v%d' % (RR+x, A0+16*q+x, CO+q) for x in range(16)]
        def ep_b(q):
            r = []
            for p in range(2):
                r += ['v_fmac_f32 v%d, v%d, v%d' % (RR+8*p+x, A1+16*(q & 1)+8*p+x, CP+q) for x in range(8)]
                r += ['v_cvt_pk_bf16_f32 v%d, v%d, v%d' % (PK+4*p+x, RR+8*p+2*x, RR+8*p+2*x+1) for x in range(4)]
                r += ['ds_write_b128 v6, %s offset:%d' % (vr(PK+4*p,4), p*1024), Op('ds_read_b128 %s, v8 offset:%d' % (vr(OT+4*p,4), p*1024), prod=('OT', q, p))]
            return r
        def ep_c(q):
            return ['s_add_u32 s%d, s%d, %d' % (S_T1, S_OP, q*16384)] + [Op('buffer_store_dwordx4 %s, v7, s[16:19], s%d offen offset:%d%s' % (vr(OT+4*p,4), S_T1, p*64, ' sc1' if cfg.get('sc3', 0) else ''), need=[('OT', q, p)]) for p in range(2)]
        fx = spread(fx, wt, n, 2, 64)
        fx = spread(fx, ep_a(0) + ep_b(0) + ep_a(1) + ep_c(0), n, 64+1, 128)
        for q in range(1, NQ-1): fx = spread(fx, ep_b(q) + ep_a(q+1) + ep_c(q), n, 64*(q+1)+8, 64*(q+2))
        for g in range(n):
            qb, G, nb, h = g//64, (g % 64)//8, (g % 8)//2, g & 1
            h ^= nb & self.SN
            kk = 2*G + h; i = 16*qb + kk; D = vr(A1 + 16*(qb & 1) + 4*nb, 4)
            o.append(Op('%s %s, %s, %s, %s' % (MF, D, self.wreg(kk, nb), vr(BR+4*(i % 8),4), D if (G or g & 1) else '0'), need=[('B2', i | 1)]))
            o += oplist(fx[g])
            if stamp and g == 128: o.append(stamp_op(6))
        if stamp: o.append(stamp_op(8))
        o += ['s_nop 5'] + ep_b(NQ-1) + ep_c(NQ-1)
        tr.run('t', o); trq.run('t', o)
        if cfg.get('xp_nodma'): a('s_nop 0')
        tr.emit(a, 'g1p'); a.label('L_tail2'); tr.emit(a, 't')
        a('s_branch L_k2_fin')
        a.label('L_tailq'); tr.emit(a, 'g1q'); a('s_branch L_tail2')
        self.spin('P', 9); self.spin('P2', 9); self.spin('C', 250)
        if cfg.get('fast', 0):
            a.label('L_rel'); a('buffer_wbl2 sc1'); a('s_waitcnt vmcnt(0)'); a(self.flag_text + ' sc1'); a('s_branch L_rel_back')
    def tail2(self):
        a = self.a; NQ = self.NQ; cfg = self.cfg; tr = self.tr; stamp = cfg.get('stamp') and not cfg.get('sthead')
        ST = self.T_ST; CW = 20; A0 = self.T_A0; NH = cfg.get('nh', 3); PR = A0+16*NH; A1 = self.T_A1; BR = self.T_BR; BF = self.T_BF; RR = self.T_R; PK = self.T_PK; OT = self.T_OT
        L16 = self.V_L16; F = self.V_F; n1 = 64*NH; n = 320; L_PS = 155648; BAR = [249, 251, 253, 254, 255]
        ND = cfg.get('nd', 3 if self.EA else 2)
        class FX:
            def __init__(s, m): s.fx = [[] for _ in range(m)]
            def putd(s, lst, g, step=4):
                fx = s.fx
                for x in oplist(lst):
                    if kind_of(x) == 'D':
                        g += 1
                        while any(kind_of(y) in ('R','D','B','V','X') for y in oplist(fx[g])): g += 1
                        fx[g].append(x); g += step-1
                    else: fx[g].append(x)
                return g
            def check(s, g, tag, name):
                fx = s.fx
                while fx[g] or fx[g+2]: g += 1
                fx[g] += [Op('v_cmp_ne_u32 vcc, s7, v%d' % F, need=[tag])]; fx[g+2] += ['s_cbranch_vccnz L_spin%s' % name, 'L_ok%s:' % name]
                return g+2
        def rd1(i):
            G, qb, h = i//(2*NH), (i % (2*NH))//2, i & 1
            return Op('ds_read_b128 %s, v%d offset:%d' % (vr(BR+4*(i % 8),4), L16, qb*16384 + (2*G+h)*1024), prod=('B1', i))
        t = Asm(); h_frag_addr(t, 6, 8)
        su = ['v_add_u32 v2, 0x10000, v%d' % L16, 'v_add_u32 v3, %d, v%d' % (L_PAR, L16)] + t.lines
        su += ['v_add_u32 v6, s%d, v6' % S_LP, 'v_add_u32 v8, s%d, v%d' % (S_LP, L16), 'v_add_u32 v4, 0x10000, v8',
               'v_lshrrev_b32 v7, 4, v0', 'v_sub_u32 v7, 0, v7', 'v_xor_b32 v7, v7, v0', 'v_and_b32 v7, 3, v7', 'v_lshlrev_b32 v7, 4, v7',
               'v_lshrrev_b32 v9, 2, v0', 'v_lshl_add_u32 v7, v9, 10, v7',
               'v_and_b32 v252, 15, v0', 'v_lshlrev_b32 v252, 3, v252', 'v_add_u32 v252, %d, v252' % L_PS,
               's_mul_i32 s%d, s%d, %d' % (S_T1, S_QT, 80*55189), 's_add_u32 s%d, s%d, %d' % (S_T2, S_T1, 79*55189),
               's_lshr_b32 s%d, s%d, 22' % (S_T1, S_T1), 's_lshr_b32 s%d, s%d, 22' % (S_T2, S_T2),
               'v_and_b32 v250, 3, v0', 'v_add_u32 v250, s%d, v250' % S_T1, 'v_min_u32 v250, s%d, v250' % S_T2,
               's_mul_i32 s%d, s%d, %d' % (S_T1, S_B, 53*128), 's_add_u32 s%d, s%d, 0x%x' % (S_T1, S_T1, WS_FLG + 128*FLG_C),
               'v_lshl_add_u32 v250, v250, 7, s%d' % S_T1]
        suq = ['s_xor_b32 s%d, s3, 2' % S_T1, 's_lshl_b32 s%d, s%d, 8' % (S_T1, S_T1), 's_add_u32 s%d, s%d, 0x%x' % (S_T1, S_T1, WS_FLG),
               'v_and_b32 v9, 1, v0', 'v_lshl_add_u32 v9, v9, 7, s%d' % S_T1,
               's_lshl_b32 s%d, s%d, 13' % (S_T2, S_J), 's_add_u32 s%d, s%d, s%d' % (S_PP, S_PP, S_T2)]
        sub = ['s_mul_i32 s%d, s%d, 80' % (S_SPIN, S_QT), 'v_and_b32 v236, 15, v0', 'v_add_u32 v236, s%d, v236' % S_SPIN, 'v_lshrrev_b32 v237, 4, v0', 'v_lshlrev_b32 v237, 8, v237']
        for q in range(NQ):
            sub += ['v_add_u32 v238, %d, v236' % (16*q), 'v_mul_u32_u24 v239, 0xd795, v238', 'v_lshrrev_b32 v239, 22, v239', 'v_lshl_add_u32 v238, v239, 2, v238',
                    'v_and_b32 v239, 15, v238', 'v_lshl_add_u32 v239, v239, 4, v237', 'v_lshrrev_b32 v238, 4, v238', 'v_lshl_add_u32 v%d, v238, 14, v239' % BAR[q]]
        own = ['v_and_b32 v9, 0xfffffffb, v%d' % self.V_XA]
        for q in range(NQ): own += ['ds_read_b64 %s, v9 offset:%d' % (vr(ST+2*q,2), q*512), Op('ds_read_b32 v%d, v9 offset:%d' % (CW+q, L_X2-L_X + q*512), prod=('OS', q))]
        own2 = []
        for q in range(NQ): own2 += [Op('v_add_f32 v%d, v%d, v%d' % (ST+2*q, ST+2*q, ST+2*q+1), need=[('OS', q)]), 'v_mov_b32 v%d, v%d' % (ST+2*q+1, CW+q)]
        def gemm1(role):
            X = FX(n1); o = []
            TWO = self.TWO; WQ = cfg.get('tw1', 8)
            fv = ['v_min_u32 v30, 1, v0', 'v_lshlrev_b32 v30, 30, v30', 'v_mov_b32 v31, s7']
            fl = 'buffer_store_dword v31, v30, s[%d:%d], s%d offen sc1' % (S_WS, S_WS+3, S_FO)
            if role == 'q':
                if TWO:
                    for kk in range(WQ, WQ + cfg.get('tw2', 2)): o += self.wload(kk)
                    WQ += cfg.get('tw2', 2)
                o += su + suq + sub
                if TWO:
                    o += fv + ['s_mul_i32 s%d, s%d, 500' % (S_T0, S_SP), 's_add_u32 s%d, s%d, s%d' % (S_T0, S_T0, S_RB), 's_add_u32 s%d, s%d, s%d' % (S_T0, S_T0, S_J),
                               's_lshl_b32 s%d, s%d, 14' % (S_T0, S_T0), 's_add_u32 s%d, s%d, 0x%x' % (S_T0, S_T0, WS_PART),
                               's_lshl_b32 s%d, s%d, 14' % (S_T1, S_J), 'v_add_u32 v248, s%d, v%d' % (S_T1, L16), 's_barrier']
                    o += [Op('ds_read_b128 %s, v248 offset:%d' % (vr(32+4*k,4), k*1024), prod=('QR', k)) for k in range(16)]
                    for k in range(16):
                        o.append(Op('buffer_store_dwordx4 %s, v%d, s[%d:%d], s%d offen offset:%d sc1' % (vr(32+4*k,4), L16, S_WS, S_WS+3, S_T0, (k%4)*1024), need=[('QR', k)]))
                        if k % 4 == 3: o.append('s_add_u32 s%d, s%d, 4096' % (S_T0, S_T0))
            def pdm(q):
                dm = []
                for k in range(8):
                    if k % 4 == 0: dm += ['s_add_u32 m0, s%d, %d' % (S_T2, L_PAR + q*16384 + k*1024), 's_add_u32 s%d, s%d, %d' % (S_T0, S_PP, q*16384 + k*1024)]
                    dm.append(Op('buffer_load_dwordx4 v%d, s[%d:%d], s%d offen offset:%d sc1 lds' % (L16, S_WS, S_WS+3, S_T0, (k%4)*1024), prod=('PD', q)))
                return dm
            if role == 'q' and self.EA:
                for kk in range(WQ, WQ + cfg.get('tw2', 2)): o += self.wload(kk)
                WQ += cfg.get('tw2', 2)
                o += ['v_add_u32 v248, %d, v9' % (128*FLG_B), Op('s_branch L_spinA', need=['ALLV']), 'L_okA:']
                for q in range(self.EA): o += pdm(q)
            o.append(Op('s_barrier', need=['ALLL', 'ALLV'] if (role == 'q' and not TWO and not self.EA) else ['ALLL']))
            if stamp: o.append(stamp_op(2))
            o += [rd1(i) for i in range(6)]
            for i in range(6, 16*NH): X.fx[4*(i-6)].append(rd1(i))
            late = []
            for kk in ((8, 9, 12, 13, 14, 15) if (role == 'p' and self.WL) else range(self.TWP if role == 'p' else WQ, 16)): late += self.wload(kk)
            if role == 'p' and TWO:
                X.fx[1] += fv
                g = X.putd(late, 1, 2)
                g = X.putd(self.held, g, cfg.get('ths', 4))
                GB = min(n1-4, g + cfg.get('tgb', 40)); GB -= GB % 4
                X.fx[GB-1] += ['s_add_u32 s%d, s%d, %d' % (S_FO, S_FO, 128*FLG_B), Op(None, need=['ALLV'])] + ([stamp_op(3)] if stamp else [])
                X.putd([fl], GB-1)
                X.fx = spread(X.fx, own + own2 + su + sub + suq[:5], n1, 2, n1, 3)
            elif role == 'p':
                X.fx[1] += ['v_min_u32 v30, 1, v0', 'v_lshlrev_b32 v30, 30, v30', 'v_mov_b32 v31, s7']
                g = X.putd(self.held, 1, cfg.get('ths', 2))
                GF = self.GF = g + cfg.get('tgf', 28); GF += (-GF) % 4
                X.fx[GF-1] += [Op(None, need=['ALLV'])] + ([stamp_op(3)] if stamp else [])
                g = X.putd(['buffer_store_dword v31, v30, s[%d:%d], s%d offen sc1' % (S_WS, S_WS+3, S_FO)] + late, GF-1, 2)
                X.fx = spread(X.fx, own, n1, 2, GF-1)
                X.fx = spread(X.fx, own2 + su + sub, n1, GF+2, n1, 3)
            else:
                if TWO:
                    GA = cfg.get('tga', 24)
                    X.fx[GA-1].append(Op(None, need=['ALLV']))
                    nl = cfg.get('tnl', 14)
                    g = X.putd([fl] + late[:nl] + [self.poll_load(9, 'PF')], GA-1, 2)
                    X.putd(late[nl:], g, 2)
                else:
                    g = X.putd(late, 0, 2)
                    g = X.putd([self.poll_load(9, 'PF')], max(g, self.GF + cfg.get('tgp', 20)))
                g = X.check(g + cfg.get('tgc', 28), 'PF', 'P')
                if stamp: X.fx[g].append(stamp_op(3))
                sd = ['s_mov_b32 m0, %d' % L_PS, Op('buffer_load_dwordx4 v%d, s[%d:%d], s%d offen sc1 lds' % (L16, S_WS, S_WS+3, S_PS), prod=('PD', 0))]
                g = X.putd((pdm(0) if not self.EA else []) + sd, g+1, cfg.get('tps0', 2))
                for q in range(max(1, self.EA), ND): g = X.putd(pdm(q), g, cfg.get('tps', 4))
            for g in range(n1):
                G, qb, nb, h = g//(8*NH), (g % (8*NH))//8, (g % 8)//2, g & 1
                h ^= nb & self.SN
                i = 2*NH*G + 2*qb + h; kk = 2*G + h; D = vr(A0 + 16*qb + 4*nb, 4)
                o.append(Op('%s %s, %s, %s, %s' % (MF, D, self.wreg(kk, nb), vr(BR+4*(i % 8),4), D if (G or g & 1) else '0'), need=[('B1', i | 1), ('W', kk | 1)]))
                o += oplist(X.fx[g])
            return o
        tr.run('g1p', gemm1('p'))
        trq = Trace(tr.static); trq.run('x', [Op('buffer_load w', prod=('W', kk)) for kk in range(cfg.get('tw1', 8))] + ['ds_x']); trq.run('g1q', gemm1('q'))
        tr.lenient = ('PD',)
        o = []; X = FX(n); fx = X.fx
        if stamp: o.append(stamp_op(4))
        o += ['s_add_u32 s%d, s%d, s%d' % (S_WP, S_PP2, S_LP), Op('s_barrier', need=[('PD', 0)])]
        if stamp: o.append(stamp_op(5))
        def rd2(i):
            q = i//16; off = q*16384 + (i % 16)*1024
            return Op('ds_read_b128 %s, v%d offset:%d' % (vr(BR+4*(i % 8),4), 3 if q < NH else (2 if off >= 65536 else L16), off % 65536), prod=('B2', i))
        o += [rd2(i) for i in range(6)]
        for i in range(6, 80): fx[4*(i-6)].append(rd2(i))
        for q in range(1, NQ): fx[4*(16*q-6)-2].append(Op('s_barrier', need=[('PD' if q < ND else ('PE' if q < NH else 'CW'), q)]))
        seq = []
        for q in range(ND, NH):
            seq += ['s_add_u32 m0, s%d, %d' % (S_LP, L_PAR + q*16384), 's_add_u32 s%d, s%d, %d' % (S_T0, S_WP, q*16384)]
            seq += [Op('buffer_load_dwordx4 v%d, s[%d:%d], s%d offen offset:%d sc1 lds' % (L16, S_WS, S_WS+3, S_T0, k*1024), prod=('PE', q)) for k in range(4)]
        pr = lambda q: ['s_add_u32 s%d, s%d, %d' % (S_T0, S_WP, q*16384)] + [Op('buffer_load_dwordx4 %s, v%d, s[%d:%d], s%d offen offset:%d sc1' % (vr(PR+16*(q-NH)+4*k,4), L16, S_WS, S_WS+3, S_T0, k*1024), prod=('PR', q, k)) for k in range(4)]
        if self.TWO:
            fx[1].append('v_add_u32 v9, %d, v9' % (128*FLG_B))
            g = X.putd([self.poll_load(9, 'BFL')], cfg.get('tbp', 4))
            g = X.check(g + cfg.get('tbc', 28), 'BFL', 'B')
            g = X.putd(seq + pr(3) + pr(4), g+1, cfg.get('tp2', 4))
        else: g = X.putd({3: lambda: pr(3) + seq + pr(4), 4: lambda: pr(4) + seq, 2: lambda: pr(2) + seq + pr(3) + pr(4)}[NH](), 1, cfg.get('tp2', 6))
        g = X.putd([self.poll_load(250, 'CF')], max(g, cfg.get('tcp', 110)))
        g = X.check(g + cfg.get('tgc', 28), 'CF', 'C')
        X.putd([Op('buffer_load_dwordx4 %s, v%d, s[%d:%d], s%d offen offset:%d sc1' % (vr(BF+4*c,4), BAR[c >> 1], S_WS, S_WS+3, S_BS, (c & 1)*1024), prod=('BF', c)) for c in range(2*NQ)], g, cfg.get('tp3', 4))
        wt = [Op('ds_read_b64 %s, v252 offset:%d' % (vr(RR+2*q,2), q*128), prod=('PST', q)) for q in range(NQ)]
        for q in range(NQ):
            l0, m0, l1, m1, t0 = ST+2*q, ST+2*q+1, RR+2*q, RR+2*q+1, 248
            wt += [Op('v_min_f32 v%d, v%d, v%d' % (t0, m0, m1), need=[('PST', q)]), 'v_sub_f32 v%d, v%d, v%d' % (m0, t0, m0), 'v_sub_f32 v%d, v%d, v%d' % (m1, t0, m1),
                   'v_exp_f32 v%d, v%d' % (m0, m0), 'v_exp_f32 v%d, v%d' % (m1, m1), 'v_mul_f32 v%d, v%d, v%d' % (l0, l0, m0), 'v_fmac_f32 v%d, v%d, v%d' % (l0, l1, m1),
                   'v_rcp_f32 v%d, v%d' % (l0, l0), 's_nop 0', 'v_mul_f32 v%d, v%d, v%d' % (CW+2*q, m0, l0), 'v_mul_f32 v%d, v%d, v%d' % (CW+2*q+1, m1, l0)]
        unp = lambda d, s_, need=(): [Op('v_lshlrev_b32 v%d, 16, v%d' % (d, s_), need=list(need)), 'v_and_b32 v%d, s%d, v%d' % (d+1, S_MK, s_)]
        def mix(q):
            return ['v_mul_f32 v%d, v%d, v%d' % (A0+16*q+x, A0+16*q+x, CW+2*q) for x in range(16)] + \
                   ['v_fmac_f32 v%d, v%d, v%d' % (A0+16*q+x, A1+16*(q & 1)+x, CW+2*q+1) for x in range(16)]
        def comb(q):
            ad = lambda k: (4 if q == 4 else 8, (q*16384 + k*1024) % 65536)
            rd = lambda k: Op('ds_read_b128 %s, v%d offset:%d' % ((vr(OT+4*(k & 1),4),) + ad(k)), prod=('CO', q, k))
            r = [rd(0), rd(1)]; C = vr(CW+2*q, 2)
            for k in range(4):
                for x in range(4): r += unp(RR+8+2*x, PR+16*(q-NH)+4*k+x, [('PR', q, k)] if x == 0 else [])
                for x in range(4): r += unp(RR+2*x, OT+4*(k & 1)+x, [('CO', q, k)] if x == 0 else [])
                r += ['v_pk_mul_f32 %s, %s, %s op_sel:[0,1] op_sel_hi:[1,1]' % (vr(RR+8+2*x,2), vr(RR+8+2*x,2), C) for x in range(4)]
                r += ['v_pk_fma_f32 %s, %s, %s, %s op_sel_hi:[1,0,1]' % (vr(RR+2*x,2), vr(RR+2*x,2), C, vr(RR+8+2*x,2)) for x in range(4)]
                if k < 2: r.append(rd(k+2))
                r += ['v_cvt_pk_bf16_f32 v%d, v%d, v%d' % (PK+4*(k & 1)+x, RR+2*x, RR+2*x+1) for x in range(4)]
                r.append(Op('ds_write_b128 v%d, %s offset:%d' % (ad(k)[0], vr(PK+4*(k & 1),4), ad(k)[1]), prod=('CW', q)))
            return r
        def fin_a(q):
            r = []
            for p in range(2):
                for x in range(4): r += unp(RR+8*p+2*x, BF+8*q+4*p+x, [('BF', 2*q+p)] if x == 0 else [])
            return r
        def fin_b(q, pk=False):
            r = []; S = A0+16*q if q < NH else A1+16*(q & 1)
            for p in range(2):
                if pk: r += ['v_pk_add_f32 %s, %s, %s' % (vr(RR+8*p+x,2), vr(RR+8*p+x,2), vr(S+8*p+x,2)) for x in range(0, 8, 2)]
                else: r += ['v_add_f32 v%d, v%d, v%d' % (RR+8*p+x, RR+8*p+x, S+8*p+x) for x in range(8)]
                r += ['v_cvt_pk_bf16_f32 v%d, v%d, v%d' % (PK+4*p+x, RR+8*p+2*x, RR+8*p+2*x+1) for x in range(4)]
                r += ['ds_write_b128 v6, %s offset:%d' % (vr(PK+4*p,4), p*1024), Op('ds_read_b128 %s, v8 offset:%d' % (vr(OT+4*p,4), p*1024), prod=('OT', q, p))]
            return r
        def fin_c(q):
            return ['s_add_u32 s%d, s%d, %d' % (S_T1, S_OP, q*16384)] + [Op('buffer_store_dwordx4 %s, v7, s[16:19], s%d offen offset:%d%s' % (vr(OT+4*p,4), S_T1, p*64, cfg.get('opol', ' nt') if q < cfg.get('sc3', 5) else ''), need=[('OT', q, p)]) for p in range(2)]
        W0, W1, W2 = cfg.get('tw', (88, 160, 226) if self.TWO else (64, 140, 212))
        fa = lambda q: fin_a(q) + (fin_c(q-1) if q else []) + fin_b(q)
        if NH == 4:
            E0, E1, E2 = cfg.get('te', (56, 127, 170))
            fx = spread(fx, wt, n, 2, E0)
            fx = spread(fx, comb(4) + mix(0), n, E0, E1)
            fx = spread(fx, mix(1), n, 130, E2)
            fx = spread(fx, fa(0) + mix(2) + fa(1), n, E2, 256)
            fx = spread(fx, fa(2) + mix(3) + fa(3) + fin_a(4) + fin_c(3), n, 256, n)
        elif NH == 2:
            E0 = cfg.get('te', 40)
            fx = spread(fx, wt, n, 2, E0)
            fx = spread(fx, comb(2), n, E0, 100)
            fx = spread(fx, mix(0) + comb(3), n, 100, 164)
            fx = spread(fx, mix(1) + comb(4), n, 164, 226)
            fx = spread(fx, fin_a(2) + fin_b(2), n, 226, 256)
            fx = spread(fx, fin_a(0) + fin_c(2) + fin_b(0) + fa(1) + fin_a(3) + fin_c(1) + fin_b(3) + fin_a(4) + fin_c(3), n, 256, n)
        elif cfg.get('even', 1) and not self.TWO:
            E0, E1, E2 = cfg.get('te', (52, 126, 191))
            fx = spread(fx, wt, n, 2, E0)
            fx = spread(fx, comb(3) + mix(0), n, E0, E1)
            fx = spread(fx, comb(4) + mix(1), n, E1, E2)
            fx = spread(fx, fin_a(0) + fin_b(0) + mix(2) + fin_c(0) + fin_a(1) + fin_b(1) + fin_a(2) + fin_c(1) + fin_b(2) + fin_a(3) + fin_c(2) + fin_b(3) + fin_a(4) + fin_c(3), n, E2, n)
        else:
            fx = spread(fx, wt, n, 2, 64)
            fx = spread(fx, mix(0) + comb(3), n, W0, W1)
            fx = spread(fx, mix(1) + comb(4), n, W1, W2)
            fx = spread(fx, mix(2) + fin_a(0) + fin_b(0), n, W2, 256)
            fx = spread(fx, fin_a(1) + fin_c(0) + fin_b(1) + fin_a(2) + fin_c(1) + fin_b(2) + fin_a(3) + fin_c(2) + fin_b(3) + fin_a(4) + fin_c(3), n, 256, n)
        where = lambda txt: [g for g in range(n) for y in oplist(fx[g]) if y.text == txt][0]
        for q in range(NH):
            m = mix(q); assert where(m[16]) >= 64*(q+1)+6 and where(m[-1]) < 64*(q+2), (q, where(m[16]), where(m[-1]))
        assert where(fin_b(3)[0]) >= 256+8
        for g in range(n):
            qb, G, nb, h = g//64, (g % 64)//8, (g % 8)//2, g & 1
            h ^= nb & self.SN
            kk = 2*G + h; i = 16*qb + kk; D = vr(A1 + 16*(qb & 1) + 4*nb, 4)
            o.append(Op('%s %s, %s, %s, %s' % (MF, D, self.wreg(kk, nb), vr(BR+4*(i % 8),4), D if (G or g & 1) else '0'), need=[('B2', i | 1)]))
            o += oplist(fx[g])
            if stamp and g == 128: o.append(stamp_op(6))
        if stamp: o.append(stamp_op(8))
        o += ['s_nop 5'] + fin_b(NQ-1, True) + fin_c(NQ-1)
        tr.run('t', o); trq.run('t', o)
        tr.emit(a, 'g1p'); a.label('L_tail2'); tr.emit(a, 't')
        a('s_branch L_k2_fin')
        a.label('L_tailq'); tr.emit(a, 'g1q'); a('s_branch L_tail2')
        self.spin('P', 9)
        if self.TWO: self.spin('B', 9)
        if self.EA: self.spin('A', 248)
        if cfg.get('xp_noc'): a.label('L_spinC'); a('s_branch L_okC')
        else: self.spin('C', 250)
    def vread(self, db, par):
        return [Op('ds_read_b64_tr_b16 %s, v%d offset:%d' % (ar(self.A_RP+4*(db % self.RP)+2*jj,2), self.V_A2 if db & 1 else self.V_A, par*32768 + jj*16384 + (db >> 1)*1024), prod=('V', par, db)) for jj in range(2)]
    def pread(self, qb, par):
        return Op('ds_read_b128 %s, v%d offset:%d' % (ar(self.A_PP+4*self.NQ*par+4*qb,4), self.V_PA, (par*self.NQ+qb)*1024), prod=('P', par, qb))
    def pv_body(self, par):
        NQ = self.NQ; n = self.n; cfg = self.cfg
        G = Gaps(n)
        LA = min(self.RP - 1, cfg['lap']); W = cfg['pw']; PP = cfg.get('kpf', 0) and cfg.get('kpp', 1)
        for db in range(16):
            d2 = db + LA; p2 = par
            if d2 >= 16: d2 -= 16; p2 ^= 1
            if d2 == 0 and par == 1: G.put(Task('V', 'v_xor_b32 v%d, 0x10000, v%d' % (self.V_A, self.V_A)), NQ*(db-1)+1)
            if d2 == 1 and par == 1: G.put(Task('V', 'v_xor_b32 v%d, 0x10000, v%d' % (self.V_A2, self.V_A2)), NQ*(db-1)+1)
            r = self.vread(d2, p2)
            G.put(Task('R', r[0]), NQ*db); G.put(Task('R', r[1]), NQ*db+1)
            if (db+1) % W == 0 and db < 15:
                G.put(Task('S', Op(None, need=[('V', par, db+W)])), NQ*db)
        gb = n - cfg['bp']
        while not G.fits(gb, 'X'): gb -= 1
        assert gb > NQ*(15-LA)+1, (gb, LA)
        bar = G.put(Task('X', [Op(None, need=[('V', par, 15)], extra='vmcnt(%d)' % (cfg['dv'] + (1 if PP else 0)) if cfg['dq'] < 16 else ''), 's_barrier']), gb)
        prev = fr = G.asap(Task('R', self.flag_read(par), [(bar,1)]))
        for qb in range(NQ): prev = G.asap(Task('R', self.pread(qb, par ^ 1), [(prev,1)]))
        fw = G.put(Task('SV', [Op(None, need=[('F', par)]), 'v_cmp_eq_u32 vcc, s%d, v%d' % (S_T, self.V_F)]), n-3)
        G.put(Task('SSS', ['s_add_u32 s%d, s%d, 1' % (S_T, S_T), ('s_cmp_lg_u32 s%d, s%d' if par else 's_cmp_eq_u32 s%d, s%d') % (S_T, S_N),
                           Op(None, need=[('P', par^1, NQ-1), ('V', par^1, W-1)])]), n-2)
        G.put(Task('B', ['s_cbranch_vccnz L_prec%d' % par, 'L_pback%d:' % par]), n-1)
        dd = self.place_dma(G, cfg['dq'], 16-cfg['dq'], cfg['dp0'], cfg['dpend'], False, (15-cfg['dq']-cfg['dv']+cfg.get('kpo', cfg['dv'])) if PP else None)
        assert all(t.gap < gb for t, _ in dd)
        if cfg.get('show'): print('PV', par, G.show())
        ops = []
        for g in range(n):
            db, qb = g//NQ, g % NQ
            need = []
            if qb == 0: need.append(('V', par, db))
            if db & self.SN: qb = NQ-1-qb
            if g < NQ: need.append(('P', par, qb))
            D = self.O(8*qb + (db >> 1), 4*(db & 1), 4)
            ops.append(Op('%s %s, %s, %s, %s' % (MF, D, ar(self.A_RP+4*(db % self.RP),4), ar(self.A_PP+4*NQ*par+4*qb,4), D), need=need))
            ops += G.ops(g)
        return ops
    def pv_path(self):
        a = self.a; NQ = self.NQ; cfg = self.cfg; T = self.V_T
        b = Asm()
        if self.T1L:
            for pre, ins in self.dma(0, 16):
                for x in pre: b(x)
                b(ins)
            for it in self.dma_adv():
                for x in it: b(x)
        KP0 = cfg.get('kpf', 0)+1 if cfg.get('kpf', 0) else cfg.get('kp0', 0)
        if KP0:
            a('s_and_b32 s%d, s%d, 7', S_T2, S_QT); a('s_lshl_b32 s%d, s%d, 11', S_T2, S_T2); a('v_lshl_add_u32 v10, v0, 5, s%d', S_T2)
            a('v_add_u32 v22, %d, v10', 32768*cfg.get('kpf', 0))
            for i in range(KP0):
                b('s_add_u32 s%d, s%d, %d', S_T2, S_SRC, 32768*i); b('buffer_load_dword v11, v10, s[%d:%d], s%d offen', S_WS, S_WS+3, S_T2)
        for r in range(4): a('v_mov_b32 v%d, 0', 12+r)
        a('s_nop 1')
        z = ['v_mfma_f32_32x32x16_bf16 %s, v[12:15], v[12:15], 0' % self.O(f, 0, 16) for f in range(0, 8*NQ, 2)]
        for l in b.lines:
            if l.startswith('buffer') and z: a(z.pop(0))
            a(l)
        for l in z: a(l)
        F = self.V_F
        a('v_lshrrev_b32 v%d, 4, v0', T); a('v_sub_u32 v%d, 0, v%d', T, T); a('v_bfe_u32 v%d, v0, 1, 1', F)
        a('v_xor_b32 v%d, v%d, v%d', T, T, F); a('v_and_b32 v%d, 3, v%d', T, T); a('v_lshlrev_b32 v%d, 4, v%d', T, T)
        a('v_lshrrev_b32 v%d, 2, v0', F); a('v_lshl_add_u32 v%d, v%d, 6, v%d', T, F, T)
        a('v_and_b32 v%d, 1, v0', F); a('v_lshl_add_u32 v%d, v%d, 3, v%d', T, F, T)
        a('s_lshl_b32 s%d, s%d, 13', S_T2, S_J); a('v_add_u32 v%d, s%d, v%d', self.V_A, S_T2, T)
        a('v_xor_b32 v%d, 32, v%d', self.V_A2, self.V_A)
        a('v_add_u32 v%d, %d, v%d', self.V_PA, L_P, self.V_L16)
        if cfg.get('stamp') and cfg.get('sthead') == 1: stamp_mid(a, 8)
        if self.T1L: a('s_waitcnt vmcnt(%d)', KP0)
        a('s_barrier')
        for pre, ins in self.dma(0, 16):
            for x in pre: a(x)
            a(ins)
        for it in self.dma_adv():
            for x in it: a(x)
        for db in range(min(self.RP-1, cfg['lap'])):
            for o in self.vread(db, 0): a(o.text)
        a('s_waitcnt vmcnt(%d)', cfg['dv']); a('s_barrier')
        for qb in range(NQ): a(self.pread(qb, 0).text)
        if cfg.get('stamp'): stamp_mid(a, 9)
        a('s_mov_b32 s%d, 2', S_T); a('s_add_u32 s%d, s%d, 2', S_N, S_N)
        a('s_waitcnt lgkmcnt(0)')
        b0 = self.pv_body(0); b1 = self.pv_body(1)
        a('.p2align 6') if cfg.get('align',1) else None
        a.label('L_ploop')
        resolve(a, b0, b1)
        a('s_cbranch_scc1 L_pend')
        resolve(a, b1, b0)
        a('s_cbranch_scc1 L_ploop')
        a.label('L_pend')
        if cfg.get('stamp'): stamp_mid(a, 10)
        if cfg.get('fuse3', 1): self.pv_tail(); (self.tail2 if cfg.get('hyb', 1) else self.tail)()
        else: self.pv_tail_old()
        a.label('L_prec0'); a('s_mov_b32 s%d, 0', S_RET); a('s_branch L_precx')
        a.label('L_prec1'); a('s_mov_b32 s%d, 1', S_RET)
        a.label('L_precx')
        a('s_waitcnt lgkmcnt(0)'); a('s_barrier')
        X = self.V_PX
        self.read_x(X)
        for qb in range(NQ):
            a('v_max3_f32 v%d, v%d, v%d, 0', X+2*qb, X+2*qb, X+2*qb+1)
            a('v_sub_f32 v%d, 0, v%d', X+2*qb, X+2*qb); a('v_exp_f32 v%d, v%d', X+2*qb, X+2*qb)
        a('s_nop 7')
        E = 24
        for f in range(8*NQ):
            qb = f//8
            if f < self.NFV:
                for r in range(8): a('v_mul_f32 %s, %s, v%d', self.O(f, r), self.O(f, r), X+2*qb)
            else:
                for r in range(8): a('v_accvgpr_read_b32 v%d, %s', E+r, self.O(f, r))
                for r in range(8): a('v_mul_f32 v%d, v%d, v%d', E+r, E+r, X+2*qb)
                for r in range(8): a('v_accvgpr_write_b32 %s, v%d', self.O(f, r), E+r)
        a('s_barrier')
        a('s_cmp_eq_u32 s%d, 0', S_RET); a('s_cbranch_scc0 L_precy')
        for qb in range(NQ): a(self.pread(qb, 1).text)
        a('s_waitcnt lgkmcnt(0)'); a('s_cmp_eq_u32 s%d, s%d', S_T, S_N); a('s_branch L_pback0')
        a.label('L_precy')
        for qb in range(NQ): a(self.pread(qb, 0).text)
        a('s_waitcnt lgkmcnt(0)'); a('s_cmp_lg_u32 s%d, s%d', S_T, S_N); a('s_branch L_pback1')
    def qprime(self):
        a = self.a; NQ = self.NQ; n = self.n; T = self.V_T
        assert NQ == 5
        RA = 64; DD = 16; PK = 8; BA = 2; WA = 56; S_AP = S_T3; S_X = S_T1
        ONE = self.cfg.get('one', 1)
        tr = self.tr0 if ONE else Trace(); ops = []
        LN2 = self.cfg.get('ln2', 1); KSC = ' sc1' if (LN2 and self.cfg.get('ksc', 1)) else ''
        Xs = [128+16*q for q in range(5)]
        if ONE: pass
        elif LN2:
            ops += ln_lane_addr(58, 59, S_W, 1)
            ops += ['s_lshl_b32 s%d, s%d, 14' % (S_X, S_RB), 's_lshl_b32 s%d, s%d, 9' % (S_T2, S_SP), 's_add_u32 s%d, s%d, s%d' % (S_T0, S_X, S_T2), 's_xor_b32 s%d, s%d, 512' % (S_T2, S_T0)]
            ops += ['s_mov_b32 s60, s%d' % S_T0, 's_mov_b32 s61, s%d' % S_T2, 'v_mov_b32 v55, v58']
            X0 = self.cfg.get('x0', 3) if self.cfg.get('lnb', 1) else 5
            xlate = []
            for q in range(5):
                l = [Op('buffer_load_dwordx4 %s, v55, s[12:15], s%d offen offset:%d' % (vr(Xs[q]+4*k,4), 61 if k & 2 else 60, (k & 1)*256), prod=(('X', q), k)) for k in range(4)]
                if q < 4: l += ['s_add_u32 s60, s60, 16384', 's_add_u32 s61, s61, 16384']
                if q < X0: ops += l
                else: xlate.append(l)
        else:
            ops += ['s_mul_i32 s%d, s%d, 20480' % (S_T2, S_W), 's_lshl_b32 s%d, s%d, 14' % (S_X, S_RB), 's_add_u32 s%d, s%d, s%d' % (S_X, S_X, S_T2)]
            for d in range(20):
                if d % 4 == 0: ops += ['s_add_u32 m0, s%d, %d' % (S_T2, L_ST + d*1024), 's_add_u32 s%d, s%d, %d' % (S_T0, S_X, d*1024)]
                ops.append(Op('buffer_load_dwordx4 v%d, s[%d:%d], s%d offen offset:%d lds' % (self.V_L16, S_WS, S_WS+3, S_T0, (d%4)*1024), prod='XS'))
        ops += ['s_mov_b32 s%d, s6' % S_AP] if ONE else ['s_lshl_b32 s%d, s%d, 17' % (S_AP, S_W), 's_add_u32 s%d, s%d, 0x%x' % (S_AP, S_AP, WS_MF)]
        RO = 16 if ONE else 0
        def aload(f):
            o = [Op('buffer_load_dwordx4 %s, v%d, s[%d:%d], s%d offen offset:%d%s' % (vr(RA+4*((f+RO) % 32),4), self.V_L16, S_WS, S_WS+3, S_AP, (f%4)*1024, ' sc1' if ONE else ''), prod=('A', f))]
            return o, (['s_add_u32 s%d, s%d, 4096' % (S_AP, S_AP)] if f % 4 == 3 else [])
        LNB = LN2 and self.cfg.get('lnb', 1)
        A0 = self.cfg.get('qa0', 0 if LNB else (16 if LN2 else 8))
        if ONE: A0 = self.cfg.get('qla', 16)
        for f in range(14 if ONE else 0, A0):
            o, s_ = aload(f); ops += o + s_
        if self.cfg.get('stamp') and self.cfg.get('sthead') == 1: ops.append(stamp_op(1))
        tr.run('pre', ops); tr.emit(a, 'pre')
        if self.cfg.get('fuse3', 1): self.tail_sgprs()
        h_frag_addr(a, BA, T); a('v_add_u32 v%d, %d, v%d', BA, L_ST, BA); a('v_add_u32 v%d, 0x10000, v%d', BA+1, BA)
        a('s_lshl_b32 s%d, s%d, 12', S_T2, S_W); a('s_add_u32 s%d, s%d, %d', S_T2, S_T2, L_ST)
        a('v_add_u32 v%d, s%d, v%d', WA, S_T2, self.V_L16); a('v_add_u32 v%d, 0x10000, v%d', WA+1, WA)
        a('v_mov_b32 v%d, -1', T); a('ds_write_b32 v%d, v%d', self.V_FA, T); a('s_waitcnt lgkmcnt(0)')
        a('s_lshl_b32 s%d, s%d, 14', S_T2, S_W); a('s_add_u32 s%d, s%d, s%d', S_X, S_SRC, S_T2)
        def pos(g):
            G = g//(2*NQ); w = g % (2*NQ); return w//2, 2*G + ((w & 1) ^ ((w//2) & self.SN))
        def bread(g):
            qb, kk = pos(g); off = qb*16384 + kk*1024
            return Op('ds_read_b128 %s, v%d offset:%d' % (self.R(4*(kk*NQ+qb),4), BA + off//65536, off % 65536), prod=('B', g))
        def ep(i):
            o = []
            for qb in range(NQ):
                D = DD + 20*(i & 1) + 4*qb; P = PK + 2*(qb % 4); off = qb*16384 + (i >> 1)*1024 + 8*(i & 1)
                o += ['v_cvt_pk_bf16_f32 v%d, v%d, v%d' % (P, D, D+1), 'v_cvt_pk_bf16_f32 v%d, v%d, v%d' % (P+1, D+2, D+3),
                      'ds_write_b64 v%d, %s offset:%d' % (WA + off//65536, vr(P,2), off % 65536)]
            return o
        PRE = 10
        ops = []
        if LN2 and not ONE:
            ops += ln_h_addr(58, 59, S_W) + ['s_lshl_b32 s%d, s%d, 13' % (S_T0, S_SP), 'v_add_u32 v58, s%d, v58' % S_T0, 'v_add_u32 v60, %d, v58' % L_ST, 'v_xor_b32 v61, 0x2000, v60',
                                             'v_add_u32 v62, 0x10000, v60', 'v_add_u32 v63, 0x10000, v61', 's_lshl_b32 s%d, s%d, 14' % (S_RET, S_RB)]
            def wr(q, k, reg):
                off = q*16384 + (k & 1)*4096
                r = ['ds_write_b128 v%d, %s offset:%d' % (60 + (k >> 1) + 2*(off//65536), vr(reg,4), off % 65536)]
                if k < 2 and not (self.cfg.get('noxst') and q): r += ['s_add_u32 s%d, s%d, %d' % (S_T0 if q & 1 else S_SPIN, S_RET, off), Op('buffer_store_dwordx4 %s, v58, s[%d:%d], s%d offen%s' % (vr(reg,4), S_WS, S_WS+3, S_T0 if q & 1 else S_SPIN, '' if self.cfg.get('xplain') else ' sc1'), prod='XST')]
                return r
            if LNB:
                cnt = self.cfg.get('lnx', [0, 0, 6, 5, 5]); ex = []
                for q in range(5):
                    e = xlate.pop(0) if xlate else []
                    for c in range(cnt[q]):
                        assert A0 < 16 + 4*q
                        o_, s_ = aload(A0); e += o_ + s_; A0 += 1
                    ex.append(e)
                ops += ln80b(Xs, 16, 48, 'X', S_MK, 54, wr, ex)
            else: ops += ln80(Xs, [16, 208], [48, 240], 'X', S_MK, wr)
            if self.cfg.get('stamp') and self.cfg.get('sthead'): ops.append(stamp_op(5))
        if LN2:
            ops += ['s_lshl_b32 s%d, s3, 7' % S_RET, 's_add_u32 s%d, s%d, 0x%x' % (S_RET, S_RET, WS_FLG + 128*FLG_X),
                    's_mul_i32 s%d, s%d, 50' % (S_T0, S_SP), 'v_min_u32 v58, 51, v0', 'v_add_u32 v58, s%d, v58' % S_T0, 'v_min_u32 v58, 0x63, v58',
                    'v_lshl_add_u32 v58, v58, 1, s%d' % S_B, 's_xor_b32 s%d, s3, 2' % S_T0, 'v_cmp_eq_u32 vcc, 63, v0', 'v_mov_b32 v59, s%d' % S_T0, 's_nop 0', 'v_cndmask_b32 v58, v58, v59, vcc', 'v_lshlrev_b32 v58, 7, v58', 'v_add_u32 v58, 0x%x, v58' % (WS_FLG + 128*FLG_X), 'v_min_u32 v60, 1, v0', 'v_lshlrev_b32 v60, 30, v60', 'v_mov_b32 v62, s7', 's_getreg_b32 s%d, hwreg(HW_REG_XCC_ID, 0, 4)' % S_SAME, 'v_mov_b32 v63, s%d' % S_SAME,
                    's_cmp_eq_u32 s%d, 0' % S_W, 's_cselect_b32 s%d, s%d, 0x%x' % (S_RET, S_RET, WS_SIZE)]
        ops += [Op('s_barrier', need=['ALLL'] if LN2 else ['XS'])] + [bread(g) for g in range(PRE)]
        QLA = self.cfg.get('qla', 16); assert A0 <= QLA
        for f in range(A0, QLA):
            o, s_ = aload(f); ops += o + s_
        for i in range(8):
            if self.cfg.get('stamp') and self.cfg.get('sthead') == 1 and i in (0,1,2,6): ops.append(stamp_op({0:2,1:3,2:4,6:6}[i]))
            if self.cfg.get('stamp') and self.cfg.get('sthead') == 2 and i == 1: ops.append(stamp_op(8))
            fx = [[] for _ in range(n)]
            for G in range(8):
                for h in range(2):
                    f = 16*i + QLA + 2*G + h; gp = 2*NQ*G + 5*h
                    if f < 128:
                        o, s_ = aload(f); fx[gp] += o; fx[gp+1] += s_
                    d = 16*(i-6) + 2*G + h - self.cfg.get('qd0', 12)
                    if 0 <= d < 16:
                        if d % 4 == 0: fx[gp+1] += ['s_add_u32 m0, s%d, %d' % (S_T2, d*1024), 's_add_u32 s%d, s%d, %d' % (S_T0, S_X, d*1024)]
                        fx[gp+2].append('buffer_load_dwordx4 v%d, s[%d:%d], s%d offen offset:%d%s lds' % (self.V_L16, S_WS, S_WS+3, S_T0, (d%4)*1024, KSC))
                nxt = 16*i + 2*G + 3
                if nxt < 128: fx[2*NQ*G + 8].append(Op(None, need=[('A', nxt)]))
            if i == 0:
                for g in range(n - PRE): fx[g].insert(0, bread(g+PRE))
            if i == 1: fx[2].append('s_barrier')
            if LN2 and i == self.cfg.get('xfb', 2):
                fx[72].append(Op('s_barrier', need=['XST'])); fx[73].append('buffer_store_dwordx2 v[62:63], v60, s[%d:%d], s%d offen sc1' % (S_WS, S_WS+3, S_RET))
            if LN2 and i == 5: fx[33].append(self.poll_load(58, 'XF'))
            if LN2 and i == 6:
                fx[1].append(Op('v_cmp_ne_u32 vcc, s7, v%d' % self.V_F, need=['XF'])); fx[3] += ['s_cbranch_vccnz L_spinX', 'L_okX:']
                fx[13].append(Op('buffer_load_dword v59, v58, s[%d:%d], 0 offen offset:4 sc1' % (S_WS, S_WS+3), prod='XC'))
            if i: fx = spread(fx, ep(i-1), n, 4)
            for g in range(n):
                qb, kk = pos(g); D = vr(DD + 20*(i & 1) + 4*qb, 4)
                need = [('A', 16*i+kk)] + ([('B', g | 1)] if i == 0 else [])
                ops.append(Op('%s %s, %s, %s, %s' % (MF, D, vr(RA+4*((16*i+kk+RO) % 32),4), self.R(4*(kk*NQ+qb),4), D if (g >= 2*NQ or g & 1) else '0'), need=need))
                ops += oplist(fx[g])
        ops += ep(7) + [Op('s_barrier', need=['ALLV', 'ALLL'])]
        if LN2: ops += ['v_readlane_b32 s%d, v59, 63' % S_T0, 's_nop 0', 's_cmp_eq_u32 s%d, s%d' % (S_T0, S_SAME), 's_cselect_b32 s%d, %d, 0' % (S_SAME, 0 if self.cfg.get('forceslow') else 1)]
        tr.run('main', ops); tr.emit(a, 'main')
    def qprime6(self):
        a = self.a; NQ = self.NQ; n = self.n; T = self.V_T; cfg = self.cfg
        RA = 64; DD = 16; BA = 2; WA = 56; WS0 = 8; S_AP = S_T3; S_X = S_T1; S_QO = 60; S_QI = 61; S_QL = 62; S_QF = 63; S_J1 = 44
        PKF = 64
        T1L = cfg.get('t1l', 1); ND = 8 if T1L else 16
        NB = 6; NF = 16*NB; QLA = 16; st1 = cfg.get('stamp') and cfg.get('sthead') == 1; st2 = cfg.get('stamp') and cfg.get('sthead') == 2
        tr = self.tr0
        reg = lambda f: vr(128 + 4*(f % 16) if (f//16) % 2 == 0 or (f % 16) < 5 else 64 + 4*(f % 16), 4)
        def aload(f):
            o = [Op('buffer_load_dwordx4 %s, v%d, s[%d:%d], s%d offen offset:%d sc1' % (self.areg(f), self.V_L16, S_WS, S_WS+3, S_AP, (f%4)*1024), prod=('A', f))]
            if f == 31: return o, ['s_mov_b32 s%d, s%d' % (S_AP, S_J1)]
            return o, (['s_add_u32 s%d, s%d, 4096' % (S_AP, S_AP)] if f % 4 == 3 else [])
        self.areg = lambda f: vr(84 + 4*((f + 11) % 27), 4)
        ops = ['s_mov_b32 s%d, s6' % S_AP]
        for f in range(14, QLA):
            o, s_ = aload(f); ops += o + s_
        t = Asm(); h_frag_addr(t, BA, T); ops += t.lines + ['v_add_u32 v%d, %d, v%d' % (BA, L_ST, BA), 'v_add_u32 v%d, 0x10000, v%d' % (BA+1, BA)]
        def pos(g):
            G = g//(2*NQ); w = g % (2*NQ); return w//2, 2*G + ((w & 1) ^ ((w//2) & self.SN))
        def bread(g):
            qb, kk = pos(g); off = qb*16384 + kk*1024
            return Op('ds_read_b128 %s, v%d offset:%d' % (self.R(4*(kk*NQ+qb),4), BA + off//65536, off % 65536), prod=('B', g))
        PRE = 10
        ops += [Op('s_barrier', need=['ALLL'])] + [bread(g) for g in range(PRE)]
        t = Asm(); sv = self.a; self.a = t; self.tail_sgprs(); self.a = sv
        su = t.lines + ['s_lshl_b32 s%d, s%d, 17' % (S_J1, S_W), 's_add_u32 s%d, s%d, 0x%x' % (S_J1, S_J1, WS_MF + 32768),
              's_lshl_b32 s%d, s%d, 12' % (S_T2, S_W), 's_add_u32 s%d, s%d, %d' % (S_T2, S_T2, L_ST),
              'v_add_u32 v%d, s%d, v%d' % (WA, S_T2, self.V_L16), 'v_add_u32 v%d, 0x10000, v%d' % (WA+1, WA),
              's_mul_i32 s%d, s%d, 3072' % (S_T0, S_SP), 'v_add_u32 v%d, s%d, v%d' % (WS0, S_T0, WA), 'v_add_u32 v%d, s%d, v%d' % (WS0+1, S_T0, WA+1),
              's_sub_u32 s%d, s%d, s%d' % (S_QL, S_T2, S_T0), 's_add_u32 s%d, s%d, 3072' % (S_QL, S_QL),
              's_lshl_b32 s%d, s3, 2' % S_T0, 's_add_u32 s%d, s%d, s%d' % (S_T0, S_T0, S_W), 's_mul_i32 s%d, s%d, 5120' % (S_QO, S_T0), 's_add_u32 s%d, s%d, 0x%x' % (S_QO, S_QO, WS_QX),
              's_xor_b32 s%d, s%d, 8' % (S_T0, S_T0), 's_mul_i32 s%d, s%d, 5120' % (S_QI, S_T0), 's_add_u32 s%d, s%d, 0x%x' % (S_QI, S_QI, WS_QX),
              's_lshl_b32 s%d, s3, 7' % S_RET, 's_add_u32 s%d, s%d, 0x%x' % (S_QF, S_RET, WS_FLG + 128*FLG_Q), 's_add_u32 s%d, s%d, 0x%x' % (S_RET, S_RET, WS_FLG + 128*FLG_X),
              's_xor_b32 s%d, s%d, 256' % (S_T0, S_QF), 'v_mov_b32 v59, s%d' % S_T0,
              's_mul_i32 s%d, s%d, 50' % (S_T0, S_SP), 'v_min_u32 v58, 51, v0', 'v_add_u32 v58, s%d, v58' % S_T0, 'v_min_u32 v58, 0x63, v58',
              'v_lshl_add_u32 v58, v58, 1, s%d' % S_B, 'v_lshlrev_b32 v58, 7, v58', 'v_add_u32 v58, 0x%x, v58' % (WS_FLG + 128*FLG_X),
              'v_or_b32 v60, s%d, v0' % S_W, 'v_min_u32 v60, 1, v60', 'v_lshlrev_b32 v60, 30, v60', 'v_mov_b32 v61, s7', 'v_mov_b32 v62, -1',
              's_lshl_b32 s%d, s%d, %d' % (S_T2, S_W, 13 if T1L else 14), 's_add_u32 s%d, s%d, s%d' % (S_X, S_SRC, S_T2)]
        assert (WS_FLG + 128*FLG_Q) % 512 == 0
        ops += [x for x in su if x.startswith('s_') and False]
        def ep(i):
            o = []
            for qb in range(NQ):
                D = DD + 20*(i & 1) + 4*qb
                if i < 2: P = PKF + 4*qb + 2*i; off = qb*16384 + 8*i; wa = WS0
                else: P = 10 + 2*(qb % 3); off = qb*16384 + (i >> 1)*1024 + 8*(i & 1); wa = WA
                o += ['v_cvt_pk_bf16_f32 v%d, v%d, v%d' % (P, D, D+1), 'v_cvt_pk_bf16_f32 v%d, v%d, v%d' % (P+1, D+2, D+3),
                      'ds_write_b64 v%d, %s offset:%d' % (wa + off//65536, vr(P,2), off % 65536)]
                if i == 1:
                    if qb == 4: o.append('s_add_u32 s%d, s%d, 4096' % (S_QO, S_QO))
                    o.append(Op('buffer_store_dwordx4 %s, v%d, s[%d:%d], s%d offen offset:%d sc1' % (vr(PKF+4*qb,4), self.V_L16, S_WS, S_WS+3, S_QO, (qb % 4)*1024), prod='QST'))
            return o
        XB = cfg.get('q6x', (1, 72)); QB = cfg.get('q6q', (3, 22)); XP = cfg.get('q6xp', (3, 43)); XC = cfg.get('q6xc', (4, 1))
        QP = cfg.get('q6qp', (4, 33)); QC = cfg.get('q6qc', (5, 1)); D0 = cfg.get('q6d', 12 if T1L else 4)
        fl = lambda sreg: 'buffer_store_dword v61, v60, s[%d:%d], s%d offen sc1' % (S_WS, S_WS+3, sreg)
        nf = [QLA]
        for i in range(NB):
            if st1 and i in (0,1,2,4): ops.append(stamp_op({0:2,1:3,2:4,4:6}[i]))
            if st2 and i == 1: ops.append(stamp_op(8))
            fx = [[] for _ in range(n)]
            for G in range(8):
                for h in range(2):
                    gp = 2*NQ*G + 5*h
                    if nf[0] < NF:
                        o, s_ = aload(nf[0]); fx[gp] += o; fx[gp+1] += s_; nf[0] += 1
                    if i == 1 and h == 1 and G < cfg.get('q6r', 0):
                        o, s_ = aload(nf[0]); fx[gp+2] += o; fx[gp+3] += s_; nf[0] += 1
                    assert nf[0] - (16*i + 2*G) <= 27
                    d = 16*(i-4) + 2*G + h - D0
                    if 0 <= d < ND:
                        if d % 4 == 0: fx[gp+1] += ['s_add_u32 m0, s%d, %d' % (S_T2, d*1024), 's_add_u32 s%d, s%d, %d' % (S_T0, S_X, d*1024)]
                        fx[gp+2].append('buffer_load_dwordx4 v%d, s[%d:%d], s%d offen offset:%d sc1 lds' % (self.V_L16, S_WS, S_WS+3, S_T0, (d%4)*1024))
                nxt = 16*i + 2*G + 3
                if nxt < NF: fx[2*NQ*G + 8].append(Op(None, need=[('A', nxt)]))
            if i == 0:
                for g in range(n - PRE): fx[g].insert(0, bread(g+PRE))
            if i == 1: fx[2].append('s_barrier'); fx[3].append('ds_write_b32 v%d, v62' % self.V_FA)
            if i == XB[0]: fx[XB[1]].append(Op('s_barrier', need=['XST'])); fx[XB[1]+1].append(fl(S_RET))
            if i == QB[0]: fx[QB[1]].append(Op('s_barrier', need=['QST'])); fx[QB[1]+1].append(fl(S_QF))
            if i == XP[0]: fx[XP[1]].append(self.poll_load(58, 'XF'))
            if i == XC[0]: fx[XC[1]].append(Op('v_cmp_ne_u32 vcc, s7, v%d' % self.V_F, need=['XF'])); fx[XC[1]+2] += ['s_cbranch_vccnz L_spinX', 'L_okX:']
            if i == QP[0]: fx[QP[1]].append(self.poll_load(59, 'QF'))
            if i == QC[0]:
                fx[QC[1]].append(Op('v_cmp_ne_u32 vcc, s7, v%d' % self.V_F, need=['QF'])); fx[QC[1]+2] += ['s_cbranch_vccnz L_spinQ', 'L_okQ:']
                g0 = max(QC[1]+4, 5*(D0 + ND - 16*(i-4)))
                g0 += (-g0) % 5
                for qb in range(NQ):
                    fx[g0+5*qb-1] += ['s_add_u32 m0, s%d, %d' % (S_QL, qb*16384), 's_add_u32 s%d, s%d, %d' % (S_T0, S_QI, qb*1024)]
                    fx[g0+5*qb].append('buffer_load_dwordx4 v%d, s[%d:%d], s%d offen sc1 lds' % (self.V_L16, S_WS, S_WS+3, S_T0))
            fx = spread(fx, ep(i-1), n, 4) if i else spread(fx, su, n, 0, None, 2)
            for g in range(n):
                qb, kk = pos(g); D = vr(DD + 20*(i & 1) + 4*qb, 4)
                need = [('A', 16*i+kk)] + ([('B', g | 1)] if i == 0 else [])
                ops.append(Op('%s %s, %s, %s, %s' % (MF, D, self.areg(16*i+kk), self.R(4*(kk*NQ+qb),4), D if (g >= 2*NQ or g & 1) else '0'), need=need))
                ops += oplist(fx[g])
        ops += ep(NB-1) + [Op('s_barrier', need=['ALLV', 'ALLL'])]
        tr.run('main', ops); tr.emit(a, 'main')
    def gen_body(self):
        a = self.a; cfg = self.cfg; NQ = self.NQ; NS = self.NS; T = self.V_T
        a('s_and_b32 s%d, s3, 1', S_B); a('s_bfe_u32 s%d, s3, 0x10001', S_SP); a('s_lshr_b32 s%d, s3, 2', S_QT)
        a('s_mul_i32 s%d, s%d, %d', S_RB, S_QT, NQ); a('s_sub_u32 s%d, 249, s%d', S_NV, S_RB)
        a('s_mul_i32 s%d, s%d, 250', S_T0, S_B); a('s_add_u32 s%d, s%d, s%d', S_RB, S_RB, S_T0)
        per = cfg.get('per', 63)
        a('s_mul_i32 s%d, s%d, %d', S_T1, S_SP, per); a('s_sub_u32 s%d, 125, s%d', S_N, S_T1); a('s_min_u32 s%d, s%d, %d', S_N, S_N, per)
        a('s_mul_i32 s%d, s%d, 125', S_T0, S_B); a('s_add_u32 s%d, s%d, s%d', S_T1, S_T1, S_T0)
        a(('s_lshr_b32 s%d, s%d, 1' if cfg.get('roles', 0) else 's_and_b32 s%d, s%d, 1') % (S_J, S_W))
        a('s_lshl_b32 s%d, s%d, 15', S_SRC, S_T1); a('s_add_u32 s%d, s%d, s%d', S_T1, S_T1, S_N); a('s_lshl_b32 s%d, s%d, 15', S_END, S_T1)
        assert WS_XA == 0
        a('s_mov_b32 s%d, 0x%x', S_THR, f2u(2.0**cfg.get('thr', 40)))
        a('v_mov_b32 v%d, %d', self.V_FA, L_FLAG)
        a('s_lshl_b32 s%d, s%d, 2', S_T2, S_J); a('s_add_u32 s%d, s%d, %d', S_T2, S_T2, L_X); a('v_lshl_add_u32 v%d, v0, 3, s%d', self.V_XA, S_T2)
        if cfg.get('one', 1) and cfg.get('q6', 1): self.qprime6()
        else: self.qprime()
        if cfg.get('stamp'): stamp_mid(a, 7)
        self.T1L = cfg.get('one', 1) and cfg.get('q6', 1) and cfg.get('t1l', 1)
        a('s_lshl_b32 s%d, s%d, 14', S_DST, S_J); a('s_add_u32 s%d, s%d, %d', S_DST, S_DST, (1 if self.T1L else 2)*32768)
        a('s_add_u32 s%d, s%d, s%d', S_SRC, S_SRC, S_DST); a('s_mov_b32 s%d, s%d', S_SRCV, S_SRC)
        a('s_bitcmp1_b32 s%d, %d', S_W, 0 if cfg.get('roles', 0) else 1); a('s_cbranch_scc1 L_pv')
        sk = 65536 if self.T1L else 32768
        a('s_add_u32 s%d, s%d, %d', S_SRC, S_SRC, sk); a('s_add_u32 s%d, s%d, %d', S_DST, S_DST, sk); a('s_mov_b32 s%d, s%d', S_SRCV, S_SRC)
        self.qk_path()
        a.label('L_pv')
        self.pv_path()

DEFCFG = dict(NQ=5, NS=2, ringq=8, ringp=8, bq=4, fq=5, dq=6, bp=16, pw=2, dpend=50, laq=1, lap=5, dv=4, dp0=0, dqe=8, w32=0)
```

```python
from asmlib import *
from layout import *
from gen_k0 import srd, h_frag_addr
from gen_ln import *
MF='v_mfma_f32_16x16x32_bf16'
S_WS=8; S_W=20
C1 = 2*0.7978845608028654*1.4426950408889634; C2 = C1*0.044715
L_DW=81920; L_SX=92160; L_DUM=96256; L_XS=102400
NQ=5; n=80
def R(i, k=1): return ar(i, k) if i < 256 else vr(192 + i - 256, k)
def pos(g):
    G = g//10; w = g % 10; return w//2, 2*G + (w & 1)

class Conv:
    L16=1; HA=2; PA=4; GA=6; DA=11; XA=12; RS=17; SH=22; KC2=27; U0=28; U1=48; U2=68; DD=88; RA=128
    S_C=21; S_R0=22; S_TB=23; S_AP=24; S_CNT=25; S_T0=26; S_T1=27; S_T2=28; S_OUT=29; S_JMP=30; S_TILE=31
    S_PG=32; S_PU=33; S_PZ=34; S_M=36
    S_XP=42; S_XL=43; S_FL=44
    def __init__(self, a, cfg): self.a = a; self.cfg = cfg
    def aload(self, kk, blk):
        return Op('buffer_load_dwordx4 %s, v%d, s[%d:%d], s%d offen offset:%d' % (vr(self.RA+4*kk,4), self.L16, S_WS, S_WS+3, self.S_AP, (kk%4)*1024) + (' sc1' if self.cfg.get('lean', 1) else ''), prod=('A', blk, kk))
    def block(self, blk, par, stream=(), bread=None, jump=None, extra=None, g0=2, tail=()):
        fx = [[] for _ in range(n)]
        for G in range(8):
            for h in range(2):
                kk = (2*G + h - 2) % 16; gp = 10*G + 5*h
                fx[gp].append(self.aload(kk, blk if G == 0 else blk+1))
                if kk % 4 == 3:
                    fx[gp+1] += (jump if (kk == 15 and jump) else ['s_add_u32 s%d, s%d, 4096' % (self.S_AP, self.S_AP)])
            fx[10*G+8].append(Op(None, need=[('A', blk if G < 7 else blk+1, (2*G+3) % 16)]))
        if extra:
            for g, o in extra: fx[g] += oplist(o)
        ops = []
        PRE = 10
        if bread is not None:
            def rd(g):
                qb, kk = pos(g); off = qb*16384 + kk*1024
                return Op('ds_read_b128 %s, v%d offset:%d' % (R(4*(kk*NQ+qb),4), bread + off//65536, off % 65536), prod=('B', blk, g))
            ops += [rd(g) for g in range(PRE)]
            for g in range(n-PRE): fx[g].insert(0, rd(g+PRE))
        if stream: fx = spread(fx, stream, n, g0)
        for g in range(n):
            qb, kk = pos(g); D = vr(self.DD + 20*par + 4*qb, 4)
            need = [('A', blk, kk)] + ([('B', blk, g | 1)] if bread is not None else [])
            ops.append(Op('%s %s, %s, %s, %s' % (MF, D, vr(self.RA+4*kk,4), R(4*(kk*NQ+qb),4), D if kk else '0'), need=need))
            ops += oplist(fx[g])
        return ops + oplist(list(tail))
    def gelu(self, D, T):
        o = []
        for r in range(4): o.append('v_mul_f32 v%d, v%d, v%d' % (T+r, D+r, D+r))
        for r in range(4): o.append('v_fmaak_f32 v%d, v%d, v%d, 0x%x' % (T+r, self.KC2, T+r, f2u(-C1)))
        for r in range(4): o.append('v_mul_f32 v%d, v%d, v%d' % (T+r, T+r, D+r))
        for r in range(4): o.append('v_exp_f32 v%d, v%d' % (T+r, T+r))
        for r in range(4): o.append('v_add_f32 v%d, 1.0, v%d' % (T+r, T+r))
        for r in range(4): o.append('v_rcp_f32 v%d, v%d' % (T+r, T+r))
        for r in range(4): o.append('v_mul_f32 v%d, v%d, v%d' % (D+r, T+r, D+r))
        return o
    def adv_g(self, d): return ['v_add_u32 v%d, %d, v%d' % (self.GA+q, d, self.GA+q) for q in range(NQ)]
    def ep_g(self, t):
        o = []; PK = self.U0; S1 = self.U1; S2 = self.U2
        for qb in range(NQ):
            D = self.DD + 20*t + 4*qb; P = PK + 4*qb + 2*t
            o += self.gelu(D, self.RS)
            o += ['v_cvt_pk_bf16_f32 v%d, v%d, v%d' % (P, D, D+1), 'v_cvt_pk_bf16_f32 v%d, v%d, v%d' % (P+1, D+2, D+3),
                  'ds_write_b64 v%d, %s offset:%d' % (self.GA+qb, vr(P,2), 8*t)]
            if t:
                F = vr(PK+4*qb,4)
                o += ['v_add_u32 v%d, 1024, v%d' % (self.GA+qb, self.GA+qb),
                      '%s %s, %s, %s, %s' % (MF, vr(S1+4*qb,4), vr(self.XA,4), F, vr(S1+4*qb,4)),
                      '%s %s, %s, %s, %s' % (MF, vr(S2+4*qb,4), F, F, vr(S2+4*qb,4))]
        return o
    def ep_u(self, t, blk):
        GN = self.U0; DW = self.U1; RAW = self.U2; T = self.U2+10; CV = self.U2+14; PK = self.U2+18
        rd = [Op('ds_read_b64 %s, v%d offset:%d' % (vr(RAW+2*q,2), self.GA+q, 8*t), prod=('G', blk, q)) for q in range(NQ)]
        rd += [Op('ds_read_b128 %s, v%d offset:%d' % (vr(DW+4*k,4), self.DA, k*2048 + 16*t), prod=('DW', blk, k)) for k in range(5)]
        g0 = self.gelu(self.DD + 20*t, T)
        o = []
        for i, x in enumerate(rd): o += [x] + g0[2*i:2*i+2]
        o += g0[20:]
        o.append(Op(None, need=[('DW', blk, 4)]))
        for q in range(NQ):
            for h in range(2):
                o += ['v_lshlrev_b32 v%d, 16, v%d' % (GN+4*q+2*h, RAW+2*q+h), 'v_and_b32 v%d, s%d, v%d' % (GN+4*q+2*h+1, self.S_T2, RAW+2*q+h)]
            for r in range(4): o.append('v_fma_f32 v%d, v%d, v%d, v%d' % (GN+4*q+r, GN+4*q+r, self.RS+q, self.SH+q))
        for qb in range(NQ):
            D = self.DD + 20*t + 4*qb
            if qb: o += self.gelu(D, T)
            for r in range(4): o.append('v_mul_f32 v%d, v%d, v%d' % (CV+r, GN+4*qb+r, DW+8+r))
            for k in (3, 4, 1, 0):
                q2 = qb + k - 2; dpp = ''
                if q2 < 0: q2 += 5; dpp = ' row_shr:1 row_mask:0xf bank_mask:0xf bound_ctrl:0'
                elif q2 > 4: q2 -= 5; dpp = ' row_shl:1 row_mask:0xf bank_mask:0xf bound_ctrl:0'
                for r in range(4): o.append('v_fmac_f32%s v%d, v%d, v%d%s' % ('_dpp' if dpp else '', CV+r, GN+4*q2+r, DW+4*k+r, dpp))
            for r in range(4): o.append('v_mul_f32 v%d, v%d, v%d' % (CV+r, CV+r, D+r))
            o += ['v_cvt_pk_bf16_f32 v%d, v%d, v%d' % (PK, CV, CV+1), 'v_cvt_pk_bf16_f32 v%d, v%d, v%d' % (PK+1, CV+2, CV+3),
                  'ds_write_b64 v%d, %s offset:%d' % (self.GA+qb, vr(PK,2), 8*t)]
            if t: o.append('v_add_u32 v%d, 1024, v%d' % (self.GA+qb, self.GA+qb))
        if t: o.append('v_add_u32 v%d, 128, v%d' % (self.DA, self.DA))
        return o
    def xdma(self, tag):
        o = []
        for q in range(NQ):
            o += ['s_add_u32 m0, s%d, %d' % (self.S_XL, q*1024)] + (['s_nop 0'] if q == 0 else []) + [Op('buffer_load_dwordx4 v%d, s[16:19], s%d offen lds' % (self.RS+q, self.S_XP), prod=('XD', tag))]
        return o + ['s_add_u32 s%d, s%d, 64' % (self.S_XP, self.S_XP)]
    def ep_z(self, t, tag=None, nxt=None):
        o = []; PK = self.U0; OA = self.U1; XF = self.U2; T = self.U1+8; fuse = self.cfg.get('fuse3', 1)
        if fuse and t == 0:
            o += [Op('ds_read_b128 %s, v%d offset:%d' % (vr(XF+4*q,4), self.SH, q*1024), prod=('XF', tag, q), need=[('XD', tag)] if q == 0 else []) for q in range(NQ)]
        if fuse and t == 1 and nxt is not None: o += self.xdma(nxt)
        for qb in range(NQ):
            D = self.DD + 20*t + 4*qb; P = PK + 4*qb + 2*t
            if fuse:
                for h in range(2):
                    o += [Op('v_lshlrev_b32 v%d, 16, v%d' % (T+2*h, XF+4*qb+2*t+h), need=[('XF', tag, 4)] if (t == 0 and qb == 0 and h == 0) else []),
                          'v_and_b32 v%d, s%d, v%d' % (T+2*h+1, self.S_T2, XF+4*qb+2*t+h)]
                for r in range(4): o.append('v_add_f32 v%d, v%d, v%d' % (D+r, D+r, T+r))
            o += ['v_cvt_pk_bf16_f32 v%d, v%d, v%d' % (P, D, D+1), 'v_cvt_pk_bf16_f32 v%d, v%d, v%d' % (P+1, D+2, D+3)]
            if t: o.append(Op('buffer_store_dwordx4 %s, v%d, s[%d:%d], s%d offen%s' % (vr(PK+4*qb,4), OA+qb, S_WS, S_WS+3, self.S_OUT, ' sc1' if (fuse or self.cfg.get('scb', 0)) else ''), prod='BST'))
        if t: o.append('s_add_u32 s%d, s%d, 1024' % (self.S_OUT, self.S_OUT))
        return o
    def x_addr(self):
        T = self.U1+8
        o = ['v_lshrrev_b32 v%d, 2, v0' % T, 'v_add_u32 v%d, s%d, v%d' % (T, self.S_R0, T),
             'v_lshrrev_b32 v%d, 4, v0' % (T+1), 'v_sub_u32 v%d, 0, v%d' % (T+1, T+1), 'v_xor_b32 v%d, v%d, v0' % (T+1, T+1),
             'v_and_b32 v%d, 3, v%d' % (T+1, T+1), 'v_lshlrev_b32 v%d, 4, v%d' % (T+1, T+1), 'v_add_u32 v%d, s%d, v%d' % (self.SH, self.S_XL, self.HA),
             's_lshl_b32 s%d, s%d, 10' % (self.S_XP, self.S_TB), 's_lshr_b32 s%d, s%d, 4' % (self.S_JMP, self.S_T1), 's_add_u32 s%d, s%d, s%d' % (self.S_XP, self.S_XP, self.S_JMP)]
        for q in range(NQ):
            o += ['v_add_u32 v%d, %d, v%d' % (T+2, 16*q, T), 'v_max_i32 v%d, 0, v%d' % (T+2, T+2), 'v_min_i32 v%d, 0xf9f, v%d' % (T+2, T+2),
                  'v_lshl_add_u32 v%d, v%d, 10, v%d' % (self.RS+q, T+2, T+1)]
        return o
    def flag_store(self):
        T = self.RS
        return ['v_or_b32 v%d, s%d, v0' % (T, S_W), 'v_min_u32 v%d, 1, v%d' % (T, T), 'v_lshlrev_b32 v%d, 30, v%d' % (T, T), 'v_mov_b32 v%d, s7' % (T+1), 'buffer_store_dword v%d, v%d, s[%d:%d], s%d offen sc1' % (T+1, T, S_WS, S_WS+3, self.S_FL)]
    def stage_addr(self, sbase):
        o = []; T = self.U2
        o += ['v_lshrrev_b32 v%d, 2, v0' % T, 'v_mul_u32_u24 v%d, 5, v%d' % (T, T), 'v_add_u32 v%d, s%d, v%d' % (T, self.S_R0, T),
              'v_lshrrev_b32 v%d, 4, v0' % (T+1), 'v_sub_u32 v%d, 0, v%d' % (T+1, T+1), 'v_xor_b32 v%d, v%d, v0' % (T+1, T+1)]
        for q in range(NQ):
            X = self.XA+q
            o += ['v_add_u32 v%d, %d, v%d' % (T+2, q, T), 'v_max_i32 v%d, 0, v%d' % (T+2, T+2), 'v_min_i32 v%d, 0xf9f, v%d' % (T+2, T+2),
                  'v_add_u32 v%d, s%d, v%d' % (T+2, sbase, T+2),
                  'v_lshrrev_b32 v%d, 2, v%d' % (T+3, T+2), 'v_sub_u32 v%d, 0, v%d' % (T+3, T+3), 'v_xor_b32 v%d, v%d, v%d' % (T+3, T+3, T+1),
                  'v_and_b32 v%d, 3, v%d' % (T+3, T+3), 'v_lshlrev_b32 v%d, 4, v%d' % (T+3, T+3),
                  'v_and_b32 v%d, 15, v%d' % (X, T+2), 'v_lshl_add_u32 v%d, v%d, 6, v%d' % (T+3, X, T+3),
                  'v_lshrrev_b32 v%d, 4, v%d' % (X, T+2), 'v_lshl_add_u32 v%d, v%d, 14, v%d' % (X, X, T+3)]
        return o
    def stage_dma(self, tag):
        g = []
        for q in range(NQ):
            for k in range(4):
                pre = ['s_add_u32 m0, s%d, %d' % (self.S_T1, q*16384)] if k == 0 else []
                g.append((pre, Op('buffer_load_dwordx4 v%d, s[%d:%d], s%d offen offset:%d%s lds' % (self.XA+q, S_WS, S_WS+3, self.S_T0, k*1024, ' sc1' if self.cfg.get('ln2', 1) else ''), prod=tag)))
        return g
    def out_addr(self):
        o = []; T = self.U2+8; OA = self.U1
        o += ['v_and_b32 v%d, 15, v0' % T, 'v_lshrrev_b32 v%d, 4, v0' % (T+1), 'v_lshlrev_b32 v%d, 8, v%d' % (T+1, T+1), 'v_mov_b32 v%d, 0x40000000' % (T+4)]
        for q in range(NQ):
            o += ['v_add_u32 v%d, %d, v%d' % (T+2, 16*q, T), 'v_add_u32 v%d, s%d, v%d' % (T+3, self.S_R0, T+2),
                  'v_add_u32 v%d, -2, v%d' % (T+2, T+2), 'v_cmp_gt_u32 vcc, 76, v%d' % (T+2),
                  'v_cndmask_b32 v%d, v%d, v%d, vcc' % (T+3, T+4, T+3), 'v_cmp_gt_u32 vcc, 0xfa0, v%d' % (T+3),
                  'v_add_u32 v%d, s%d, v%d' % (T+3, self.S_TB, T+3), 'v_and_b32 v%d, 15, v%d' % (T+2, T+3),
                  'v_lshl_add_u32 v%d, v%d, 4, v%d' % (T+2, T+2, T+1), 'v_lshrrev_b32 v%d, 4, v%d' % (T+3, T+3),
                  'v_lshl_add_u32 v%d, v%d, 14, v%d' % (T+2, T+3, T+2), 'v_cndmask_b32 v%d, v%d, v%d, vcc' % (OA+q, T+4, T+2)]
            o.insert(len(o)-8, 's_nop 1')
        return o
    def stats(self, tile):
        S1 = self.U1; S2 = self.U2; T = self.U0; M = self.S_M
        o = ['s_nop 7']
        o += ['v_and_b32 v%d, 15, v0' % T, 'v_lshrrev_b32 v%d, 2, v%d' % (T+1, T), 'v_lshrrev_b32 v%d, 4, v0' % (T+2),
              'v_cmp_eq_u32 vcc, v%d, v%d' % (T+1, T+2), 'v_lshlrev_b32 v%d, 5, v%d' % (T+1, T), 'v_add_u32 v%d, %d, v%d' % (T+1, L_SX, T+1),
              's_lshl_b32 s%d, s%d, 3' % (self.S_T0, S_W), 'v_add_u32 v%d, s%d, v%d' % (T+2, self.S_T0, T+1), 'v_mov_b32 v%d, %d' % (T+3, L_DUM),
              'v_cndmask_b32 v%d, v%d, v%d, vcc' % (T+2, T+3, T+2)]
        for q in range(NQ):
            d = S1+4*q+1
            o += ['v_cndmask_b32 v%d, v%d, v%d, s[%d:%d]' % (d, S2+4*q, S2+4*q+1, M, M+1),
                  'v_cndmask_b32 v%d, v%d, v%d, s[%d:%d]' % (d, d, S2+4*q+2, M+2, M+3),
                  'v_cndmask_b32 v%d, v%d, v%d, s[%d:%d]' % (d, d, S2+4*q+3, M+4, M+5),
                  'ds_write_b64 v%d, %s offset:%d' % (T+2, vr(S1+4*q,2), q*512)]
        o.append(Op('s_barrier', need=['ALLL']))
        for q in range(NQ):
            o += [Op('ds_read_b128 %s, v%d offset:%d' % (vr(S1+4*q,4), T+1, q*512), prod=('SA', tile, q)),
                  Op('ds_read_b128 %s, v%d offset:%d' % (vr(S2+4*q,4), T+1, q*512+16), prod=('SB', tile, q))]
        o += self.adv_g(-4096)
        o += ['v_mul_u32_u24 v%d, 5, v%d' % (T, T), 'v_add_u32 v%d, s%d, v%d' % (T, self.S_R0, T), 'v_mov_b32 v%d, 0x%x' % (T+4, f2u(1e-5))]
        for q in range(NQ):
            A = S1+4*q; B = S2+4*q
            o += [Op('v_add_f32 v%d, v%d, v%d' % (A, A, A+2), need=[('SB', tile, q)]), 'v_add_f32 v%d, v%d, v%d' % (B, B, B+2),
                  'v_add_f32 v%d, v%d, v%d' % (A+1, A+1, A+3), 'v_add_f32 v%d, v%d, v%d' % (B+1, B+1, B+3),
                  'v_add_f32 v%d, v%d, v%d' % (A, A, B), 'v_add_f32 v%d, v%d, v%d' % (A+1, A+1, B+1),
                  'v_mul_f32 v%d, 0x%x, v%d' % (A, f2u(1/512.), A), 'v_mul_f32 v%d, 0x%x, v%d' % (A+1, f2u(1/512.), A+1),
                  'v_fma_f32 v%d, -v%d, v%d, v%d' % (A+1, A, A, A+1), 'v_max_f32 v%d, 0, v%d' % (A+1, A+1), 'v_add_f32 v%d, v%d, v%d' % (A+1, T+4, A+1),
                  'v_add_u32 v%d, %d, v%d' % (T+2, q, T), 'v_cmp_gt_u32 vcc, 0xfa0, v%d' % (T+2), 'v_rsq_f32 v%d, v%d' % (A+1, A+1), 's_nop 0',
                  'v_cndmask_b32 v%d, 0, v%d, vcc' % (self.RS+q, A+1), 'v_mul_f32 v%d, v%d, v%d' % (A, A, self.RS+q), 'v_sub_f32 v%d, 0, v%d' % (self.SH+q, A)]
        return o
    def gen(self):
        a = self.a; cfg = self.cfg; T = self.U2
        ONE = cfg.get('one', 1)
        tr = self.tr0 if ONE else Trace()
        S = self
        pre = ['s_sub_u32 s%d, s3, 200' % S.S_C, 's_mul_i32 s%d, s%d, 76' % (S.S_R0, S.S_C), 's_sub_u32 s%d, s%d, 2' % (S.S_R0, S.S_R0),
               's_mov_b32 s%d, 0' % S.S_TB, 's_mov_b32 s%d, 0' % S.S_TILE, 's_lshl_b32 s%d, s%d, 12' % (S.S_T1, S_W), 's_mov_b32 s%d, s%d' % (S.S_T0, S.S_T1)]
        pre += ['s_mul_i32 s%d, s%d, 5120' % (S.S_XL, S_W), 's_add_u32 s%d, s%d, %d' % (S.S_XL, S.S_XL, L_XS), 's_mov_b32 s%d, 0x%x' % (S.S_FL, WS_SIZE)]
        LN2 = cfg.get('ln2', 1); Xs = [192, 208, 224, 240, 112]
        if ONE: pass
        elif LN2:
            pre += ln_lane_addr(S.XA, S.XA+1, S_W, 5) + ['s_lshl_b32 s%d, s%d, 10' % (S.S_JMP, S.S_R0), 'v_add_u32 v%d, s%d, v%d' % (S.XA, S.S_JMP, S.XA)]
            for q in range(5):
                if q: pre.append('v_add_u32 v%d, %d, v%d' % (S.XA+q, 1024*q, S.XA))
                for k in range(4): pre.append(Op('buffer_load_dwordx4 %s, v%d, s[16:19], 0 offen offset:%d' % (vr(Xs[q]+4*k,4), S.XA+q, k*256), prod=(('X', q), k)))
        else:
            pre += S.stage_addr(S.S_TB)
            for p, o in S.stage_dma(('XS', 0)): pre += p + (['s_nop 0'] if p else []) + [o]
        pre += ['s_lshl_b32 s%d, s%d, 17' % (S.S_PU, S_W), 's_add_u32 s%d, s%d, 0x%x' % (S.S_PZ, S.S_PU, WS_WDMF),
                's_add_u32 s%d, s%d, 0x%x' % (S.S_PU, S.S_PU, WS_WUPF), 's_add_u32 s%d, s%d, 0x80000' % (S.S_PG, S.S_PU), 's_mov_b32 s%d, s%d' % (S.S_AP, 6 if ONE else S.S_PG)]
        pre += ['s_lshl_b32 s%d, s%d, 8' % (S.S_T2, S_W), 'v_lshl_add_u32 v%d, v0, 2, s%d' % (T, S.S_T2)]
        for k in range(5): pre.append(Op('buffer_load_dword v%d, v%d, s[12:15], %s offen offset:%d' % (S.U0+k, T, '0' if k < 4 else 's%d' % S.S_JMP, (k%4)*1024), prod=('DWL', k)))
        pre.insert(len(pre)-5, 's_mov_b32 s%d, 4096' % S.S_JMP)
        LNB = LN2 and cfg.get('lnb', 1); ex = [[] for _ in range(5)]
        for kk in range(0 if ONE else 14):
            dst = ex[kk//3] if LNB else pre
            dst.append(S.aload(kk, 0))
            if kk % 4 == 3: dst.append('s_add_u32 s%d, s%d, 4096' % (S.S_AP, S.S_AP))
        pre += ['v_lshlrev_b32 v%d, 1, v%d' % (T, T), 'v_add_u32 v%d, %d, v%d' % (T, L_DW, T), 's_mov_b32 s%d, 0xffff0000' % S.S_T2]
        tmp = Asm(); h_frag_addr(tmp, S.HA, T+1); pre += tmp.lines
        pre += ['v_add_u32 v%d, 0x10000, v%d' % (S.HA+1, S.HA), 'v_mov_b32 v%d, v%d' % (S.PA, S.L16), 'v_add_u32 v%d, 0x10000, v%d' % (S.PA+1, S.L16),
                'v_mov_b32 v%d, 0x%x' % (S.KC2, f2u(-C2))]
        pre += ['v_and_b32 v%d, 15, v0' % (T+1), 'v_mul_u32_u24 v%d, 5, v%d' % (T+1, T+1), 'v_lshrrev_b32 v%d, 4, v0' % (T+2),
                'v_lshl_add_u32 v%d, v%d, 8, s%d' % (T+3, T+2, S.S_T1), 's_lshr_b32 s%d, s%d, 3' % (S.S_JMP, S.S_T1), 's_add_u32 s%d, s%d, %d' % (S.S_JMP, S.S_JMP, L_DW),
                'v_lshl_add_u32 v%d, v%d, 5, s%d' % (S.DA, T+2, S.S_JMP)]
        for q in range(NQ):
            pre += ['v_add_u32 v%d, %d, v%d' % (T+2, q, T+1), 'v_and_b32 v%d, 15, v%d' % (T+4, T+2), 'v_lshl_add_u32 v%d, v%d, 4, v%d' % (T+4, T+4, T+3),
                    'v_lshrrev_b32 v%d, 4, v%d' % (T+2, T+2), 'v_lshl_add_u32 v%d, v%d, 14, v%d' % (S.GA+q, T+2, T+4)]
        pre += ['v_and_b32 v%d, 3, v0' % (T+1)] + ['v_cmp_eq_u32 s[%d:%d], %d, v%d' % (S.S_M+2*i, S.S_M+2*i+1, i+1, T+1) for i in range(3)]
        dwo = []
        for k in range(5):
            dwo += [Op('v_lshlrev_b32 v%d, 16, v%d' % (S.U1+2*k, S.U0+k), need=[('DWL', k)]), 'v_and_b32 v%d, s%d, v%d' % (S.U1+2*k+1, S.S_T2, S.U0+k),
                    'ds_write_b64 v%d, %s offset:%d' % (T, vr(S.U1+2*k,2), k*2048)]
        if ONE or not LNB: pre += dwo
        if LN2 and not ONE:
            pre += ln_h_addr(S.XA, S.XA+1, S_W) + ['v_add_u32 v%d, 0x10000, v%d' % (S.XA+1, S.XA)]
            def wr(q, k, reg):
                off = q*16384 + k*4096
                return [Op('ds_write_b128 v%d, %s offset:%d' % (S.XA + off//65536, vr(reg,4), off % 65536), prod=('XS', 0))]
            pre += (ln80b(Xs, 76, 60, 'X', S.S_T2, 66, wr, ex) + oplist(dwo)) if LNB else ln80(Xs, [28, 60], [92, 98], 'X', S.S_T2, wr)
        tr.run('pre', pre)
        sel = lambda tgt: ['s_add_u32 s%d, s%d, 4096' % (S.S_AP, S.S_AP), 's_cmp_eq_u32 s%d, 3' % S.S_CNT, 's_cselect_b32 s%d, s%d, s%d' % (S.S_AP, tgt, S.S_AP)]
        blk = 0; fuse = cfg.get('fuse3', 1)
        for tile in range(2):
            init = ['v_mov_b32 v%d, 0x3f803f80' % (S.XA+r) for r in range(4)] + ['v_mov_b32 v%d, 0' % (S.U1+r) for r in range(40)]
            tr.run('g0', [Op('s_barrier', need=[('XS', tile), 'ALLL']), 's_mov_b32 s%d, 0' % S.S_CNT] + S.block(blk, 0, stream=init, bread=S.HA, tail=[Op('s_barrier', need=['ALLV'] if fuse else [])] + (S.flag_store() if fuse else []))); blk += 1
            for it in range(4):
                tr.run('g1', S.block(blk, 1, stream=S.ep_g(0), jump=sel(S.S_PU))); blk += 1
                tr.run('g2', S.block(blk, 0, stream=S.ep_g(1), tail=['s_add_u32 s%d, s%d, 1' % (S.S_CNT, S.S_CNT), 's_cmp_lt_u32 s%d, 4' % S.S_CNT])); blk += 1
            pf = []
            if fuse and cfg.get('xpf', 1):
                pf = ['s_max_i32 s%d, s%d, 0' % (S.S_XP, S.S_R0), 's_add_u32 s%d, s%d, s%d' % (S.S_XP, S.S_XP, S.S_TB), 's_lshl_b32 s%d, s%d, 10' % (S.S_XP, S.S_XP),
                      's_mul_i32 s%d, s%d, 5' % (S.S_JMP, S.S_T1), 's_add_u32 s%d, s%d, s%d' % (S.S_XP, S.S_XP, S.S_JMP), 'v_lshlrev_b32 v%d, 7, v0' % S.XA]
                for i in range(3): pf += ['buffer_load_dword v%d, v%d, s[16:19], s%d offen' % (S.XA+1+i, S.XA, S.S_XP), 's_add_u32 s%d, s%d, %d' % (S.S_XP, S.S_XP, 8192 if i == 0 else 4096)]
            if cfg.get('lean', 1):
                pf = pf + ['v_and_b32 v%d, 3, v0' % (S.XA+4), 'v_min_u32 v%d, 2, v%d' % (S.XA+4, S.XA+4), 'v_lshlrev_b32 v%d, 7, v%d' % (S.XA+4, S.XA+4),
                           'v_add_u32 v%d, 0x%x, v%d' % (S.XA+4, WS_FLG + 128*FLG_D, S.XA+4)]
                if LN2:
                    t = S.RS
                    pf += ['s_max_i32 s%d, s%d, 0' % (S.S_JMP, S.S_R0), 's_mul_i32 s%d, s%d, 52429' % (S.S_JMP, S.S_JMP), 's_lshr_b32 s%d, s%d, 22' % (S.S_JMP, S.S_JMP),
                           's_lshl_b32 s%d, s%d, 1' % (S.S_JMP, S.S_JMP), 'v_and_b32 v%d, 3, v0' % t, 'v_add_u32 v%d, s%d, v%d' % (t, S.S_JMP, t), 'v_min_u32 v%d, 0x63, v%d' % (t, t),
                           'v_lshlrev_b32 v%d, 8, v%d' % (t, t), 'v_add_u32 v%d, 0x%x, v%d' % (t, WS_FLG + 128*(FLG_X+1), t),
                           'v_and_b32 v%d, 4, v0' % (t+1), 'v_cmp_eq_u32 vcc, 0, v%d' % (t+1), 's_nop 1', 'v_cndmask_b32 v%d, v%d, v%d, vcc' % (S.XA+4, t, S.XA+4)]
                    if cfg.get('dm0', 0): pf.append('v_mov_b32 v%d, v%d' % (S.XA+4, t))
            tr.run('stats', ['s_nop 7'] + pf + S.stats(tile) + ['s_mov_b32 s%d, 0' % S.S_CNT])
            for it in range(4):
                tr.run('u1', S.block(blk, 1, stream=S.ep_u(0, blk), jump=sel(S.S_PZ), g0=1, tail=['s_cmp_eq_u32 s%d, 3' % S.S_CNT])); blk += 1
                if it < 3:
                    tl = ['s_add_u32 s%d, s%d, 1' % (S.S_CNT, S.S_CNT)]; ex = None
                    if cfg.get('lean', 1):
                        ex = [(2, [Op('buffer_load_dword v%d, v%d, s[%d:%d], 0 offen sc1' % (S.XA+1, S.XA+4, S_WS, S_WS+3), prod=('DF', blk))])]
                        tl = [Op('v_cmp_ne_u32 vcc, s7, v%d' % (S.XA+1), need=[('DF', blk)])] + tl + ['s_cmp_eq_u32 s%d, 3' % S.S_CNT, 's_cselect_b64 vcc, vcc, 0', 's_cbranch_vccnz L_c_spin']
                    tr.run('u2', S.block(blk, 0, stream=S.ep_u(1, blk), g0=1, extra=ex, tail=tl)); blk += 1
            tr.run('u3', S.ep_u(1, ('e', tile)) + S.adv_g(-4096) + ['v_add_u32 v%d, -512, v%d' % (S.DA, S.DA)] + (S.x_addr() + [x for o in S.xdma((tile, 0)) for x in ([o, 's_nop 0'] if isinstance(o, str) else [o])] if fuse else []))
            z0s = S.out_addr() + ['s_mov_b32 s%d, 4000' % S.S_JMP] + S.stage_addr(S.S_JMP)
            tr.run('z0', [Op('s_barrier', need=['ALLL']), 's_mov_b32 s%d, 0' % S.S_CNT, 's_add_u32 s%d, s%d, 0x%x' % (S.S_OUT, S.S_T1, WS_BASE),
                          's_cmp_eq_u32 s%d, 0' % S.S_TILE, 's_cselect_b32 s%d, s%d, 0x%x' % (S.S_T0, S.S_T1, WS_SIZE)]
                   + S.block(blk, 0, stream=z0s, bread=S.PA, tail=['s_barrier'])); blk += 1
            dm = S.stage_dma(('XS', tile+1))
            ex = []
            for i, (p, o) in enumerate(dm):
                gp = [2, 7, 13][i % 3] + 10*(i//3) if False else 3 + 4*i - (1 if (3+4*i) % 5 == 0 else 0)
                gp = min(gp, 79)
                if p: ex.append((gp-1, p))
                ex.append((gp, [o]))
            tr.run('z1a', S.block(blk, 1, stream=S.ep_z(0, (tile, 0)), extra=ex)); blk += 1
            for it in range(3):
                tr.run('z2', S.block(blk, 0, stream=S.ep_z(1, None, (tile, it+1)), tail=['s_add_u32 s%d, s%d, 1' % (S.S_CNT, S.S_CNT)])); blk += 1
                tr.run('z1', S.block(blk, 1, stream=S.ep_z(0, (tile, it+1)), jump=sel(S.S_PG), tail=['s_cmp_lt_u32 s%d, 3' % S.S_CNT])); blk += 1
            tr.run('z3', ['s_nop 1'] + S.ep_z(1) + ['s_mul_i32 s%d, s%d, 53' % (S.S_FL, S.S_TILE), 's_add_u32 s%d, s%d, s%d' % (S.S_FL, S.S_FL, S.S_C), 's_lshl_b32 s%d, s%d, 7' % (S.S_FL, S.S_FL), 's_add_u32 s%d, s%d, 0x%x' % (S.S_FL, S.S_FL, WS_FLG + 128*FLG_C),
                                                   's_mov_b32 s%d, 4000' % S.S_TB, 's_add_u32 s%d, s%d, 1' % (S.S_TILE, S.S_TILE), 's_cmp_lt_u32 s%d, 2' % S.S_TILE])
        def E(k, st=None):
            if st and cfg.get('stamp') and cfg.get('sthead') != 2:
                a('s_cmp_eq_u32 s%d, 0', S.S_TILE); a('s_cbranch_scc0 L_c_s%da', st); stamp_mid(a, st); a('s_branch L_c_s%db', st)
                a.label('L_c_s%da' % st); stamp_mid(a, st+5); a.label('L_c_s%db' % st)
            tr.emit(a, k)
        E('pre')
        a.label('L_c_tile'); E('g0', 1)
        a.label('L_c_g'); E('g1'); E('g2'); a('s_cbranch_scc1 L_c_g')
        E('stats', 2)
        a.label('L_c_u'); E('u1'); a('s_cbranch_scc1 L_c_u3'); E('u2'); a('s_branch L_c_u')
        a.label('L_c_u3'); E('u3', 3); E('z0', 4); E('z1a', 5)
        a.label('L_c_z'); E('z2'); E('z1'); a('s_cbranch_scc1 L_c_z')
        E('z3')
        a('s_cbranch_scc1 L_c_tile')
        if fuse:
            a('s_waitcnt vmcnt(0)'); a('s_barrier')
            for x in S.flag_store(): a(x)
        a('s_branch L_k2_fin')
        if cfg.get('lean', 1):
            a.label('L_c_spin'); a('s_mov_b32 s%d, 0', S.S_JMP)
            a.label('L_c_spin_l')
            a('buffer_load_dword v%d, v%d, s[%d:%d], 0 offen sc1', S.XA+1, S.XA+4, S_WS, S_WS+3); a('s_waitcnt vmcnt(0)')
            a('v_cmp_ne_u32 vcc, s7, v%d', S.XA+1); a('s_cbranch_vccz L_c_u')
            a('s_add_u32 s%d, s%d, 1', S.S_JMP, S.S_JMP); a('s_cmp_lt_u32 s%d, 0x40000', S.S_JMP); a('s_cbranch_scc1 L_c_spin_l')
            a('s_branch L_c_u')

def gen_wvo(a, cfg):
    tr = Trace(); o = []
    o += ['s_sub_u32 s21, s3, 253', 's_lshl_b32 s21, s21, 2', 's_add_u32 s21, s21, s20', 's_lshl_b32 s22, s21, 16',
          'v_and_b32 v2, 15, v0', 'v_lshlrev_b32 v2, 10, v2', 'v_lshrrev_b32 v3, 4, v0', 'v_lshl_add_u32 v2, v3, 4, v2',
          's_mov_b32 s24, 0x%x' % WS_T1F, 's_lshl_b32 s25, s21, 11', 's_add_u32 s25, s25, 0x%x' % WS_WVOF, 's_mov_b32 s26, 0']
    for rb in range(4):
        for e in range(16):
            o.append(Op('buffer_load_dwordx4 %s, v2, s[12:15], s22 offen offset:%d' % (ar(64*rb+4*e,4), e*64), need=['ALLV'] if (rb, e) in ((2, 0), (3, 8)) else []))
        o.append('s_add_u32 s22, s22, 16384')
    def bl(par, nb):
        r = []
        for e in range(16):
            r.append(Op('buffer_load_dwordx4 %s, v1, s[8:11], s24 offen offset:%d' % (vr(64+64*par+4*e,4), (e%4)*1024), prod=('B', nb, e)))
            if e % 4 == 3: r.append('s_add_u32 s24, s24, 4096')
        return r
    o += bl(0, 0)
    tr.run('pre', o)
    for nb in range(32):
        par = nb & 1; o = bl(par ^ 1, nb+1)
        for e in range(16):
            for rb in range(4):
                D = vr(16+4*rb,4)
                o.append(Op('%s %s, %s, %s, %s' % (MF, D, ar(64*rb+4*e,4), vr(64+64*par+4*e,4), D if e else '0'), need=[('B', nb, e | 3)]))
        o.append('s_nop 7')
        P = 32 + 8*par
        for r in range(8): o.append('v_cvt_pk_bf16_f32 v%d, v%d, v%d' % (P+r, 16+2*r, 17+2*r))
        o += ['buffer_store_dwordx4 %s, v1, s[8:11], s25 offen sc1' % vr(P,4), 'buffer_store_dwordx4 %s, v1, s[8:11], s25 offen offset:1024 sc1' % vr(P+4,4), 's_add_u32 s25, s25, 16384']
        if par: o += ['s_add_u32 s26, s26, 1', 's_cmp_lt_u32 s26, 16']
        tr.run('b%d' % par, o)
    tr.emit(a, 'pre'); a.label('L_wvo'); tr.emit(a, 'b0'); tr.emit(a, 'b1'); a('s_cbranch_scc1 L_wvo')
    if cfg.get('fuse3', 1):
        a('s_waitcnt vmcnt(0)'); a('s_barrier')
        a('s_lshl_b32 s22, s3, 7'); a('s_add_u32 s22, s22, 0x%x', WS_FLG + 128*(FLG_W-253)); a('v_mov_b32 v2, 0'); a('v_mov_b32 v3, s7')
        a('buffer_store_dword v3, v2, s[8:11], s22 offen sc1')
    a('s_branch L_k2_fin')

def gen_spare(a, cfg):
    RA = 64; DD = 16; PK = 96; n = 96; PD = cfg.get('spd', 2)
    WL = cfg.get('wl', 1) and cfg.get('hyb', 1) and cfg.get('one', 1)
    S_P = 21; S_IT = 22; S_A0 = 23; S_A1 = 24; S_TS = 25; S_OUT = 26; S_LD = 30; S_T = 31; S_NB = 32; S_FL = 33; S_B = 34
    a('v_lshrrev_b32 v2, 4, v0'); a('v_sub_u32 v3, 0, v2'); a('v_xor_b32 v3, v3, v0'); a('v_and_b32 v3, 3, v3'); a('v_lshlrev_b32 v3, 4, v3')
    a('v_lshl_add_u32 v4, v2, 13, v3'); a('v_bfe_u32 v5, v0, 2, 2'); a('v_lshl_add_u32 v4, v5, 10, v4')
    a('v_lshrrev_b32 v5, 2, v0'); a('v_lshl_add_u32 v5, v5, 10, v3')
    h_frag_addr(a, 7, 3)
    a('s_sub_u32 s%d, s3, 253', S_FL); a('s_lshl_b32 s%d, s%d, 2', S_NB, S_FL); a('s_add_u32 s%d, s%d, s20', S_NB, S_NB); a('s_mul_i32 s%d, s%d, 3', S_NB, S_NB)
    a('s_lshl_b32 s%d, s%d, 7', S_FL, S_FL); a('s_mov_b32 s%d, %d', S_P, 1 if (cfg.get('dm0', 0) or (cfg.get('one', 1) and (cfg.get('dmh', 0) or (cfg.get('cv2', 1) and cfg.get('dmv', 1))))) else 0); a('v_or_b32 v8, s20, v0'); a('v_min_u32 v8, 1, v8'); a('v_lshlrev_b32 v8, 30, v8'); a('v_mov_b32 v9, s7')
    a.label('L_sp_prod')
    for p, (srdn, bsrc, out, ts, vp) in enumerate([(60, WS_WMF+0x80000, WS_WDMF, 4096, 4), (64, WS_WMF, WS_T1F, 4096, 4), (68, WS_T1F, WS_WVOF, 16384, 5)]):
        if p < 2: a('s_cmp_eq_u32 s%d, %d', S_P, p); a('s_cbranch_scc0 L_sp_p%d', p+1)
        for i in range(4): a('s_mov_b32 s%d, s%d', 12+i, srdn+i); a('s_mov_b32 s%d, s%d', 72+i, min(srdn+4, 68)+i)
        a('s_mov_b32 s%d, 0x%x', S_B, bsrc); a('s_mov_b32 s%d, 0x%x', S_T, out); a('s_mov_b32 s%d, %d', S_TS, ts); a('v_mov_b32 v6, v%d', vp)
        wl = WL and p == 2
        a('s_mov_b32 s44, %d', 4096 if wl else 1024); a('s_mov_b32 s45, s44'); a('s_mov_b32 s46, %d', 16384 if wl else 0)
        if p < 2: a('s_branch L_sp_go'); a.label('L_sp_p%d' % (p+1))
    a.label('L_sp_go')
    def dma(tile):
        r = []
        for t in range(2):
            for e in range(4):
                r += ['s_add_u32 m0, s%d, %d' % (S_LD, t*16384 + e*960), Op('buffer_load_dwordx4 v6, s[12:15], s%d offen offset:%d lds' % (S_A0+t, e*64), prod=('T', tile))]
        return r + ['s_add_u32 s%d, s%d, 32768' % (S_A0, S_A0), 's_add_u32 s%d, s%d, 32768' % (S_A1, S_A1), 's_add_u32 s%d, s%d, 32768' % (S_LD, S_LD), 's_and_b32 s%d, s%d, 0x1ffff' % (S_LD, S_LD)]
    nop = lambda l: [x for o in l for x in ([o, 's_nop 0'] if isinstance(o, str) and 'm0' in o else [o])]
    def rd(i, tile):
        G, t, h = i//4, (i >> 1) & 1, i & 1
        return Op('ds_read_b128 %s, v2 offset:%d' % (vr(RA+4*(i % 8),4), (tile & 1)*32768 + t*16384 + (2*G+h)*1024), prod=('A', tile, i))
    def ep(par, tag):
        r = []
        for nb in range(3):
            D = DD + 24*par + 8*nb
            r += ['v_cvt_pk_bf16_f32 v%d, v%d, v%d' % (PK+4*nb+x, D+2*x, D+2*x+1) for x in range(4)]
            st = 'buffer_store_dwordx4 %s, v1, s[8:11], s%d offen' % (vr(PK+4*nb,4), S_OUT+nb)
            L = 'L_sp_%s%d' % (tag, nb)
            r += [Op('buffer_store_sel', lds=False), 's_add_u32 s%d, s%d, s%d' % (S_OUT+nb, S_OUT+nb, 44+par)]
            if not cfg.get('spbr', 0): r[-2].text = st + ' sc1'
            else: r[-2].text = 'buffer_x\n'.join(['', '']) + '\n'.join(['s_cmp_eq_u32 s%d, 1' % S_P, 's_cbranch_scc1 %sa' % L, st + ' sc1', 's_branch %sb' % L, L + 'a:', st, L + 'b:'])
        return r
    tr = Trace()
    o = ['s_lshl_b32 s%d, s20, 8' % S_A0, 's_add_u32 s%d, s%d, s%d' % (S_A1, S_A0, S_TS), 's_lshl_b32 s%d, s20, 12' % S_LD, 'v_mov_b32 v2, v7', 's_mov_b32 s%d, 0' % S_IT]
    o += nop(dma(0))
    for nb in range(3):
        o += ['s_add_u32 s36, s%d, %d' % (S_NB, nb), 's_min_u32 s37, s36, 31', 's_lshl_b32 s37, s37, 14', 's_add_u32 s%d, s37, s%d' % (40+nb, S_B),
              's_lshr_b32 s38, s36, 3', 's_lshl_b32 s38, s38, 17', 's_bfe_u32 s39, s36, 0x10002', 's_lshl_b32 s39, s39, 14', 's_add_u32 s38, s38, s39',
              's_and_b32 s39, s36, 3', 's_lshl_b32 s39, s39, 10', 's_add_u32 s38, s38, s39', 's_cmp_eq_u32 s46, 0', 's_cselect_b32 s38, s37, s38', 's_add_u32 s38, s38, s%d' % S_T,
              's_cmp_lt_u32 s36, 32', 's_cselect_b32 s%d, s38, 0x%x' % (S_OUT+nb, WS_SIZE)]
    blate = []
    for e in range(16):
        l = [Op('buffer_load_dwordx4 %s, v1, s[8:11], s%d offen offset:%d sc1' % (ar(64*nb+4*e,4), 40+nb, (e%4)*1024), prod=('B', e)) for nb in range(3)]
        if e % 4 == 3: l += ['s_add_u32 s%d, s%d, 4096' % (40+nb, 40+nb) for nb in range(3)]
        if e < cfg.get('spb0', 8): o += l
        else: blate += l
    o += [Op('s_barrier', need=[('T', 0)])] + [rd(i, 0) for i in range(6)]
    tr.run('pre', o)
    def body(tile, first=False):
        par = tile & 1; fx = [[] for _ in range(n)]
        for i in range(6, 32): fx[3*(i-6) - (0 if i < 30 else (2 if i == 30 else 4))].append(rd(i, tile))
        fx[77].append(Op('s_barrier', need=[('T', tile+1)] + ([('A', tile, 31)] if PD == 3 else [])))
        if par: fx[76].append('v_xor_b32 v2, 0x10000, v2')
        for i in range(6): fx[78+3*i].append(rd(i, tile+1))
        for i in range(15): fx[6*i+4].append(Op(None, need=[('A', tile, 2*i+3)]))
        fx[94].append(Op(None, need=[('A', tile+1, 1)]))
        dd = dma(tile+PD)
        if first:
            st = list(blate)
            for t in range(1, PD+1): st += nop(dma(t))
            g = 1
            for x in oplist(st):
                if kind_of(x) == 'D':
                    while g % 3 == 0: g += 1
                    fx[min(g, 75)].append(x); g += 1
                else: fx[min(g if g % 3 else g+1, 75)].append(x)
        else:
            for i in range(8): fx[1+9*i].append(dd[2*i]); fx[2+9*i].append(dd[2*i+1])
            fx[67] += dd[16:18]; fx[68] += dd[18:]
            if not par: fx[73].append('s_xor_b32 s45, s45, s46')
            e_ = oplist(ep(par ^ 1, 'e%d' % par))
            for nb in range(3):
                x = e_[6*nb:6*nb+6]; g = 13 + 18*nb
                fx[g] += x[0:2]; fx[g+1] += x[2:4]; fx[g+4].append(x[4]); fx[g+5].append(x[5])
        o = []
        for g in range(n):
            G, t, nb, h = g//12, (g % 12)//6, (g % 6)//2, g & 1
            i = 4*G + 2*t + h; e = 2*G + h; D = vr(DD + 24*par + 8*nb + 4*t, 4)
            o.append(Op('%s %s, %s, %s, %s' % (MF, D, vr(RA+4*(i % 8),4), ar(64*nb+4*e,4), D if e else '0'), need=[('A', tile, i | 1)] + ([('B', e | 1)] if first else [])))
            o += oplist(fx[g])
        return o
    tr.run('b0f', body(0, True))
    for tile in range(1, 16):
        if tile & 1: tr.run('b1', body(tile) + ['s_add_u32 s%d, s%d, 1' % (S_IT, S_IT), 's_cmp_eq_u32 s%d, 8' % S_IT])
        else: tr.run('b0', body(tile))
    tr.run('fin', ['s_nop 7'] + ep(1, 'f') + [Op('s_barrier', need=['ALLV', 'ALLL'])])
    def pst(base):
        if cfg.get('stamp') and cfg.get('sthead') != 2:
            for p in range(3):
                a('s_cmp_eq_u32 s%d, %d', S_P, p); a('s_cbranch_scc0 L_sp_s%d_%d', base, p); stamp_mid(a, base+3*p); a.label('L_sp_s%d_%d' % (base, p))
    tr.emit(a, 'pre'); pst(1); tr.emit(a, 'b0f'); pst(2)
    a.label('L_sp_l'); tr.emit(a, 'b1'); a('s_cbranch_scc1 L_sp_f'); tr.emit(a, 'b0'); a('s_branch L_sp_l')
    a.label('L_sp_f'); tr.emit(a, 'fin')
    pst(3)
    a('s_mov_b32 s36, 0x%x', WS_FLG + 128*FLG_W); a('s_cmp_eq_u32 s%d, 0', S_P); a('s_cselect_b32 s36, 0x%x, s36', WS_FLG + 128*FLG_D)
    a('s_cmp_eq_u32 s%d, 1', S_P); a('s_cselect_b32 s36, 0x%x, s36', WS_SIZE); a('s_add_u32 s36, s36, s%d', S_FL)
    a('buffer_store_dword v9, v8, s[8:11], s36 offen sc1')
    a('s_add_u32 s%d, s%d, 1', S_P, S_P); a('s_cmp_lt_u32 s%d, 3', S_P); a('s_cbranch_scc1 L_sp_prod')
    a('s_branch L_k2_fin')
```

```python
from asmlib import *
from layout import *
from gen_k0 import srd, h_frag_addr
MF='v_mfma_f32_16x16x32_bf16'
S_WS=8; S_W=20
C1 = 2*0.7978845608028654*1.4426950408889634; C2 = C1*0.044715
L_DW=81920; L_SX=92160; L_DUM=96256; L_XS=102400
NQ=5; n=80
def R(i, k=1): return ar(i, k) if i < 256 else vr(192 + i - 256, k)
SN = [1]
def pos(g):
    G = g//10; w = g % 10; return w//2, 2*G + ((w & 1) ^ ((w//2) & SN[0]))
p2 = lambda r: vr(r, 2)

class Conv:
    L16=1; HA=2; PH=4; XV=5; GA=6; DA=11; XA=12; XR=17; RS=18; U0=28; U1=48; U2=68; DD=88; RA=128
    S_C=21; S_R0=22; S_TB=23; S_AP=24; S_CNT=25; S_T0=26; S_T1=27; S_MK=28; S_OUT=29; S_JMP=30; S_TILE=31
    S_PG=32; S_PU=33; S_PZ=34; S_T3=35; S_M=36
    S_XP=42; S_XL=43; S_FL=44; S_XD=45; S_K=46; S_ONE=48
    def __init__(self, a, cfg): self.a = a; self.cfg = cfg; SN[0] = cfg.get('snake', 1)
    def aload(self, kk, blk):
        return Op('buffer_load_dwordx4 %s, v%d, s[%d:%d], s%d offen offset:%d sc1' % (vr(self.RA+4*kk,4), self.L16, S_WS, S_WS+3, self.S_AP, (kk%4)*1024), prod=('A', blk, kk))
    def block(self, blk, par, stream=(), bread=None, jump=None, extra=None, g0=2, tail=()):
        fx = [[] for _ in range(n)]
        for G in range(8):
            for h in range(2):
                kk = (2*G + h - 2) % 16; gp = 10*G + 5*h
                fx[gp].append(self.aload(kk, blk if G == 0 else blk+1))
                if kk % 4 == 3:
                    fx[gp+1] += (jump if (kk == 15 and jump) else ['s_add_u32 s%d, s%d, 4096' % (self.S_AP, self.S_AP)])
            fx[10*G+8].append(Op(None, need=[('A', blk if G < 7 else blk+1, (2*G+3) % 16)]))
        if extra:
            for g, o in extra: fx[g] += oplist(o)
        ops = []; PRE = 10
        if bread is not None:
            def rd(g):
                qb, kk = pos(g); off = qb*16384 + kk*1024
                return Op('ds_read_b128 %s, v%d offset:%d' % (R(4*(kk*NQ+qb),4), bread[off//65536], off % 65536), prod=('B', blk, g))
            ops += [rd(g) for g in range(PRE)]
            for g in range(n-PRE): fx[g].insert(0, rd(g+PRE))
        if stream: fx = spread(fx, stream, n, g0)
        for g in range(n):
            qb, kk = pos(g); D = vr(self.DD + 20*par + 4*qb, 4)
            need = [('A', blk, kk)] + ([('B', blk, g | 1)] if bread is not None else [])
            ops.append(Op('%s %s, %s, %s, %s' % (MF, D, vr(self.RA+4*kk,4), R(4*(kk*NQ+qb),4), D if (g >= 10 or g & 1) else '0'), need=need))
            ops += oplist(fx[g])
        return ops + oplist(list(tail))
    def P1(self, D, T, m):
        K = sr(self.S_K, 2)
        return (['v_pk_mul_f32 %s, %s, %s' % (p2(T+r), p2(D+r), p2(D+r)) for r in range(0, m, 2)] +
                ['v_pk_fma_f32 %s, %s, %s, %s op_sel:[0,0,1] op_sel_hi:[1,0,1]' % (p2(T+r), p2(T+r), K, K) for r in range(0, m, 2)] +
                ['v_pk_mul_f32 %s, %s, %s' % (p2(T+r), p2(T+r), p2(D+r)) for r in range(0, m, 2)])
    def E1(self, T, m): return ['v_exp_f32 v%d, v%d' % (T+r, T+r) for r in range(m)]
    def E2(self, T, m): return ['v_rcp_f32 v%d, v%d' % (T+r, T+r) for r in range(m)]
    def P2(self, T, m, pk=True):
        if pk: return ['v_pk_add_f32 %s, %s, %s' % (p2(T+r), p2(T+r), sr(self.S_ONE, 2)) for r in range(0, m, 2)]
        return ['v_add_f32 v%d, 1.0, v%d' % (T+r, T+r) for r in range(m)]
    def mul(self, D, T, pk=True):
        if pk: return ['v_pk_mul_f32 %s, %s, %s' % (p2(D+r), p2(D+r), p2(T+r)) for r in (0, 2)]
        return ['v_mul_f32 v%d, v%d, v%d' % (D+r, D+r, T+r) for r in range(4)]
    def adv_g(self, d): return ['v_add_u32 v%d, %d, v%d' % (self.GA+q, d, self.GA+q) for q in range(NQ)]
    def ep_g(self, t):
        o = []; PK = self.U0; S1 = self.U1; S2 = self.U2; T = self.RS
        def fin(qb):
            D = self.DD + 20*t + 4*qb; P = PK + 4*qb + 2*t
            r = ['v_cvt_pk_bf16_f32 v%d, v%d, v%d' % (P, D, D+1), 'v_cvt_pk_bf16_f32 v%d, v%d, v%d' % (P+1, D+2, D+3),
                 'ds_write_b64 v%d, %s offset:%d' % (self.GA+qb, vr(P,2), 8*t)]
            if t:
                F = vr(PK+4*qb,4)
                r += ['v_add_u32 v%d, 1024, v%d' % (self.GA+qb, self.GA+qb),
                      '%s %s, %s, %s, %s' % (MF, vr(S1+4*qb,4), vr(self.XA,4), F, vr(S1+4*qb,4)),
                      '%s %s, %s, %s, %s' % (MF, vr(S2+4*qb,4), F, F, vr(S2+4*qb,4))]
            return r
        late = []
        for q0, m in ((0, 8), (2, 8), (4, 4)):
            D = self.DD + 20*t + 4*q0
            o += self.P1(D, T, m) + late + self.E1(T, m) + self.P2(T, m, False) + self.E2(T, m)
            late = []
            for j in range(m//4):
                o += self.mul(D+4*j, T+4*j, self.cfg.get('gm', 0) and q0 < 4); late += fin(q0+j)
        return o + late
    def ep_u(self, t, blk):
        GN = self.U0; DW = self.U1; TA = self.U2; TB = self.U2+8; CV = self.U2+16; RAW = self.U2+8
        D = lambda q: self.DD + 20*t + 4*q
        rd = [Op('ds_read_b64 %s, v%d offset:%d' % (vr(RAW+2*q,2), self.GA+q, 8*t), prod=('G', blk, q)) for q in range(NQ)]
        rw = [Op('ds_read_b128 %s, v%d offset:%d' % (vr(DW+4*k,4), self.DA, k*2048 + 16*t), prod=('DW', blk, k)) for k in range(5)]
        un = []
        for q in range(NQ):
            for h in range(2): un += ['v_lshlrev_b32 v%d, 16, v%d' % (GN+4*q+2*h, RAW+2*q+h), 'v_and_b32 v%d, s%d, v%d' % (GN+4*q+2*h+1, self.S_MK, RAW+2*q+h)]
        norm = ['v_pk_fma_f32 %s, %s, %s, %s op_sel:[0,0,1] op_sel_hi:[1,0,1]' % (p2(GN+4*q+r), p2(GN+4*q+r), p2(self.RS+2*q), p2(self.RS+2*q)) for q in range(NQ) for r in (0, 2)]
        def cpk(q):
            r_ = ['v_pk_mul_f32 %s, %s, %s' % (p2(CV+r), p2(GN+4*q+r), p2(DW+8+r)) for r in (0, 2)]
            for k in (3, 4, 1, 0):
                if 0 <= q+k-2 <= 4: r_ += ['v_pk_fma_f32 %s, %s, %s, %s' % (p2(CV+r), p2(GN+4*(q+k-2)+r), p2(DW+4*k+r), p2(CV+r)) for r in (0, 2)]
            return r_
        def cdpp(q):
            r_ = []
            for k in (3, 4, 1, 0):
                q2 = q+k-2
                if q2 < 0: r_ += ['v_fmac_f32_dpp v%d, v%d, v%d row_shr:1 row_mask:0xf bank_mask:0xf bound_ctrl:0' % (CV+r, GN+4*(q2+5)+r, DW+4*k+r) for r in range(4)]
                if q2 > 4: r_ += ['v_fmac_f32_dpp v%d, v%d, v%d row_shl:1 row_mask:0xf bank_mask:0xf bound_ctrl:0' % (CV+r, GN+4*(q2-5)+r, DW+4*k+r) for r in range(4)]
            return r_
        def fin(q):
            d = D(q)
            r_ = ['v_cvt_pk_bf16_f32 v%d, v%d, v%d' % (d, d, d+1), 'v_cvt_pk_bf16_f32 v%d, v%d, v%d' % (d+1, d+2, d+3), 'ds_write_b64 v%d, %s offset:%d' % (self.GA+q, vr(d,2), 8*t)]
            if t: r_.append('v_add_u32 v%d, 1024, v%d' % (self.GA+q, self.GA+q))
            return r_
        m = self.mul
        o = rd + self.P1(D(0), TA, 8) + self.E1(TA, 8)
        un[0] = Op(un[0], need=[('G', blk, 4)])
        for i in range(5): o += [rw[i], un[i]]
        o += un[5:]
        o += self.P2(TA, 8) + norm + self.P1(D(2), TB, 8) + [Op(None, need=[('DW', blk, 4)])] + cpk(0)
        o += self.E2(TA, 8) + self.E1(TB, 8) + cdpp(0)
        o += m(D(0), CV) + self.P2(TB, 8) + m(D(0), TA) + cpk(1)
        o += self.E2(TB, 8) + fin(0) + cdpp(1)
        o += m(D(1), CV) + m(D(2), TB) + m(D(1), TA+4) + self.P1(D(4), TA, 4) + cpk(2) + m(D(3), TB+4) + m(D(2), CV) + cpk(3)
        o += self.E1(TA, 4) + fin(1) + fin(2) + cdpp(3)
        o += self.P2(TA, 4) + m(D(3), CV) + cpk(4)
        o += self.E2(TA, 4) + fin(3) + cdpp(4) + m(D(4), TA, False) + m(D(4), CV, False) + fin(4)
        if t: o.append('v_add_u32 v%d, 128, v%d' % (self.DA, self.DA))
        return o
    def xdma(self, tag):
        g = [(['s_add_u32 m0, s%d, %d' % (self.S_XD, q*1024), 's_add_u32 s%d, s%d, %d' % (self.S_T3, self.S_XP, q*16384)],
              Op('buffer_load_dwordx4 v%d, s[16:19], s%d offen lds' % (self.XV, self.S_T3), prod=('XD', tag))) for q in range(NQ)]
        return g, ['s_add_u32 s%d, s%d, 64' % (self.S_XP, self.S_XP), 's_add_u32 s%d, s%d, 5120' % (self.S_XD, self.S_XD)]
    def ep_z(self, t, tag=None):
        o = []; PK = self.U0; XF = self.U2; T = self.U1
        if t == 0:
            o += [Op('ds_read_b128 %s, v%d offset:%d' % (vr(XF+4*q,4), self.XR, q*1024), prod=('XF', tag, q), need=[('XD', tag)] if q == 0 else []) for q in range(NQ)]
        for qb in range(NQ):
            D = self.DD + 20*t + 4*qb; P = PK + 4*qb + 2*t
            for h in range(2):
                o += [Op('v_lshlrev_b32 v%d, 16, v%d' % (T+2*h, XF+4*qb+2*t+h), need=[('XF', tag, qb)] if (t == 0 and h == 0) else []),
                      'v_and_b32 v%d, s%d, v%d' % (T+2*h+1, self.S_MK, XF+4*qb+2*t+h)]
            for r in range(4): o.append('v_add_f32 v%d, v%d, v%d' % (D+r, D+r, T+r))
            o += ['v_cvt_pk_bf16_f32 v%d, v%d, v%d' % (P, D, D+1), 'v_cvt_pk_bf16_f32 v%d, v%d, v%d' % (P+1, D+2, D+3)]
            if t: o += ['s_add_u32 s%d, s%d, %d' % (self.S_T3, self.S_OUT, qb*16384),
                        Op('buffer_store_dwordx4 %s, v%d, s[%d:%d], s%d offen%s' % (vr(PK+4*qb,4), self.L16, S_WS, S_WS+3, self.S_T3, '' if self.cfg.get('xp_plainb') else ' sc1'), prod='BST')]
        if t: o.append('s_add_u32 s%d, s%d, 1024' % (self.S_OUT, self.S_OUT))
        return o
    def flag_store(self):
        T = self.RS+8
        return ['v_or_b32 v%d, s%d, v0' % (T, S_W), 'v_min_u32 v%d, 1, v%d' % (T, T), 'v_lshlrev_b32 v%d, 30, v%d' % (T, T), 'v_mov_b32 v%d, s7' % (T+1),
                'buffer_store_dword v%d, v%d, s[%d:%d], s%d offen sc1' % (T+1, T, S_WS, S_WS+3, self.S_FL)]
    def stage_addr(self):
        T = self.U1+8
        o = ['v_lshrrev_b32 v%d, 2, v0' % T, 'v_mul_u32_u24 v%d, 5, v%d' % (T, T), 's_add_u32 s%d, s%d, 4000' % (self.S_JMP, self.S_R0), 'v_add_u32 v%d, s%d, v%d' % (T, self.S_JMP, T),
             'v_lshrrev_b32 v%d, 4, v%d' % (T+1, self.XV), 's_movk_i32 s%d, 4000' % self.S_JMP, 'v_mov_b32 v%d, 7999' % (T+4)]
        for q in range(NQ):
            X = self.XA+q
            o += ['v_add_u32 v%d, %d, v%d' % (T+2, q, T), 'v_med3_i32 v%d, v%d, s%d, v%d' % (T+2, T+2, self.S_JMP, T+4),
                  'v_lshrrev_b32 v%d, 2, v%d' % (T+3, T+2), 'v_sub_u32 v%d, 0, v%d' % (T+3, T+3), 'v_xor_b32 v%d, v%d, v%d' % (T+3, T+3, T+1),
                  'v_and_b32 v%d, 3, v%d' % (T+3, T+3), 'v_and_b32 v%d, 15, v%d' % (X, T+2), 'v_lshl_add_u32 v%d, v%d, 2, v%d' % (T+3, X, T+3),
                  'v_lshrrev_b32 v%d, 4, v%d' % (X, T+2), 'v_lshl_add_u32 v%d, v%d, 10, v%d' % (X, X, T+3), 'v_lshlrev_b32 v%d, 4, v%d' % (X, X)]
        return o
    def stage_dma(self, tag):
        g = [(['s_add_u32 m0, s%d, %d' % (self.S_JMP, q*16384)], Op('buffer_load_dwordx4 v%d, s[%d:%d], s%d offen sc1 lds' % (self.XA+q, S_WS, S_WS+3, self.S_T0), prod=tag)) for q in range(NQ)]
        return g, ['s_add_u32 s%d, s%d, 1024' % (self.S_T0, self.S_T0), 's_add_u32 s%d, s%d, 1024' % (self.S_JMP, self.S_JMP)]
    def place(self, gm, gaps):
        g, post = gm; ex = []
        for (pre, o), gp in zip(g, gaps): ex += [(gp-1, pre), (gp, [o])]
        return ex + [(gaps[len(g)-1]+1, post)]
    def stats(self, tile):
        S1 = self.U1; S2 = self.U2; T = self.U0; M = self.S_M
        o = ['v_and_b32 v%d, 15, v0' % T, 'v_lshrrev_b32 v%d, 2, v%d' % (T+1, T), 'v_lshrrev_b32 v%d, 4, v0' % (T+2),
             'v_cmp_eq_u32 vcc, v%d, v%d' % (T+1, T+2), 'v_lshlrev_b32 v%d, 5, v%d' % (T+1, T), 'v_add_u32 v%d, %d, v%d' % (T+1, L_SX, T+1),
             's_lshl_b32 s%d, s%d, 3' % (self.S_T0, S_W), 'v_add_u32 v%d, s%d, v%d' % (T+2, self.S_T0, T+1), 'v_mov_b32 v%d, %d' % (T+3, L_DUM),
             'v_cndmask_b32 v%d, v%d, v%d, vcc' % (T+2, T+3, T+2)]
        for q in range(NQ):
            d = S1+4*q+1
            o += ['v_cndmask_b32 v%d, v%d, v%d, s[%d:%d]' % (d, S2+4*q, S2+4*q+1, M, M+1),
                  'v_cndmask_b32 v%d, v%d, v%d, s[%d:%d]' % (d, d, S2+4*q+2, M+2, M+3),
                  'v_cndmask_b32 v%d, v%d, v%d, s[%d:%d]' % (d, d, S2+4*q+3, M+4, M+5),
                  'ds_write_b64 v%d, %s offset:%d' % (T+2, vr(S1+4*q,2), q*512)]
        t = self.XA; P = self.XA+4
        if self.cfg.get('dmh', 0):
            o += ['s_lshl_b32 s%d, s%d, 13' % (self.S_JMP, S_W), 's_add_u32 s%d, s%d, 0x%x' % (self.S_JMP, self.S_JMP, WS_FLG + 128*FLG_X), 'v_lshl_add_u32 v%d, v0, 7, s%d' % (P, self.S_JMP)]
        else:
          DMV = self.cfg.get('dmv', 1)
          o += ['v_and_b32 v%d, 3, v0' % t] + (['v_lshlrev_b32 v%d, 7, v0' % P, 'v_add_u32 v%d, 0x%x, v%d' % (P, WS_FLG + 128*(FLG_X+200), P)] if DMV else
                ['v_min_u32 v%d, 2, v%d' % (P, t), 'v_lshlrev_b32 v%d, 7, v%d' % (P, P), 'v_add_u32 v%d, 0x%x, v%d' % (P, WS_FLG + 128*FLG_D, P)])
          o += [
              's_max_i32 s%d, s%d, 0' % (self.S_JMP, self.S_R0), 's_mul_i32 s%d, s%d, 52429' % (self.S_JMP, self.S_JMP), 's_lshr_b32 s%d, s%d, 22' % (self.S_JMP, self.S_JMP),
              's_lshl_b32 s%d, s%d, 1' % (self.S_JMP, self.S_JMP), 'v_and_b32 v%d, 4, v0' % (t+1), 'v_cmp_gt_u32 vcc, 48, v0' if DMV else 'v_cmp_eq_u32 vcc, 0, v%d' % (t+1),
              'v_add_u32 v%d, s%d, v%d' % (t, self.S_JMP, t), 'v_min_u32 v%d, 0x63, v%d' % (t, t),
              'v_lshlrev_b32 v%d, 8, v%d' % (t, t), 'v_add_u32 v%d, 0x%x, v%d' % (t, WS_FLG + 128*(FLG_X+1), t), 'v_cndmask_b32 v%d, v%d, v%d, vcc' % (P, t, P)]
        o.append(Op('s_barrier', need=['ALLL']))
        for q in range(NQ):
            o += [Op('ds_read_b128 %s, v%d offset:%d' % (vr(S1+8*q,4), T+1, q*512), prod=('SA', tile, q)),
                  Op('ds_read_b128 %s, v%d offset:%d' % (vr(S1+8*q+4,4), T+1, q*512+16), prod=('SB', tile, q))]
        o += self.adv_g(-4096)
        o += ['v_mul_u32_u24 v%d, 5, v%d' % (T, T), 'v_add_u32 v%d, s%d, v%d' % (T, self.S_R0, T), 'v_mov_b32 v%d, 0x%x' % (T+4, f2u(1/512.)),
              's_add_u32 s%d, s%d, 2' % (self.S_XP, self.S_R0), 's_add_u32 s%d, s%d, s%d' % (self.S_XP, self.S_XP, self.S_TB), 's_lshl_b32 s%d, s%d, 10' % (self.S_XP, self.S_XP),
              's_lshr_b32 s%d, s%d, 4' % (self.S_JMP, self.S_T1), 's_add_u32 s%d, s%d, s%d' % (self.S_XP, self.S_XP, self.S_JMP), 's_mov_b32 s%d, s%d' % (self.S_XD, self.S_XL)]
        for q in range(NQ):
            A = S1+8*q
            o += [Op('v_pk_add_f32 %s, %s, %s' % (p2(A), p2(A), p2(A+2)), need=[('SB', tile, q)]), 'v_pk_add_f32 %s, %s, %s' % (p2(A+4), p2(A+4), p2(A+6)),
                  'v_add_u32 v%d, %d, v%d' % (T+2, q, T), 'v_pk_add_f32 %s, %s, %s' % (p2(A), p2(A), p2(A+4)), 'v_cmp_gt_u32 vcc, 0xfa0, v%d' % (T+2),
                  'v_pk_mul_f32 %s, %s, %s op_sel_hi:[1,0]' % (p2(A), p2(A), p2(T+4)),
                  'v_fma_f32 v%d, -v%d, v%d, v%d' % (A+1, A, A, A+1), 'v_max_f32 v%d, 0, v%d' % (A+1, A+1), 'v_add_f32 v%d, 0x%x, v%d' % (A+1, f2u(1e-5), A+1),
                  'v_rsq_f32 v%d, v%d' % (A+1, A+1), 's_nop 0',
                  'v_cndmask_b32 v%d, 0, v%d, vcc' % (self.RS+2*q, A+1), 'v_mul_f32 v%d, -v%d, v%d' % (self.RS+2*q+1, A, self.RS+2*q)]
        return o
    def wdm_unit(self):
        LA = 98304; RG = 192; D = 92
        t = Asm(); srd(t, 64, 50, 51, 524288)
        t('s_sub_u32 s21, s3, 200'); t('s_and_b32 s22, s21, 15'); t('s_lshr_b32 s23, s21, 4')
        t('s_lshl_b32 s24, s22, 15'); t('s_lshl_b32 s25, s20, 8'); t('s_add_u32 s24, s24, s25'); t('s_add_u32 s25, s24, 4096')
        t('s_lshl_b32 s26, s20, 12'); t('s_add_u32 s26, s26, %d', LA)
        o = t.lines
        for tt in range(2):
            for e in range(4): o += ['s_add_u32 m0, s26, %d' % (tt*16384 + e*960), 's_nop 0', Op('buffer_load_dwordx4 v4, s[64:67], s%d offen offset:%d lds' % (24+tt, e*64), prod='UA')]
        o += ['s_mul_i32 s23, s23, 12', 's_mul_i32 s27, s20, 3', 's_add_u32 s23, s23, s27', 's_lshl_b32 s22, s22, 10', 's_add_u32 s22, s22, 0x%x' % WS_WDMF]
        for nb in range(3):
            o += ['s_add_u32 s27, s23, %d' % nb, 's_min_u32 s34, s27, 31', 's_lshl_b32 s34, s34, 14', 's_add_u32 s%d, s34, 0x%x' % (28+nb, WS_WMF + 0x80000),
                  's_add_u32 s34, s34, s22', 's_cmp_lt_u32 s27, 32', 's_cselect_b32 s%d, s34, 0x%x' % (31+nb, WS_SIZE)]
        o.append('s_barrier')
        def bl(e):
            l = [Op('buffer_load_dwordx4 %s, v1, s[8:11], s%d offen offset:%d sc1' % (ar(12*e+4*nb,4), 28+nb, (e%4)*1024), prod=('UB', e)) for nb in range(3)]
            if e % 4 == 3: l += ['s_add_u32 s%d, s%d, 4096' % (28+nb, 28+nb) for nb in range(3)]
            return l
        for e in range(8): o += bl(e)
        t = Asm(); h_frag_addr(t, 2, 3); t('v_add_u32 v2, %d, v2', LA); o += t.lines
        rd = lambda e: [Op('ds_read_b128 %s, v2 offset:%d' % (vr(RG+8*(e % 8)+4*tt,4), tt*16384 + e*1024), prod=('UF', e)) for tt in range(2)]
        o.append(Op('s_barrier', need=['UA']))
        for e in range(4): o += rd(e)
        for e in range(16):
            if e+8 < 16: o += bl(e+8)
            if e+4 < 16: o += rd(e+4)
            for nb in range(3):
                for tt in range(2):
                    d = vr(D+8*nb+4*tt, 4)
                    o.append(Op('%s %s, %s, %s, %s' % (MF, d, vr(RG+8*(e % 8)+4*tt,4), ar(12*e+4*nb,4), d if e else '0'), need=[('UB', e), ('UF', e)]))
        o.append('s_nop 7')
        for nb in range(3):
            b = D+8*nb
            o += ['v_cvt_pk_bf16_f32 v%d, v%d, v%d' % (b+x, b+2*x, b+2*x+1) for x in range(4)]
            o.append(Op('buffer_store_dwordx4 %s, v1, s[8:11], s%d offen sc1' % (vr(b,4), 31+nb), prod='XST'))
        return o
    def gen(self):
        a = self.a; cfg = self.cfg; T = self.U2; tr = self.tr0; S = self
        DMV = cfg.get('dmv', 1) and not cfg.get('dmh', 0)
        pre = S.wdm_unit() if (DMV and not cfg.get('xp_nounit')) else []
        pre += ['s_lshl_b32 s%d, s%d, 8' % (S.S_T0, S_W), 'v_lshl_add_u32 v%d, v0, 2, s%d' % (T, S.S_T0), 's_mov_b32 s%d, 4096' % S.S_JMP]
        for k in range(5): pre.append(Op('buffer_load_dword v%d, v%d, s[12:15], %s offen offset:%d' % (S.U0+k, T, '0' if k < 4 else 's%d' % S.S_JMP, (k%4)*1024), prod=('DWL', k)))
        if cfg.get('wpf', 0):
            pre += ['s_sub_u32 s21, s3, 200', 's_lshl_b32 s21, s21, 2', 's_add_u32 s21, s21, s20', 's_lshr_b32 s22, s21, 6',
                    's_cmp_eq_u32 s22, 1', 's_cselect_b32 s60, s44, s50', 's_cselect_b32 s61, s45, s51', 's_cmp_eq_u32 s22, 2', 's_cselect_b32 s60, s42, s60', 's_cselect_b32 s61, s43, s61',
                    's_and_b32 s61, s61, 0xffff', 's_cmp_eq_u32 s22, 3', 's_cselect_b32 s62, 0, 0x80000', 's_mov_b32 s63, 0x20000',
                    's_and_b32 s21, s21, 63', 's_lshl_b32 s21, s21, 13', 'v_lshlrev_b32 v%d, 7, v0' % S.XR, 'buffer_load_dword v%d, v%d, s[60:63], s21 offen' % (S.XR, S.XR)]
        pre += ['s_sub_u32 s%d, s3, 200' % S.S_C, 's_mul_i32 s%d, s%d, 76' % (S.S_R0, S.S_C), 's_sub_u32 s%d, s%d, 2' % (S.S_R0, S.S_R0),
                's_mov_b32 s%d, 0' % S.S_TB, 's_mov_b32 s%d, 0' % S.S_TILE, 's_lshl_b32 s%d, s%d, 12' % (S.S_T1, S_W),
                's_mul_i32 s%d, s%d, 15360' % (S.S_XL, S_W), 's_add_u32 s%d, s%d, %d' % (S.S_XL, S.S_XL, L_XS), 's_lshl_b32 s%d, s3, 7' % S.S_FL, 's_add_u32 s%d, s%d, 0x%x' % (S.S_FL, S.S_FL, WS_FLG + 128*FLG_X if (cfg.get('dmh', 0) or DMV) else WS_SIZE),
                's_lshl_b32 s%d, s%d, 17' % (S.S_PU, S_W), 's_add_u32 s%d, s%d, 0x%x' % (S.S_PZ, S.S_PU, WS_WDMF),
                's_add_u32 s%d, s%d, 0x%x' % (S.S_PU, S.S_PU, WS_WUPF), 's_add_u32 s%d, s%d, 0x80000' % (S.S_PG, S.S_PU), 's_mov_b32 s%d, s6' % S.S_AP,
                's_mov_b32 s%d, 0xffff0000' % S.S_MK, 's_mov_b32 s%d, 0x%x' % (S.S_K, f2u(-C2)), 's_mov_b32 s%d, 0x%x' % (S.S_K+1, f2u(-C1)),
                's_mov_b32 s%d, 1.0' % S.S_ONE, 's_mov_b32 s%d, 1.0' % (S.S_ONE+1)]
        tmp = Asm(); h_frag_addr(tmp, S.HA, T+1); pre += tmp.lines
        pre += ['v_add_u32 v%d, 0x10000, v%d' % (S.HA+1, S.HA)]
        tr.run('pre', pre)
        su = ['v_add_u32 v%d, 0x10000, v%d' % (S.PH, S.L16),
              'v_lshrrev_b32 v%d, 4, v0' % (T+2), 'v_sub_u32 v%d, 0, v%d' % (T+1, T+2), 'v_xor_b32 v%d, v%d, v0' % (T+1, T+1), 'v_and_b32 v%d, 3, v%d' % (T+1, T+1),
              'v_lshlrev_b32 v%d, 4, v%d' % (T+1, T+1), 'v_lshrrev_b32 v%d, 2, v0' % S.XV, 'v_lshl_add_u32 v%d, v%d, 10, v%d' % (S.XV, S.XV, T+1),
              'v_and_b32 v%d, 15, v0' % (T+1), 'v_mul_u32_u24 v%d, 5, v%d' % (T+1, T+1),
              'v_lshl_add_u32 v%d, v%d, 8, s%d' % (T+3, T+2, S.S_T1), 's_lshr_b32 s%d, s%d, 3' % (S.S_JMP, S.S_T1), 's_add_u32 s%d, s%d, %d' % (S.S_JMP, S.S_JMP, L_DW),
              'v_lshl_add_u32 v%d, v%d, 5, s%d' % (S.DA, T+2, S.S_JMP)]
        for q in range(NQ):
            su += ['v_add_u32 v%d, %d, v%d' % (T+2, q-2, T+1)]
            if q < 2: su += ['v_min_u32 v%d, %d, v%d' % (T+2, 78+q, T+2)]
            su += ['v_and_b32 v%d, 15, v%d' % (T+4, T+2), 'v_lshl_add_u32 v%d, v%d, 4, v%d' % (T+4, T+4, T+3),
                   'v_lshrrev_b32 v%d, 4, v%d' % (T+2, T+2), 'v_lshl_add_u32 v%d, v%d, 14, v%d' % (S.GA+q, T+2, T+4)]
        su += ['v_and_b32 v%d, 3, v0' % (T+1)] + ['v_cmp_eq_u32 s[%d:%d], %d, v%d' % (S.S_M+2*i, S.S_M+2*i+1, i+1, T+1) for i in range(3)]
        dwo = ['v_lshlrev_b32 v%d, 1, v%d' % (T, T), 'v_add_u32 v%d, %d, v%d' % (T, L_DW, T)]
        for k in range(5):
            dwo += [Op('v_lshlrev_b32 v%d, 16, v%d' % (S.U1+2*k, S.U0+k), need=[('DWL', k)]), 'v_and_b32 v%d, s%d, v%d' % (S.U1+2*k+1, S.S_MK, S.U0+k),
                    'ds_write_b64 v%d, %s offset:%d' % (T, vr(S.U1+2*k,2), k*2048)]
        tr.run('pre2', su + dwo)
        sel = lambda tgt: ['s_add_u32 s%d, s%d, 4096' % (S.S_AP, S.S_AP), 's_cmp_eq_u32 s%d, 3' % S.S_CNT, 's_cselect_b32 s%d, s%d, s%d' % (S.S_AP, tgt, S.S_AP)]
        inc = 's_add_u32 s%d, s%d, 1' % (S.S_CNT, S.S_CNT)
        blk = 0
        for tile in range(2):
            init = ['v_mov_b32 v%d, 0x3f803f80' % (S.XA+r) for r in range(4)] + ['v_mov_b32 v%d, 0' % (S.U1+r) for r in range(40)]
            tr.run('g0', [Op('s_barrier', need=[('XS', tile), 'ALLL']), 's_mov_b32 s%d, 0' % S.S_CNT] +
                   S.block(blk, 0, stream=init, bread=(S.HA, S.HA+1), tail=[Op('s_barrier', need=['BST'] if tile else ['XST'])] + S.flag_store())); blk += 1
            for it in range(4):
                tr.run('g1', S.block(blk, 1, stream=S.ep_g(0), jump=sel(S.S_PU))); blk += 1
                tr.run('g2', S.block(blk, 0, stream=S.ep_g(1), tail=[inc, 's_cmp_lt_u32 s%d, 4' % S.S_CNT])); blk += 1
            tr.run('stats', S.stats(tile) + ['s_mov_b32 s%d, 0' % S.S_CNT])
            for it in range(4):
                tr.run('u1', S.block(blk, 1, stream=S.ep_u(0, blk), jump=sel(S.S_PZ), g0=1, tail=['s_cmp_eq_u32 s%d, 3' % S.S_CNT])); blk += 1
                if it < 3:
                    ex = [(3, [Op('buffer_load_dword v%d, v%d, s[%d:%d], 0 offen sc1' % (S.XA+1, S.XA+4, S_WS, S_WS+3), prod=('DF', blk))])]
                    ex += S.place(S.xdma((tile, it)), [13, 23, 33, 43, 53])
                    tl = [Op('v_cmp_ne_u32 vcc, s7, v%d' % (S.XA+1), need=[('DF', blk)]), inc, 's_cmp_eq_u32 s%d, 3' % S.S_CNT, 's_cselect_b64 vcc, vcc, 0', 's_cbranch_vccnz L_c_spin']
                    tr.run('u2', S.block(blk, 0, stream=S.ep_u(1, blk), g0=1, extra=ex, tail=tl)); blk += 1
            tr.run('u3', S.ep_u(1, ('e', tile)))
            z0s = S.adv_g(-4096) + ['v_add_u32 v%d, -512, v%d' % (S.DA, S.DA), 'v_add_u32 v%d, s%d, v%d' % (S.XR, S.S_XL, S.HA)] + S.stage_addr()
            tr.run('z0', [Op('s_barrier', need=['ALLL']), 's_mov_b32 s%d, 0' % S.S_CNT, 's_mul_i32 s%d, s%d, 53' % (S.S_FL, S.S_TILE), 's_add_u32 s%d, s%d, s%d' % (S.S_FL, S.S_FL, S.S_C),
                          's_mul_i32 s%d, s%d, 81920' % (S.S_OUT, S.S_FL), 's_add_u32 s%d, s%d, s%d' % (S.S_OUT, S.S_OUT, S.S_T1), 's_add_u32 s%d, s%d, 0x%x' % (S.S_OUT, S.S_OUT, WS_BASE),
                          's_lshl_b32 s%d, s%d, 7' % (S.S_FL, S.S_FL), 's_add_u32 s%d, s%d, 0x%x' % (S.S_FL, S.S_FL, WS_FLG + 128*FLG_C), 's_mov_b32 s%d, s%d' % (S.S_XD, S.S_XL),
                          's_cmp_eq_u32 s%d, 0' % S.S_TILE, 's_cselect_b32 s%d, s%d, 0x%x' % (S.S_T0, S.S_T1, WS_SIZE)]
                   + S.block(blk, 0, stream=z0s, bread=(S.L16, S.PH), tail=['s_mov_b32 s%d, s%d' % (S.S_JMP, S.S_T1), 's_barrier'])); blk += 1
            sg = [13, 23, 33, 43, 53]
            xg, xpost = S.xdma((tile, 3)); xg[0][1].need = [('XF', (tile, 0), 4)]
            tr.run('z1a', S.block(blk, 1, stream=S.ep_z(0, (tile, 0)), extra=S.place(S.stage_dma(('XS', tile+1)), sg) + S.place((xg, []), [58-1, 63, 68-1, 73, 78-1]))); blk += 1
            for it in range(3):
                tr.run('z2', S.block(blk, 0, stream=S.ep_z(1), tail=[inc, 's_cmp_eq_u32 s%d, 3' % S.S_CNT, 's_movk_i32 s%d, 5120' % S.S_T3, 's_cselect_b32 s%d, -10240, s%d' % (S.S_T3, S.S_T3),
                                                                    'v_add_u32 v%d, s%d, v%d' % (S.XR, S.S_T3, S.XR)])); blk += 1
                tr.run('z1', S.block(blk, 1, stream=S.ep_z(0, (tile, it+1)), extra=S.place(S.stage_dma(('XS', tile+1)), sg), jump=sel(S.S_PG), tail=['s_cmp_lt_u32 s%d, 3' % S.S_CNT])); blk += 1
            tr.run('z3', ['s_nop 1'] + S.ep_z(1) + ['s_mov_b32 s%d, 4000' % S.S_TB, 's_add_u32 s%d, s%d, 1' % (S.S_TILE, S.S_TILE), 's_cmp_lt_u32 s%d, 2' % S.S_TILE])
        def E(k, st=None):
            if st and cfg.get('stamp') and cfg.get('sthead') != 2:
                a('s_cmp_eq_u32 s%d, 0', S.S_TILE); a('s_cbranch_scc0 L_c_s%da', st); stamp_mid(a, st); a('s_branch L_c_s%db', st)
                a.label('L_c_s%da' % st); stamp_mid(a, st+5); a.label('L_c_s%db' % st)
            tr.emit(a, k)
        def lpf(cond):
            a(cond); a('s_cbranch_scc1 L_c_nopf')
            a('s_lshr_b32 s60, s2, 3'); a('s_and_b32 s60, s60, 3'); a('s_lshl_b32 s60, s60, 2'); a('s_add_u32 s60, s60, s20')
            a('s_lshl_b32 s61, s60, 15'); a('s_add_u32 s61, s61, 0x%x', WS_WVOF); a('v_lshlrev_b32 v%d, 7, v0', S.XA)
            for i in range(4): a('buffer_load_dword v%d, v%d, s[8:11], s61 offen', S.XA+3, S.XA); a('s_add_u32 s61, s61, 8192')
            a('s_getpc_b64 s[64:65]'); a.label('L_pc1'); a('s_sub_u32 s64, s64, L_pc1-L_qfin1'); a('s_subb_u32 s65, s65, 0'); a('s_and_b32 s65, s65, 0xffff')
            a('s_mov_b32 s66, L_prec0-L_qfin1'); a('s_mov_b32 s67, 0x20000'); a('s_lshl_b32 s60, s60, 11'); a('v_lshlrev_b32 v%d, 5, v0', S.XA+2)
            a('buffer_load_dword v%d, v%d, s[64:67], s60 offen', S.XA+3, S.XA+2)
            a('s_waitcnt vmcnt(0)') if cfg.get('lpfw', 0) else None
            a.label('L_c_nopf')
        E('pre'); E('pre2')
        a.label('L_c_tile'); E('g0', 1)
        a.label('L_c_g'); E('g1'); E('g2'); a('s_cbranch_scc1 L_c_g')
        E('stats', 2)
        a.label('L_c_u')
        if cfg.get('lpf', 1) == 2: a('s_lshl_b32 s60, s%d, 2', S.S_TILE); a('s_add_u32 s60, s60, s%d', S.S_CNT); lpf('s_cmp_lg_u32 s60, %d' % (4 + cfg.get('lpi', 2)))
        E('u1'); a('s_cbranch_scc1 L_c_u3'); E('u2'); a('s_branch L_c_u')
        a.label('L_c_u3')
        if cfg.get('lpf', 1) == 1: lpf('s_cmp_eq_u32 s%d, 0' % S.S_TILE)
        E('u3', 3); E('z0', 4); E('z1a', 5)
        a.label('L_c_z'); E('z2'); E('z1'); a('s_cbranch_scc1 L_c_z')
        E('z3')
        a('s_cbranch_scc1 L_c_tile')
        a('s_waitcnt vmcnt(0)'); a('s_barrier')
        for x in S.flag_store(): a(x)
        a('s_branch L_k2_fin')
        a.label('L_c_spin'); a('s_mov_b32 s%d, 0', S.S_JMP)
        a.label('L_c_spin_l')
        a('buffer_load_dword v%d, v%d, s[%d:%d], 0 offen sc1', S.XA+1, S.XA+4, S_WS, S_WS+3); a('s_waitcnt vmcnt(0)')
        a('v_cmp_ne_u32 vcc, s7, v%d', S.XA+1); a('s_cbranch_vccz L_c_u')
        a('s_add_u32 s%d, s%d, 1', S.S_JMP, S.S_JMP); a('s_cmp_lt_u32 s%d, 0x40000', S.S_JMP); a('s_cbranch_scc1 L_c_spin_l')
        a('s_branch L_c_u')
```

```python
from asmlib import *
from layout import *
from gen_k0 import srd, h_frag_addr, QSCALE
from gen_ln import *
MF='v_mfma_f32_16x16x32_bf16'
XS = [192, 208, 224, 240, 112]
def entry(a, cfg):
    a('s_load_dwordx16 s[36:51], s[0:1], 0'); a('s_load_dwordx8 s[52:59], s[0:1], 64')
    a('v_lshrrev_b32 v1, 6, v0'); a('v_and_b32 v0, 63, v0'); a('v_readfirstlane_b32 s20, v1'); a('v_lshlrev_b32 v1, 4, v0')
    if cfg.get('ipf', 1):
        a('s_getpc_b64 s[72:73]'); a.label('L_pc0'); a('s_and_b32 s73, s73, 0xffff'); a('s_mov_b32 s74, L_code_end-L_pc0'); a('s_mov_b32 s75, 0x20000')
        a('s_lshr_b32 s21, s2, 3'); a('s_lshl_b32 s21, s21, 2'); a('s_add_u32 s21, s21, s20'); a('s_lshl_b32 s21, s21, 10')
        a('buffer_load_dword v7, v1, s[72:75], s21 offen')
    MAP = cfg.get('map', 2)
    if MAP == 3:
        a('s_lshr_b32 s21, s2, 3'); a('s_and_b32 s22, s2, 1')
        if cfg.get('swp', 0): a('s_xor_b32 s22, s22, 1')
        a('s_bfe_u32 s24, s2, 0x10001'); a('s_mul_i32 s24, s24, 25'); a('s_add_u32 s24, s24, s21'); a('s_lshl_b32 s24, s24, 1'); a('s_or_b32 s24, s24, s22')
        a('s_lshl_b32 s24, s24, 1'); a('s_bfe_u32 s25, s2, 0x10002'); a('s_or_b32 s24, s24, s25')
        a('s_and_b32 s25, s2, 7'); a('s_mul_i32 s25, s25, 7'); a('s_add_u32 s25, s25, s21'); a('s_add_u32 s25, s25, 175')
        a('s_cmp_lt_u32 s21, 25'); a('s_cselect_b32 s3, s24, s25')
    else:
        a('s_lshr_b32 s21, s2, 3'); a('s_and_b32 s22, s2, 1')
        if cfg.get('swp', 0): a('s_xor_b32 s22, s22, 1')
        a('s_lshl_b32 s23, s22, 1'); a('s_sub_u32 s23, 26, s23')
        a('s_bfe_u32 s24, s2, 0x10001'); a('s_mul_i32 s24, s24, 25'); a('s_mul_i32 s25, s22, 13'); a('s_add_u32 s24, s24, s25')
        a('s_lshl_b32 s24, s24, 1'); a('s_add_u32 s24, s24, s21'); a('s_lshl_b32 s24, s24, 1'); a('s_bfe_u32 s25, s2, 0x10002'); a('s_or_b32 s24, s24, s25')
        a('s_bfe_u32 s25, s2, 0x20001'); a('s_mul_i32 s25, s25, 14'); a('s_mul_i32 s26, s22, 6'); a('s_add_u32 s25, s25, s26')
        a('s_add_u32 s25, s25, s21'); a('s_sub_u32 s25, s25, s23'); a('s_add_u32 s25, s25, 200')
        a('s_cmp_lt_u32 s21, s23'); a('s_cselect_b32 s3, s24, s25')
    for x, y in cfg.get('spx', [(253, 213), (254, 227), (255, 241)]):
        a('s_cmp_eq_u32 s3, %d', x); a('s_cselect_b32 s24, %d, s3', y); a('s_cmp_eq_u32 s3, %d', y); a('s_cselect_b32 s3, %d, s24', x)
    a('v_lshrrev_b32 v2, 4, v0'); a('v_sub_u32 v4, 0, v2'); a('v_xor_b32 v4, v4, v0'); a('v_and_b32 v4, 3, v4'); a('v_lshlrev_b32 v4, 4, v4')
    a('v_lshl_add_u32 v4, v2, 13, v4'); a('v_bfe_u32 v5, v0, 2, 2'); a('v_lshl_add_u32 v4, v5, 10, v4')
    a('s_and_b32 s23, s2, 3'); a('s_lshl_b32 s23, s23, 2'); a('s_bfe_u32 s21, s2, 0x20003'); a('s_add_u32 s23, s23, s21')
    a('s_bfe_u32 s22, s2, 0x10002'); a('s_lshl_b32 s22, s22, 3'); a('s_lshr_b32 s21, s2, 5'); a('s_add_u32 s22, s22, s21')
    a('s_lshl_b32 s21, s20, 8'); a('s_lshl_b32 s24, s23, 15'); a('s_add_u32 s24, s24, s21'); a('s_add_u32 s25, s24, 4096')
    a('s_lshl_b32 s26, s22, 15'); a('s_add_u32 s26, s26, s21'); a('s_add_u32 s27, s26, 4096')
    a('s_sub_u32 s21, s3, 200'); a('s_cmp_lt_u32 s21, %d', 56 if cfg.get('dmh', 0) else 53)
    a('s_cselect_b32 s33, 0x18000, 0'); a('s_mov_b32 s31, 147456'); a('s_cselect_b32 s31, 81920, s31')
    a('s_lshl_b32 s32, s20, 14'); a('s_add_u32 s32, s32, s33'); a('s_lshl_b32 s21, s20, 11'); a('s_add_u32 s31, s31, s21')
    a('s_waitcnt lgkmcnt(0)')
    srd(a, 60, 38, 39, 524288); srd(a, 64, 40, 41, 524288)

def head_a(cfg):
    stamp = cfg.get('stamp') and cfg.get('sthead') == 2
    o = []
    if stamp: o.append(stamp_op(1))
    order = [(2*ep+h, rb) for ep in range(2) for rb in range(4) for h in range(2)] if cfg.get('hord', 1) else [(e, rb) for e in range(4) for rb in range(4)]
    if 1:
        for e, rb in order:
            o += ['s_add_u32 m0, s32, %d' % ((e*4+rb)*1024 - e*64), 's_nop 0',
                  Op('buffer_load_dwordx4 v4, s[%d:%d], s%d offen offset:%d lds' % (60+4*(rb >> 1), 63+4*(rb >> 1), 24+rb, e*64), prod=('D', e))]
    t = Asm()
    t('s_add_u32 s4, s58, 0x%x', WS_FLG + 128*FLG_E); t('s_addc_u32 s5, s59, 0'); t('s_load_dword s7, s[4:5], 0')
    srd(t, 8, 58, 59, WS_SIZE); srd(t, 72, 36, 37, 8192000)
    t('s_lshl_b32 s30, s22, 4'); t('s_add_u32 s30, s30, s23'); t('s_lshr_b32 s24, s30, 6')
    t('s_bfe_u32 s25, s30, 0x10004'); t('s_lshl_b32 s25, s25, 3'); t('s_bfe_u32 s26, s30, 0x10003'); t('s_add_u32 s25, s25, s26')
    t('s_lshl_b32 s26, s24, 1'); t('s_add_u32 s25, s25, s26'); t('s_and_b32 s26, s30, 7')
    t('s_bfe_u32 s27, s30, 0x20003'); t('s_lshl_b32 s24, s24, 2'); t('s_add_u32 s27, s27, s24')
    t('s_bitcmp0_b32 s30, 5')
    t('s_cselect_b32 s34, s25, s26'); t('s_cselect_b32 s35, s26, s27')
    t('s_cselect_b32 s68, s46, s52'); t('s_cselect_b32 s69, s47, s53'); t('s_cselect_b32 s28, 11, 10')
    SP2 = cfg.get('sp2', 0)
    t('s_mov_b32 s29, 0x%x', WS_SIZE if SP2 else WS_WMF); t('s_cselect_b32 s29, 0x%x, s29', WS_WUPF)
    if SP2: t('s_cselect_b32 s70, 0x100000, 0')
    else: t('s_mov_b32 s70, 0x%x', 0x80000 if cfg.get('dmh', 0) else 0x100000); t('s_cselect_b32 s70, 0x100000, s70')
    if cfg.get('xp_not'): t('s_mov_b32 s70, 0'); t('s_mov_b32 s29, 0x%x', WS_SIZE)
    t('s_and_b32 s69, s69, 0xffff'); t('s_mov_b32 s71, 0x20000')
    t('s_lshl_b32 s34, s34, 1'); t('s_and_b32 s21, s20, 1'); t('s_add_u32 s34, s34, s21')
    t('s_lshl_b32 s35, s35, 1'); t('s_lshr_b32 s21, s20, 1'); t('s_add_u32 s35, s35, s21')
    t('v_lshrrev_b32 v5, 2, v0'); t('v_lshlrev_b32 v5, s28, v5'); t('v_and_b32 v6, 3, v0'); t('v_lshl_add_u32 v5, v6, 4, v5')
    t('s_add_u32 s21, s28, 5'); t('s_lshl_b32 s24, s35, s21'); t('s_lshl_b32 s21, s34, 6'); t('s_add_u32 s24, s24, s21')
    t('s_lshl_b32 s21, 16, s28'); t('s_add_u32 s25, s24, s21')
    o += t.lines
    TL = cfg.get('tl', 0)
    tdm = []
    for b in range(2): tdm += ['s_add_u32 m0, s31, %d' % (b*1024), 's_nop 0', Op('buffer_load_dwordx4 v5, s[68:71], s%d offen lds' % ((18 if TL else 24)+b), prod='T')]
    if TL: o += ['s_mov_b32 s18, s24', 's_mov_b32 s19, s25']
    else: o += tdm
    t = Asm()
    t('s_lshr_b32 s24, s3, 2'); t('s_mul_i32 s24, s24, 80'); t('s_and_b32 s25, s3, 1'); t('s_mul_i32 s25, s25, 4000'); t('s_add_u32 s24, s24, s25')
    t('s_sub_u32 s25, s3, 200'); t('s_mul_i32 s25, s25, 76'); t('s_sub_u32 s25, s25, 2'); t('s_cmp_lt_u32 s3, 253'); t('s_cselect_b32 s25, s25, 0x4000')
    t('s_bfe_u32 s14, s3, 0x10001'); t('s_lshl_b32 s12, s24, 10')
    t('s_cmp_lt_u32 s3, 200')
    if cfg.get('xp_nocx'): t('s_mov_b32 s25, 0x4000')
    t('s_cselect_b32 s24, s24, s25'); t('s_cselect_b32 s26, 1, 5'); t('s_mov_b32 s27, 1024'); t('s_cselect_b32 s27, 0x4000, s27'); t('s_cselect_b32 s14, s14, 0')
    t('s_cselect_b32 s12, s12, 0x%x', WS_SIZE); t('s_cselect_b32 s13, 0x10000, 0')
    t('s_mov_b32 s6, 0x%x', WS_WUPF + 0x80000); t('s_cselect_b32 s6, 0x%x, s6', WS_MF)
    o += t.lines
    la = ln_lane_addr(12, 13, 20, 1); la = [x.replace('v_mul_u32_u24 v12, 1, v12', 'v_mul_u32_u24 v12, s26, v12') for x in la]
    o += la + ['s_lshl_b32 s24, s24, 10', 'v_add_u32 v12, s24, v12', 's_lshl_b32 s16, s14, 9', 's_xor_b32 s17, s16, 512']
    xl = []
    for q in range(5):
        if q: o.append('v_add_u32 v%d, s27, v%d' % (12+q, 11+q))
        xl.append([Op('buffer_load_dwordx4 %s, v%d, s[72:75], s%d offen offset:%d' % (vr(XS[q]+4*k,4), 12+q, 17 if k & 2 else 16, (k & 1)*256), prod=(('X', q), k)) for k in range(4)])
    X0 = cfg.get('x0', 1)
    for l in xl[:X0]: o += l
    if stamp: o.append(stamp_op(2))
    t = Asm(); h_frag_addr(t, 2, 3); t('v_add_u32 v2, s32, v2')
    t('v_and_b32 v6, 15, v0'); t('v_lshlrev_b32 v6, 4, v6'); t('v_lshrrev_b32 v3, 4, v0'); t('v_lshl_add_u32 v6, v3, 9, v6'); t('v_add_u32 v6, s31, v6')
    o += t.lines
    F = 128; D0 = 76; FS = cfg.get('fs', 7)
    for e in range(4):
        for rb in range(4): o.append(Op('ds_read_b128 %s, v2 offset:%d' % (vr(F+16*e+4*rb,4), (e*4+rb)*1024), need=[('D', e)], prod=('F', e)))
    X1 = cfg.get('x1', 2)
    for e in range(4):
        if X0+e < X1: o += xl[X0+e]
        for t2 in range(2):
            for t_ in range(2):
                D = vr(D0+8*t2+4*t_, 4)
                o.append(Op('%s %s, %s, %s, %s' % (MF, D, vr(F+16*e+4*t_,4), vr(F+16*e+8+4*t2,4), D if e else '0'), need=[('F', e)]))
    if TL == 1: o += tdm
    for t2 in range(0 if TL else 2):
        for jj in range(2): o.append(Op('ds_read_b64_tr_b16 %s, v6 offset:%d' % (vr(92+4*t2+2*jj,2), jj*256 + t2*8), need=['T'], prod=('TT', t2)))
    o += ['v_add_u32 v22, s32, v1', 's_and_b32 s21, s20, 1', 's_lshl_b32 s24, s21, 11', 's_add_u32 s24, s24, s33', 'v_add_u32 v23, s24, v1',
          's_lshl_b32 s22, s22, 1', 's_add_u32 s22, s22, s21', 's_lshl_b32 s22, s22, 14', 's_lshl_b32 s23, s23, 10', 's_add_u32 s22, s22, s23', 's_add_u32 s22, s22, 0x%x' % WS_MF,
          's_cmp_lt_u32 s20, 2', 's_cselect_b32 s22, s22, 0x%x' % WS_SIZE]
    for c in range(4): o.append('ds_write_b128 v22, %s offset:%d' % (vr(D0+4*c,4), c*1024))
    o += ['s_lshr_b32 s21, s35, 4', 's_lshl_b32 s21, s21, 19', 's_add_u32 s29, s29, s21', 's_and_b32 s21, s35, 15', 's_lshl_b32 s21, s21, 10',
          's_add_u32 s29, s29, s21', 's_lshl_b32 s21, s34, 15', 's_add_u32 s24, s29, s21']
    if cfg.get('dmh', 0): o += ['s_cmp_lt_u32 s35, 16', 's_cselect_b32 s24, s24, 0x%x' % WS_SIZE]
    o += ['s_add_u32 s25, s24, 16384']
    o.append(Op('s_barrier', need=['ALLL']))
    G = 128
    for w in range(4):
        for c in range(2): o.append(Op('ds_read_b128 %s, v23 offset:%d' % (vr(G+8*w+4*c,4), w*16384 + c*1024), prod=('R', w)))
    if TL: o += ['s_mov_b32 s34, s24', 's_mov_b32 s35, s25']
    for t2 in range(0 if TL else 2): o.append('buffer_store_dwordx4 %s, v1, s[8:11], s%d offen sc1' % (vr(92+4*t2,4), 24+t2))
    o += ['v_mov_b32 v60, 0x%x' % f2u(QSCALE), 's_add_u32 s7, s7, 0x9e3779b9', 'v_min_u32 v20, 1, v0', 'v_lshlrev_b32 v20, 30, v20', 'v_mov_b32 v21, s7',
          's_lshl_b32 s30, s30, %d' % FS, 's_add_u32 s30, s30, 0x%x' % (WS_FLG + 128*FLG_0), 's_cmp_eq_u32 s20, 0', 's_cselect_b32 s30, s30, 0x%x' % WS_SIZE,
          's_lshl_b32 s21, s20, %d' % (6+FS), 's_add_u32 s21, s21, 0x%x' % (WS_FLG + 128*FLG_0), 'v_lshl_add_u32 v18, v0, %d, s21' % FS]
    if TL: o += ['s_cmp_lt_u32 s3, 200', 's_cselect_b32 s21, 0, 0x%x' % (128*(FLG_1-FLG_0)), 'v_add_u32 v18, s21, v18', 's_add_u32 s29, s30, 0x%x' % (128*(FLG_1-FLG_0))]
    for w in range(1, 4):
        for r in range(4): o.append(Op('v_pk_add_f32 %s, %s, %s' % (vr(G+2*r,2), vr(G+2*r,2), vr(G+8*w+2*r,2)), need=[('R', w)]))
    for r in range(4): o.append('v_pk_mul_f32 %s, %s, v[60:61] op_sel_hi:[1,0]' % (vr(G+2*r,2), vr(G+2*r,2)))
    for r in range(4): o.append('v_cvt_pk_bf16_f32 v%d, v%d, v%d' % (G+r, G+2*r, G+2*r+1))
    o.append(Op('buffer_store_dwordx4 %s, v1, s[8:11], s22 offen sc1' % vr(G,4), prod='P0'))
    if TL == 2: o += tdm
    if stamp: o.append(stamp_op(3))
    return o, xl[max(X0, X1):]
FLAG0 = 'buffer_store_dword v21, v20, s[8:11], s30 offen sc1'
FLAG1 = 'buffer_store_dword v21, v20, s[8:11], s29 offen sc1'
def t_reads(): return [Op('ds_read_b64_tr_b16 %s, v6 offset:%d' % (vr(28+4*t2+2*jj,2), jj*256 + t2*8), need=['T'], prod=('TT', t2)) for t2 in range(2) for jj in range(2)]
def t_stores(): return [Op('buffer_store_dwordx4 %s, v1, s[8:11], s%d offen sc1' % (vr(28+4*t2,4), 34+t2), need=[('TT', t2)], prod='P1') for t2 in range(2)]
POLL0 = 'buffer_load_dword v19, v18, s[8:11], 0 offen sc1'
def spin0(a, name, back):
    a.label(name); a('s_mov_b32 s21, 0'); a.label(name + '_l')
    a(POLL0); a('s_waitcnt vmcnt(0)'); a('v_cmp_ne_u32 vcc, s7, v19'); a('s_cbranch_vccz %s', back)
    a('s_add_u32 s21, s21, 1'); a('s_cmp_lt_u32 s21, 0x40000'); a('s_cbranch_scc1 %s_l', name); a('s_branch %s', back)
def head_b(cfg, xlate, atag):
    stamp = cfg.get('stamp') and cfg.get('sthead') == 2
    o = ln_h_addr(17, 3, 20) + ['s_lshl_b32 s21, s14, 13', 'v_add_u32 v17, s21, v17', 'v_add_u32 v8, s13, v17', 'v_xor_b32 v9, 0x2000, v8',
                                'v_add_u32 v10, 0x10000, v8', 'v_add_u32 v11, 0x10000, v9', 's_mov_b32 s15, 0xffff0000',
                                's_lshl_b32 s21, s20, 17', 's_add_u32 s6, s6, s21', Op('v_mov_b32 v66, 0x3f803f80')]
    if cfg.get('q6', 1): o += ['s_mul_i32 s21, s14, 98304', 's_add_u32 s6, s6, s21']
    def wr(q, k, reg):
        off = q*16384 + (k & 1)*4096
        r = [Op('ds_write_b128 v%d, %s offset:%d' % (8 + (k >> 1) + 2*(off//65536), vr(reg,4), off % 65536), prod=('XS', 0))]
        if k < 2: r += ['s_add_u32 s24, s12, %d' % off, Op('buffer_store_dwordx4 %s, v17, s[8:11], s24 offen sc1' % vr(reg,4), prod='XST')]
        return r
    al = []
    for f in range(14):
        al.append(Op('buffer_load_dwordx4 %s, v1, s[8:11], s6 offen offset:%d sc1' % (vr(128+4*f,4), (f%4)*1024), prod=atag(f)))
        if f % 4 == 3: al.append('s_add_u32 s6, s6, 4096')
    PF = cfg.get('hpf', 0); PP = cfg.get('hpp', 3); PC = cfg.get('hpc', 3)
    xlate = list(xlate)
    DMH = cfg.get('dmh', 0); dml = [[] for _ in range(5)]
    if DMH:
        t = Asm(); srd(t, 60, 50, 51, 524288); srd(t, 64, 52, 53, 1048576)
        t('s_and_b32 s23, s3, 15'); t('s_lshr_b32 s22, s3, 4'); t('s_lshl_b32 s21, s20, 8'); t('s_lshl_b32 s26, s23, 15'); t('s_add_u32 s26, s26, s21'); t('s_add_u32 s27, s26, 4096')
        t('s_lshl_b32 s28, s20, 17'); t('s_lshl_b32 s21, s22, 6'); t('s_add_u32 s28, s28, s21'); t('s_add_u32 s28, s28, 0x80000')
        t('v_lshrrev_b32 v5, 2, v0'); t('v_lshlrev_b32 v5, 10, v5'); t('v_and_b32 v3, 3, v0'); t('v_lshl_add_u32 v5, v3, 4, v5')
        t('s_sub_u32 s21, s32, s31'); t('v_add_u32 v6, s21, v6')
        t('s_and_b32 s21, s20, 1'); t('s_lshl_b32 s22, s22, 1'); t('s_add_u32 s22, s22, s21'); t('s_lshl_b32 s22, s22, 14'); t('s_lshl_b32 s23, s23, 10'); t('s_add_u32 s22, s22, s23')
        t('s_add_u32 s22, s22, 0x%x', WS_WDMF); t('s_cmp_lt_u32 s20, 2'); t('s_cselect_b32 s22, s22, 0x%x', WS_SIZE)
        o += t.lines
        dl = []
        for rb in range(2):
            for e in range(4): dl.append(Op('buffer_x\ns_add_u32 m0, s32, %d\ns_nop 0\nbuffer_load_dwordx4 v4, s[60:63], s%d offen offset:%d lds' % ((e*4+rb)*1024 - e*64, 26+rb, e*64), prod='D2'))
        for e in range(4):
            for b in range(2): dl.append(Op('buffer_x\ns_add_u32 m0, s32, %d\ns_add_u32 s29, s28, %d\nbuffer_load_dwordx4 v5, s[64:67], s29 offen lds' % ((e*4+2+b)*1024, (2*e+b)*16384), prod='D2'))
        cnt = cfg.get('dmc', [0, 6, 10, 0, 0])
        for q in range(5): dml[q] = dl[:cnt[q]]; dl = dl[cnt[q]:]
        assert not dl and all(c == 0 for c in cnt[:PF+1])
    for q in range(5):
        p = ln_pass1(XS[q], 76, 60, ('X', q), 15, 66, (lambda k, reg, q=q: wr(q, k, reg)))
        ex = oplist(xlate.pop(0)) if xlate else []
        ex += dml[q]
        if q == cfg.get('upq', 2) and cfg.get('upf', 1) and cfg.get('dmv', 1) and not DMH:
            o += ['s_mov_b32 s60, s50', 's_and_b32 s61, s51, 0xffff', 's_sub_u32 s21, s3, 200', 's_cmp_lt_u32 s21, 48', 's_cselect_b32 s62, 0x80000, 0', 's_mov_b32 s63, 0x20000',
                  's_and_b32 s21, s21, 15', 's_lshl_b32 s21, s21, 2', 's_add_u32 s21, s21, s20', 's_lshl_b32 s22, s21, 13', 'v_lshlrev_b32 v24, 7, v0']
            ex.append(Op('buffer_load_dword v24, v24, s[60:63], s22 offen'))
        if q == PC+1: ex += oplist(al); al = []
        nd = sum(1 for x in ex if kind_of(x) == 'D'); step = max(1, len(p)//(nd+1))
        for i, x in enumerate(p):
            if cfg.get('tl', 0):
                if q == cfg.get('tq', 1) and i == 0: o += t_reads()
                if q == cfg.get('tq', 1) and i == 20: o += t_stores()
                if (q, i) == cfg.get('tf', (2, 60)): o += [Op('s_barrier', need=['P1']), FLAG1]
            if q == PP and i == cfg.get('hpi', 0): o.append(Op(POLL0, prod='F0'))
            if q == PF and i == cfg.get('hfi', 80):
                o += [Op('s_barrier', need=['P0']), FLAG0]
                if stamp: o.append(stamp_op(4))
            o.append(x)
            if ex and i % step == step-1:
                o.append(ex.pop(0))
                while ex and kind_of(ex[0]) != 'D': o.append(ex.pop(0))
        o += ex
        if q == PF and cfg.get('hfi', 80) >= len(p):
            o += [Op('s_barrier', need=['P0']), FLAG0]
            if stamp: o.append(stamp_op(4))
        if q == PC:
            o += [Op('v_cmp_ne_u32 vcc, s7, v19', need=['F0']), 's_cbranch_vccnz L_spin0', 'L_ok0:']
            if stamp: o.append(stamp_op(5))
    o += al
    if DMH:
        D0 = 76; G = 28
        for e in range(4):
            for rb in range(2): o.append(Op('ds_read_b128 %s, v2 offset:%d' % (ar(16*e+4*rb,4), (e*4+rb)*1024), need=['D2'], prod=('F2', e)))
            for t2 in range(2):
                for jj in range(2): o.append(Op('ds_read_b64_tr_b16 %s, v6 offset:%d' % (ar(16*e+8+4*t2+2*jj,2), (e*4+2)*1024 + jj*256 + t2*8), prod=('F2', e)))
            for ee in ([e-1] if 0 < e < 3 else ([2, 3] if e == 3 else [])):
                for t2 in range(2):
                    for t_ in range(2):
                        D = vr(D0+8*t2+4*t_, 4)
                        o.append(Op('%s %s, %s, %s, %s' % (MF, D, ar(16*ee+4*t_,4), ar(16*ee+8+4*t2,4), D if ee else '0'), need=[('F2', ee)]))
        o.append('s_nop 4')
        for c in range(4): o.append('ds_write_b128 v22, %s offset:%d' % (vr(D0+4*c,4), c*1024))
        o.append(Op('s_barrier', need=['ALLL']))
        for w in range(4):
            for c in range(2): o.append(Op('ds_read_b128 %s, v23 offset:%d' % (vr(G+8*w+4*c,4), w*16384 + c*1024), prod=('R2', w)))
        for w in range(1, 4):
            for r in range(4): o.append(Op('v_pk_add_f32 %s, %s, %s' % (vr(G+2*r,2), vr(G+2*r,2), vr(G+8*w+2*r,2)), need=[('R2', w)]))
        for r in range(4): o.append('v_cvt_pk_bf16_f32 v%d, v%d, v%d' % (24+r, G+2*r, G+2*r+1))
        o.append(Op('buffer_store_dwordx4 v[24:27], v1, s[8:11], s22 offen sc1', prod='XST'))
    if stamp: o.append(stamp_op(6))
    return o
```

```python
from asmlib import *
from layout import *
MF='v_mfma_f32_16x16x32_bf16'
QSCALE = 512.0**-0.5 * 1.4426950408889634

def srd(a, s, lo, hi, size):
    a('s_mov_b32 s%d, s%d', s, lo); a('s_and_b32 s%d, s%d, 0xffff', s+1, hi); a('s_mov_b32 s%d, 0x%x', s+2, size); a('s_mov_b32 s%d, 0x20000', s+3)
def h_frag_addr(a, dst, t):
    a('v_bfe_u32 v%d, v0, 2, 2', t); a('v_sub_u32 v%d, 0, v%d', t, t); a('v_lshrrev_b32 v%d, 4, v0', dst)
    a('v_xor_b32 v%d, v%d, v%d', t, t, dst); a('v_and_b32 v%d, 3, v%d', t, t)
    a('v_and_b32 v%d, 15, v0', dst); a('v_lshl_add_u32 v%d, v%d, 2, v%d', dst, dst, t); a('v_lshlrev_b32 v%d, 4, v%d', dst, dst)

def gen_k0(a0, name='prep_kernel', stamp=0, cfg={}):
    a = a0; SC = ' sc1' if cfg.get('sc0', 1) else ''; PRE = cfg.get('k0pre', 8)
    kernel_header(a, name)
    a('s_cmp_ge_u32 s2, 256'); a('s_cbranch_scc1 L_k0_end')
    if stamp: stamp_begin(a)
    a('s_load_dwordx16 s[36:51], s[0:1], 0')
    a('s_load_dwordx2 s[52:53], s[0:1], 64')
    a('s_load_dwordx2 s[54:55], s[0:1], 88')
    a('s_load_dwordx2 s[4:5], s[0:1], 72')
    a('v_lshrrev_b32 v1, 6, v0'); a('v_and_b32 v0, 63, v0'); a('v_readfirstlane_b32 s20, v1')
    a('v_lshlrev_b32 v1, 4, v0')
    a('s_and_b32 s21, s20, 1'); a('s_lshl_b32 s21, s21, 1')
    a('v_bfe_u32 v2, v0, 4, 1'); a('v_add_u32 v2, s21, v2'); a('v_sub_u32 v2, 0, v2'); a('v_xor_b32 v2, v2, v0'); a('v_and_b32 v2, 3, v2')
    a('v_bfe_u32 v3, v0, 2, 3'); a('v_lshlrev_b32 v3, 10, v3'); a('v_lshl_add_u32 v3, v2, 4, v3')
    a('v_lshrrev_b32 v2, 5, v0'); a('v_lshl_add_u32 v3, v2, 6, v3')
    a('v_and_b32 v7, 31, v0'); a('v_lshlrev_b32 v7, 4, v7'); a('v_lshl_add_u32 v7, v2, 10, v7')
    a('s_and_b32 s33, s2, 3'); a('s_lshl_b32 s33, s33, 3'); a('s_lshr_b32 s34, 0x5f3f2000, s33'); a('s_and_b32 s34, s34, 0xff')
    a('s_lshr_b32 s35, 0x7d5f3f20, s33'); a('s_and_b32 s35, s35, 0xff')
    a('s_lshr_b32 s33, s2, 3'); a('s_add_u32 s34, s34, s33'); a('s_bfe_u32 s33, s2, 0x10002'); a('s_mul_i32 s33, s33, 125'); a('s_add_u32 s33, s33, s34')
    a('s_cmp_lt_u32 s34, s35'); a('s_cselect_b32 s33, s33, 250')
    a('s_lshl_b32 s22, s33, 2'); a('s_add_u32 s22, s22, s20'); a('s_lshl_b32 s30, s22, 13')
    a('s_lshr_b32 s31, s22, 1'); a('s_lshl_b32 s31, s31, 14'); a('s_lshl_b32 s21, s21, 8'); a('s_add_u32 s31, s31, s21')
    a('s_waitcnt lgkmcnt(0)')
    if cfg.get('tlb', 0):
        for i, p in enumerate((38, 40, 44, 46, 50, 52, 42, 48)): a('s_load_dword s%d, s[%d:%d], 0', 64+i, p, p+1)
        a('s_lshr_b32 s72, s2, 3'); a('s_lshl_b32 s72, s72, 21'); a('s_load_dword s73, s[54:55], s72')
        a('s_and_b32 s72, s72, 0x7fffff'); a('s_load_dword s74, s[4:5], s72'); a('s_load_dword s75, s[36:37], s72')
    srd(a, 56, 36, 37, 8192000); srd(a, 8, 54, 55, WS_SIZE); srd(a, 60, 54, 55, 8192000)
    assert WS_XA == 0
    if stamp: stamp_mid(a, 1)
    for k in range(8): a('buffer_load_dwordx4 %s, v3, s[56:59], s30 offen offset:%d', vr(8+4*k,4), k*128)
    if stamp: stamp_mid(a, 2)
    if cfg.get('fuse3', 1):
        a('v_lshlrev_b32 v2, 2, v0'); a('v_mov_b32 v4, 0'); a('s_lshl_b32 s33, s2, 8'); a('s_add_u32 s33, s33, 0x%x', WS_FLG)
        a('buffer_store_dword v4, v2, s[8:11], s33 offen sc1')
    a('v_lshrrev_b32 v2, 4, v0'); a('v_sub_u32 v4, 0, v2'); a('v_xor_b32 v4, v4, v0'); a('v_and_b32 v4, 3, v4'); a('v_lshlrev_b32 v4, 4, v4')
    a('v_lshl_add_u32 v4, v2, 13, v4'); a('v_bfe_u32 v5, v0, 2, 2'); a('v_lshl_add_u32 v4, v5, 10, v4')
    a('s_lshl_b32 s32, s20, 15')
    a('s_bfe_u32 s21, s2, 0x20001'); a('s_bfe_u32 s22, s2, 0x30003')
    a('s_and_b32 s23, s2, 1'); a('s_lshl_b32 s23, s23, 2'); a('s_lshr_b32 s27, s2, 6'); a('s_add_u32 s23, s23, s27')
    a('s_cmp_eq_u32 s21, 3'); a('s_cbranch_scc1 L_tr')
    a('s_lshl_b32 s24, s23, 16'); a('s_lshl_b32 s27, s20, 8'); a('s_add_u32 s24, s24, s27')
    def stageA(e, sr, sb, lds):
        return [['s_add_u32 m0, s32, %d' % (lds + (e*4+rb)*1024), 's_add_u32 s27, s%d, %d' % (sb, (rb >> 1)*32768 + (rb & 1)*4096 + e*64),
                 Op('buffer_load_dwordx4 v4, s[%d:%d], s27 offen lds' % (sr, sr+3), prod=('D', e))] for rb in range(4)]
    def layernorm(tr, dmas):
        a = Asm(); X = 40; marks = {}
        for k in range(8):
            marks[len(a.lines)] = ('X', k)
            for r in range(4):
                a('v_lshlrev_b32 v%d, 16, v%d', X+8*k+2*r, 8+4*k+r); a('v_and_b32 v%d, 0xffff0000, v%d', X+1+8*k+2*r, 8+4*k+r)
            if stamp and k in (0, 7): stamp_mid(a, 4 + k//7)
            for r in range(4):
                p = vr(X+8*k+2*r,2)
                if k == 0 and r == 0: continue
                a('v_pk_add_f32 v[104:105], %s, %s', vr(X,2) if (k == 0 and r == 1) else 'v[104:105]', p)
        def red(v):
            a('v_add_f32 v%d, v%d, v%d', v, v, v+1); a('s_nop 1')
            a('v_add_f32_dpp v%d, v%d, v%d quad_perm:[1,0,3,2] row_mask:0xf bank_mask:0xf', v, v, v); a('s_nop 1')
            a('v_add_f32_dpp v%d, v%d, v%d quad_perm:[2,3,0,1] row_mask:0xf bank_mask:0xf', v, v, v)
            a('v_mov_b32 v%d, v%d', v+1, v); a('s_nop 1'); a('v_permlane32_swap_b32 v%d, v%d', v+1, v); a('v_add_f32 v%d, v%d, v%d', v, v, v+1)
        red(104)
        a('v_mul_f32 v104, 0x%x, v104', f2u(1/512.0))
        for r in range(32): a('v_pk_add_f32 %s, %s, v[104:105] op_sel_hi:[1,0] neg_lo:[0,1] neg_hi:[0,1]', vr(X+2*r,2), vr(X+2*r,2))
        a('v_pk_mul_f32 v[106:107], %s, %s', vr(X,2), vr(X,2)); a('v_pk_mul_f32 v[108:109], %s, %s', vr(X+2,2), vr(X+2,2))
        for r in range(2,32): a('v_pk_fma_f32 %s, %s, %s, %s', vr(106+2*(r&1),2), vr(X+2*r,2), vr(X+2*r,2), vr(106+2*(r&1),2))
        a('v_pk_add_f32 v[106:107], v[106:107], v[108:109]')
        red(106)
        a('v_mov_b32 v104, 0x%x', f2u(1e-5)); a('v_fmac_f32 v104, 0x%x, v106', f2u(1/512.0)); a('v_rsq_f32 v104, v104'); a('s_nop 0')
        nvalu = len(a.lines)
        for k in range(8):
            for r in range(4): a('v_pk_mul_f32 %s, %s, v[104:105] op_sel_hi:[1,0]', vr(X+8*k+2*r,2), vr(X+8*k+2*r,2))
            for r in range(4): a('v_cvt_pk_bf16_f32 v%d, v%d, v%d', 8+4*k+r, X+8*k+2*r, X+1+8*k+2*r)
            if k and k % 2 == 0: a('s_add_u32 s31, s31, 4096')
            a('buffer_store_dwordx4 %s, v7, s[60:63], s31 offen offset:%d%s', vr(8+4*k,4), (k%2)*2048, SC)
        if stamp: stamp_mid(a, 6)
        ops = []
        for d in dmas[:PRE]: ops += d
        if stamp: ops.append(stamp_op(3))
        rest = dmas[PRE:]; NI = cfg.get('k0in', 12)
        inl, after = rest[:NI], rest[NI:]; step = max(1, nvalu//(len(inl)+1))
        for i, l in enumerate(a.lines):
            ops.append(Op(l, need=[marks[i]] if i in marks else [], prod='ST' if l.startswith('buffer_store') else None))
            if inl and i % step == step-1: ops += inl.pop(0)
        for d in inl + after: ops += d
        return ops
    def readback():
        if not cfg.get('rb', 1): return []
        return ['v_lshrrev_b32 v8, 2, v0', 'v_lshlrev_b32 v8, 10, v8', 'v_and_b32 v9, 3, v0', 'v_lshl_add_u32 v8, v9, 7, v8', 's_sub_u32 s31, s31, 12288',
                Op('buffer_load_dword v9, v8, s[60:63], s31 offen', need=['ST'])]
    def xtrace():
        tr = Trace(); tr.run('x', [Op('buffer_load x', prod=('X', k)) for k in range(8)] + (['buffer_store f'] if cfg.get('fuse3', 1) else [])); return tr
    def core(trm, dmas):
        tr = xtrace(); o = layernorm(tr, dmas)
        t = Asm(); h_frag_addr(t, 2, 3); t('v_add_u32 v2, s32, v2'); o += t.lines
        for e in range(4):
            o.append(Op(None, need=[('D', e)]))
            if stamp and e in (0, 3): o.append(stamp_op(7 + e//3))
            F = 112 + 32*(e & 1)
            for rb in range(4): o.append('ds_read_b128 %s, v2 offset:%d' % (vr(F+4*rb,4), (e*4+rb)*1024))
            for nb in range(4):
                if trm:
                    for jj in range(2): o.append(Op('ds_read_b64_tr_b16 %s, v6 offset:%d' % (vr(F+16+4*nb+2*jj,2), 16384 + e*4096 + (nb >> 1)*1024 + jj*256 + (nb & 1)*8), prod=('B', e, nb)))
                else: o.append(Op('ds_read_b128 %s, v2 offset:%d' % (vr(F+16+4*nb,4), 16384 + (e*4+nb)*1024), prod=('B', e, nb)))
            if e == 3: o += readback()
            for nb in range(4):
                for rb in range(4):
                    D = vr(40 + 16*((rb >> 1) + 2*(nb >> 1)) + 8*(nb & 1) + 4*(rb & 1), 4)
                    o.append(Op('%s %s, %s, %s, %s' % (MF, D, vr(F+4*rb,4), vr(F+16+4*nb,4), D if e else '0'), need=[('B', e, nb)]))
        tr.run('c', o); tr.emit(a0, 'c')
    def nat_addr(rowshift):
        a('v_lshrrev_b32 v5, 2, v0'); a('v_lshlrev_b32 v5, %d, v5', rowshift); a('v_and_b32 v6, 3, v0'); a('v_lshl_add_u32 v5, v6, 4, v5')
    a('s_cmp_eq_u32 s21, 0'); a('s_cbranch_scc0 L_prod_t')
    srd(a, 12, 38, 39, 524288); srd(a, 16, 40, 41, 524288)
    a('s_lshl_b32 s25, s22, 16'); a('s_lshl_b32 s27, s20, 8'); a('s_add_u32 s25, s25, s27')
    dm = []
    for e in range(4): dm += stageA(e, 12, 24, 0) + stageA(e, 16, 25, 16384)
    a('s_mov_b32 s28, 0x%x', WS_MF); a('s_mov_b32 s29, 0x%x', f2u(QSCALE))
    core(False, dm)
    a('s_branch L_prod_out')
    a.label('L_prod_t')
    srd(a, 16, 52, 53, 1048576)
    a('s_cmp_eq_u32 s21, 1'); a('s_cbranch_scc0 L_prod_dm')
    srd(a, 12, 44, 45, 524288); a('s_mov_b32 s25, 0'); a('s_mov_b32 s28, 0x%x', WS_T1F); a('s_branch L_prod_t2')
    a.label('L_prod_dm')
    srd(a, 12, 50, 51, 524288); a('s_mov_b32 s25, 524288'); a('s_mov_b32 s28, 0x%x', WS_WDMF)
    a.label('L_prod_t2')
    a('s_mov_b32 s29, 1.0')
    nat_addr(10)
    a('s_lshl_b32 s27, s22, 7'); a('s_add_u32 s25, s25, s27'); a('s_lshl_b32 s27, s20, 17'); a('s_add_u32 s25, s25, s27')
    dm = []
    for e in range(4):
        dm += stageA(e, 12, 24, 0)
        for b in range(4):
            dm.append(['s_add_u32 m0, s32, %d' % (16384 + (e*4+b)*1024), 's_add_u32 s27, s25, %d' % ((e*32 + (b >> 1)*16)*1024 + (b & 1)*64),
                       Op('buffer_load_dwordx4 v5, s[16:19], s27 offen lds', prod=('D', e))])
    a('v_and_b32 v6, 15, v0'); a('v_lshlrev_b32 v6, 4, v6'); a('v_bfe_u32 v2, v0, 4, 1'); a('v_lshl_add_u32 v6, v2, 9, v6')
    a('v_lshrrev_b32 v2, 5, v0'); a('v_lshl_add_u32 v6, v2, 11, v6'); a('v_add_u32 v6, s32, v6')
    core(True, dm)
    a.label('L_prod_out')
    if stamp: stamp_mid(a, 9)
    a('v_add_u32 v2, s32, v1'); a('s_lshl_b32 s27, s20, 12'); a('v_add_u32 v3, s27, v1'); a('v_add_u32 v4, 0x10000, v3')
    a('s_nop 4')
    for c in range(16): a('ds_write_b128 v2, %s offset:%d', vr(40+4*c,4), c*1024)
    a('s_lshl_b32 s26, s22, 16'); a('s_lshr_b32 s27, s20, 1'); a('s_lshl_b32 s27, s27, 15'); a('s_add_u32 s26, s26, s27')
    a('s_lshl_b32 s27, s23, 11'); a('s_add_u32 s26, s26, s27'); a('s_and_b32 s27, s20, 1'); a('s_lshl_b32 s27, s27, 10'); a('s_add_u32 s26, s26, s27')
    a('s_add_u32 s26, s26, s28'); a('s_add_u32 s27, s26, 16384')
    a('s_waitcnt lgkmcnt(0)'); a('s_barrier')
    for w in range(4):
        for c in range(4): a('ds_read_b128 %s, v%d offset:%d', vr(40+16*w+4*c,4), 3 + (w >> 1), (w & 1)*32768 + c*1024)
    a('v_mov_b32 v6, s29')
    a('s_waitcnt lgkmcnt(8)')
    for r in range(8): a('v_pk_add_f32 %s, %s, %s', vr(40+2*r,2), vr(40+2*r,2), vr(56+2*r,2))
    a('s_waitcnt lgkmcnt(0)')
    for r in range(8): a('v_pk_add_f32 %s, %s, %s', vr(72+2*r,2), vr(72+2*r,2), vr(88+2*r,2))
    for r in range(8): a('v_pk_add_f32 %s, %s, %s', vr(40+2*r,2), vr(40+2*r,2), vr(72+2*r,2))
    for r in range(8): a('v_pk_mul_f32 %s, %s, v[6:7] op_sel_hi:[1,0]', vr(40+2*r,2), vr(40+2*r,2))
    for r in range(8): a('v_cvt_pk_bf16_f32 v%d, v%d, v%d', 112+r, 40+2*r, 41+2*r)
    a('buffer_store_dwordx4 v[112:115], v1, s[8:11], s26 offen' + SC); a('buffer_store_dwordx4 v[116:119], v1, s[8:11], s27 offen' + SC)
    if stamp: stamp_end(a, stamp, 20)
    a('s_endpgm')
    a.label('L_tr')
    srd(a, 16, 46, 47, 1048576)
    nat_addr(11)
    a('s_lshr_b32 s22, s2, 3'); a('s_and_b32 s23, s2, 1'); a('s_lshl_b32 s23, s23, 2'); a('s_add_u32 s23, s23, s20')
    a('s_lshl_b32 s25, s22, 6'); a('s_lshl_b32 s27, s23, 17'); a('s_add_u32 s25, s25, s27')
    dm = [['s_add_u32 m0, s32, %d' % (b*1024), 's_add_u32 s27, s25, %d' % (b*16*2048), Op('buffer_load_dwordx4 v5, s[16:19], s27 offen lds', prod='D')] for b in range(4)]
    tr = xtrace(); tr.run('l', layernorm(tr, dm) + [Op(None, need=['D'])]); tr.emit(a, 'l')
    a('v_and_b32 v6, 15, v0'); a('v_lshlrev_b32 v6, 4, v6'); a('v_lshrrev_b32 v2, 4, v0'); a('v_lshl_add_u32 v6, v2, 9, v6'); a('v_add_u32 v6, s32, v6')
    a('s_lshl_b32 s26, s22, 15'); a('s_lshl_b32 s27, s23, 11'); a('s_add_u32 s26, s26, s27'); a('s_add_u32 s26, s26, 0x%x', WS_WUPF); a('s_add_u32 s27, s26, 16384')
    for e in range(2):
        for t2 in range(2):
            for jj in range(2): a('ds_read_b64_tr_b16 %s, v6 offset:%d', vr(112+8*e+4*t2+2*jj,2), e*2048 + jj*256 + t2*8)
    a('s_waitcnt lgkmcnt(0)')
    for e in range(2):
        for t2 in range(2): a('buffer_store_dwordx4 %s, v1, s[8:11], s%d offen offset:%d%s', vr(112+8*e+4*t2,4), 26+t2, e*1024, SC)
    if cfg.get('rb', 1):
        for o in oplist(readback()):
            if o.need: a('s_waitcnt vmcnt(4)')
            a(o.text)
    if stamp: stamp_end(a, stamp, 20)
    a.label('L_k0_end')
    a('s_endpgm')
K0_LAUNCH = 'grid=(256,1,1) block=(256,1,1) lds=131072'
def k0_desc(a, name='prep_kernel'): kernel_desc(a, name, 176, 176, 102)
if __name__ == '__main__':
    a = Asm()
    a('; @launch kernel=prep_kernel ' + K0_LAUNCH)
    a('.amdgcn_target "amdgcn-amd-amdhsa--gfx950"')
    gen_k0(a, stamp=WS_STAMP); k0_desc(a)
    open('k0.s', 'w').write(a.text())
```

```python
from asmlib import *
from layout import *
from gen_k0 import srd, h_frag_addr, QSCALE
MF='v_mfma_f32_16x16x32_bf16'

def gen_k0(a, name='prep_kernel', stamp=0, cfg={}):
    SC = ' sc1' if cfg.get('sc0', 1) else ''
    kernel_header(a, name)
    a('s_cmp_lt_u32 s2, 256'); a('s_cbranch_scc1 L_k0_go'); a('s_endpgm'); a.label('L_k0_go')
    if stamp: stamp_begin(a)
    a('s_load_dwordx4 s[36:39], s[0:1], 0'); a('s_load_dwordx2 s[40:41], s[0:1], 16')
    a('s_load_dwordx2 s[46:47], s[0:1], 40'); a('s_load_dwordx2 s[52:53], s[0:1], 64'); a('s_load_dwordx2 s[54:55], s[0:1], 88')
    a('v_lshrrev_b32 v1, 6, v0'); a('v_and_b32 v0, 63, v0'); a('v_readfirstlane_b32 s20, v1')
    a('v_lshlrev_b32 v1, 4, v0')
    a('v_lshrrev_b32 v2, 4, v0'); a('v_sub_u32 v4, 0, v2'); a('v_xor_b32 v4, v4, v0'); a('v_and_b32 v4, 3, v4'); a('v_lshlrev_b32 v4, 4, v4')
    a('v_lshl_add_u32 v4, v2, 13, v4'); a('v_bfe_u32 v5, v0, 2, 2'); a('v_lshl_add_u32 v4, v5, 10, v4')
    a('s_and_b32 s23, s2, 3'); a('s_lshl_b32 s23, s23, 2'); a('s_bfe_u32 s21, s2, 0x20003'); a('s_add_u32 s23, s23, s21')
    a('s_bfe_u32 s22, s2, 0x10002'); a('s_lshl_b32 s22, s22, 3'); a('s_lshr_b32 s21, s2, 5'); a('s_add_u32 s22, s22, s21')
    a('s_lshl_b32 s21, s20, 8'); a('s_lshl_b32 s24, s23, 15'); a('s_add_u32 s24, s24, s21'); a('s_add_u32 s25, s24, 4096')
    a('s_lshl_b32 s26, s22, 15'); a('s_add_u32 s26, s26, s21'); a('s_add_u32 s27, s26, 4096')
    a('s_mul_i32 s32, s20, 18432')
    a('s_and_b32 s21, s20, 1'); a('s_lshl_b32 s21, s21, 1')
    if not cfg.get('ln2', 1):
        a('v_bfe_u32 v2, v0, 4, 1'); a('v_add_u32 v2, s21, v2'); a('v_sub_u32 v2, 0, v2'); a('v_xor_b32 v2, v2, v0'); a('v_and_b32 v2, 3, v2')
        a('v_bfe_u32 v3, v0, 2, 3'); a('v_lshlrev_b32 v3, 10, v3'); a('v_lshl_add_u32 v3, v2, 4, v3')
        a('v_lshrrev_b32 v2, 5, v0'); a('v_lshl_add_u32 v3, v2, 6, v3')
        a('v_and_b32 v7, 31, v0'); a('v_lshlrev_b32 v7, 4, v7'); a('v_lshl_add_u32 v7, v2, 10, v7')
    a('s_and_b32 s33, s2, 3'); a('s_lshl_b32 s33, s33, 3'); a('s_lshr_b32 s34, 0x5f3f2000, s33'); a('s_and_b32 s34, s34, 0xff')
    a('s_lshr_b32 s35, 0x7d5f3f20, s33'); a('s_and_b32 s35, s35, 0xff')
    a('s_lshr_b32 s33, s2, 3'); a('s_add_u32 s34, s34, s33'); a('s_bfe_u32 s33, s2, 0x10002'); a('s_mul_i32 s33, s33, 125'); a('s_add_u32 s33, s33, s34')
    a('s_cmp_lt_u32 s34, s35'); a('s_cselect_b32 s33, s33, 250')
    a('s_lshl_b32 s33, s33, 2'); a('s_add_u32 s33, s33, s20'); a('s_lshl_b32 s30, s33, 13')
    a('s_lshr_b32 s31, s33, 1'); a('s_lshl_b32 s31, s31, 14'); a('s_lshl_b32 s21, s21, 8'); a('s_add_u32 s31, s31, s21')
    a('s_waitcnt lgkmcnt(0)')
    srd(a, 56, 36, 37, 8192000); srd(a, 12, 38, 39, 524288); srd(a, 16, 40, 41, 524288)
    assert WS_XA == 0
    if stamp: stamp_mid(a, 1)
    tr = Trace(); o = []
    xl = [Op('buffer_load_dwordx4 %s, v3, s[56:59], s30 offen offset:%d' % (vr(8+4*k,4), k*128), prod=('X', k)) for k in range(8)]
    dm = []
    for e in range(4):
        for rb in range(4):
            dm.append(['s_add_u32 m0, s32, %d' % ((e*4+rb)*1024 - e*64), 's_nop 0',
                       Op('buffer_load_dwordx4 v4, s[%d:%d], s%d offen offset:%d lds' % (12+4*(rb >> 1), 15+4*(rb >> 1), 24+rb, e*64), prod=('D', e))])
    XF = cfg.get('k0xf', 1); LN2 = cfg.get('ln2', 1)
    if LN2: XF = 0; xl = []
    if XF: o += xl
    PRE = cfg.get('k0pre', 16)
    for d in dm[:PRE]: o += d
    if not XF: o += xl
    if stamp: o.append(stamp_op(2))
    t = Asm()
    srd(t, 8, 54, 55, WS_SIZE); srd(t, 60, 54, 55, 8192000)
    t('s_cmp_lt_u32 s2, 128')
    t('s_cselect_b32 s64, s46, s52'); t('s_cselect_b32 s65, s47, s53'); t('s_cselect_b32 s28, 11, 10'); t('s_cselect_b32 s29, 4, 3')
    t('s_mov_b32 s35, 0x%x', WS_WMF); t('s_cselect_b32 s35, 0x%x, s35', WS_WUPF)
    t('s_and_b32 s65, s65, 0xffff'); t('s_mov_b32 s66, 0x100000'); t('s_mov_b32 s67, 0x20000')
    t('s_and_b32 s33, s2, 127'); t('s_lshr_b32 s34, s33, s29'); t('s_lshl_b32 s21, s34, s29'); t('s_sub_u32 s33, s33, s21')
    t('s_lshl_b32 s33, s33, 1'); t('s_and_b32 s21, s20, 1'); t('s_add_u32 s33, s33, s21')
    t('s_lshl_b32 s34, s34, 1'); t('s_lshr_b32 s21, s20, 1'); t('s_add_u32 s34, s34, s21')
    t('v_lshrrev_b32 v5, 2, v0'); t('v_lshlrev_b32 v5, s28, v5'); t('v_and_b32 v6, 3, v0'); t('v_lshl_add_u32 v5, v6, 4, v5')
    t('s_add_u32 s21, s28, 5'); t('s_lshl_b32 s42, s34, s21'); t('s_lshl_b32 s21, s33, 6'); t('s_add_u32 s42, s42, s21')
    t('s_lshl_b32 s21, 16, s28'); t('s_add_u32 s43, s42, s21')
    t('s_lshr_b32 s21, s34, 4'); t('s_lshl_b32 s21, s21, 19'); t('s_add_u32 s35, s35, s21'); t('s_and_b32 s21, s34, 15'); t('s_lshl_b32 s21, s21, 10')
    t('s_add_u32 s35, s35, s21'); t('s_lshl_b32 s21, s33, 15'); t('s_add_u32 s44, s35, s21'); t('s_add_u32 s45, s44, 16384')
    t('v_and_b32 v6, 15, v0'); t('v_lshlrev_b32 v6, 4, v6'); t('v_lshrrev_b32 v2, 4, v0'); t('v_lshl_add_u32 v6, v2, 9, v6'); t('v_add_u32 v6, s32, v6')
    o += t.lines
    for b in range(2): o += ['s_add_u32 m0, s32, %d' % (16384 + b*1024), 's_nop 0', Op('buffer_load_dwordx4 v5, s[64:67], s%d offen lds' % (42+b), prod='T')]
    if LN2 and cfg.get('xpf0', 0): o += ['v_lshlrev_b32 v3, 7, v0', 'buffer_load_dword v8, v3, s[56:59], s30 offen']
    o += ['v_and_b32 v2, 31, v0', 'v_lshlrev_b32 v2, 2, v2', 'v_mov_b32 v104, 0', 's_lshl_b32 s33, s2, 2', 's_add_u32 s33, s33, s20', 's_lshl_b32 s33, s33, 7',
          's_add_u32 s33, s33, 0x%x' % WS_FLG, 'buffer_store_dword v104, v2, s[8:11], s33 offen sc1']
    for d in dm[PRE:]: o += d
    t = Asm(); h_frag_addr(t, 2, 5); t('v_add_u32 v2, s32, v2'); o += t.lines
    if stamp: o.append(stamp_op(3))
    def layernorm():
        a = Asm(); X = 40; marks = {}
        for k in range(8):
            marks[len(a.lines)] = ('X', k)
            for r in range(4):
                a('v_lshlrev_b32 v%d, 16, v%d', X+8*k+2*r, 8+4*k+r); a('v_and_b32 v%d, s33, v%d', X+1+8*k+2*r, 8+4*k+r)
            if stamp and k in (0, 7): stamp_mid(a, 4 + k//7)
            for r in range(4):
                if k == 0 and r == 0: continue
                a('v_pk_add_f32 v[104:105], %s, %s', vr(X,2) if (k == 0 and r == 1) else 'v[104:105]', vr(X+8*k+2*r,2))
        def red(v):
            a('v_add_f32 v%d, v%d, v%d', v, v, v+1); a('s_nop 1')
            a('v_add_f32_dpp v%d, v%d, v%d quad_perm:[1,0,3,2] row_mask:0xf bank_mask:0xf', v, v, v); a('s_nop 1')
            a('v_add_f32_dpp v%d, v%d, v%d quad_perm:[2,3,0,1] row_mask:0xf bank_mask:0xf', v, v, v)
            a('v_mov_b32 v%d, v%d', v+1, v); a('s_nop 1'); a('v_permlane32_swap_b32 v%d, v%d', v+1, v); a('v_add_f32 v%d, v%d, v%d', v, v, v+1)
        red(104)
        a('v_mul_f32 v104, 0x%x, v104', f2u(1/512.0))
        for r in range(32): a('v_pk_add_f32 %s, %s, v[104:105] op_sel_hi:[1,0] neg_lo:[0,1] neg_hi:[0,1]', vr(X+2*r,2), vr(X+2*r,2))
        a('v_pk_mul_f32 v[106:107], %s, %s', vr(X,2), vr(X,2)); a('v_pk_mul_f32 v[108:109], %s, %s', vr(X+2,2), vr(X+2,2))
        for r in range(2,32): a('v_pk_fma_f32 %s, %s, %s, %s', vr(106+2*(r&1),2), vr(X+2*r,2), vr(X+2*r,2), vr(106+2*(r&1),2))
        a('v_pk_add_f32 v[106:107], v[106:107], v[108:109]')
        red(106)
        a('v_mov_b32 v104, 0x%x', f2u(1e-5)); a('v_fmac_f32 v104, 0x%x, v106', f2u(1/512.0)); a('v_rsq_f32 v104, v104'); a('s_nop 0')
        for k in range(8):
            for r in range(4): a('v_pk_mul_f32 %s, %s, v[104:105] op_sel_hi:[1,0]', vr(X+8*k+2*r,2), vr(X+8*k+2*r,2))
            for r in range(4): a('v_cvt_pk_bf16_f32 v%d, v%d, v%d', 8+4*k+r, X+8*k+2*r, X+1+8*k+2*r)
            if k and k % 2 == 0: a('s_add_u32 s31, s31, 4096')
            a('buffer_store_dwordx4 %s, v7, s[60:63], s31 offen offset:%d%s', vr(8+4*k,4), (k%2)*2048, SC)
        if stamp: stamp_mid(a, 6)
        return ['s_mov_b32 s33, 0xffff0000'] + [Op(l, need=[marks[i]] if i in marks else [], prod='ST' if l.startswith('buffer_store') else None) for i, l in enumerate(a.lines)]
    def product():
        o = []; F = 112; D0 = 176
        for e in range(4):
            for rb in range(4): o.append(Op('ds_read_b128 %s, v2 offset:%d' % (vr(F+16*e+4*rb,4), (e*4+rb)*1024), need=[('D', e)], prod=('F', e)))
        if stamp: o.append(stamp_op(7))
        for e in range(4):
            for t2 in range(2):
                for t in range(2):
                    D = vr(D0+8*t2+4*t, 4)
                    o.append(Op('%s %s, %s, %s, %s' % (MF, D, vr(F+16*e+4*t,4), vr(F+16*e+8+4*t2,4), D if e else '0'), need=[('F', e)]))
        for t2 in range(2):
            for jj in range(2): o.append(Op('ds_read_b64_tr_b16 %s, v6 offset:%d' % (vr(F+4*t2+2*jj,2), 16384 + jj*256 + t2*8), need=['T'], prod=('TT', t2)))
        o += ['v_add_u32 v5, s32, v1', 's_and_b32 s21, s20, 1', 's_lshl_b32 s34, s21, 11', 'v_add_u32 v4, s34, v1',
              's_lshl_b32 s22, s22, 1', 's_add_u32 s22, s22, s21', 's_lshl_b32 s22, s22, 14', 's_lshl_b32 s23, s23, 10', 's_add_u32 s22, s22, s23', 's_add_u32 s22, s22, 0x%x' % WS_MF]
        for c in range(4): o.append('ds_write_b128 v5, %s offset:%d' % (vr(D0+4*c,4), c*1024))
        for t2 in range(2): o.append(Op('buffer_store_dwordx4 %s, v1, s[8:11], s%d offen%s' % (vr(F+4*t2,4), 44+t2, SC), need=[('TT', t2)]))
        return o
    def finish():
        G = 128; o = [Op('s_barrier', need=['ALLL'])]
        if stamp: o.append(stamp_op(8))
        o += ['s_cmp_lt_u32 s20, 2', 's_cselect_b32 s22, s22, 0x%x' % WS_SIZE]
        for w in range(4):
            for c in range(2): o.append(Op('ds_read_b128 %s, v4 offset:%d' % (vr(G+8*w+4*c,4), w*18432 + c*1024), prod=('R', w)))
        o.append('v_mov_b32 v110, 0x%x' % f2u(QSCALE))
        for w in range(1, 4):
            for r in range(4): o.append(Op('v_pk_add_f32 %s, %s, %s' % (vr(G+2*r,2), vr(G+2*r,2), vr(G+8*w+2*r,2)), need=[('R', w)]))
        for r in range(4): o.append('v_pk_mul_f32 %s, %s, v[110:111] op_sel_hi:[1,0]' % (vr(G+2*r,2), vr(G+2*r,2)))
        for r in range(4): o.append('v_cvt_pk_bf16_f32 v%d, v%d, v%d' % (G+r, G+2*r, G+2*r+1))
        o += ['buffer_store_dwordx4 %s, v1, s[8:11], s22 offen%s' % (vr(G,4), SC)]
        return o
    rb = ['v_lshrrev_b32 v104, 2, v0', 'v_lshlrev_b32 v104, 10, v104', 'v_and_b32 v105, 3, v0', 'v_lshl_add_u32 v104, v105, 7, v104', 's_sub_u32 s31, s31, 12288',
          Op('buffer_load_dword v105, v104, s[60:63], s31 offen', need=['ALLV'])] if cfg.get('rb', 1) else []
    if LN2: o += product() + finish()
    elif XF: o += layernorm() + product() + finish() + rb
    else:  o += product() + finish() + layernorm() + rb
    tr.run('a', o); tr.emit(a, 'a')
    if stamp: stamp_end(a, stamp, 20)
    a('s_endpgm')
K0_LAUNCH = 'grid=(256,1,1) block=(256,1,1) lds=98304'
def k0_desc(a, name='prep_kernel'): kernel_desc(a, name, 192, 192, 102)
```

```python
from asmlib import *
from layout import *
from gen_k0 import srd, h_frag_addr, QSCALE
MF='v_mfma_f32_16x16x32_bf16'
WB = 18432
def gen_k0(a, name='prep_kernel', stamp=0, cfg={}):
    SC = ' sc1' if cfg.get('sc0', 1) else ''
    kernel_header(a, name)
    a('s_cmp_lt_u32 s2, 256'); a('s_cbranch_scc1 L_k0_go'); a('s_endpgm'); a.label('L_k0_go')
    if stamp: stamp_begin(a)
    a('s_load_dwordx4 s[36:39], s[0:1], 8')
    a('s_load_dwordx2 s[46:47], s[0:1], 40'); a('s_load_dwordx4 s[48:51], s[0:1], 56'); a('s_load_dwordx2 s[54:55], s[0:1], 88')
    a('v_lshrrev_b32 v1, 6, v0'); a('v_and_b32 v0, 63, v0'); a('v_readfirstlane_b32 s19, v1')
    a('v_lshlrev_b32 v1, 4, v0')
    a('v_lshrrev_b32 v2, 4, v0'); a('v_sub_u32 v4, 0, v2'); a('v_xor_b32 v4, v4, v0'); a('v_and_b32 v4, 3, v4'); a('v_lshlrev_b32 v4, 4, v4')
    a('v_lshl_add_u32 v4, v2, 13, v4'); a('v_bfe_u32 v5, v0, 2, 2'); a('v_lshl_add_u32 v4, v5, 10, v4')
    a('s_and_b32 s20, s19, 3'); a('s_mul_i32 s32, s19, %d', WB); a('s_lshr_b32 s30, s19, 2')
    a('s_and_b32 s23, s2, 3'); a('s_lshl_b32 s23, s23, 2'); a('s_bfe_u32 s21, s2, 0x20003'); a('s_add_u32 s23, s23, s21')
    a('s_bfe_u32 s22, s2, 0x10002'); a('s_lshl_b32 s22, s22, 3'); a('s_lshr_b32 s21, s2, 5'); a('s_add_u32 s22, s22, s21')
    a('s_lshl_b32 s21, s20, 8'); a('s_lshl_b32 s24, s23, 15'); a('s_add_u32 s24, s24, s21'); a('s_add_u32 s25, s24, 4096')
    a('s_cmp_eq_u32 s30, 0'); a('s_cbranch_scc0 L_k0_dm')
    F = 16; D0 = 80
    def adma(e, rb): return ['s_add_u32 m0, s32, %d' % ((e*4+rb)*1024 - e*64), 's_nop 0',
                             Op('buffer_load_dwordx4 v4, s[%d:%d], s%d offen offset:%d lds' % (12+4*(rb >> 1), 15+4*(rb >> 1), 24+rb, e*64), prod=('D', e))]
    def common_addr():
        t = Asm(); srd(t, 8, 54, 55, WS_SIZE); h_frag_addr(t, 2, 3); t('v_add_u32 v2, s32, v2')
        t('v_and_b32 v6, 15, v0'); t('v_lshlrev_b32 v6, 4, v6'); t('v_lshrrev_b32 v3, 4, v0'); t('v_lshl_add_u32 v6, v3, 9, v6'); t('v_add_u32 v6, s32, v6')
        return t.lines
    def product(trm):
        o = []
        for e in range(4):
            for rb in range(2): o.append(Op('ds_read_b128 %s, v2 offset:%d' % (vr(F+16*e+4*rb,4), (e*4+rb)*1024), need=[('D', e)], prod=('F', e)))
            for t2 in range(2):
                if trm:
                    for jj in range(2): o.append(Op('ds_read_b64_tr_b16 %s, v6 offset:%d' % (vr(F+16*e+8+4*t2+2*jj,2), (e*4+2)*1024 + jj*256 + t2*8), prod=('F', e)))
                else: o.append(Op('ds_read_b128 %s, v2 offset:%d' % (vr(F+16*e+8+4*t2,4), (e*4+2+t2)*1024), prod=('F', e)))
            for ee in ([e-1] if 0 < e < 3 else ([2, 3] if e == 3 else [])):
                for t2 in range(2):
                    for t in range(2):
                        D = vr(D0+8*t2+4*t, 4)
                        o.append(Op('%s %s, %s, %s, %s' % (MF, D, vr(F+16*ee+4*t,4), vr(F+16*ee+8+4*t2,4), D if ee else '0'), need=[('F', ee)]))
        return o
    a('s_lshl_b32 s26, s22, 15'); a('s_add_u32 s26, s26, s21'); a('s_add_u32 s27, s26, 4096')
    a('s_waitcnt lgkmcnt(0)')
    srd(a, 12, 36, 37, 524288); srd(a, 16, 38, 39, 524288)
    if stamp: stamp_mid(a, 1)
    tr = Trace(); o = []
    for e in range(4):
        for rb in range(4): o += adma(e, rb)
    if stamp: o.append(stamp_op(2))
    t = Asm()
    t('s_cmp_lt_u32 s2, 128')
    t('s_cselect_b32 s64, s46, s50'); t('s_cselect_b32 s65, s47, s51'); t('s_cselect_b32 s28, 11, 10'); t('s_cselect_b32 s29, 4, 3')
    t('s_mov_b32 s35, 0x%x', WS_WMF); t('s_cselect_b32 s35, 0x%x, s35', WS_WUPF); t('s_mov_b32 s66, 0x80000'); t('s_cselect_b32 s66, 0x100000, s66')
    t('s_and_b32 s65, s65, 0xffff'); t('s_mov_b32 s67, 0x20000')
    t('s_and_b32 s33, s2, 127'); t('s_lshr_b32 s34, s33, s29'); t('s_lshl_b32 s21, s34, s29'); t('s_sub_u32 s33, s33, s21')
    t('s_lshl_b32 s33, s33, 1'); t('s_and_b32 s21, s20, 1'); t('s_add_u32 s33, s33, s21')
    t('s_lshl_b32 s34, s34, 1'); t('s_lshr_b32 s21, s20, 1'); t('s_add_u32 s34, s34, s21')
    t('v_lshrrev_b32 v5, 2, v0'); t('v_lshlrev_b32 v5, s28, v5'); t('v_and_b32 v6, 3, v0'); t('v_lshl_add_u32 v5, v6, 4, v5')
    t('s_add_u32 s21, s28, 5'); t('s_lshl_b32 s42, s34, s21'); t('s_lshl_b32 s21, s33, 6'); t('s_add_u32 s42, s42, s21')
    t('s_lshl_b32 s21, 16, s28'); t('s_add_u32 s43, s42, s21')
    o += t.lines
    for b in range(2): o += ['s_add_u32 m0, s32, %d' % (16384 + b*1024), 's_nop 0', Op('buffer_load_dwordx4 v5, s[64:67], s%d offen lds' % (42+b), prod='T')]
    o += ['s_lshl_b32 s21, s34, 10', 's_add_u32 s35, s35, s21', 's_lshl_b32 s21, s33, 15', 's_add_u32 s44, s35, s21',
          's_cmp_lt_u32 s2, 192', 's_cselect_b32 s44, s44, 0x%x' % WS_SIZE, 's_add_u32 s45, s44, 16384',
          's_mov_b32 s28, 0x%x' % WS_MF, 's_mov_b32 s29, 0x%x' % f2u(QSCALE)]
    o += common_addr()
    if stamp: o.append(stamp_op(3))
    o += product(False)
    for t2 in range(2):
        for jj in range(2): o.append(Op('ds_read_b64_tr_b16 %s, v6 offset:%d' % (vr(8+4*t2+2*jj,2), 16384 + jj*256 + t2*8), need=['T'], prod=('TT', t2)))
    for t2 in range(2): o.append(Op('buffer_store_dwordx4 %s, v1, s[8:11], s%d offen%s' % (vr(8+4*t2,4), 44+t2, SC), need=[('TT', t2)]))
    tr.run('a', o); tr.emit(a, 'a')
    a('s_branch L_k0_fin')
    a.label('L_k0_dm')
    a('v_lshrrev_b32 v5, 2, v0'); a('v_lshlrev_b32 v5, 10, v5'); a('v_and_b32 v6, 3, v0'); a('v_lshl_add_u32 v5, v6, 4, v5')
    a('s_lshl_b32 s26, s20, 17'); a('s_lshl_b32 s21, s22, 6'); a('s_add_u32 s26, s26, s21'); a('s_add_u32 s26, s26, 0x80000')
    a('s_waitcnt lgkmcnt(0)')
    srd(a, 12, 48, 49, 524288); srd(a, 16, 50, 51, 1048576)
    if stamp: stamp_mid(a, 1)
    tr = Trace(); o = []
    for e in range(4):
        o += adma(e, 0) + adma(e, 1)
        for b in range(2):
            o += ['s_add_u32 m0, s32, %d' % ((e*4+2+b)*1024), 's_add_u32 s27, s26, %d' % ((2*e+b)*16384), Op('buffer_load_dwordx4 v5, s[16:19], s27 offen lds', prod=('D', e))]
    if stamp: o.append(stamp_op(2))
    o += common_addr()
    o += ['v_and_b32 v3, 31, v0', 'v_lshlrev_b32 v3, 2, v3', 'v_mov_b32 v7, 0', 's_lshl_b32 s33, s2, 2', 's_add_u32 s33, s33, s20', 's_lshl_b32 s33, s33, 7',
          's_add_u32 s33, s33, 0x%x' % WS_FLG, 'buffer_store_dword v7, v3, s[8:11], s33 offen sc1', 's_mov_b32 s28, 0x%x' % WS_WDMF, 's_mov_b32 s29, 1.0']
    if stamp: o.append(stamp_op(3))
    o += product(True)
    tr.run('a', o); tr.emit(a, 'a')
    a.label('L_k0_fin')
    if stamp: stamp_mid(a, 7)
    a('v_add_u32 v5, s32, v1'); a('s_and_b32 s21, s20, 1'); a('s_lshl_b32 s34, s21, 11'); a('s_mul_i32 s33, s30, %d', 4*WB); a('s_add_u32 s34, s34, s33'); a('v_add_u32 v4, s34, v1')
    a('s_lshl_b32 s22, s22, 1'); a('s_add_u32 s22, s22, s21'); a('s_lshl_b32 s22, s22, 14'); a('s_lshl_b32 s23, s23, 10'); a('s_add_u32 s22, s22, s23'); a('s_add_u32 s22, s22, s28')
    for c in range(4): a('ds_write_b128 v5, %s offset:%d', vr(D0+4*c,4), c*1024)
    a('s_waitcnt lgkmcnt(0)'); a('s_barrier')
    if stamp: stamp_mid(a, 8)
    a('s_cmp_lt_u32 s20, 2'); a('s_cbranch_scc0 L_k0_end')
    G = 16
    for w in range(4):
        for c in range(2): a('ds_read_b128 %s, v4 offset:%d', vr(G+8*w+4*c,4), w*WB + c*1024)
    a('v_mov_b32 v6, s29')
    for w in range(1, 4):
        a('s_waitcnt lgkmcnt(%d)', 6-2*w)
        for r in range(4): a('v_pk_add_f32 %s, %s, %s', vr(G+2*r,2), vr(G+2*r,2), vr(G+8*w+2*r,2))
    for r in range(4): a('v_pk_mul_f32 %s, %s, v[6:7] op_sel_hi:[1,0]', vr(G+2*r,2), vr(G+2*r,2))
    for r in range(4): a('v_cvt_pk_bf16_f32 v%d, v%d, v%d', G+r, G+2*r, G+2*r+1)
    a('buffer_store_dwordx4 %s, v1, s[8:11], s22 offen%s', vr(G,4), SC)
    a.label('L_k0_end')
    if stamp:
        a('s_and_b32 s21, s20, 1'); a('s_lshl_b32 s30, s30, 1'); a('s_add_u32 s21, s21, s30'); a('s_cmp_lt_u32 s20, 2'); a('s_cbranch_scc0 L_k0_e2')
        stamp_end(a, stamp, 21); a.label('L_k0_e2')
    a('s_endpgm')
K0_LAUNCH = 'grid=(256,1,1) block=(512,1,1) lds=%d' % (8*WB)
def k0_desc(a, name='prep_kernel'): kernel_desc(a, name, 96, 96, 102)
```

```python
from asmlib import *
from layout import *
from gen_k0 import srd
import gen_attn3, gen_conv, gen_conv2, gen_head, gen_spare
def gen_k2(a, cfg, name='main_kernel'):
    c = dict(gen_attn3.DEFCFG); c.update(cfg); cfg = c
    kernel_header(a, name)
    a('s_cmp_lt_u32 s2, 256'); a('s_cbranch_scc1 L_k2_go'); a('s_endpgm'); a.label('L_k2_go')
    if cfg.get('stamp'): stamp_begin(a)
    if cfg.get('one', 1): return gen_one(a, cfg)
    a('s_load_dwordx2 s[4:5], s[0:1], 88'); a('s_load_dwordx2 s[6:7], s[0:1], 48'); a('s_load_dwordx2 s[16:17], s[0:1], 24'); a('s_load_dwordx2 s[18:19], s[0:1], 0'); a('s_load_dwordx2 s[46:47], s[0:1], 72')
    a('v_lshrrev_b32 v1, 6, v0'); a('v_and_b32 v0, 63, v0'); a('v_readfirstlane_b32 s20, v1'); a('v_lshlrev_b32 v1, 4, v0')
    a('s_waitcnt lgkmcnt(0)')
    srd(a, 8, 4, 5, WS_SIZE)
    if cfg.get('map', 2) == 1: a('s_mov_b32 s3, s2')
    else:
        a('s_lshr_b32 s21, s2, 3'); a('s_and_b32 s22, s2, 1'); a('s_lshl_b32 s23, s22, 1'); a('s_sub_u32 s23, 26, s23')
        a('s_bfe_u32 s24, s2, 0x10001'); a('s_mul_i32 s24, s24, 25'); a('s_mul_i32 s25, s22, 13'); a('s_add_u32 s24, s24, s25')
        a('s_lshl_b32 s24, s24, 1'); a('s_add_u32 s24, s24, s21'); a('s_lshl_b32 s24, s24, 1'); a('s_bfe_u32 s25, s2, 0x10002'); a('s_or_b32 s24, s24, s25')
        a('s_bfe_u32 s25, s2, 0x20001'); a('s_mul_i32 s25, s25, 14'); a('s_mul_i32 s26, s22, 6'); a('s_add_u32 s25, s25, s26')
        a('s_add_u32 s25, s25, s21'); a('s_sub_u32 s25, s25, s23'); a('s_add_u32 s25, s25, 200')
        a('s_cmp_lt_u32 s21, s23'); a('s_cselect_b32 s3, s24, s25')
    a('s_cmp_lt_u32 s3, 200'); a('s_cbranch_scc1 L_k2_attn')
    a('s_cmp_lt_u32 s3, 253'); a('s_cbranch_scc1 L_k2_conv')
    if cfg.get('lean', 1):
        a('s_load_dwordx2 s[60:61], s[0:1], 56'); a('s_load_dwordx2 s[64:65], s[0:1], 32'); a('s_waitcnt lgkmcnt(0)')
        srd(a, 60, 60, 61, 524288); srd(a, 64, 64, 65, 524288); srd(a, 68, 16, 17, 524288)
        a('s_mov_b32 s7, 1'); gen_conv.gen_spare(a, cfg)
    else:
        a('s_cmp_lt_u32 s3, 255'); a('s_cbranch_scc1 L_k2_wvo'); a('s_endpgm'); a.label('L_k2_wvo')
        srd(a, 12, 16, 17, 524288)
        if cfg.get('no_wvo'): a('s_endpgm')
        a('s_mov_b32 s7, 1'); gen_conv.gen_wvo(a, cfg)
    a.label('L_k2_conv')
    srd(a, 12, 6, 7, 5120); a('s_mov_b32 s7, 1'); srd(a, 16, 18, 19, 8192000)
    if cfg.get('no_conv'): a('s_endpgm')
    gen_conv.Conv(a, cfg).gen()
    a.label('L_k2_fin')
    if cfg.get('stamp'): a('s_mov_b32 s2, s3'); stamp_end(a, cfg['stamp'], 20)
    a('s_endpgm')
    a.label('L_k2_attn')
    if cfg.get('no_attn'): a('s_endpgm')
    srd(a, 12, 18, 19, 8192000); srd(a, 16, 46, 47, 8192000)
    a('s_mov_b32 s7, 1'); gen_attn3.Attn(a, cfg).gen_body()
K2_LAUNCH = 'grid=(256,1,1) block=(256,1,1) lds=163840'
def k2_desc(a, name='main_kernel'): kernel_desc(a, name, 512, 256, 102)

def gen_one(a, cfg):
    gen_head.entry(a, cfg)
    st = {}; ta = Trace(st); tc = Trace(st)
    for t, tag in ((ta, lambda f: ('A', f)), (tc, lambda f: ('A', 0, f))):
        ha, xl = gen_head.head_a(cfg); t.run('ha', ha); t.run('hb', gen_head.head_b(cfg, xl, tag))
    ta.emit(a, 'ha')
    DMH = cfg.get('dmh', 0)
    if not DMH: a('s_cmp_lt_u32 s3, 253'); a('s_cbranch_scc0 L_k2_spare')
    ta.emit(a, 'hb')
    ta.static = {}; tc.static = {}
    a('s_cmp_lt_u32 s3, 200'); a('s_cbranch_scc0 L_k2_conv')
    srd(a, 16, 54, 55, 8192000)
    A = gen_attn3.Attn(a, cfg); A.tr0 = ta; A.gen_body()
    gen_head.spin0(a, 'L_spin0', 'L_ok0')
    a.label('L_k2_fin')
    if cfg.get('stamp'): a('s_mov_b32 s2, s3'); stamp_end(a, cfg['stamp'], 20)
    a('s_endpgm')
    a.label('L_k2_conv')
    if DMH: a('s_cmp_lt_u32 s3, 253'); a('s_cbranch_scc0 L_k2_spare')
    srd(a, 12, 48, 49, 5120); srd(a, 16, 36, 37, 8192000)
    C = (gen_conv2 if cfg.get('cv2', 1) else gen_conv).Conv(a, cfg); C.tr0 = tc; C.gen()
    a.label('L_k2_spare')
    if DMH:
        a('s_lshl_b32 s30, s3, 7'); a('s_add_u32 s30, s30, 0x%x', WS_FLG + 128*FLG_X); a('s_cmp_eq_u32 s20, 0'); a('s_cselect_b32 s30, s30, 0x%x', WS_SIZE)
    a('s_waitcnt vmcnt(0) lgkmcnt(0)'); a('s_barrier'); a(gen_head.FLAG0)
    if cfg.get('tl', 0):
        assert not DMH
        for x in gen_head.t_reads(): a(x.text)
        a('s_waitcnt lgkmcnt(0)')
        for x in gen_head.t_stores(): a(x.text)
        a('s_waitcnt vmcnt(0)'); a('s_barrier'); a(gen_head.FLAG1)
    def token_update():
        if not DMH:
            gen_head.spin0(a, 'L_spin1', 'L_ok1'); a.label('L_ok1')
            a('s_barrier')
        a('s_mov_b32 s21, 0x%x', WS_SIZE); a('s_cmp_eq_u32 s3, 253'); a('s_cselect_b32 s21, 0x%x, s21', WS_FLG + 128*FLG_E)
        a('buffer_store_dword v21, v20, s[8:11], s21 offen sc1')
    if cfg.get('sp2', 0): gen_spare.gen_spare(a, cfg, token_update)
    else:
        srd(a, 60, 50, 51, 524288); srd(a, 64, 44, 45, 524288); srd(a, 68, 42, 43, 524288)
        token_update()
        gen_conv.gen_spare(a, cfg)
    a.label('L_code_end'); a('s_endpgm')
```

```python
from asmlib import *
def ln_pass(X, W, T, tag, smask, wr):
    o = []
    for k in range(4):
        for r in range(4):
            o += [Op('v_lshlrev_b32 v%d, 16, v%d' % (W+8*k+2*r, X+4*k+r), need=[(tag, k)] if r == 0 else []), 'v_and_b32 v%d, s%d, v%d' % (W+1+8*k+2*r, smask, X+4*k+r)]
        for r in range(4):
            if k == 0: continue
            acc = vr(T+2*(r & 1), 2)
            first = (k == 1 and r < 2)
            if k == 1: o.append('v_pk_add_f32 %s, %s, %s' % (acc, vr(W+2*r,2) if first else acc, vr(W+8+2*r,2)))
            else: o.append('v_pk_add_f32 %s, %s, %s' % (acc, acc, vr(W+8*k+2*r,2)))
    o += ['v_pk_add_f32 %s, %s, %s' % (vr(T,2), vr(T,2), vr(W+4,2)), 'v_pk_add_f32 %s, %s, %s' % (vr(T+2,2), vr(T+2,2), vr(W+6,2))]
    def red():
        v = T
        return ['v_pk_add_f32 %s, %s, %s' % (vr(T,2), vr(T,2), vr(T+2,2)), 'v_add_f32 v%d, v%d, v%d' % (v, v, v+1), 's_nop 1',
                'v_add_f32_dpp v%d, v%d, v%d quad_perm:[1,0,3,2] row_mask:0xf bank_mask:0xf' % (v, v, v), 's_nop 1',
                'v_add_f32_dpp v%d, v%d, v%d quad_perm:[2,3,0,1] row_mask:0xf bank_mask:0xf' % (v, v, v),
                'v_mov_b32 v%d, v%d' % (v+1, v), 's_nop 1', 'v_permlane16_swap_b32 v%d, v%d' % (v+1, v), 'v_add_f32 v%d, v%d, v%d' % (v, v, v+1),
                'v_mov_b32 v%d, v%d' % (v+1, v), 's_nop 1', 'v_permlane32_swap_b32 v%d, v%d' % (v+1, v), 'v_add_f32 v%d, v%d, v%d' % (v, v, v+1)]
    o += red()
    o.append('v_mul_f32 v%d, 0x%x, v%d' % (T+4, f2u(-1/512.0), T))
    for r in range(16): o.append('v_pk_add_f32 %s, %s, %s op_sel_hi:[1,0]' % (vr(W+2*r,2), vr(W+2*r,2), vr(T+4,2)))
    for r in range(16):
        acc = vr(T+2*(r & 1), 2); p = vr(W+2*r,2)
        o.append('v_pk_mul_f32 %s, %s, %s' % (acc, p, p) if r < 2 else 'v_pk_fma_f32 %s, %s, %s, %s' % (acc, p, p, acc))
    o += red()
    o += ['v_mov_b32 v%d, 0x%x' % (T+4, f2u(1e-5)), 'v_fmac_f32 v%d, 0x%x, v%d' % (T+4, f2u(1/512.0), T), 'v_rsq_f32 v%d, v%d' % (T+4, T+4), 's_nop 0']
    for k in range(4):
        for r in range(4): o.append('v_pk_mul_f32 %s, %s, %s op_sel_hi:[1,0]' % (vr(W+8*k+2*r,2), vr(W+8*k+2*r,2), vr(T+4,2)))
        for r in range(4): o.append('v_cvt_pk_bf16_f32 v%d, v%d, v%d' % (X+4*k+r, W+8*k+2*r, W+1+8*k+2*r))
        o += wr(k, X+4*k)
    return oplist(o)
def zip2(a, b):
    o = []
    for x, y in zip(a, b):
        if x.text == 's_nop 1': o.append(Op('s_nop 0'))
        elif x.text == 's_nop 0': continue
        else: o += [x, y]
    return o
def ln80(Xs, Ws, Ts, tag, smask, wr):
    p = [ln_pass(Xs[q], Ws[q & 1], Ts[q & 1], (tag, q), smask, (lambda k, reg, q=q: wr(q, k, reg))) for q in range(5)]
    return p[0] + zip2(p[1], p[2]) + zip2(p[3], p[4])
def ln_lane_addr(dst, t, swave, rowmul):
    return ['s_sub_u32 s101, 0, s%d' % swave, 'v_xor_b32 v%d, s101, v0' % t, 'v_and_b32 v%d, 3, v%d' % (t, t), 'v_lshlrev_b32 v%d, 4, v%d' % (t, t),
            'v_lshrrev_b32 v%d, 4, v0' % dst, 'v_lshl_add_u32 v%d, v%d, 6, v%d' % (t, dst, t),
            's_lshl_b32 s101, s%d, 2' % swave, 'v_bfe_u32 v%d, v0, 2, 2' % dst, 'v_add_u32 v%d, s101, v%d' % (dst, dst),
            'v_mul_u32_u24 v%d, %d, v%d' % (dst, rowmul, dst), 'v_lshl_add_u32 v%d, v%d, 10, v%d' % (dst, dst, t)]
def ln_h_addr(dst, t, swave):
    return ['v_and_b32 v%d, 15, v0' % t, 's_lshl_b32 s101, s%d, 8' % swave, 'v_lshl_add_u32 v%d, v%d, 4, s101' % (t, t),
            'v_lshrrev_b32 v%d, 4, v0' % dst, 'v_lshl_add_u32 v%d, v%d, 10, v%d' % (dst, dst, t)]

def ln_pass1(X, W, T, tag, smask, vones, wr):
    o = ['v_mov_b32 v%d, 0' % T, 'v_mov_b32 v%d, 0' % (T+1)]
    for k in range(4):
        for r in range(4):
            x = X+4*k+r
            o += [Op('v_dot2c_f32_bf16 v%d, v%d, v%d' % (T, x, vones), need=[(tag, k)] if r == 0 else []), 'v_dot2c_f32_bf16 v%d, v%d, v%d' % (T+1, x, x)]
    un = []
    for k in range(4):
        for r in range(4): un += ['v_lshlrev_b32 v%d, 16, v%d' % (W+8*k+2*r, X+4*k+r), 'v_and_b32 v%d, s%d, v%d' % (W+1+8*k+2*r, smask, X+4*k+r)]
    dpp = lambda v, p: 'v_add_f32_dpp v%d, v%d, v%d quad_perm:%s row_mask:0xf bank_mask:0xf' % (v, v, v, p)
    steps = [[dpp(T, '[1,0,3,2]'), dpp(T+1, '[1,0,3,2]')], [dpp(T, '[2,3,0,1]'), dpp(T+1, '[2,3,0,1]'), 'v_mov_b32 v%d, v%d' % (T+2, T), 'v_mov_b32 v%d, v%d' % (T+3, T+1)],
             ['v_permlane16_swap_b32 v%d, v%d' % (T+2, T), 'v_permlane16_swap_b32 v%d, v%d' % (T+3, T+1), 'v_add_f32 v%d, v%d, v%d' % (T, T, T+2), 'v_add_f32 v%d, v%d, v%d' % (T+1, T+1, T+3),
              'v_mov_b32 v%d, v%d' % (T+2, T), 'v_mov_b32 v%d, v%d' % (T+3, T+1)],
             ['v_permlane32_swap_b32 v%d, v%d' % (T+2, T), 'v_permlane32_swap_b32 v%d, v%d' % (T+3, T+1), 'v_add_f32 v%d, v%d, v%d' % (T, T, T+2), 'v_add_f32 v%d, v%d, v%d' % (T+1, T+1, T+3),
              'v_mul_f32 v%d, 0x%x, v%d' % (T, f2u(-1/512.0), T), 'v_mul_f32 v%d, 0x%x, v%d' % (T+1, f2u(1/512.0), T+1), 'v_fma_f32 v%d, -v%d, v%d, v%d' % (T+1, T, T, T+1),
              'v_max_f32 v%d, 0, v%d' % (T+1, T+1), 'v_add_f32 v%d, 0x%x, v%d' % (T+1, f2u(1e-5), T+1), 'v_rsq_f32 v%d, v%d' % (T+2, T+1)],
             ['v_mul_f32 v%d, v%d, v%d' % (T+4, T, T+2)]]
    for st in steps: o += un[:4] + st; un = un[4:]
    o += un
    for k in range(4):
        for r in range(4): o.append('v_pk_fma_f32 %s, %s, %s, %s op_sel_hi:[1,0,0]' % (vr(W+8*k+2*r,2), vr(W+8*k+2*r,2), vr(T+2,2), vr(T+4,2)))
        for r in range(4): o.append('v_cvt_pk_bf16_f32 v%d, v%d, v%d' % (X+4*k+r, W+8*k+2*r, W+1+8*k+2*r))
        o += wr(k, X+4*k)
    return oplist(o)
def ln80b(Xs, W, T, tag, smask, vones, wr, extra):
    o = [Op('v_mov_b32 v%d, 0x3f803f80' % vones)]
    for q in range(5):
        p = ln_pass1(Xs[q], W, T, (tag, q), smask, vones, (lambda k, reg, q=q: wr(q, k, reg)))
        ex = oplist(extra[q]); nd = sum(1 for x in ex if kind_of(x) == 'D'); step = max(1, len(p)//(nd+1))
        for i, x in enumerate(p):
            o.append(x)
            if ex and i % step == step-1:
                o.append(ex.pop(0))
                while ex and kind_of(ex[0]) != 'D': o.append(ex.pop(0))
        o += ex
    return o
```

```python
from asmlib import *
from layout import *
from gen_k0 import srd, h_frag_addr
MF='v_mfma_f32_16x16x32_bf16'
def gen_spare(a, cfg, token_update):
    S_SEG=21; S_CNT=22; S_A=24; S_B=44; S_BL=50; S_BST=31; S_LA=32; S_LB=33; S_LA2=28; S_LB2=29; S_U=30; S_G=34; S_T=35; S_OUT=60; S_NB=62; S_T2=63
    VA=4; VB=5; PN=6; PP=7; PR=8; RA=9; RB=10; RT=11; ACC=64; n=48
    srd(a, 64, 50, 51, 524288); srd(a, 68, 44, 45, 524288); srd(a, 72, 42, 43, 524288); srd(a, 40, 52, 53, 1048576)
    a('v_lshrrev_b32 v2, 4, v0'); a('v_sub_u32 v3, 0, v2'); a('v_xor_b32 v3, v3, v0'); a('v_and_b32 v3, 3, v3'); a('v_lshlrev_b32 v3, 4, v3')
    a('v_lshl_add_u32 v%d, v2, 13, v3', PN); a('v_bfe_u32 v%d, v0, 2, 2', PP); a('v_lshl_add_u32 v%d, v%d, 10, v%d', PN, PP, PN)
    a('v_lshrrev_b32 v%d, 2, v0', PR); a('v_lshl_add_u32 v%d, v%d, 10, v3', PP, PR)
    a('v_lshlrev_b32 v%d, 10, v%d', PR, PR); a('v_and_b32 v3, 3, v0'); a('v_lshl_add_u32 v%d, v3, 4, v%d', PR, PR)
    a('s_sub_u32 s%d, s3, 253', S_G)
    a('s_lshl_b32 s%d, s20, 12', S_LA); a('s_lshr_b32 s%d, s20, 1', S_LB); a('s_lshl_b32 s%d, s%d, 15', S_LB, S_LB); a('s_add_u32 s%d, s%d, 16384', S_LB, S_LB)
    a('s_and_b32 s%d, s20, 1', S_U); a('s_lshl_b32 s%d, s%d, 10', S_T, S_U); a('s_add_u32 s%d, s%d, s%d', S_LB, S_LB, S_T)
    def params(lbl, back):
        for p in range(3):
            if p < 2: a('s_cmp_lt_u32 s%d, %d', S_T, 2*p+2); a('s_cbranch_scc0 %s_%d', lbl, p+1)
            for i in range(4): a('s_mov_b32 s%d, s%d', 12+i, 64+4*p+i); a('s_mov_b32 s%d, s%d', 16+i, (40 if p < 2 else 8)+i)
            a('v_mov_b32 v%d, v%d', VA, PN if p < 2 else PP); a('v_mov_b32 v%d, v%d', VB, PR if p < 2 else 1)
            a('s_sub_u32 s%d, s%d, %d', S_T, S_T, 2*p); a('s_lshl_b32 s%d, s%d, 18', S_A, S_T); a('s_lshl_b32 s%d, s20, 16', S_T2); a('s_add_u32 s%d, s%d, s%d', S_A, S_A, S_T2)
            ts = 4096 if p < 2 else 16384
            for j in range(1, 4): a('s_add_u32 s%d, s%d, %d', S_A+j, S_A, (j >> 1)*32768 + (j & 1)*ts)
            a('s_mov_b32 s%d, %d', S_BST, 65536 if p < 2 else 2048)
            a('s_lshr_b32 s%d, s20, 1', S_T); a('s_lshl_b32 s%d, s%d, %d', S_T, S_T, 15 if p < 2 else 10)
            for j in range(6):
                if p < 2:
                    a('s_mul_i32 s%d, s%d, 6', S_T2, S_G); a('s_add_u32 s%d, s%d, %d', S_T2, S_T2, j); a('s_min_u32 s%d, s%d, 15', S_T2, S_T2); a('s_lshl_b32 s%d, s%d, 6', S_T2, S_T2)
                    a('s_lshl_b32 s%d, s%d, 14', S_B+j, S_U); a('s_add_u32 s%d, s%d, s%d', S_B+j, S_B+j, S_T2); a('s_add_u32 s%d, s%d, s%d', S_B+j, S_B+j, S_T)
                    if p == 0: a('s_add_u32 s%d, s%d, 0x80000', S_B+j, S_B+j)
                else:
                    a('s_mul_i32 s%d, s%d, 12', S_T2, S_G); a('s_add_u32 s%d, s%d, s%d', S_T2, S_T2, S_U); a('s_add_u32 s%d, s%d, %d', S_T2, S_T2, 2*j); a('s_min_u32 s%d, s%d, 31', S_T2, S_T2)
                    a('s_lshl_b32 s%d, s%d, 14', S_T2, S_T2); a('s_add_u32 s%d, s%d, s%d', S_T2, S_T2, S_T); a('s_add_u32 s%d, s%d, 0x%x', S_B+j, S_T2, WS_T1F)
            a('s_branch %s', back)
            if p < 2: a.label('%s_%d' % (lbl, p+1))
    def dma(step):
        g = []
        for j in range(4):
            g.append((['s_add_u32 m0, s%d, %d' % (S_LA, j*1024)], Op('buffer_load_dwordx4 v%d, s[12:15], s%d offen lds' % (VA, S_A+j), prod=('T', step)), []))
            g.append((['s_add_u32 m0, s%d, %d' % (S_LA, 32768 + j*1024 - 64)], Op('buffer_load_dwordx4 v%d, s[12:15], s%d offen offset:64 lds' % (VA, S_A+j), prod=('T', step)), ['s_add_u32 s%d, s%d, 128' % (S_A+j, S_A+j)]))
        g += [(['s_add_u32 m0, s%d, %d' % (S_LB, j*2048)], Op('buffer_load_dwordx4 v%d, s[16:19], s%d offen lds' % (VB, S_B+j), prod=('T', step)), ['s_add_u32 s%d, s%d, s%d' % (S_B+j, S_B+j, S_BST)]) for j in range(6)]
        return g, ['s_xor_b32 s%d, s%d, 0x10000' % (S_LA, S_LA), 's_xor_b32 s%d, s%d, 0x10000' % (S_LB, S_LB)]
    def reads(step, trm):
        par = step & 1; F = 56*par; o = []
        rb = lambda c: ([Op('ds_read_b64_tr_b16 %s, v%d offset:%d' % (ar(F+32+4*c+2*jj,2), RT, par*32768 + (c >> 1)*2048 + jj*256 + (c & 1)*8), prod=('F', step)) for jj in range(2)] if trm
                        else [Op('ds_read_b128 %s, v%d offset:%d' % (ar(F+32+4*c,4), RB, par*32768 + c*1024), prod=('F', step))])
        for r in range(8): o.append(Op('ds_read_b128 %s, v%d offset:%d' % (ar(F+4*r,4), RA, par*32768 + r*1024), prod=('F', step)))
        for c in range(6): o += rb(c)
        return o
    def body(step, trm, first=False):
        par = step & 1; F = 56*par
        fx = [[] for _ in range(n)]
        if par:
            fx[0].append(Op('s_barrier', need=[('T', step+1)]))
            fx[1] += ['v_xor_b32 v%d, 0x10000, v%d' % (x, x) for x in (RA, RB)]; fx[2].append('v_xor_b32 v%d, 0x10000, v%d' % (RT, RT))
        g, post = dma(step+3 if par else step+2)
        NO = cfg.get('spo', 10)
        g = g[:NO] if par else g[NO:]
        dg = [3 + 4*i for i in range(len(g))]
        for gp, (pre, o, aft) in zip(dg, g): fx[gp-1] += pre; fx[gp].append(o); fx[gp+1] += aft
        if not par: fx[42] += post
        rd = reads(step+1, trm)
        free = [x for x in range(4, 41) if x not in dg]
        for i, o in enumerate(rd): fx[free[(i*len(free))//len(rd)]].append(o)
        fx[46].append(Op(None, need=[('F', step+1)]))
        o = []
        for gi in range(n):
            c, r = gi//8, gi % 8; D = vr(ACC + 8*(6*(r >> 1) + c) + 4*(r & 1), 4)
            o.append(Op('%s %s, %s, %s, %s' % (MF, D, ar(F+4*r,4), ar(F+32+4*c,4), '0' if first else D), need=[('F', step)]))
            o += oplist(fx[gi])
        return o
    def epi():
        o = ['s_lshr_b32 s%d, s%d, 1' % (S_T, S_SEG), 's_mov_b32 s%d, 0x%x' % (S_OUT, WS_WVOF), 's_cmp_eq_u32 s%d, 1' % S_T, 's_cselect_b32 s%d, 0x%x, s%d' % (S_OUT, WS_T1F, S_OUT),
             's_cmp_eq_u32 s%d, 0' % S_T, 's_cselect_b32 s%d, 0x%x, s%d' % (S_OUT, WS_WDMF, S_OUT),
             's_and_b32 s%d, s%d, 1' % (S_T, S_SEG), 's_lshl_b32 s%d, s%d, 13' % (S_T, S_T), 's_add_u32 s%d, s%d, s%d' % (S_OUT, S_OUT, S_T),
             's_and_b32 s%d, s20, 1' % S_T, 's_lshl_b32 s%d, s%d, 12' % (S_T, S_T), 's_add_u32 s%d, s%d, s%d' % (S_OUT, S_OUT, S_T)]
        for c in range(6):
            o += ['s_add_u32 s%d, s%d, %d' % (S_T, S_NB, c), 's_lshl_b32 s%d, s%d, 14' % (S_T2, S_T), 's_add_u32 s%d, s%d, s%d' % (S_T2, S_T2, S_OUT),
                  's_cmp_lt_u32 s%d, 32' % S_T, 's_cselect_b32 s%d, s%d, 0x%x' % (S_T2, S_T2, WS_SIZE)]
            for kq in range(4):
                b = ACC + 8*(6*kq + c)
                o += ['v_cvt_pk_bf16_f32 v%d, v%d, v%d' % (b+x, b+2*x, b+2*x+1) for x in range(4)]
                o.append(Op('buffer_store_dwordx4 %s, v1, s[8:11], s%d offen offset:%d sc1' % (vr(b,4), S_T2, kq*1024), prod='ST'))
        return o + ['s_add_u32 s%d, s%d, 1' % (S_SEG, S_SEG), 's_mov_b32 s%d, 0' % S_CNT]
    h_frag_addr(a, RA, 3); a('s_and_b32 s%d, s20, 1', S_T); a('s_lshl_b32 s%d, s%d, 13', S_T, S_T); a('v_add_u32 v%d, s%d, v%d', RA, S_T, RA)
    a('s_lshr_b32 s%d, s20, 1', S_T); a('s_mul_i32 s%d, s%d, 6', S_NB, S_T); a('s_mul_i32 s%d, s%d, 6144', S_T, S_T); a('s_add_u32 s%d, s%d, 16384', S_T, S_T)
    a('v_add_u32 v%d, s%d, v1', RB, S_T)
    a('v_and_b32 v3, 15, v0'); a('v_lshl_add_u32 v3, v3, 4, s%d', S_T); a('v_lshrrev_b32 v2, 4, v0'); a('v_lshl_add_u32 v%d, v2, 9, v3', RT)
    a('s_mul_i32 s%d, s%d, 12', S_T, S_G); a('s_add_u32 s%d, s%d, s%d', S_NB, S_NB, S_T)
    a('s_mov_b32 s%d, 0', S_SEG); a('s_mov_b32 s%d, 0', S_CNT); a('s_mov_b32 s%d, 0', S_T); a('s_mov_b32 s23, 0')
    a.label('L_sp_par'); params('L_sp_par', 'L_sp_ret')
    a.label('L_sp_ret')
    a('s_cmp_eq_u32 s23, 1'); a('s_cbranch_scc1 L_sp_Ot'); a('s_cmp_eq_u32 s23, 2'); a('s_cbranch_scc1 L_sp_Op')
    tr = Trace(); o = []
    g, post = dma(0)
    for pre, x, aft in g: o += pre + ['s_nop 0', x] + aft
    o += post
    for pre, x, aft in dma(2)[0][:cfg.get('spo', 10)]: o += pre + ['s_nop 0', x] + aft
    o += [Op('s_barrier', need=[('T', 0)])] + reads(0, True) + [Op(None, need=[('F', 0)])]
    tr.run('pre', o)
    inc = ['s_add_u32 s%d, s%d, 1' % (S_CNT, S_CNT)]
    for seg in range(6):
        for e in range(16):
            step = 16*seg + e; trm = step+1 < 64; v = 't' if trm else 'p'
            if e == 0: tr.run('F'+v, body(step, trm, True))
            elif e & 1: tr.run('O'+v, body(step, trm) + inc)
            else: tr.run('E'+v, body(step, trm))
        tr.run('epi', epi())
    st = cfg.get('stamp') and cfg.get('sthead') != 2
    tr.emit(a, 'pre')
    if st: stamp_mid(a, 1)
    for v in 'tp':
        a.label('L_sp_F'+v); tr.emit(a, 'F'+v)
        a.label('L_sp_O'+v); tr.emit(a, 'O'+v)
        a('s_cmp_eq_u32 s%d, 8', S_CNT); a('s_cbranch_scc1 L_sp_epi')
        if v == 't': a('s_cmp_eq_u32 s%d, 1', S_CNT); a('s_cbranch_scc1 L_sp_fl')
        a.label('L_sp_E'+v); tr.emit(a, 'E'+v)
        if v == 't':
            a('s_lshl_b32 s%d, s%d, 3', S_T, S_SEG); a('s_add_u32 s%d, s%d, s%d', S_T, S_T, S_CNT); a('s_cmp_eq_u32 s%d, 31', S_T); a('s_cbranch_scc1 L_sp_Op')
        a('s_cmp_eq_u32 s%d, 6', S_CNT); a('s_cbranch_scc0 L_sp_O'+v)
        a.label('L_sp_sw'+v); a('s_add_u32 s%d, s%d, 1', S_T, S_SEG); a('s_mov_b32 s23, %d', 1 if v == 't' else 2); a('s_branch L_sp_par')
    a.label('L_sp_epi'); tr.emit(a, 'epi')
    if st:
        for p in range(6):
            a('s_cmp_eq_u32 s%d, %d', S_SEG, p+1); a('s_cbranch_scc0 L_sp_s%d', p); stamp_mid(a, 2+p); a.label('L_sp_s%d' % p)
    a('s_cmp_lt_u32 s%d, 4', S_SEG); a('s_cbranch_scc1 L_sp_Ft'); a('s_cmp_lt_u32 s%d, 6', S_SEG); a('s_cbranch_scc1 L_sp_Fp')
    def flag(base):
        a('s_lshl_b32 s%d, s%d, 7', S_T, S_G); a('s_add_u32 s%d, s%d, 0x%x', S_T, S_T, WS_FLG + 128*base)
        a('s_cmp_eq_u32 s20, 0'); a('s_cselect_b32 s%d, s%d, 0x%x', S_T, S_T, WS_SIZE)
        a('buffer_store_dword v21, v20, s[8:11], s%d offen sc1', S_T)
    a('s_waitcnt vmcnt(0) lgkmcnt(0)'); a('s_barrier'); flag(FLG_W)
    token_update()
    a('s_branch L_k2_fin')
    a.label('L_sp_fl'); a('s_cmp_eq_u32 s%d, 2', S_SEG); a('s_cbranch_scc0 L_sp_Et'); flag(FLG_D); a('s_branch L_sp_Et')
```

```python
import numpy as np
WS_XA   = 0x0000000
WS_QP   = 0x0800000
WS_PART = 0x1000000
WS_LSE  = 0x2800000
WS_STAMP= 0x7000000
WS_SIZE = 0x10000000

def slotF(h, i, p):
    a = i >> 2; r = i & 3
    return (2*h + (a >> 2))*16 + 4*((a + 2*p + h) & 3) + r

def to_F(mat):
    nt = mat.shape[0]//32
    out = np.empty((nt, 32, 64, 8), mat.dtype)
    m = mat.reshape(nt, 32, 32, 2, 8)
    for i in range(32):
        for h in range(2):
            for p in range(2):
                out[:, p::2, slotF(h, i, p), :] = m[:, i, p::2, h, :]
    return out
def from_F(f):
    nt = f.shape[0]
    m = np.empty((nt, 32, 32, 2, 8), f.dtype)
    for i in range(32):
        for h in range(2):
            for p in range(2):
                m[:, i, p::2, h, :] = f[:, p::2, slotF(h, i, p), :]
    return m.reshape(nt*32, 512)
def to_frag(mat):
    nt = mat.shape[0]//32; nk = mat.shape[1]//16
    m = mat.reshape(nt, 32, nk, 2, 8)
    return np.ascontiguousarray(m.transpose(0, 2, 3, 1, 4)).reshape(nt, nk, 64, 8)
def from_frag(f):
    nt, nk = f.shape[0], f.shape[1]
    return np.ascontiguousarray(f.reshape(nt, nk, 2, 32, 8).transpose(0, 3, 1, 2, 4)).reshape(nt*32, nk*16)

def slotG(g, key): return g*16 + (key ^ (12*(g & 1)))
def to_G(mat):
    nb = mat.shape[0]//16
    m = mat.reshape(nb, 16, 16, 4, 8)
    out = np.empty((nb, 16, 64, 8), mat.dtype)
    for key in range(16):
        for g in range(4):
            out[:, :, slotG(g, key), :] = m[:, key, :, g, :]
    return out
def from_G(f):
    nb = f.shape[0]
    m = np.empty((nb, 16, 16, 4, 8), f.dtype)
    for key in range(16):
        for g in range(4):
            m[:, key, :, g, :] = f[:, :, slotG(g, key), :]
    return m.reshape(nb*16, 512)
def to_frag16(mat):
    nb = mat.shape[0]//16; nk = mat.shape[1]//32
    m = mat.reshape(nb, 16, nk, 4, 8)
    return np.ascontiguousarray(m.transpose(0, 2, 3, 1, 4)).reshape(nb, nk, 64, 8)
def from_frag16(f):
    nb, nk = f.shape[0], f.shape[1]
    return np.ascontiguousarray(f.reshape(nb, nk, 4, 16, 8).transpose(0, 3, 1, 2, 4)).reshape(nb*16, nk*32)
def from_fragO(f):
    nb, nk = f.shape[0], f.shape[1]
    return np.ascontiguousarray(f.reshape(nb, nk, 4, 16, 2, 4).transpose(0, 3, 1, 4, 2, 5)).reshape(nb*16, nk*32)

WS_MF   = 0x3000000
WS_WDMF = 0x3080000
WS_T1F  = 0x3100000
WS_WVOF = 0x3180000
WS_WUPF = 0x3200000
WS_BASE = 0x3800000
def nu(nb, col): return 32*(nb >> 1) + 8*(col >> 2) + 4*(nb & 1) + (col & 3)
def kap_nat(kk, g, j): return 32*kk + 8*g + j
def kap_O(kk, g, j): return 32*kk + 16*(j >> 2) + 4*g + (j & 3)
def to_WF(W, kap=kap_nat):
    K, N = W.shape
    nb = np.arange(N//16)[:, None, None, None]; kk = np.arange(K//32)[None, :, None, None]
    l = np.arange(64)[None, None, :, None]; j = np.arange(8)[None, None, None, :]
    return W[kap(kk, l >> 4, j), nu(nb, l & 15)]

def slotH(g, key): return 4*key + (g ^ ((-(key >> 2)) & 3))
def to_H(mat):
    nb = mat.shape[0]//16
    m = mat.reshape(nb, 16, 16, 4, 8)
    out = np.empty((nb, 16, 64, 8), mat.dtype)
    for key in range(16):
        for g in range(4): out[:, :, slotH(g, key), :] = m[:, key, :, g, :]
    return out
def from_H(f):
    nb = f.shape[0]
    m = np.empty((nb, 16, 16, 4, 8), f.dtype)
    for key in range(16):
        for g in range(4): m[:, key, :, g, :] = f[:, :, slotH(g, key), :]
    return m.reshape(nb*16, 512)

WS_FLG = 0x3400000
FLG_C = 400; FLG_W = 506; FLG_D = 509
WS_WMF = 0x3300000
FLG_X = 512
FLG_0 = 768
FLG_E = 1024
FLG_Q = 1032
WS_QX = WS_QP
FLG_B = 1280
FLG_1 = 1792
FLG_QW = 2048
```

```python
class Asm:
    def __init__(self):
        self.lines = []
    def __call__(self, s, *a):
        if a: s = s % a
        for l in s.split('\n'):
            self.lines.append(l)
    def label(self, n): self.lines.append(n + ':')
    def text(self): return '\n'.join(self.lines) + '\n'

def kernel_header(a, name):
    a('.text')
    a('.globl %s', name)
    a('.p2align 8')
    a('.type %s,@function', name)
    a.label(name)

def kernel_desc(a, name, vgpr, accum, sgpr=102):
    a('.section .rodata,"a"')
    a('.p2align 6')
    a('.amdhsa_kernel %s', name)
    a('  .amdhsa_next_free_vgpr %d', vgpr)
    a('  .amdhsa_next_free_sgpr %d', sgpr)
    a('  .amdhsa_accum_offset %d', accum)
    a('  .amdhsa_group_segment_fixed_size 0')
    a('  .amdhsa_kernarg_size 96')
    a('  .amdhsa_user_sgpr_count 2')
    a('  .amdhsa_user_sgpr_kernarg_segment_ptr 1')
    a('  .amdhsa_system_sgpr_workgroup_id_x 1')
    a('  .amdhsa_float_denorm_mode_32 3')
    a('.end_amdhsa_kernel')

def vr(b, n=1): return 'v%d' % b if n == 1 else 'v[%d:%d]' % (b, b + n - 1)
def ar(b, n=1): return 'a%d' % b if n == 1 else 'a[%d:%d]' % (b, b + n - 1)
def sr(b, n=1): return 's%d' % b if n == 1 else 's[%d:%d]' % (b, b + n - 1)

import struct
def f2u(x): return struct.unpack('<I', struct.pack('<f', x))[0]

class Op:
    def __init__(self, text, prod=None, need=None, lds=None, extra=''):
        self.text = text; self.prod = prod; self.need = need or []
        self.lds = lds if lds is not None else (text or '').startswith('ds_')
        self.extra = extra
def resolve(a, ops, history):
    seq = []; done = -1
    for o in history:
        for t in o.need:
            c = [i for i in range(len(seq)) if seq[i].prod == t]
            if c: done = max(done, c[-1])
        if o.lds: seq.append(o)
    for o in ops:
        if isinstance(o, str): o = Op(o)
        if o.need or (o.text is None):
            idx = -1
            for t in o.need:
                c = [i for i in range(len(seq)) if seq[i].prod == t]
                assert c, ('missing producer', t)
                idx = max(idx, c[-1])
            w = []
            if o.extra: w.append(o.extra)
            if idx > done:
                cnt = min(15, len(seq)-1-idx)
                w.append('lgkmcnt(%d)' % cnt); done = len(seq)-1-cnt
            if w: a('s_waitcnt ' + ' '.join(w))
        if o.text is not None: a(o.text)
        if o.lds: seq.append(o)
def oplist(x):
    return [o if isinstance(o, Op) else Op(o) for o in x]

OKPAT = {'', 'E','V','VV','S','SS','SSS','SE','SV','SVV','R','RV','SR','RS','D','W','B','X','SSV'}
ORDER = {'S':0,'R':1,'D':1,'W':1,'X':1,'B':1,'E':2,'V':2}
class Task:
    def __init__(self, kind, ops, deps=(), lo=0, name=None):
        self.kind = kind; self.ops = ops if isinstance(ops, list) else [ops]
        self.deps = list(deps)
        self.lo = lo; self.gap = None; self.name = name
class Gaps:
    def __init__(self, n):
        self.n = n; self.g = [[] for _ in range(n)]
    def pat(self, i, extra=''):
        k = [t.kind for t in self.g[i]] + list(extra)
        return ''.join(sorted(''.join(k), key=lambda c: ORDER[c]))
    def fits(self, i, kind): return self.pat(i, kind) in OKPAT
    def put(self, t, i, force=False):
        assert force or self.fits(i, t.kind), (i, self.pat(i), t.kind, t.ops)
        t.gap = i; self.g[i].append(t); return t
    def asap(self, t, hi=None):
        lo = t.lo
        for d, dist in t.deps: lo = max(lo, d.gap + dist)
        for i in range(lo, hi or self.n):
            if self.fits(i, t.kind): return self.put(t, i)
        raise AssertionError(('no room', t.kind, t.ops, lo))
    def listsched(self, tasks, g0=0):
        todo = list(tasks)
        for i in range(g0, self.n):
            prog = True
            while prog:
                prog = False
                for t in todo:
                    if t.lo > i: continue
                    if any(d.gap is None or d.gap + dist > i for d, dist in t.deps): continue
                    if self.fits(i, t.kind):
                        self.put(t, i); todo.remove(t); prog = True; break
            if not todo: return
        raise AssertionError(('unscheduled', [t.ops for t in todo]))
    def ops(self, i):
        out = []
        for t in sorted(self.g[i], key=lambda t: ORDER[t.kind[0]]): out += oplist(t.ops)
        return out
    def show(self): return ' '.join(self.pat(i) or '.' for i in range(self.n))

SB = 76
def stamp_begin(a):
    for i in range(1, 12): a('s_mov_b32 s%d, 0', SB+2*i)
    a('s_memrealtime s[%d:%d]', SB, SB+1)
def stamp_op(i): return 's_memrealtime s[%d:%d]' % (SB+2*i, SB+2*i+1)
def stamp_mid(a, i): a(stamp_op(i))
def stamp_end(a, base, swave, srd=8):
    a('s_waitcnt vmcnt(0)'); a(stamp_op(11)); a('s_waitcnt lgkmcnt(0)')
    for i in range(12): a('v_mov_b32 v%d, s%d', 4+i, SB+2*i)
    a('s_lshl_b32 s100, s2, 2'); a('s_add_u32 s100, s100, s%d', swave); a('s_lshl_b32 s100, s100, 6')
    a('s_add_u32 s100, s100, 0x%x', base); a('v_mov_b32 v3, 0')
    for i in range(3): a('buffer_store_dwordx4 v[%d:%d], v3, s[%d:%d], s100 offen offset:%d', 4+4*i, 7+4*i, srd, srd+3, 16*i)

def is_vm(o): return o.text is not None and o.text.startswith('buffer_')
class Trace:
    def __init__(self, static=None, lenient=False):
        self.l = []; self.v = []; self.dl = -1; self.dv = -1; self.lenient = lenient
        self.static = {} if static is None else static
        self.lp = {}; self.vp = {}
    def run(self, key, ops):
        ops = oplist(ops)
        if key not in self.static: self.static[key] = (ops, [[None, None] for _ in ops])
        sops, waits = self.static[key]
        assert [o.text for o in sops] == [o.text for o in ops], ('segment text differs', key)
        for i, o in enumerate(ops):
            il = iv = -1
            for t in o.need:
                if t == 'ALLV': iv = len(self.v)-1; continue
                if t == 'ALLL': il = len(self.l)-1; continue
                assert (self.lenient and t[0] in self.lenient) or t in self.lp or t in self.vp, ('missing producer', t, key)
                if t in self.lp: il = max(il, self.lp[t])
                if t in self.vp: iv = max(iv, self.vp[t])
            if is_vm(o): iv = max(iv, len(self.v)-1-62)
            if iv > self.dv:
                c = min(63, len(self.v)-1-iv); self.dv = len(self.v)-1-c
                waits[i][0] = c if waits[i][0] is None else min(c, waits[i][0])
            if il > self.dl:
                c = min(15, len(self.l)-1-il); self.dl = len(self.l)-1-c
                waits[i][1] = c if waits[i][1] is None else min(c, waits[i][1])
            if o.lds:
                self.l.append(o)
                if o.prod is not None: self.lp[o.prod] = len(self.l)-1
            elif is_vm(o):
                self.v.append(o)
                assert len(self.v)-1-self.dv <= 63, ('vmcnt overflow', key, o.text)
                if o.prod is not None: self.vp[o.prod] = len(self.v)-1
    def emit(self, a, key):
        ops, waits = self.static[key]
        for o, (v, l) in zip(ops, waits):
            w = []
            if v is not None: w.append('vmcnt(%d)' % v)
            if l is not None: w.append('lgkmcnt(%d)' % l)
            if w: a('s_waitcnt ' + ' '.join(w))
            if o.text is not None: a(o.text.replace('buffer_x\n', ''))
def kind_of(o):
    t = o.text
    if t is None: return 'S'
    if t.endswith(':'): return ''
    if t.startswith('ds_read'): return 'R'
    if t.startswith('ds_write'): return 'W'
    if t.startswith('buffer_'): return 'D'
    if t.startswith('s_barrier'): return 'X'
    if t.startswith('s_cbranch'): return 'B'
    if t.startswith('s_'): return 'S'
    if t.startswith('v_mfma'): return 'M'
    if t.startswith('v_pk_'): return 'P'
    if t.split()[0] in ('v_exp_f32','v_rcp_f32','v_rsq_f32','v_log_f32'): return 'E'
    return 'V'
def spread(fixed, stream, n, g0=0, g1=None, smax=99):
    g1 = n if g1 is None else g1
    stream = oplist(stream)
    cost = {'V':4,'E':8,'R':8,'W':16,'D':12,'S':4,'M':16,'X':8,'':0,'B':8}
    def cap(g):
        k = ''.join(kind_of(o) for o in oplist(fixed[g]))
        if 'D' in k or 'W' in k or 'X' in k: return 0
        if 'R' in k: return 4
        return 8
    caps = [cap(g) for g in range(g0, g1)]
    vc = {'V':4,'E':8,'R':4,'W':8,'D':8,'S':0,'M':-8,'X':8,'':0,'B':8,'P':0}
    def attempt(scale):
        out = [list(oplist(f)) for f in fixed]
        i = 0; budget = 0.0
        for gi, g in enumerate(range(g0, g1)):
            budget += caps[gi]*scale
            if caps[gi] == 0: continue
            placed_v = False; placed_p = False
            while i < len(stream):
                k = kind_of(stream[i]); c = vc[k]
                if k in ('R','W','D') and (placed_v or any(kind_of(o) in ('R','W','D') for o in out[g])): break
                if placed_p and k not in ('P','S','M'): break
                if k == 'S' and len(out[g]) >= smax: break
                if c > budget + 1e-6:
                    j = i
                    while j < len(stream) and j-i < 3 and kind_of(stream[j]) == 'V': j += 1
                    if not (j < len(stream) and kind_of(stream[j]) == 'P'): break
                    c = 0
                out[g].append(stream[i]); budget -= c; i += 1
                if k in ('V','E','P'): placed_v = True
                if k == 'P': placed_p = True
                if k == 'M': placed_v = False; placed_p = False; budget = 8.0*scale
            if scale == 1.0: budget = 0.0
            budget = min(budget, 8.0)
        return out, i
    scale = 1.0
    while True:
        out, i = attempt(scale)
        if i >= len(stream) or scale > 8: break
        scale += 0.05
    out[g1-1] += stream[i:]
    return out

def _adv(t, pv, o):
    k = kind_of(o)
    if o.need and o.text is not None: t += 4
    if k == '': return t, pv
    if k == 'S': return t+4, False
    if k in ('R', 'D', 'W', 'X', 'B'):
        c = {'R': 8, 'D': 24 if 'store' in o.text else 12, 'X': 8, 'B': 10, 'W': 24 if 'b128' in o.text else (16 if 'b64' in o.text else 12)}[k]
        return t + c + (4 if pv else 0), False
    if k == 'P': return max(t, 28) + 4.6, True
    return max(t, 8) + (8 if k == 'E' else 4), True
_DPC = {}
def spread_dp(fixed, stream, n, g0=0, g1=None, lat=5):
    g1 = n if g1 is None else g1
    st = oplist(stream); m = len(st); fx = [oplist(f) for f in fixed]
    prod = {o.prod: i for i, o in enumerate(st) if o.prod is not None and o.lds}
    import hashlib, pickle, os
    key = hashlib.md5(repr(([[(o.text, bool(o.need)) for o in f] for f in fx], [(o.text, [prod.get(t, -1) for t in o.need]) for o in st], g0, g1, lat)).encode()).hexdigest()
    if not _DPC and os.path.exists('dp.cache'): _DPC.update(pickle.load(open('dp.cache', 'rb')))
    best = {0: (0.0, ())}
    for g in range(g0, g1 if key not in _DPC else g0):
        t0 = 4; pv0 = False
        for o in fx[g]: t0, pv0 = _adv(t0, pv0, o)
        nb = {}
        for i, (c, cuts) in best.items():
            t, pv, acc = t0, pv0, 0.0
            j = i
            while True:
                tot = c + acc + max(16, t) + 1e-3*(j-i)*(g-g0)/n
                if j not in nb or tot < nb[j][0]: nb[j] = (tot, cuts + (j,))
                if j >= m or (j-i > 48): break
                o = st[j]
                for tg in o.need:
                    if tg in prod:
                        p = prod[tg]; d = 0
                        while d < lat and d < len(cuts) and cuts[-1-d] > p: d += 1
                        if d < lat: acc += 16*(lat-d) * (0.0 if any(kind_of(x) == 'P' for x in st[p:j]) else 1.0)
                if kind_of(o) == 'M': acc += max(16, t); t = 4; pv = False
                else: t, pv = _adv(t, pv, o)
                j += 1
        best = nb
    if key not in _DPC:
        _DPC[key] = best[m]; pickle.dump(_DPC, open('dp.cache', 'wb'))
    cost, cuts = _DPC[key]
    out = [list(f) for f in fx]; i = 0
    for g, j in zip(range(g0, g1), cuts): out[g] += st[i:j]; i = j
    return out
def est_cycles(ops):
    t = None; tot = 0; pv = False
    for o in oplist(ops):
        if kind_of(o) == 'M':
            if t is not None: tot += max(16, t)
            t = 4; pv = False
        elif t is not None: t, pv = _adv(t, pv, o)
    return tot + max(16, t or 0)
```

```python
from asmlib import *
from layout import *
from gen_k0 import srd, h_frag_addr
from gen_ln import *

S_WS=8
S_W=20; S_J=21; S_B=23; S_SP=24; S_QT=25; S_N=26; S_T=27
S_SRC=28; S_DST=29; S_END=30; S_SRCV=31
S_T0=34; S_T1=35; S_T2=36; S_T3=37; S_RET=38; S_RB=39; S_THR=41; S_NV=42
S_WP=48; S_FO=52; S_PP=53; S_PS=54; S_BS=55; S_OP=56; S_SPIN=57; S_LP=58; S_MK=59; S_SAME=43; S_PP2=45; S_WB=46; S_NR=47
L_X2=151552; L_PAR=81920
L_ST=65536; L_P=131072; L_X=147456; L_FLAG=159744
MF='v_mfma_f32_16x16x32_bf16'

class Attn:
    def __init__(self, a, cfg):
        self.a = a; self.cfg = cfg
        self.NQ = NQ = cfg['NQ']; self.NS = cfg['NS']
        self.vb = 256 - max(0, 64*NQ - 256)
        self.n = 16*NQ; self.SN = cfg.get('snake', 1)
        self.EA = cfg.get('ea', 0) if (cfg.get('hyb', 1) and not cfg.get('two', 0)) else 0
        self.WL = cfg.get('wl', 1) and cfg.get('hyb', 1) and cfg.get('one', 1)
        self.TWP = 0 if self.WL else cfg.get('twp', 10 if (cfg.get('hyb', 1) and cfg.get('two', 0)) else 6)
        self.V_L16=1; self.V_A=2; self.V_PA=3; self.V_XA=4; self.V_F=5; self.V_FA=6; self.V_T=7
        r = 8
        self.V_E=r; r+=8
        self.V_PK=r; r+=4
        self.V_NEGM=r; r+=4*NQ
        self.V_S=r; r+=8*NQ
        self.RQ = cfg['ringq']; self.V_RQ=r; r+=4*self.RQ
        self.V_L=r; r+=NQ
        self.V_TS=r; r+=NQ
        self.V_PF=r; r+=2
        self.W2 = cfg.get('w2', 1); self.PL = self.W2 and cfg.get('pl', 1)
        self.V_EE=r; r+=4*NQ
        self.V_P2=r; r+=2*NQ
        assert r <= self.vb, r
        self.V_A2 = 8; self.V_PX = 10; self.NFV = 28
        r = 8*(8*NQ - self.NFV)
        self.RP = cfg['ringp']; self.A_RP = r; r += 4*self.RP
        self.A_PP = r; r += 8*NQ
        assert r <= 256
    def O(self, f, off=0, n=1):
        return vr(32+8*f+off, n) if f < self.NFV else ar(8*(f-self.NFV)+off, n)
    def R(self, i, n=1):
        return ar(i, n) if i < 256 else vr(self.vb + i - 256, n)
    def dma(self, d0, cnt):
        g = []
        for x in range(cnt):
            d = d0 + x; pre = []
            if d % 4 == 0 or x == 0:
                pre = ['s_add_u32 m0, s%d, %d' % (S_DST, (d//4)*4096), 's_add_u32 s%d, s%d, %d' % (S_T0, S_SRC if self.WL else S_SRCV, (d//4)*4096)]
            g.append((pre, 'buffer_load_dwordx4 v%d, s[%d:%d], s%d offen offset:%d%s lds' % (self.V_L16, S_WS, S_WS+3, S_T0, (d%4)*1024, self.cfg.get('kpol', ' sc1'))))
        return g
    def dma_adv(self):
        return [['s_add_u32 s%d, s%d, 32768' % (S_SRC, S_SRC), 's_add_u32 s%d, s%d, 32768' % (S_DST, S_DST)],
                ['s_and_b32 s%d, s%d, 0x1ffff' % (S_DST, S_DST)],
                ['s_cmp_eq_u32 s%d, s%d' % (S_SRC, S_END), 's_cselect_b32 s%d, s%d, s%d' % (S_SRC, S_WB, S_SRC)] if self.WL else
                ['s_cmp_lt_u32 s%d, s%d' % (S_SRC, S_END), 's_cselect_b32 s%d, s%d, 0x%x' % (S_SRCV, S_SRC, WS_SIZE)]]
    def place_dma(self, G, d0, cnt, g0, g1, pf=False, pfp=None):
        if cnt == 0: return []
        prev = None; lst = self.dma(d0, cnt)
        for i, (pre, ins) in enumerate(lst):
            lo = g0 + (i*(g1-g0))//cnt
            if pre:
                t1 = G.asap(Task('S', pre[0], [(prev,1)] if prev else [], lo=max(g0, lo-2) if prev is None else g0))
                t2 = G.asap(Task('S', pre[1], [(t1,0)]))
                prev = t2
            prev = G.asap(Task('D', ins, [(prev,1)], lo=lo))
            if i == pfp: prev = G.asap(Task('D', 'buffer_load_dword v23, v22, s[%d:%d], s%d offen' % (S_WS, S_WS+3, S_SRCV), [(prev,1)]))
        if pf: prev = G.asap(Task('D', 'buffer_load_dword v%d, v%d, s[%d:%d], s%d offen' % (self.V_PF+1, self.V_PF, S_WS, S_WS+3, S_SRCV), [(prev,1)]))
        self.last_dma = prev.gap
        adv = self.dma_adv()
        for x in adv[0] + adv[1]: prev = G.asap(Task('S', x, [(prev, 1 if prev.kind == 'D' else 0)]))
        return [(G.asap(Task('SS', adv[2], [(prev,1)])), 1)]
    def kread(self, kk, par):
        return Op('ds_read_b128 %s, v%d offset:%d' % (vr(self.V_RQ+4*(kk % self.RQ),4), self.V_A, par*32768 + kk*1024), prod=('K', par, kk))
    def qk_mfma(self, g, par, first=False):
        NQ = self.NQ
        G = g//(2*NQ); w = g % (2*NQ); qb = w//2; kk = 2*G + ((w & 1) ^ (qb & self.SN))
        D = vr(self.V_S + 4*NQ*par + 4*qb, 4)
        C = D if (G or w & 1) else ('0' if first else vr(self.V_NEGM+4*qb,4))
        need = [('K', par, kk)] if w < 2 else []
        return Op('%s %s, %s, %s, %s' % (MF, D, vr(self.V_RQ+4*(kk % self.RQ),4), self.R(4*(kk*NQ+qb),4), C), need=need)
    def softmax_groups(self, sp):
        NQ = self.NQ; E = self.V_E; out = []
        if self.W2:
            for qb in range(NQ):
                S = self.V_S + 4*NQ*sp + 4*qb; E = self.V_EE + 4*qb; PK = self.V_P2 + 2*qb
                out += [['v_exp_f32 v%d, v%d' % (E+r, S+r)] for r in range(4)]
                out.append(['v_cvt_pk_bf16_f32 v%d, v%d, v%d' % (PK+h, E+2*h, E+2*h+1) for h in range(2)])
                out.append([self.pwrite(sp, qb, h) for h in range(2)])
            return out
        for qb in range(NQ):
            S = self.V_S + 4*NQ*sp + 4*qb; PK = self.V_PK + 2*(qb & 1); TS = self.V_TS+qb
            for r in range(4): out.append(['v_exp_f32 v%d, v%d' % (E+r, S+r)])
            out.append(['v_add_f32 v%d, v%d, v%d' % (TS, E, E+1), 'v_cvt_pk_bf16_f32 v%d, v%d, v%d' % (PK, E, E+1)])
            out.append(['v_add_f32 v%d, v%d, v%d' % (self.V_T, E+2, E+3), 'v_cvt_pk_bf16_f32 v%d, v%d, v%d' % (PK+1, E+2, E+3)])
            out.append(['v_add_f32 v%d, v%d, v%d' % (TS, TS, self.V_T),
                        Op('ds_write_b64 v%d, %s offset:%d' % (self.V_PA, vr(PK,2), (sp*NQ+qb)*1024), prod=('PW', sp, qb))])
        return out
    def pwrite(self, sp, qb, h):
        return Op('ds_write_b32 v%d, v%d offset:%d' % (self.V_PA, self.V_P2+2*qb+h, (sp*self.NQ+qb)*1024 + (256 if self.PL else 4)*h), prod=('PW' if h else 'PW0', sp, qb))
    def ladds(self, qb):
        M = self.V_L+qb
        if self.W2: return ['v_add_f32 v%d, v%d, v%d' % (M, M, self.V_EE+4*qb+r) for r in range(4)]
        return ['v_add_f32 v%d, v%d, v%d' % (M, M, self.V_TS+qb)]
    def check_groups(self, tag):
        NQ = self.NQ; TS = self.V_TS; T = self.V_T
        if self.W2:
            P = self.V_P2
            m = ['v_or3_b32 v%d, v%d, v%d, v%d' % (T, P, P+1, P+2)] + ['v_or3_b32 v%d, v%d, v%d, v%d' % (T, T, P+i, P+i+1) for i in (3, 5, 7)]
            m += ['v_bitop3_b32 v%d, v%d, v%d, s%d bitop3:0xa8' % (T, T, P+9, S_THR), 'v_cmp_ne_u32 vcc, 0, v%d' % T]
            return [m[i:i+2] for i in range(0, 6, 2)] + [['s_cbranch_vccnz L_setflag%s' % tag, 'L_flagset%s:' % tag]]
        m = ['v_max3_f32 v%d, v%d, v%d, v%d' % (T, TS, TS+1, TS+2)]
        i = 3
        while i < NQ:
            if i+1 < NQ: m.append('v_max3_f32 v%d, v%d, v%d, v%d' % (T, T, TS+i, TS+i+1)); i += 2
            else: m.append('v_max_f32 v%d, v%d, v%d' % (T, T, TS+i)); i += 1
        m.append('v_cmp_lt_f32 vcc, s%d, v%d' % (S_THR, T))
        out = [m[i:i+2] for i in range(0, len(m), 2)]
        out.append(['s_cbranch_vccnz L_setflag%s' % tag, 'L_flagset%s:' % tag])
        return out
    def flag_read(self, par): return Op('ds_read_b32 v%d, v%d' % (self.V_F, self.V_FA), prod=('F', par))
    def softmax_tasks(self, sp):
        NQ = self.NQ; cfg = self.cfg; tasks = []; hist = []
        for qb in range(NQ):
            E = self.V_E + 4*(qb & 1)
            S = self.V_S + 4*NQ*sp + 4*qb; PK = self.V_PK + 2*(qb & 1); TS = self.V_TS+qb
            old = hist[qb-2] if qb >= 2 else None
            e = []
            for r in range(4):
                dep = [(e[-1],1)] if e else ([(hist[-1]['e'],1)] if hist else [])
                if old: dep += [(old['a01' if r < 2 else 'af'],1), (old['c01' if r < 2 else 'c23'],1)]
                e.append(Task('E', 'v_exp_f32 v%d, v%d' % (E+r, S+r), dep))
            a01 = Task('V', 'v_add_f32 v%d, v%d, v%d' % (TS, E, E+1), [(e[1],1)])
            c01 = Task('V', 'v_cvt_pk_bf16_f32 v%d, v%d, v%d' % (PK, E, E+1), [(e[1],1)] + ([(old['w'],1)] if old else []))
            a2 = Task('V', 'v_add_f32 v%d, v%d, v%d' % (TS, TS, E+2), [(e[2],1),(a01,0)])
            c23 = Task('V', 'v_cvt_pk_bf16_f32 v%d, v%d, v%d' % (PK+1, E+2, E+3), [(e[3],1)] + ([(old['w'],1)] if old else []))
            af = Task('V', 'v_add_f32 v%d, v%d, v%d' % (TS, TS, E+3), [(e[3],1),(a2,0)])
            off = (sp*NQ+qb)*1024
            if cfg.get('w32', 1):
                w0 = Task('W', Op('ds_write_b32 v%d, v%d offset:%d' % (self.V_PA, PK, off), prod=('PW0', sp, qb)), [(c01,1)] + ([(hist[-1]['w'],1)] if hist else []))
                w = Task('W', Op('ds_write_b32 v%d, v%d offset:%d' % (self.V_PA, PK+1, off+4), prod=('PW', sp, qb)), [(c23,1),(w0,1)])
                ws = [w0, w]
            else:
                w = Task('W', Op(('ds_write_b32 v%d, v%d offset:%d' % (self.V_PA, PK + (qb & 1), off + 4*(qb & 1))) if cfg.get('xp_w1') else 'ds_write_b64 v%d, %s offset:%d' % (self.V_PA, vr(PK,2), off), prod=('PW', sp, qb)), [(c01,1),(c23,1)] + ([(hist[-1]['w'],1)] if hist else []))
                ws = [w]
            hist.append(dict(e=e[3], a01=a01, c01=c01, c23=c23, af=af, w=w))
            tasks.append((e, [a01, c01, a2, c23, af], ws))
        return tasks, hist
    def qk_body(self, par, first=False):
        NQ = self.NQ; n = self.n; cfg = self.cfg
        G = Gaps(n)
        LA = min(self.RQ//2 - 1, cfg['laq'])
        for gi in range(8):
            G2 = gi + LA; p2 = par; pos = 2*NQ*gi
            if G2 >= 8: G2 -= 8; p2 = par ^ 1
            if G2 == 0 and par == 1: G.put(Task('V', 'v_xor_b32 v%d, 0x10000, v%d' % (self.V_A, self.V_A)), pos-1)
            G.put(Task('R', self.kread(2*G2, p2)), pos); G.put(Task('R', self.kread(2*G2+1, p2)), pos+cfg.get('kd',1))
            g1 = (gi+1) % 8
            if not (first and gi == 7):
                G.put(Task('S', Op(None, need=[('K', par if gi < 7 else par^1, 2*g1+1)])), pos+2*NQ-1)
        if not first:
            if self.W2:
                sp = par ^ 1; ee = []; cv = []; ww = []
                for i in range(4*NQ): ee.append(Task('E', 'v_exp_f32 v%d, v%d' % (self.V_EE+i, self.V_S+4*NQ*sp+i), [(ee[-1],1)] if ee else []))
                for i in range(2*NQ):
                    cv.append(Task('V', 'v_cvt_pk_bf16_f32 v%d, v%d, v%d' % (self.V_P2+i, self.V_EE+2*i, self.V_EE+2*i+1), [(ee[2*i+1],1)]))
                    ww.append(Task('W', self.pwrite(sp, i//2, i & 1), [(cv[i],1)] + ([(ww[-1],1)] if ww else [])))
                ck = self.check_groups(str(par)); flat = [x for it in ck[:-1] for x in it]; cks = []
                for i, x in enumerate(flat): cks.append(Task('V', x, [(cv[j],0) for j in range(min(2*NQ, 3+2*i))] + ([(cks[-1],0)] if cks else [])))
                br = Task('B', ck[-1], [(cks[-1], 2)])
                plan = cfg.get('w2p', '..EEEEEEEEccEWEWECEEccEWEWEWEEccEEWWWCWOooOW')
                q = {'E': list(ee), 'c': list(cv), 'W': list(ww), 'o': list(cks)}
                for g, ch in enumerate(plan):
                    for k in {'.': '', 'C': 'cc', 'O': 'oo'}.get(ch, ch):
                        t = q[k].pop(0)
                        assert all(d.gap is not None and d.gap + dist <= g for d, dist in t.deps), (g, t.ops)
                        G.put(t, g)
                assert not any(q.values()), {k: len(v) for k, v in q.items()}
                G.asap(br); hist = [dict(w=ww[-1])]
            else:
                tk, hist = self.softmax_tasks(par ^ 1)
                order = []
                for q in range(NQ):
                    order += tk[q][0][:2]
                    if q: order += tk[q-1][1][2:] + tk[q-1][2][-1:]
                    order += tk[q][0][2:] + tk[q][1][:2] + tk[q][2][:-1]
                order += tk[NQ-1][1][2:] + tk[NQ-1][2][-1:]
                ck = self.check_groups(str(par))
                flat = [x for it in ck[:-1] for x in it]
                prev = None; cks = []
                for i, x in enumerate(flat):
                    dep = [(hist[q]['af'],0) for q in range(min(NQ-1, 2+2*i)+1)] + ([(prev,0)] if prev else [])
                    prev = Task('V', x, dep); cks.append(prev)
                br = Task('B', ck[-1][1:] if cfg.get('xp_nb') else ck[-1], [(prev, 2)])
                G.listsched(order[:-1] + cks + order[-1:] + [br])
            bar = G.asap(Task('X', [Op(None, need=[('PW', par^1, NQ-1)], extra=('vmcnt(1)' if (cfg.get('kpf', 0) and not cfg.get('kpp', 1)) else 'vmcnt(0)') if cfg['dq'] else ''), 's_barrier'], [(br,1),(hist[-1]['w'], cfg['bq'])]))
            assert bar.gap < 2*NQ*(8-LA-(cfg['dv']+1)//2), (bar.gap, LA)
            fr = G.asap(Task('R', self.flag_read(par), [(bar,1)]))
            fw = G.asap(Task('SV', [Op(None, need=[('F', par)]), 'v_cmp_eq_u32 vcc, s%d, v%d' % (S_T, self.V_F)], [(fr, cfg['fq'])]))
            b2 = G.asap(Task('B', ['s_cbranch_vccnz L_qrec%d' % par, 'L_qback%d:' % par][1 if cfg.get('xp_nb') else 0:], [(fw,2)]))
            if not self.W2:
                for q in range(NQ): G.asap(Task('V', 'v_add_f32 v%d, v%d, v%d' % (self.V_L+q, self.V_L+q, self.V_TS+q), [(b2,1)]))
            if cfg.get('wpl', 1) and (par or not self.WL): G.asap(Task('D', 'buffer_load_dword v%d, v%d, s[%d:%d], 0 offen sc1' % (self.V_PF+1, self.V_PF, S_WS, S_WS+3), [(b2, cfg.get('wpd', 14))]))
            dd = self.place_dma(G, 0, cfg['dq'], bar.gap+1, n-cfg['dqe'], cfg.get('kpf', 0) and not cfg.get('kpp', 1))
            inc = G.asap(Task('SS', ['s_add_u32 s%d, s%d, 1' % (S_T, S_T), ('s_cmp_eq_u32 s%d, s%d' if par else 's_cmp_lg_u32 s%d, s%d') % (S_T, S_N)], [(b2,1)]+dd, lo=n-3))
            if self.W2:
                ad = [self.ladds(q) for q in range(NQ)]; prev = b2
                for r in range(4):
                    for q in range(NQ): prev = G.asap(Task('V', ad[q][r], [(prev, 1 if prev is b2 else 0)]))
            if cfg.get('show'): print('QK', par, G.show())
        ops = []
        for g in range(n):
            ops.append(self.qk_mfma(g, par, first)); ops += G.ops(g)
        return ops
    def rowmax_exchange(self, sp):
        a = self.a; NQ = self.NQ; T = self.V_T
        for qb in range(NQ):
            S = self.V_S + 4*NQ*sp + 4*qb; M = self.V_TS+qb
            a('v_max3_f32 v%d, v%d, v%d, v%d', M, S, S+1, S+2); a('v_max_f32 v%d, v%d, v%d', M, M, S+3)
            for ins in ['v_permlane16_swap_b32', 'v_permlane32_swap_b32']:
                a('v_mov_b32 v%d, v%d', T, M); a('s_nop 1'); a('%s v%d, v%d', ins, T, M); a('v_max_f32 v%d, v%d, v%d', M, M, T)
            if self.W2: a('v_add_f32 v%d, 0x%x, v%d', M, f2u(float(self.cfg.get('thr', 40))), M)
            a('ds_write_b32 v%d, v%d offset:%d', self.V_XA, M, qb*512)
    def read_x(self, dst):
        a = self.a
        a('v_and_b32 v%d, 0xfffffffb, v%d', self.V_T, self.V_XA)
        for qb in range(self.NQ): a('ds_read_b64 %s, v%d offset:%d', vr(dst+2*qb,2), self.V_T, qb*512)
        a('s_waitcnt lgkmcnt(0)')
    def emit_flat(self, groups):
        for it in groups:
            for o in oplist(it): self.a(o.text)
            if it and not isinstance(it[0], Op) and it[0].startswith('v_exp'): pass
    def qk_path(self):
        a = self.a; NQ = self.NQ; cfg = self.cfg; T = self.V_T
        h_frag_addr(a, self.V_A, T)
        a('s_lshl_b32 s%d, s%d, 14', S_T2, S_J); a('v_add_u32 v%d, s%d, v%d', self.V_A, S_T2, self.V_A)
        QA = self.V_E
        a('v_add_u32 v%d, %d, v%d', QA, L_ST, self.V_L16); a('v_add_u32 v%d, %d, v%d', QA+1, L_ST+65536, self.V_L16)
        LA = min(self.RQ//2 - 1, cfg['laq'])
        def qread(g):
            G = g//(2*NQ); w = g % (2*NQ); qb = w//2; kk = 2*G + ((w & 1) ^ (qb & self.SN)); off = qb*16384 + kk*1024
            return Op('ds_read_b128 %s, v%d offset:%d' % (self.R(4*(kk*NQ+qb),4), QA + off//65536, off % 65536), prod=('Q', g))
        PRE = 10
        ops = [self.kread(kk, 0) for kk in range(2*LA)] + [qread(g) for g in range(PRE)]
        ops += ['s_lshl_b32 s%d, s%d, %d' % (S_T2, S_J, 9 if self.PL else 3), 's_add_u32 s%d, s%d, %d' % (S_T2, S_T2, L_P), 'v_lshl_add_u32 v%d, v0, %d, s%d' % (self.V_PA, 2 if self.PL else 4, S_T2)]
        ops += ['v_mov_b32 v%d, 0' % (self.V_L+q) for q in range(NQ)]
        ops += ['s_and_b32 s%d, s%d, 7' % (S_T2, S_QT), 's_lshl_b32 s%d, s%d, 11' % (S_T2, S_T2), 's_add_u32 s%d, s%d, %d' % (S_T2, S_T2, 32768*cfg.get('kpf', 0)), 'v_lshl_add_u32 v%d, v0, 5, s%d' % (self.V_PF, S_T2)]
        if cfg.get('wpl', 1):
            assert cfg.get('kpp', 1)
            ops += ['v_lshrrev_b32 v%d, 4, v0' % self.V_PF, 'v_min_u32 v%d, 2, v%d' % (self.V_PF, self.V_PF), 'v_lshlrev_b32 v%d, 7, v%d' % (self.V_PF, self.V_PF), 'v_add_u32 v%d, 0x%x, v%d' % (self.V_PF, WS_FLG + 128*FLG_W, self.V_PF)]
        g = 0; late = []
        for o in self.qk_body(0, first=True):
            if self.T1L and o.prod and o.prod[0] == 'K' and o.prod[1] == 1: late.append(o)
            elif o.text and o.text.startswith(MF):
                if g % 2 == 0: o.need = o.need + [('Q', g+1)]
                ops.append(o)
                if g + PRE < self.n: ops.append(qread(g+PRE))
                g += 1
            else: ops.append(o)
        resolve(a, oplist(ops), [])
        if cfg.get('stamp') and cfg.get('sthead') == 1: stamp_mid(a, 8)
        M = self.V_TS; X = self.V_S + 4*NQ
        a('v_and_b32 v%d, 0xfffffffb, v%d', T, self.V_XA)
        for qb in range(NQ):
            S = self.V_S + 4*qb
            a('v_max3_f32 v%d, v%d, v%d, v%d', M+qb, S, S+1, S+2); a('v_max_f32 v%d, v%d, v%d', M+qb, M+qb, S+3); a('v_mov_b32 v%d, v%d', X+qb, M+qb)
        for qb in range(NQ): a('v_permlane16_swap_b32 v%d, v%d', X+qb, M+qb)
        for qb in range(NQ): a('v_max_f32 v%d, v%d, v%d', M+qb, M+qb, X+qb); a('v_mov_b32 v%d, v%d', X+qb, M+qb)
        for qb in range(NQ): a('v_permlane32_swap_b32 v%d, v%d', X+qb, M+qb)
        for qb in range(NQ): a('v_max_f32 v%d, v%d, v%d', M+qb, M+qb, X+qb)
        for qb in range(NQ if self.W2 else 0): a('v_add_f32 v%d, 0x%x, v%d', M+qb, f2u(float(cfg.get('thr', 40))), M+qb)
        for qb in range(NQ): a('ds_write_b32 v%d, v%d offset:%d', self.V_XA, M+qb, qb*512)
        a('s_waitcnt lgkmcnt(0)'); a('s_barrier')
        for qb in range(NQ): a('ds_read_b64 %s, v%d offset:%d', vr(X+2*qb,2), T, qb*512)
        for o in late: a(o.text)
        for qb in range(NQ):
            N_ = self.V_NEGM+4*qb; S = self.V_S+4*qb
            a('s_waitcnt lgkmcnt(%d)', NQ-1-qb+len(late))
            a('v_min_f32 v%d, -v%d, -v%d', N_, X+2*qb, X+2*qb+1); a('v_mov_b32 v%d, v%d', N_+1, N_)
            a('v_pk_mov_b32 %s, %s, %s', vr(N_+2,2), vr(N_,2), vr(N_,2))
            for r in (0, 2): a('v_pk_add_f32 %s, %s, %s', vr(S+r,2), vr(S+r,2), vr(N_,2))
        a('s_waitcnt lgkmcnt(0)')
        if cfg.get('stamp'): stamp_mid(a, 9)
        a('s_mov_b32 s%d, 1', S_T)
        if self.WL: a('s_mov_b32 s%d, s%d', S_NR, S_N); a('s_mov_b32 s%d, %d', S_N, cfg.get('wlt', 57))
        b0 = self.qk_body(0); b1 = self.qk_body(1)
        a('.p2align 6') if cfg.get('align',1) else None
        a.label('L_qloop')
        resolve(a, b1, b0)
        a('s_cbranch_scc1 L_qfin0')
        resolve(a, b0, b1)
        a('s_cbranch_scc1 L_qloop')
        for par in (1, 0):
            a.label('L_qfin%d' % par)
            if self.WL and par == 1: a('s_cmp_lg_u32 s%d, s%d', S_T, S_NR); a('s_cbranch_scc1 L_qmid')
            a('s_nop 3')
            for it in self.softmax_groups(par ^ 1) + self.check_groups('f%d' % par):
                for o in oplist(it): a(o.text)
            a('s_waitcnt vmcnt(0) lgkmcnt(0)'); a('s_barrier')
            a(self.flag_read(par).text); a('s_waitcnt lgkmcnt(0)')
            a('v_cmp_eq_u32 vcc, s%d, v%d', S_T, self.V_F)
            a('s_cbranch_vccnz L_qrecf%d', par); a.label('L_qbackf%d' % par)
            if par == 1: a('s_branch L_qend')
        a.label('L_qend')
        if cfg.get('fuse3', 1): self.qk_tail()
        else: self.qk_tail_old()
        for tag in ['0', '1', 'f0', 'f1']:
            a.label('L_setflag%s' % tag)
            a('v_mov_b32 v%d, s%d', T, S_T); a('ds_write_b32 v%d, v%d', self.V_FA, T); a('s_waitcnt lgkmcnt(0)')
            a('s_branch L_flagset%s', tag)
        for par in (0, 1):
            sp = par ^ 1
            a.label('L_qrecf%d' % par); a('s_mov_b32 s%d, 1', S_RET); a('s_branch L_qrecx%d', par)
            a.label('L_qrec%d' % par); a('s_mov_b32 s%d, 0', S_RET)
            a.label('L_qrecx%d' % par)
            a('s_nop 15')
            self.rowmax_exchange(sp)
            a('s_waitcnt lgkmcnt(0)'); a('s_barrier')
            a('v_and_b32 v%d, 0xfffffffb, v%d', self.V_F, self.V_XA)
            for qb in range(NQ):
                E = self.V_E
                a('ds_read_b64 %s, v%d offset:%d', vr(E,2), self.V_F, qb*512); a('s_waitcnt lgkmcnt(0)')
                a('v_max3_f32 v%d, v%d, v%d, 0', T, E, E+1)
                a('v_sub_f32 v%d, 0, v%d', E, T); a('v_exp_f32 v%d, v%d', E, E)
                for r in range(4):
                    for base in (self.V_S, self.V_S+4*NQ, self.V_NEGM):
                        a('v_sub_f32 v%d, v%d, v%d', base+4*qb+r, base+4*qb+r, T)
                a('v_mul_f32 v%d, v%d, v%d', self.V_L+qb, self.V_L+qb, E)
            for it in self.softmax_groups(sp):
                for o in oplist(it): a(o.text)
            a('s_waitcnt lgkmcnt(0)'); a('s_barrier')
            a('s_cmp_eq_u32 s%d, 0', S_RET); a('s_cbranch_scc1 L_qback%d', par); a('s_branch L_qbackf%d', par)
    def pv_tail_old(self):
        a = self.a; NQ = self.NQ; cfg = self.cfg; T = self.V_T
        a('s_mul_i32 s%d, s%d, 500', S_T0, S_SP); a('s_add_u32 s%d, s%d, s%d', S_T0, S_T0, S_RB)
        a('s_lshl_b32 s%d, s%d, 14', S_T0, S_T0); a('s_lshl_b32 s%d, s%d, 13', S_T1, S_J)
        a('s_add_u32 s%d, s%d, s%d', S_T0, S_T0, S_T1); a('s_add_u32 s%d, s%d, %d', S_T0, S_T0, WS_PART)
        RBK = cfg.get('rb2', 0)
        if RBK: a('v_lshlrev_b32 v%d, 7, v0', self.V_F); a('s_mov_b32 s%d, s%d', S_T2, S_T0)
        for f in range(8*NQ):
            qb, k2 = f//8, f % 8
            if f < self.NFV: b = 32+8*f
            else:
                b = 12 + 8*(f & 1)
                for r in range(8): a('v_accvgpr_read_b32 v%d, %s', b+r, self.O(f, r))
            for r in range(4): a('v_cvt_pk_bf16_f32 v%d, v%d, v%d', b+r, b+2*r, b+2*r+1)
            if k2 == 4: a('s_add_u32 s%d, s%d, 4096', S_T0, S_T0)
            a('buffer_store_dwordx4 %s, v%d, s[%d:%d], s%d offen offset:%d%s', vr(b,4), self.V_L16, S_WS, S_WS+3, S_T0, (k2%4)*1024, ' sc1' if cfg.get('sc2', 1) else '')
            if k2 == 7: a('s_add_u32 s%d, s%d, %d', S_T0, S_T0, 16384-4096)
        if RBK:
            for qb in range(NQ):
                a('s_waitcnt vmcnt(%d)', 8*(NQ-1-qb) + qb)
                a('buffer_load_dword v%d, v%d, s[%d:%d], s%d offen', T, self.V_F, S_WS, S_WS+3, S_T2); a('s_add_u32 s%d, s%d, 16384', S_T2, S_T2)
        a('s_branch L_k2_fin')
    def qk_tail_old(self):
        a = self.a; NQ = self.NQ; cfg = self.cfg; T = self.V_T
        if cfg.get('pf3', 1):
            F = self.V_F; E = self.V_E
            a('v_lshlrev_b32 v%d, 7, v0', F)
            a('s_lshl_b32 s%d, s%d, 1', S_T0, S_SP); a('s_add_u32 s%d, s%d, s%d', S_T0, S_T0, S_J); a('s_mul_i32 s%d, s%d, 20480', S_T0, S_T0)
            a('s_lshl_b32 s%d, s%d, 14', S_T1, S_RB); a('s_add_u32 s%d, s%d, s%d', S_T0, S_T0, S_T1)
            a('s_lshr_b32 s%d, s2, 3', S_T1); a('s_lshl_b32 s%d, s%d, 1', S_T1, S_T1); a('s_add_u32 s%d, s%d, s%d', S_T1, S_T1, S_J)
            a('s_cmp_lt_u32 s%d, 32', S_T1); a('s_cselect_b32 s%d, s%d, 0x4000', S_T1, S_T1)
            a('s_lshl_b32 s%d, s%d, 14', S_T1, S_T1); a('s_add_u32 s%d, s%d, 0x%x', S_T1, S_T1, WS_WVOF)
            for i in range(2):
                a('buffer_load_dword v%d, v%d, s[%d:%d], s%d offen', E+i, F, S_WS, S_WS+3, S_T1); a('s_add_u32 s%d, s%d, 8192', S_T1, S_T1)
            for i in range(3):
                a('buffer_load_dword v%d, v%d, s[12:15], s%d offen', E+2+i, F, S_T0); a('s_add_u32 s%d, s%d, %d', S_T0, S_T0, 8192 if i == 0 else 4096)
        for qb in range(NQ):
            M = self.V_L+qb
            [a(x) for x in self.ladds(qb)]
            for ins in ['v_permlane16_swap_b32', 'v_permlane32_swap_b32']:
                a('v_mov_b32 v%d, v%d', T, M); a('s_nop 1'); a('%s v%d, v%d', ins, T, M); a('v_add_f32 v%d, v%d, v%d', M, M, T)
            a('ds_write_b32 v%d, v%d offset:%d', self.V_XA, M, qb*512)
        a('s_waitcnt lgkmcnt(0)'); a('s_barrier')
        if cfg.get('stamp'): stamp_mid(a, 10)
        a('s_cmp_lg_u32 s%d, 0', S_J); a('s_cbranch_scc1 L_k2_fin')
        X = self.V_S
        self.read_x(X)
        a('s_mul_i32 s%d, s%d, 500', S_T0, S_SP); a('s_add_u32 s%d, s%d, s%d', S_T0, S_T0, S_RB)
        a('s_lshl_b32 s%d, s%d, 7', S_T0, S_T0); a('s_add_u32 s%d, s%d, %d', S_T0, S_T0, WS_LSE)
        a('v_and_b32 v%d, 15, v0', self.V_F); a('v_lshlrev_b32 v%d, 3, v%d', self.V_F, self.V_F)
        for qb in range(NQ):
            a('v_add_f32 v%d, v%d, v%d', X+2*qb, X+2*qb, X+2*qb+1); a('v_mov_b32 v%d, v%d', X+2*qb+1, self.V_NEGM+4*qb)
            a('buffer_store_dwordx2 %s, v%d, s[%d:%d], s%d offen offset:%d', vr(X+2*qb,2), self.V_F, S_WS, S_WS+3, S_T0, qb*128)
        a('s_branch L_k2_fin')
    T_ST=10; T_CO=20; T_CP=25; T_A0=32; T_A1=112; T_BR=144; T_BF=176; T_R=216; T_PK=232; T_OT=240
    def wreg(self, kk, nb):
        if self.WL: kk = {8: 10, 9: 11, 10: 8, 11: 9}.get(kk, kk)
        return ar((96 + 16*kk + 4*nb) % 256, 4)
    def wload(self, kk):
        if self.WL:
            return ['s_add_u32 s%d, s%d, %d' % (S_WP+1, S_WP, (kk >> 2)*32768 + (kk & 3)*4096)] + \
                   [Op('buffer_load_dwordx4 %s, v%d, s[%d:%d], s%d offen offset:%d sc1' % (self.wreg(kk, nb), self.V_L16, S_WS, S_WS+3, S_WP+1, nb*1024), prod=('W', kk)) for nb in range(4)]
        r = [Op('buffer_load_dwordx4 %s, v%d, s[%d:%d], s%d offen offset:%d sc1' % (self.wreg(kk, nb), self.V_L16, S_WS, S_WS+3, S_WP+nb, (kk%4)*1024), prod=('W', kk)) for nb in range(4)]
        if kk % 4 == 3: r += ['s_add_u32 s%d, s%d, 4096' % (S_WP+nb, S_WP+nb) for nb in range(4)]
        return r
    def tail_sgprs(self):
        a = self.a
        a('s_lshl_b32 s%d, s%d, 2', S_T0, S_SP); a('s_add_u32 s%d, s%d, s%d', S_T0, S_T0, S_W)
        a('s_lshl_b32 s%d, s%d, 16', S_WP, S_T0); a('s_add_u32 s%d, s%d, 0x%x', S_WP, S_WP, WS_WVOF)
        if self.cfg.get('xp_now'): a('s_mov_b32 s%d, 0x%x', S_WP, WS_SIZE)
        if self.WL:
            assert not self.cfg.get('roles', 0)
            a('s_lshr_b32 s%d, s%d, 1', S_WP, S_T0); a('s_lshl_b32 s%d, s%d, 17', S_WP, S_WP); a('s_lshl_b32 s%d, s%d, 14', S_WB, S_J)
            a('s_add_u32 s%d, s%d, s%d', S_END, S_END, S_WB); a('s_add_u32 s%d, s%d, s%d', S_WP, S_WP, S_WB); a('s_add_u32 s%d, s%d, 0x%x', S_WP, S_WP, WS_WVOF)
            a('s_or_b32 s%d, s%d, 0x20000', S_WB, S_WP)
        for i in range(1, 1 if self.WL else 4): a('s_add_u32 s%d, s%d, %d', S_WP+i, S_WP, i*16384)
        a('s_lshl_b32 s%d, s%d, 14', S_T1, S_RB)
        a('s_lshl_b32 s%d, s%d, 7', S_OP, S_T0); a('s_add_u32 s%d, s%d, s%d', S_OP, S_OP, S_T1)
        CV2 = self.cfg.get('one', 1) and self.cfg.get('cv2', 1)
        if CV2: a('s_mul_i32 s%d, s%d, %d', S_T1, S_B, 53*81920)
        a('s_lshl_b32 s%d, s%d, 11', S_BS, S_T0); a('s_add_u32 s%d, s%d, s%d', S_BS, S_BS, S_T1); a('s_add_u32 s%d, s%d, 0x%x', S_BS, S_BS, WS_BASE)
        a('s_xor_b32 s%d, s%d, 1', S_T0, S_SP); a('s_mul_i32 s%d, s%d, 500', S_T0, S_T0); a('s_add_u32 s%d, s%d, s%d', S_T0, S_T0, S_RB)
        a('s_lshl_b32 s%d, s%d, 7', S_PS, S_T0); a('s_add_u32 s%d, s%d, 0x%x', S_PS, S_PS, WS_LSE)
        a('s_lshl_b32 s%d, s%d, 12', S_LP, S_W)
        a('s_lshl_b32 s%d, s%d, 14', S_PP, S_T0); a('s_add_u32 s%d, s%d, 0x%x', S_PP, S_PP, WS_PART); a('s_mov_b32 s%d, s%d', S_PP2, S_PP)
        a('s_lshl_b32 s%d, s3, 1', S_FO); a('s_add_u32 s%d, s%d, s%d', S_FO, S_FO, S_J); a('s_lshl_b32 s%d, s%d, 7', S_FO, S_FO); a('s_add_u32 s%d, s%d, 0x%x', S_FO, S_FO, WS_FLG)
        a('s_mov_b32 s%d, 0xffff0000', S_MK)
    def poll_load(self, va, tag): return Op('buffer_load_dword v%d, v%d, s[%d:%d], 0 offen sc1' % (self.V_F, va, S_WS, S_WS+3), prod=tag)
    def spin(self, name, va):
        a = self.a
        a.label('L_spin%s' % name); a('s_mov_b32 s%d, 0', S_SPIN)
        a.label('L_spin%s_l' % name)
        a(self.poll_load(va, None).text); a('s_waitcnt vmcnt(0)'); a('v_cmp_ne_u32 vcc, s7, v%d', self.V_F)
        a('s_cbranch_vccz L_ok%s', name)
        a('s_add_u32 s%d, s%d, 1', S_SPIN, S_SPIN); a('s_cmp_lt_u32 s%d, 0x40000', S_SPIN); a('s_cbranch_scc1 L_spin%s_l', name)
        a('s_branch L_ok%s', name)
    def read_stats(self):
        a = self.a; NQ = self.NQ; ST = self.T_ST
        a('v_and_b32 v%d, 0xfffffffb, v%d', self.V_T, self.V_XA)
        for qb in range(NQ):
            a('ds_read_b64 %s, v%d offset:%d', vr(ST+2*qb,2), self.V_T, qb*512); a('ds_read_b32 v%d, v%d offset:%d', self.T_CO+qb, self.V_T, L_X2-L_X + qb*512)
        a('s_waitcnt lgkmcnt(0)')
        for qb in range(NQ):
            a('v_add_f32 v%d, v%d, v%d', ST+2*qb, ST+2*qb, ST+2*qb+1); a('v_mov_b32 v%d, v%d', ST+2*qb+1, self.T_CO+qb)
    def qk_tail(self):
        a = self.a; NQ = self.NQ; cfg = self.cfg; T = self.V_T
        W1 = cfg.get('tw1', 8)
        if cfg.get('wpl', 1):
            WA = self.V_PF
            if not self.WL: a('v_cmp_ne_u32 vcc, s7, v%d', self.V_PF+1); a('s_cbranch_vccnz L_spinW'); a.label('L_okW')
            wq = []
            for kk in range(W1): wq += oplist(self.wload(kk))
            def pop(c):
                for i in range(c):
                    while wq and kind_of(wq[0]) == 'S': a(wq.pop(0).text)
                    if wq: a(wq.pop(0).text)
                    while wq and kind_of(wq[0]) == 'S': a(wq.pop(0).text)
            for qb in range(NQ):
                M = self.V_L+qb
                [a(x) for x in self.ladds(qb)]
                for ins in ['v_permlane16_swap_b32', 'v_permlane32_swap_b32']:
                    a('v_mov_b32 v%d, v%d', T, M); a('s_nop 0'); a('s_nop 0') if not wq else pop(2); a('%s v%d, v%d', ins, T, M); a('v_add_f32 v%d, v%d, v%d', M, M, T)
                a('ds_write_b32 v%d, v%d offset:%d', self.V_XA, M, qb*512)
                a('ds_write_b32 v%d, v%d offset:%d', self.V_XA, self.V_NEGM+4*qb, L_X2-L_X + qb*512)
                pop(2)
            pop(64)
        else:
            WA = self.V_E
            a('v_and_b32 v%d, 3, v0', WA); a('v_min_u32 v%d, %d, v%d', WA, 2 if cfg.get('lean', 1) else 1, WA); a('v_lshlrev_b32 v%d, 7, v%d', WA, WA); a('v_add_u32 v%d, 0x%x, v%d', WA, WS_FLG + 128*FLG_W, WA)
            a(self.poll_load(WA, None).text)
            for qb in range(NQ):
                M = self.V_L+qb
                [a(x) for x in self.ladds(qb)]
                for ins in ['v_permlane16_swap_b32', 'v_permlane32_swap_b32']:
                    a('v_mov_b32 v%d, v%d', T, M); a('s_nop 1'); a('%s v%d, v%d', ins, T, M); a('v_add_f32 v%d, v%d, v%d', M, M, T)
                a('ds_write_b32 v%d, v%d offset:%d', self.V_XA, M, qb*512)
                a('ds_write_b32 v%d, v%d offset:%d', self.V_XA, self.V_NEGM+4*qb, L_X2-L_X + qb*512)
            a('s_waitcnt vmcnt(0)'); a('v_cmp_ne_u32 vcc, s7, v%d', self.V_F); a('s_cbranch_vccnz L_spinW'); a.label('L_okW')
            W1 = cfg.get('tw1', 8)
            for kk in range(W1):
                for o in oplist(self.wload(kk)): a(o.text)
        a('s_waitcnt lgkmcnt(0)'); a('s_barrier')
        self.read_stats()
        a('s_barrier')
        if cfg.get('stamp') and not cfg.get('sthead'): stamp_mid(a, 1)
        a('s_cmp_lg_u32 s%d, 0', S_J); a('s_cbranch_scc1 L_qt1')
        a('s_mul_i32 s%d, s%d, 500', S_T0, S_SP); a('s_add_u32 s%d, s%d, s%d', S_T0, S_T0, S_RB)
        a('s_lshl_b32 s%d, s%d, 7', S_T0, S_T0); a('s_add_u32 s%d, s%d, %d', S_T0, S_T0, WS_LSE)
        a('v_and_b32 v%d, 15, v0', T); a('v_lshlrev_b32 v%d, 3, v%d', T, T)
        for qb in range(NQ): a('buffer_store_dwordx2 %s, v%d, s[%d:%d], s%d offen offset:%d sc1', vr(self.T_ST+2*qb,2), T, S_WS, S_WS+3, S_T0, qb*128)
        a.label('L_qt1')
        a('s_branch L_tailq')
        if self.WL:
            a.label('L_qmid'); a('v_cmp_ne_u32 vcc, s7, v%d', self.V_PF+1); a('s_mov_b32 s%d, s%d', S_N, S_NR); a('s_cbranch_vccnz L_spinW'); a.label('L_okW'); a('s_branch L_qloop')
        self.spin('W', WA)
        if cfg.get('ln2', 1): self.spin('X', 58)
        if cfg.get('one', 1) and cfg.get('q6', 1): self.spin('Q', 59)
    def pv_tail(self):
        a = self.a; NQ = self.NQ; cfg = self.cfg; T = self.V_T
        if self.WL:
            for i in range(3):
                a('s_add_u32 s%d, s%d, %d', S_T0, S_DST, (i+1)*32768); a('s_and_b32 s%d, s%d, 0x1ffff', S_T0, S_T0); a('v_add_u32 v%d, s%d, v%d', 10+i, S_T0, self.V_L16)
            wr = ['ds_read_b128 %s, v%d offset:%d' % (self.wreg(kk, nb), 10 + (kk >> 2), (kk & 3)*4096 + nb*1024) for kk in list(range(8)) + [10, 11] for nb in range(4)]
        WI = cfg.get('wi', 8) if self.WL else 0
        if self.WL and not WI:
            for i, x in enumerate(wr):
                if i == 32: a('s_waitcnt vmcnt(0)')
                a(x)
        if not WI:
            a('s_waitcnt vmcnt(0) lgkmcnt(0)'); a('s_barrier')
            if cfg.get('stamp') and not cfg.get('sthead'): stamp_mid(a, 1)
        a('s_mul_i32 s%d, s%d, 500', S_T0, S_SP); a('s_add_u32 s%d, s%d, s%d', S_T0, S_T0, S_RB)
        a('s_lshl_b32 s%d, s%d, 14', S_T0, S_T0); a('s_lshl_b32 s%d, s%d, 13', S_T1, S_J)
        a('s_add_u32 s%d, s%d, s%d', S_T0, S_T0, S_T1); a('s_add_u32 s%d, s%d, %d', S_RET, S_T0, WS_PART)
        a('v_add_u32 v2, s%d, v%d', S_T1, self.V_L16); a('v_add_u32 v3, 0x10000, v2')
        tr = self.tr = Trace(); o = []
        if self.WL: tr.run('w0', [Op('buffer_load w', prod=('W', kk)) for kk in list(range(8)) + [10, 11]] + [Op(None, need=['ALLV'])])
        wq = []
        for kk in range(self.TWP): wq += oplist(self.wload(kk))
        WD = cfg.get('twd', 0)
        safe = [10, 11, 12, 13] + list(range(18, 27))
        cand = safe + list(range(self.NFV, 8*NQ))
        H = cfg.get('thold', 0 if cfg.get('hyb', 1) else 8)
        held = set(cand[(i*len(cand))//H] for i in range(H)) if H else set()
        self.held = []; FAST = cfg.get('fast', 0)
        def pstore(f, reg):
            qb, k2 = f//8, f % 8
            return ['s_add_u32 s%d, s%d, %d' % (S_T3, S_RET, qb*16384 + (k2//4)*4096),
                    Op('buffer_store_dwordx4 %s, v%d, s[%d:%d], s%d offen offset:%d%s' % (vr(reg,4), self.V_L16, S_WS, S_WS+3, S_T3, (k2%4)*1024, cfg['xp_ps'] if 'xp_ps' in cfg else ('' if FAST else ' sc1')), prod=('PS', f))]
        TWO = self.TWO = cfg.get('hyb', 1) and cfg.get('two', 0); pend = []
        if TWO: held = set(range(16, 8*NQ)); slot = {f: 80+4*i for i, f in enumerate([16, 17, 27] + list(range(self.NFV, 8*NQ)))}
        for f in range(8*NQ):
            qb, k2 = f//8, f % 8
            if TWO:
                b = 32 + 8*(f if f < self.NFV else (f - self.NFV) % 6); d = slot.get(f, b)
                if f >= self.NFV:
                    for r in range(8): o.append('v_accvgpr_read_b32 v%d, %s' % (b+r, self.O(f, r)))
            elif f < self.NFV: b = d = 32 + 8*f
            else:
                b = 32 + 8*((f - self.NFV) % 8); d = 32 + 8*safe[f - self.NFV] + 4
                for r in range(8): o.append('v_accvgpr_read_b32 v%d, %s' % (b+r, self.O(f, r)))
            for r in range(4): o.append('v_cvt_pk_bf16_f32 v%d, v%d, v%d' % (d+r, b+2*r, b+2*r+1))
            off = qb*16384 + k2*1024
            dw = Op('ds_write_b128 v%d, %s offset:%d' % (2 + off//65536, vr(d,4), off % 65536), prod=('CVW', f))
            if f < WI:
                pend.append(dw); c = -(-40//WI); o += wr[c*f:c*f+c]
                if f == 0: o.append('s_waitcnt vmcnt(0)')
            else:
                if WI and f == WI: o += [Op('s_barrier', need=['ALLL'])] + ([stamp_op(1)] if (cfg.get('stamp') and not cfg.get('sthead')) else [])
                o.append(dw)
                if pend: o.append(pend.pop(0))
            if TWO and f == 17: o.append(Op('s_barrier', need=[('CVW', 15)]))
            if TWO and f < 16: pass
            elif f in held: self.held += pstore(f, d)
            elif not (cfg.get('xp_nost') and f >= cfg.get('xp_nost')): o += pstore(f, d)
            if self.EA and f == cfg.get('eaf', 26):
                o += ['v_min_u32 v30, 1, v0', 'v_lshlrev_b32 v30, 30, v30', 'v_mov_b32 v31, s7', 's_add_u32 s%d, s%d, %d' % (S_T3, S_FO, 128*FLG_B),
                      Op('buffer_store_dword v31, v30, s[%d:%d], s%d offen sc1' % (S_WS, S_WS+3, S_T3), need=[('PS', 8*self.EA-1)])]
            for rep in range(cfg.get('twr', 1 if TWO else 2)):
                if f >= WD and wq:
                    o.append(wq.pop(0))
                    while wq and kind_of(wq[0]) == 'S': o.append(wq.pop(0))
        o += wq
        tr.run('cv', o); tr.emit(a, 'cv')
        if not cfg.get('hyb', 1): self.read_stats()
    def tail(self):
        a = self.a; NQ = self.NQ; cfg = self.cfg; tr = self.tr; stamp = cfg.get('stamp') and not cfg.get('sthead')
        ST = self.T_ST; CO = self.T_CO; CP = self.T_CP; A0 = self.T_A0; A1 = self.T_A1; BR = self.T_BR; BF = self.T_BF; RR = self.T_R; PK = self.T_PK; OT = self.T_OT
        L16 = self.V_L16; F = self.V_F
        n = 320
        class FX:
            def __init__(s): s.fx = [[] for _ in range(n)]
            def putd(s, lst, g, step=4):
                fx = s.fx
                for x in oplist(lst):
                    if kind_of(x) == 'D':
                        g += 1
                        while (step > 2 and g % step != 2) or (step == 2 and g % 2 == 0) or any(kind_of(y) in ('R','D','B','V') for y in oplist(fx[g])): g += 1
                        fx[g].append(x); g += 1
                    else: fx[g].append(x)
                return g
            def check(s, g, tag, name):
                fx = s.fx
                while fx[g] or fx[g+2]: g += 1
                fx[g] += [Op('v_cmp_ne_u32 vcc, s7, v%d' % F, need=[tag])]; fx[g+2] += ['s_cbranch_vccnz L_spin%s' % name, 'L_ok%s:' % name]
                return g+2
        def rd1(i):
            G, qb, h = i//10, (i % 10)//2, i & 1; off = qb*16384 + (2*G+h)*1024
            return Op('ds_read_b128 %s, v%d offset:%d' % (vr(BR+4*(i % 8),4), 2 if off >= 65536 else L16, off % 65536), prod=('B1', i))
        t = Asm(); h_frag_addr(t, 6, 8)
        su = ['v_add_u32 v3, %d, v%d' % (L_PAR, L16), 'v_add_u32 v4, %d, v%d' % (L_PAR+65536, L16)] + t.lines
        su += ['v_add_u32 v6, s%d, v6' % S_LP, 'v_add_u32 v8, s%d, v%d' % (S_LP, L16),
               'v_lshrrev_b32 v7, 4, v0', 'v_sub_u32 v7, 0, v7', 'v_xor_b32 v7, v7, v0', 'v_and_b32 v7, 3, v7', 'v_lshlrev_b32 v7, 4, v7',
               'v_lshrrev_b32 v9, 2, v0', 'v_lshl_add_u32 v7, v9, 10, v7',
               's_xor_b32 s%d, s3, 2' % S_T1, 's_lshl_b32 s%d, s%d, 8' % (S_T1, S_T1), 's_add_u32 s%d, s%d, 0x%x' % (S_T1, S_T1, WS_FLG),
               'v_and_b32 v9, 1, v0', 'v_lshl_add_u32 v9, v9, 7, s%d' % S_T1,
               'v_and_b32 v252, 15, v0', 'v_lshlrev_b32 v252, 3, v252']
        suq = ['s_mul_i32 s%d, s%d, %d' % (S_T1, S_QT, 80*55189), 's_add_u32 s%d, s%d, %d' % (S_T2, S_T1, 79*55189),
               's_lshr_b32 s%d, s%d, 22' % (S_T1, S_T1), 's_lshr_b32 s%d, s%d, 22' % (S_T2, S_T2),
               'v_and_b32 v250, 3, v0', 'v_add_u32 v250, s%d, v250' % S_T1, 'v_min_u32 v250, s%d, v250' % S_T2,
               's_mul_i32 s%d, s%d, %d' % (S_T1, S_B, 53*128), 's_add_u32 s%d, s%d, 0x%x' % (S_T1, S_T1, WS_FLG + 128*FLG_C),
               'v_lshl_add_u32 v250, v250, 7, s%d' % S_T1, 's_lshl_b32 s%d, s%d, 13' % (S_T2, S_J), 's_add_u32 s%d, s%d, s%d' % (S_PP, S_PP, S_T2)]
        if cfg.get('xp_nodma'): suq.append('s_mov_b32 s%d, 0x%x' % (S_PP, WS_SIZE))
        CV2 = cfg.get('one', 1) and cfg.get('cv2', 1); sub = []; BAR = [249, 251, 253, 254, 255]
        if CV2:
            sub = ['s_mul_i32 s%d, s%d, 80' % (S_SPIN, S_QT), 'v_and_b32 v232, 15, v0', 'v_add_u32 v232, s%d, v232' % S_SPIN, 'v_lshrrev_b32 v233, 4, v0', 'v_lshlrev_b32 v233, 8, v233']
            for q in range(NQ):
                d = BAR[q]
                sub += ['v_add_u32 v234, %d, v232' % (16*q), 'v_mul_u32_u24 v235, 0xd795, v234', 'v_lshrrev_b32 v235, 22, v235', 'v_lshl_add_u32 v234, v235, 2, v234',
                        'v_and_b32 v235, 15, v234', 'v_lshl_add_u32 v235, v235, 4, v233', 'v_lshrrev_b32 v234, 4, v234', 'v_lshl_add_u32 v%d, v234, 14, v235' % d]
        ld = [Op('buffer_load_dwordx2 %s, v252, s[%d:%d], s%d offen offset:%d sc1' % (vr(RR+2*q,2), S_WS, S_WS+3, S_PS, q*128), prod='PST') for q in range(NQ)]
        GC = cfg.get('tgc', 36)
        def gemm1(role):
            X = FX(); o = []
            if role == 'q': o += su + suq + sub
            o += ['v_add_u32 v2, 0x10000, v%d' % L16, Op('s_barrier', need=['ALLL', 'ALLV'] if role == 'q' else ['ALLL'])]
            if stamp: o.append(stamp_op(2))
            o += [rd1(i) for i in range(6)]
            for i in range(6, 80): X.fx[4*(i-6)].append(rd1(i))
            if role == 'p':
                g = X.putd(self.held, 0, cfg.get('ths', 4))
                GF = self.GF = g + cfg.get('tgf', 30); GF += (-GF) % 4
                X.fx[GF-1] += [Op(None, need=['ALLV'])] + ([stamp_op(3)] if stamp else [])
                late = []
                for kk in range(cfg.get('twp', 6), 16): late += self.wload(kk)
                fl = 'buffer_store_dword v31, v30, s[%d:%d], s%d offen' % (S_WS, S_WS+3, S_FO)
                if cfg.get('fast', 0):
                    X.fx[GF-2].append('s_cmp_eq_u32 s%d, 0' % S_SAME)
                    self.flag_text = fl
                    fl = Op('buffer_x\ns_cbranch_scc1 L_rel\n%s%s\nL_rel_back:\ns_nop 0' % (fl, '' if cfg.get('fastflag', 1) else ' sc1'))
                else: fl += ' sc1'
                g = X.putd([fl] + late, GF-1, 2)
                g = X.putd([self.poll_load(9, 'PF')], max(g, cfg.get('tpp', 210)))
                X.fx[1] += ['v_min_u32 v30, 1, v0', 'v_lshlrev_b32 v30, 30, v30', 'v_mov_b32 v31, s7']
                g = X.check(g+GC, 'PF', 'P2')
                X.putd(ld, g, 2); X.fx[n-1].append(Op(None, need=['PST']))
                X.fx = spread(X.fx, su, n, 3, GF-2)
                X.fx = spread(X.fx, sub, n, GF+2, 208)
            else:
                late = []
                for kk in range(cfg.get('tw1', 8), 16): late += self.wload(kk)
                g = X.putd(late, 0, cfg.get('tqs', 2))
                g = X.putd([self.poll_load(9, 'PF')], max(g, self.GF + cfg.get('tgp', 30)))
                g = X.check(g+GC, 'PF', 'P')
                if stamp: X.fx[g].append(stamp_op(3))
                dm = []
                for q in range(NQ):
                    for k in range(8):
                        if k % 4 == 0: dm += ['s_add_u32 m0, s%d, %d' % (S_T2, L_PAR + q*16384 + k*1024), 's_add_u32 s%d, s%d, %d' % (S_T0, S_PP, q*16384 + k*1024)]
                        dm.append(Op('buffer_load_dwordx4 v%d, s[%d:%d], s%d offen offset:%d%s lds' % (L16, S_WS, S_WS+3, S_T0, (k%4)*1024, '' if cfg.get('xp_plainld') else ' sc1'), prod=('PD', q)))
                NP = cfg.get('tnp', 3); ST = cfg.get('tps', 4)
                g = X.putd(dm[:12], g+1, cfg.get('tps0', 2))
                g = X.putd(ld + [self.poll_load(250, 'CF')], g, 2)
                g = X.putd(dm[12:12*NP], g, ST)
                X.check(max(g, n-8), 'CF', 'C')
            for g in range(n):
                G, qb, nb, h = g//40, (g % 40)//8, (g % 8)//2, g & 1
                h ^= nb & self.SN
                i = 10*G + 2*qb + h; kk = 2*G + h; D = vr(A0 + 16*qb + 4*nb, 4)
                o.append(Op('%s %s, %s, %s, %s' % (MF, D, self.wreg(kk, nb), vr(BR+4*(i % 8),4), D if (G or g & 1) else '0'), need=[('B1', i | 1), ('W', kk | 1)]))
                o += oplist(X.fx[g])
                if stamp and cfg.get('stg1') and g in (80, 160, 240): o.append(stamp_op({80:7, 160:9, 240:10}[g]))
            return o
        tr.run('g1p', gemm1('p'))
        trq = Trace(tr.static); trq.run('x', [Op('buffer_load w', prod=('W', kk)) for kk in range(cfg.get('tw1', 8))] + ['ds_x']); trq.run('g1q', gemm1('q'))
        tr.lenient = ('PD',)
        o = []; X = FX(); putd = X.putd
        if stamp: o.append(stamp_op(4))
        o += ['s_add_u32 s%d, s%d, s%d' % (S_WP, S_PP2, S_LP), Op('s_barrier', need=[('PD', 1)])]
        if stamp: o.append(stamp_op(5))
        def rd2(i):
            off = (i//16)*16384 + (i % 16)*1024
            return Op('ds_read_b128 %s, v%d offset:%d' % (vr(BR+4*(i % 8),4), 4 if off >= 65536 else 3, off % 65536), prod=('B2', i))
        fx = X.fx
        o += [rd2(i) for i in range(6)]
        for i in range(6, 80): fx[4*(i-6)].append(rd2(i))
        NP = cfg.get('tnp', 3)
        if NP >= 3: fx[4*26-2].append(Op('s_barrier', need=[('PD', NP-1)]))
        for q in range(max(NP, 2), NQ): fx[4*(16*q-6)-2].append(Op('s_barrier', need=[('PE', q)]))
        bl = []
        for c in range(2*NQ):
            if CV2: bl.append(Op('buffer_load_dwordx4 %s, v%d, s[%d:%d], s%d offen offset:%d sc1' % (vr(BF+4*c,4), BAR[c >> 1], S_WS, S_WS+3, S_BS, (c & 1)*1024), prod=('BF', c)))
            else: bl += ['s_add_u32 s%d, s%d, %d' % (S_T0, S_BS, (c >> 1)*16384), Op('buffer_load_dwordx4 %s, v%d, s[%d:%d], s%d offen offset:%d sc1' % (vr(BF+4*c,4), L16, S_WS, S_WS+3, S_T0, (c & 1)*1024), prod=('BF', c))]
        def pe(q):
            return ['s_add_u32 m0, s%d, %d' % (S_LP, L_PAR + q*16384), 's_add_u32 s%d, s%d, %d' % (S_T0, S_WP, q*16384)] + \
                   [Op('buffer_load_dwordx4 v%d, s[%d:%d], s%d offen offset:%d sc1 lds' % (L16, S_WS, S_WS+3, S_T0, k*1024), prod=('PE', q)) for k in range(4)]
        if NP < NQ:
            assert CV2
            seq = bl[:2]
            for q in range(1, NQ):
                if NP+q-1 < NQ: seq = seq + pe(NP+q-1)
                seq = seq + bl[2*q:2*q+2]
            putd(seq, 0, cfg.get('tp2', 8))
        else: putd(bl, 0)
        wt = []
        for q in range(NQ):
            l0, m0, l1, m1, t0 = ST+2*q, ST+2*q+1, RR+2*q, RR+2*q+1, 248
            wt += [Op('v_min_f32 v%d, v%d, v%d' % (t0, m0, m1), need=['PST']), 'v_sub_f32 v%d, v%d, v%d' % (m0, t0, m0), 'v_sub_f32 v%d, v%d, v%d' % (m1, t0, m1),
                   'v_exp_f32 v%d, v%d' % (m0, m0), 'v_exp_f32 v%d, v%d' % (m1, m1), 'v_mul_f32 v%d, v%d, v%d' % (l0, l0, m0), 'v_fmac_f32 v%d, v%d, v%d' % (l0, l1, m1),
                   'v_rcp_f32 v%d, v%d' % (l0, l0), 's_nop 0', 'v_mul_f32 v%d, v%d, v%d' % (CO+q, m0, l0), 'v_mul_f32 v%d, v%d, v%d' % (CP+q, m1, l0)]
        def ep_a(q):
            r = []
            for p in range(2):
                for x in range(4):
                    r += [Op('v_lshlrev_b32 v%d, 16, v%d' % (RR+8*p+2*x, BF+8*q+4*p+x), need=[('BF', 2*q+p)]), 'v_and_b32 v%d, s%d, v%d' % (RR+8*p+2*x+1, S_MK, BF+8*q+4*p+x)]
            return r + ['v_fmac_f32 v%d, v%d, v%d' % (RR+x, A0+16*q+x, CO+q) for x in range(16)]
        def ep_b(q):
            r = []
            for p in range(2):
                r += ['v_fmac_f32 v%d, v%d, v%d' % (RR+8*p+x, A1+16*(q & 1)+8*p+x, CP+q) for x in range(8)]
                r += ['v_cvt_pk_bf16_f32 v%d, v%d, v%d' % (PK+4*p+x, RR+8*p+2*x, RR+8*p+2*x+1) for x in range(4)]
                r += ['ds_write_b128 v6, %s offset:%d' % (vr(PK+4*p,4), p*1024), Op('ds_read_b128 %s, v8 offset:%d' % (vr(OT+4*p,4), p*1024), prod=('OT', q, p))]
            return r
        def ep_c(q):
            return ['s_add_u32 s%d, s%d, %d' % (S_T1, S_OP, q*16384)] + [Op('buffer_store_dwordx4 %s, v7, s[16:19], s%d offen offset:%d%s' % (vr(OT+4*p,4), S_T1, p*64, ' sc1' if cfg.get('sc3', 0) else ''), need=[('OT', q, p)]) for p in range(2)]
        fx = spread(fx, wt, n, 2, 64)
        fx = spread(fx, ep_a(0) + ep_b(0) + ep_a(1) + ep_c(0), n, 64+1, 128)
        for q in range(1, NQ-1): fx = spread(fx, ep_b(q) + ep_a(q+1) + ep_c(q), n, 64*(q+1)+8, 64*(q+2))
        for g in range(n):
            qb, G, nb, h = g//64, (g % 64)//8, (g % 8)//2, g & 1
            h ^= nb & self.SN
            kk = 2*G + h; i = 16*qb + kk; D = vr(A1 + 16*(qb & 1) + 4*nb, 4)
            o.append(Op('%s %s, %s, %s, %s' % (MF, D, self.wreg(kk, nb), vr(BR+4*(i % 8),4), D if (G or g & 1) else '0'), need=[('B2', i | 1)]))
            o += oplist(fx[g])
            if stamp and g == 128: o.append(stamp_op(6))
        if stamp: o.append(stamp_op(8))
        o += ['s_nop 5'] + ep_b(NQ-1) + ep_c(NQ-1)
        tr.run('t', o); trq.run('t', o)
        if cfg.get('xp_nodma'): a('s_nop 0')
        tr.emit(a, 'g1p'); a.label('L_tail2'); tr.emit(a, 't')
        a('s_branch L_k2_fin')
        a.label('L_tailq'); tr.emit(a, 'g1q'); a('s_branch L_tail2')
        self.spin('P', 9); self.spin('P2', 9); self.spin('C', 250)
        if cfg.get('fast', 0):
            a.label('L_rel'); a('buffer_wbl2 sc1'); a('s_waitcnt vmcnt(0)'); a(self.flag_text + ' sc1'); a('s_branch L_rel_back')
    def tail2(self):
        a = self.a; NQ = self.NQ; cfg = self.cfg; tr = self.tr; stamp = cfg.get('stamp') and not cfg.get('sthead')
        ST = self.T_ST; CW = 20; A0 = self.T_A0; NH = cfg.get('nh', 3); PR = A0+16*NH; A1 = self.T_A1; BR = self.T_BR; BF = self.T_BF; RR = self.T_R; PK = self.T_PK; OT = self.T_OT
        L16 = self.V_L16; F = self.V_F; n1 = 64*NH; n = 320; L_PS = 155648; BAR = [249, 251, 253, 254, 255]
        ND = cfg.get('nd', 3 if self.EA else 2)
        class FX:
            def __init__(s, m): s.fx = [[] for _ in range(m)]
            def putd(s, lst, g, step=4):
                fx = s.fx
                for x in oplist(lst):
                    if kind_of(x) == 'D':
                        g += 1
                        while any(kind_of(y) in ('R','D','B','V','X') for y in oplist(fx[g])): g += 1
                        fx[g].append(x); g += step-1
                    else: fx[g].append(x)
                return g
            def check(s, g, tag, name):
                fx = s.fx
                while fx[g] or fx[g+2]: g += 1
                fx[g] += [Op('v_cmp_ne_u32 vcc, s7, v%d' % F, need=[tag])]; fx[g+2] += ['s_cbranch_vccnz L_spin%s' % name, 'L_ok%s:' % name]
                return g+2
        def rd1(i):
            G, qb, h = i//(2*NH), (i % (2*NH))//2, i & 1
            return Op('ds_read_b128 %s, v%d offset:%d' % (vr(BR+4*(i % 8),4), L16, qb*16384 + (2*G+h)*1024), prod=('B1', i))
        t = Asm(); h_frag_addr(t, 6, 8)
        su = ['v_add_u32 v2, 0x10000, v%d' % L16, 'v_add_u32 v3, %d, v%d' % (L_PAR, L16)] + t.lines
        su += ['v_add_u32 v6, s%d, v6' % S_LP, 'v_add_u32 v8, s%d, v%d' % (S_LP, L16), 'v_add_u32 v4, 0x10000, v8',
               'v_lshrrev_b32 v7, 4, v0', 'v_sub_u32 v7, 0, v7', 'v_xor_b32 v7, v7, v0', 'v_and_b32 v7, 3, v7', 'v_lshlrev_b32 v7, 4, v7',
               'v_lshrrev_b32 v9, 2, v0', 'v_lshl_add_u32 v7, v9, 10, v7',
               'v_and_b32 v252, 15, v0', 'v_lshlrev_b32 v252, 3, v252', 'v_add_u32 v252, %d, v252' % L_PS,
               's_mul_i32 s%d, s%d, %d' % (S_T1, S_QT, 80*55189), 's_add_u32 s%d, s%d, %d' % (S_T2, S_T1, 79*55189),
               's_lshr_b32 s%d, s%d, 22' % (S_T1, S_T1), 's_lshr_b32 s%d, s%d, 22' % (S_T2, S_T2),
               'v_and_b32 v250, 3, v0', 'v_add_u32 v250, s%d, v250' % S_T1, 'v_min_u32 v250, s%d, v250' % S_T2,
               's_mul_i32 s%d, s%d, %d' % (S_T1, S_B, 53*128), 's_add_u32 s%d, s%d, 0x%x' % (S_T1, S_T1, WS_FLG + 128*FLG_C),
               'v_lshl_add_u32 v250, v250, 7, s%d' % S_T1]
        suq = ['s_xor_b32 s%d, s3, 2' % S_T1, 's_lshl_b32 s%d, s%d, 8' % (S_T1, S_T1), 's_add_u32 s%d, s%d, 0x%x' % (S_T1, S_T1, WS_FLG),
               'v_and_b32 v9, 1, v0', 'v_lshl_add_u32 v9, v9, 7, s%d' % S_T1,
               's_lshl_b32 s%d, s%d, 13' % (S_T2, S_J), 's_add_u32 s%d, s%d, s%d' % (S_PP, S_PP, S_T2)]
        sub = ['s_mul_i32 s%d, s%d, 80' % (S_SPIN, S_QT), 'v_and_b32 v236, 15, v0', 'v_add_u32 v236, s%d, v236' % S_SPIN, 'v_lshrrev_b32 v237, 4, v0', 'v_lshlrev_b32 v237, 8, v237']
        for q in range(NQ):
            sub += ['v_add_u32 v238, %d, v236' % (16*q), 'v_mul_u32_u24 v239, 0xd795, v238', 'v_lshrrev_b32 v239, 22, v239', 'v_lshl_add_u32 v238, v239, 2, v238',
                    'v_and_b32 v239, 15, v238', 'v_lshl_add_u32 v239, v239, 4, v237', 'v_lshrrev_b32 v238, 4, v238', 'v_lshl_add_u32 v%d, v238, 14, v239' % BAR[q]]
        own = ['v_and_b32 v9, 0xfffffffb, v%d' % self.V_XA]
        for q in range(NQ): own += ['ds_read_b64 %s, v9 offset:%d' % (vr(ST+2*q,2), q*512), Op('ds_read_b32 v%d, v9 offset:%d' % (CW+q, L_X2-L_X + q*512), prod=('OS', q))]
        own2 = []
        for q in range(NQ): own2 += [Op('v_add_f32 v%d, v%d, v%d' % (ST+2*q, ST+2*q, ST+2*q+1), need=[('OS', q)]), 'v_mov_b32 v%d, v%d' % (ST+2*q+1, CW+q)]
        def gemm1(role):
            X = FX(n1); o = []
            TWO = self.TWO; WQ = cfg.get('tw1', 8)
            fv = ['v_min_u32 v30, 1, v0', 'v_lshlrev_b32 v30, 30, v30', 'v_mov_b32 v31, s7']
            fl = 'buffer_store_dword v31, v30, s[%d:%d], s%d offen sc1' % (S_WS, S_WS+3, S_FO)
            if role == 'q':
                if TWO:
                    for kk in range(WQ, WQ + cfg.get('tw2', 2)): o += self.wload(kk)
                    WQ += cfg.get('tw2', 2)
                o += su + suq + sub
                if TWO:
                    o += fv + ['s_mul_i32 s%d, s%d, 500' % (S_T0, S_SP), 's_add_u32 s%d, s%d, s%d' % (S_T0, S_T0, S_RB), 's_add_u32 s%d, s%d, s%d' % (S_T0, S_T0, S_J),
                               's_lshl_b32 s%d, s%d, 14' % (S_T0, S_T0), 's_add_u32 s%d, s%d, 0x%x' % (S_T0, S_T0, WS_PART),
                               's_lshl_b32 s%d, s%d, 14' % (S_T1, S_J), 'v_add_u32 v248, s%d, v%d' % (S_T1, L16), 's_barrier']
                    o += [Op('ds_read_b128 %s, v248 offset:%d' % (vr(32+4*k,4), k*1024), prod=('QR', k)) for k in range(16)]
                    for k in range(16):
                        o.append(Op('buffer_store_dwordx4 %s, v%d, s[%d:%d], s%d offen offset:%d sc1' % (vr(32+4*k,4), L16, S_WS, S_WS+3, S_T0, (k%4)*1024), need=[('QR', k)]))
                        if k % 4 == 3: o.append('s_add_u32 s%d, s%d, 4096' % (S_T0, S_T0))
            def pdm(q):
                dm = []
                for k in range(8):
                    if k % 4 == 0: dm += ['s_add_u32 m0, s%d, %d' % (S_T2, L_PAR + q*16384 + k*1024), 's_add_u32 s%d, s%d, %d' % (S_T0, S_PP, q*16384 + k*1024)]
                    dm.append(Op('buffer_load_dwordx4 v%d, s[%d:%d], s%d offen offset:%d%s lds' % (L16, S_WS, S_WS+3, S_T0, (k%4)*1024, cfg.get('xp_pl', ' sc1')), prod=('PD', q)))
                return dm
            if role == 'q' and self.EA:
                for kk in range(WQ, WQ + cfg.get('tw2', 2)): o += self.wload(kk)
                WQ += cfg.get('tw2', 2)
                o += ['v_add_u32 v248, %d, v9' % (128*FLG_B), Op('s_branch L_spinA', need=['ALLV']), 'L_okA:']
                for q in range(self.EA): o += pdm(q)
            o.append(Op('s_barrier', need=['ALLL', 'ALLV'] if (role == 'q' and not TWO and not self.EA) else ['ALLL']))
            if stamp: o.append(stamp_op(2))
            o += [rd1(i) for i in range(6)]
            for i in range(6, 16*NH): X.fx[4*(i-6)].append(rd1(i))
            late = []
            for kk in ((8, 9, 12, 13, 14, 15) if (role == 'p' and self.WL) else range(self.TWP if role == 'p' else WQ, 16)): late += self.wload(kk)
            if role == 'p' and TWO:
                X.fx[1] += fv
                g = X.putd(late, 1, 2)
                g = X.putd(self.held, g, cfg.get('ths', 4))
                GB = min(n1-4, g + cfg.get('tgb', 40)); GB -= GB % 4
                X.fx[GB-1] += ['s_add_u32 s%d, s%d, %d' % (S_FO, S_FO, 128*FLG_B), Op(None, need=['ALLV'])] + ([stamp_op(3)] if stamp else [])
                X.putd([fl], GB-1)
                X.fx = spread(X.fx, own + own2 + su + sub + suq[:5], n1, 2, n1, 3)
            elif role == 'p':
                X.fx[1] += ['v_min_u32 v30, 1, v0', 'v_lshlrev_b32 v30, 30, v30', 'v_mov_b32 v31, s7']
                g = X.putd(self.held, 1, cfg.get('ths', 2))
                GF = self.GF = g + cfg.get('tgf', 28); GF += (-GF) % 4
                X.fx[GF-1] += [Op(None, need=['ALLV'])] + ([stamp_op(3)] if stamp else [])
                g = X.putd(['buffer_store_dword v31, v30, s[%d:%d], s%d offen%s' % (S_WS, S_WS+3, S_FO, cfg.get('xp_fl', ' sc1'))] + late, GF-1, 2)
                X.fx = spread(X.fx, own, n1, 2, GF-1)
                X.fx = spread(X.fx, own2 + su + sub, n1, GF+2, n1, 3)
            else:
                if TWO:
                    GA = cfg.get('tga', 24)
                    X.fx[GA-1].append(Op(None, need=['ALLV']))
                    nl = cfg.get('tnl', 14)
                    g = X.putd([fl] + late[:nl] + [self.poll_load(9, 'PF')], GA-1, 2)
                    X.putd(late[nl:], g, 2)
                else:
                    g = X.putd(late, 0, 2)
                    g = X.putd([self.poll_load(9, 'PF')], max(g, self.GF + cfg.get('tgp', 20)))
                g = X.check(g + cfg.get('tgc', 28), 'PF', 'P')
                if stamp: X.fx[g].append(stamp_op(3))
                sd = ['s_mov_b32 m0, %d' % L_PS, Op('buffer_load_dwordx4 v%d, s[%d:%d], s%d offen sc1 lds' % (L16, S_WS, S_WS+3, S_PS), prod=('PD', 0))]
                g = X.putd((pdm(0) if not self.EA else []) + sd, g+1, cfg.get('tps0', 2))
                for q in range(max(1, self.EA), ND): g = X.putd(pdm(q), g, cfg.get('tps', 4))
            for g in range(n1):
                G, qb, nb, h = g//(8*NH), (g % (8*NH))//8, (g % 8)//2, g & 1
                h ^= nb & self.SN
                i = 2*NH*G + 2*qb + h; kk = 2*G + h; D = vr(A0 + 16*qb + 4*nb, 4)
                o.append(Op('%s %s, %s, %s, %s' % (MF, D, self.wreg(kk, nb), vr(BR+4*(i % 8),4), D if (G or g & 1) else '0'), need=[('B1', i | 1), ('W', kk | 1)]))
                o += oplist(X.fx[g])
            return o
        tr.run('g1p', gemm1('p'))
        trq = Trace(tr.static); trq.run('x', [Op('buffer_load w', prod=('W', kk)) for kk in range(cfg.get('tw1', 8))] + ['ds_x']); trq.run('g1q', gemm1('q'))
        tr.lenient = ('PD',)
        o = []; X = FX(n); fx = X.fx
        if stamp: o.append(stamp_op(4))
        o += ['s_add_u32 s%d, s%d, s%d' % (S_WP, S_PP2, S_LP), Op('s_barrier', need=[('PD', 0)])]
        if stamp: o.append(stamp_op(5))
        def rd2(i):
            q = i//16; off = q*16384 + (i % 16)*1024
            return Op('ds_read_b128 %s, v%d offset:%d' % (vr(BR+4*(i % 8),4), 3 if q < NH else (2 if off >= 65536 else L16), off % 65536), prod=('B2', i))
        o += [rd2(i) for i in range(6)]
        for i in range(6, 80): fx[4*(i-6)].append(rd2(i))
        for q in range(1, NQ): fx[4*(16*q-6)-2].append(Op('s_barrier', need=[('PD' if q < ND else ('PE' if q < NH else 'CW'), q)]))
        seq = []
        for q in range(ND, NH):
            seq += ['s_add_u32 m0, s%d, %d' % (S_LP, L_PAR + q*16384), 's_add_u32 s%d, s%d, %d' % (S_T0, S_WP, q*16384)]
            seq += [Op('buffer_load_dwordx4 v%d, s[%d:%d], s%d offen offset:%d%s lds' % (L16, S_WS, S_WS+3, S_T0, k*1024, cfg.get('xp_pl', ' sc1')), prod=('PE', q)) for k in range(4)]
        pr = lambda q: ['s_add_u32 s%d, s%d, %d' % (S_T0, S_WP, q*16384)] + [Op('buffer_load_dwordx4 %s, v%d, s[%d:%d], s%d offen offset:%d%s' % (vr(PR+16*(q-NH)+4*k,4), L16, S_WS, S_WS+3, S_T0, k*1024, cfg.get('xp_pl', ' sc1')), prod=('PR', q, k)) for k in range(4)]
        if self.TWO:
            fx[1].append('v_add_u32 v9, %d, v9' % (128*FLG_B))
            g = X.putd([self.poll_load(9, 'BFL')], cfg.get('tbp', 4))
            g = X.check(g + cfg.get('tbc', 28), 'BFL', 'B')
            g = X.putd(seq + pr(3) + pr(4), g+1, cfg.get('tp2', 4))
        else: g = X.putd({3: lambda: pr(3) + seq + pr(4), 4: lambda: pr(4) + seq, 2: lambda: pr(2) + seq + pr(3) + pr(4)}[NH](), 1, cfg.get('tp2', 6))
        g = X.putd([self.poll_load(250, 'CF')], max(g, cfg.get('tcp', 110)))
        g = X.check(g + cfg.get('tgc', 28), 'CF', 'C')
        X.putd([Op('buffer_load_dwordx4 %s, v%d, s[%d:%d], s%d offen offset:%d sc1' % (vr(BF+4*c,4), BAR[c >> 1], S_WS, S_WS+3, S_BS, (c & 1)*1024), prod=('BF', c)) for c in range(2*NQ)], g, cfg.get('tp3', 4))
        wt = [Op('ds_read_b64 %s, v252 offset:%d' % (vr(RR+2*q,2), q*128), prod=('PST', q)) for q in range(NQ)]
        for q in range(NQ):
            l0, m0, l1, m1, t0 = ST+2*q, ST+2*q+1, RR+2*q, RR+2*q+1, 248
            wt += [Op('v_min_f32 v%d, v%d, v%d' % (t0, m0, m1), need=[('PST', q)]), 'v_sub_f32 v%d, v%d, v%d' % (m0, t0, m0), 'v_sub_f32 v%d, v%d, v%d' % (m1, t0, m1),
                   'v_exp_f32 v%d, v%d' % (m0, m0), 'v_exp_f32 v%d, v%d' % (m1, m1), 'v_mul_f32 v%d, v%d, v%d' % (l0, l0, m0), 'v_fmac_f32 v%d, v%d, v%d' % (l0, l1, m1),
                   'v_rcp_f32 v%d, v%d' % (l0, l0), 's_nop 0', 'v_mul_f32 v%d, v%d, v%d' % (CW+2*q, m0, l0), 'v_mul_f32 v%d, v%d, v%d' % (CW+2*q+1, m1, l0)]
        unp = lambda d, s_, need=(): [Op('v_lshlrev_b32 v%d, 16, v%d' % (d, s_), need=list(need)), 'v_and_b32 v%d, s%d, v%d' % (d+1, S_MK, s_)]
        def mix(q):
            return ['v_mul_f32 v%d, v%d, v%d' % (A0+16*q+x, A0+16*q+x, CW+2*q) for x in range(16)] + \
                   ['v_fmac_f32 v%d, v%d, v%d' % (A0+16*q+x, A1+16*(q & 1)+x, CW+2*q+1) for x in range(16)]
        def comb(q):
            ad = lambda k: (4 if q == 4 else 8, (q*16384 + k*1024) % 65536)
            rd = lambda k: Op('ds_read_b128 %s, v%d offset:%d' % ((vr(OT+4*(k & 1),4),) + ad(k)), prod=('CO', q, k))
            r = [rd(0), rd(1)]; C = vr(CW+2*q, 2)
            for k in range(4):
                for x in range(4): r += unp(RR+8+2*x, PR+16*(q-NH)+4*k+x, [('PR', q, k)] if x == 0 else [])
                for x in range(4): r += unp(RR+2*x, OT+4*(k & 1)+x, [('CO', q, k)] if x == 0 else [])
                r += ['v_pk_mul_f32 %s, %s, %s op_sel:[0,1] op_sel_hi:[1,1]' % (vr(RR+8+2*x,2), vr(RR+8+2*x,2), C) for x in range(4)]
                r += ['v_pk_fma_f32 %s, %s, %s, %s op_sel_hi:[1,0,1]' % (vr(RR+2*x,2), vr(RR+2*x,2), C, vr(RR+8+2*x,2)) for x in range(4)]
                if k < 2: r.append(rd(k+2))
                r += ['v_cvt_pk_bf16_f32 v%d, v%d, v%d' % (PK+4*(k & 1)+x, RR+2*x, RR+2*x+1) for x in range(4)]
                r.append(Op('ds_write_b128 v%d, %s offset:%d' % (ad(k)[0], vr(PK+4*(k & 1),4), ad(k)[1]), prod=('CW', q)))
            return r
        def fin_a(q):
            r = []
            for p in range(2):
                for x in range(4): r += unp(RR+8*p+2*x, BF+8*q+4*p+x, [('BF', 2*q+p)] if x == 0 else [])
            return r
        def fin_b(q, pk=False):
            r = []; S = A0+16*q if q < NH else A1+16*(q & 1)
            for p in range(2):
                if pk: r += ['v_pk_add_f32 %s, %s, %s' % (vr(RR+8*p+x,2), vr(RR+8*p+x,2), vr(S+8*p+x,2)) for x in range(0, 8, 2)]
                else: r += ['v_add_f32 v%d, v%d, v%d' % (RR+8*p+x, RR+8*p+x, S+8*p+x) for x in range(8)]
                r += ['v_cvt_pk_bf16_f32 v%d, v%d, v%d' % (PK+4*p+x, RR+8*p+2*x, RR+8*p+2*x+1) for x in range(4)]
                r += ['ds_write_b128 v6, %s offset:%d' % (vr(PK+4*p,4), p*1024), Op('ds_read_b128 %s, v8 offset:%d' % (vr(OT+4*p,4), p*1024), prod=('OT', q, p))]
            return r
        def fin_c(q):
            return ['s_add_u32 s%d, s%d, %d' % (S_T1, S_OP, q*16384)] + [Op('buffer_store_dwordx4 %s, v7, s[16:19], s%d offen offset:%d%s' % (vr(OT+4*p,4), S_T1, p*64, cfg.get('opol', ' nt') if q < cfg.get('sc3', 5) else ''), need=[('OT', q, p)]) for p in range(2)]
        W0, W1, W2 = cfg.get('tw', (88, 160, 226) if self.TWO else (64, 140, 212))
        fa = lambda q: fin_a(q) + (fin_c(q-1) if q else []) + fin_b(q)
        if NH == 4:
            E0, E1, E2 = cfg.get('te', (56, 127, 170))
            fx = spread(fx, wt, n, 2, E0)
            fx = spread(fx, comb(4) + mix(0), n, E0, E1)
            fx = spread(fx, mix(1), n, 130, E2)
            fx = spread(fx, fa(0) + mix(2) + fa(1), n, E2, 256)
            fx = spread(fx, fa(2) + mix(3) + fa(3) + fin_a(4) + fin_c(3), n, 256, n)
        elif NH == 2:
            E0 = cfg.get('te', 40)
            fx = spread(fx, wt, n, 2, E0)
            fx = spread(fx, comb(2), n, E0, 100)
            fx = spread(fx, mix(0) + comb(3), n, 100, 164)
            fx = spread(fx, mix(1) + comb(4), n, 164, 226)
            fx = spread(fx, fin_a(2) + fin_b(2), n, 226, 256)
            fx = spread(fx, fin_a(0) + fin_c(2) + fin_b(0) + fa(1) + fin_a(3) + fin_c(1) + fin_b(3) + fin_a(4) + fin_c(3), n, 256, n)
        elif cfg.get('even', 1) and not self.TWO:
            sp_ = spread_dp if cfg.get('tdp', 1) else spread
            E0, E1, E2 = cfg.get('te', (56, 127, 191))
            fx = sp_(fx, wt, n, 2, E0)
            fx = sp_(fx, comb(3) + mix(0), n, E0, E1)
            fx = sp_(fx, comb(4) + mix(1), n, E1, E2)
            fx = sp_(fx, fin_a(0) + fin_b(0) + mix(2) + fin_c(0) + fin_a(1) + fin_b(1) + fin_a(2) + fin_c(1) + fin_b(2) + fin_a(3) + fin_c(2) + fin_b(3) + fin_a(4) + fin_c(3), n, E2, n)
        else:
            fx = spread(fx, wt, n, 2, 64)
            fx = spread(fx, mix(0) + comb(3), n, W0, W1)
            fx = spread(fx, mix(1) + comb(4), n, W1, W2)
            fx = spread(fx, mix(2) + fin_a(0) + fin_b(0), n, W2, 256)
            fx = spread(fx, fin_a(1) + fin_c(0) + fin_b(1) + fin_a(2) + fin_c(1) + fin_b(2) + fin_a(3) + fin_c(2) + fin_b(3) + fin_a(4) + fin_c(3), n, 256, n)
        where = lambda txt: [g for g in range(n) for y in oplist(fx[g]) if y.text == txt][0]
        for q in range(NH):
            m = mix(q); assert where(m[16]) >= 64*(q+1)+6 and where(m[-1]) < 64*(q+2), (q, where(m[16]), where(m[-1]))
        assert where(fin_b(3)[0]) >= 256+8
        for g in range(n):
            qb, G, nb, h = g//64, (g % 64)//8, (g % 8)//2, g & 1
            h ^= nb & self.SN
            kk = 2*G + h; i = 16*qb + kk; D = vr(A1 + 16*(qb & 1) + 4*nb, 4)
            o.append(Op('%s %s, %s, %s, %s' % (MF, D, self.wreg(kk, nb), vr(BR+4*(i % 8),4), D if (G or g & 1) else '0'), need=[('B2', i | 1)]))
            o += oplist(fx[g])
            if stamp and g == 128: o.append(stamp_op(6))
        if stamp: o.append(stamp_op(8))
        if cfg.get('show'): print('gemm2 est', est_cycles([Op(y.text, need=y.need if kind_of(y) != 'M' else []) for y in oplist(o)]))
        o += ['s_nop 5'] + fin_b(NQ-1, True) + fin_c(NQ-1)
        tr.run('t', o); trq.run('t', o)
        tr.emit(a, 'g1p'); a.label('L_tail2'); tr.emit(a, 't')
        a('s_branch L_k2_fin')
        a.label('L_tailq'); tr.emit(a, 'g1q'); a('s_branch L_tail2')
        self.spin('P', 9)
        if self.TWO: self.spin('B', 9)
        if self.EA: self.spin('A', 248)
        if cfg.get('xp_noc'): a.label('L_spinC'); a('s_branch L_okC')
        else: self.spin('C', 250)
    def vread(self, db, par):
        return [Op('ds_read_b64_tr_b16 %s, v%d offset:%d' % (ar(self.A_RP+4*(db % self.RP)+2*jj,2), self.V_A2 if db & 1 else self.V_A, par*32768 + jj*16384 + (db >> 1)*1024), prod=('V', par, db)) for jj in range(2)]
    def preads(self, qb, par):
        if not self.PL: return [self.pread(qb, par)]
        o = 4*(par*self.NQ+qb)
        return [Op('ds_read2st64_b32 %s, v%d offset0:%d offset1:%d' % (ar(self.A_PP+4*self.NQ*par+4*qb+2*h,2), self.V_PA, o+2*h, o+2*h+1), prod=('P', par, qb)) for h in range(2)]
    def pread(self, qb, par):
        return Op('ds_read_b128 %s, v%d offset:%d' % (ar(self.A_PP+4*self.NQ*par+4*qb,4), self.V_PA, (par*self.NQ+qb)*1024), prod=('P', par, qb))
    def pv_body(self, par):
        NQ = self.NQ; n = self.n; cfg = self.cfg
        G = Gaps(n)
        LA = min(self.RP - 1, cfg['lap']); W = cfg['pw']; PP = cfg.get('kpf', 0) and cfg.get('kpp', 1)
        for db in range(16):
            d2 = db + LA; p2 = par
            if d2 >= 16: d2 -= 16; p2 ^= 1
            if d2 == 0 and par == 1: G.put(Task('V', 'v_xor_b32 v%d, 0x10000, v%d' % (self.V_A, self.V_A)), NQ*(db-1)+1)
            if d2 == 1 and par == 1: G.put(Task('V', 'v_xor_b32 v%d, 0x10000, v%d' % (self.V_A2, self.V_A2)), NQ*(db-1)+1)
            r = self.vread(d2, p2)
            G.put(Task('R', r[0]), NQ*db); G.put(Task('R', r[1]), NQ*db+1)
            if (db+1) % W == 0 and db < 15:
                G.put(Task('S', Op(None, need=[('V', par, db+W)])), NQ*db)
        gb = n - cfg['bp']
        while not G.fits(gb, 'X'): gb -= 1
        assert gb > NQ*(15-LA)+1, (gb, LA)
        bar = G.put(Task('X', [Op(None, need=[('V', par, 15)], extra='vmcnt(%d)' % (cfg['dv'] + (1 if PP else 0)) if cfg['dq'] < 16 else ''), 's_barrier']), gb)
        prev = fr = G.asap(Task('R', self.flag_read(par), [(bar,1)]))
        for qb in range(NQ):
            for x in self.preads(qb, par ^ 1): prev = G.asap(Task('R', x, [(prev,1)]))
        fw = G.put(Task('SV', [Op(None, need=[('F', par)]), 'v_cmp_eq_u32 vcc, s%d, v%d' % (S_T, self.V_F)]), n-3)
        G.put(Task('SSS', ['s_add_u32 s%d, s%d, 1' % (S_T, S_T), ('s_cmp_lg_u32 s%d, s%d' if par else 's_cmp_eq_u32 s%d, s%d') % (S_T, S_N),
                           Op(None, need=[('P', par^1, NQ-1), ('V', par^1, W-1)])]), n-2)
        G.put(Task('B', ['s_cbranch_vccnz L_prec%d' % par, 'L_pback%d:' % par]), n-1)
        dd = self.place_dma(G, cfg['dq'], 16-cfg['dq'], cfg['dp0'], cfg['dpend'], False, (15-cfg['dq']-cfg['dv']+cfg.get('kpo', cfg['dv'])) if PP else None)
        assert all(t.gap < gb for t, _ in dd)
        if cfg.get('show'): print('PV', par, G.show())
        ops = []
        for g in range(n):
            db, qb = g//NQ, g % NQ
            need = []
            if qb == 0: need.append(('V', par, db))
            if db & self.SN: qb = NQ-1-qb
            if g < NQ: need.append(('P', par, qb))
            D = self.O(8*qb + (db >> 1), 4*(db & 1), 4)
            ops.append(Op('%s %s, %s, %s, %s' % (MF, D, ar(self.A_RP+4*(db % self.RP),4), ar(self.A_PP+4*NQ*par+4*qb,4), D), need=need))
            ops += G.ops(g)
        return ops
    def pv_path(self):
        a = self.a; NQ = self.NQ; cfg = self.cfg; T = self.V_T
        b = Asm()
        if self.T1L:
            for pre, ins in self.dma(0, 16):
                for x in pre: b(x)
                b(ins)
            for it in self.dma_adv():
                for x in it: b(x)
        KP0 = cfg.get('kpf', 0)+1 if cfg.get('kpf', 0) else cfg.get('kp0', 0)
        if KP0:
            a('s_and_b32 s%d, s%d, 7', S_T2, S_QT); a('s_lshl_b32 s%d, s%d, 11', S_T2, S_T2); a('v_lshl_add_u32 v10, v0, 5, s%d', S_T2)
            a('v_add_u32 v22, %d, v10', 32768*cfg.get('kpf', 0))
            for i in range(KP0):
                b('s_add_u32 s%d, s%d, %d', S_T2, S_SRC, 32768*i); b('buffer_load_dword v11, v10, s[%d:%d], s%d offen', S_WS, S_WS+3, S_T2)
        for r in range(4): a('v_mov_b32 v%d, 0', 12+r)
        a('s_nop 1')
        z = ['v_mfma_f32_32x32x16_bf16 %s, v[12:15], v[12:15], 0' % self.O(f, 0, 16) for f in range(0, 8*NQ, 2)]
        for l in b.lines:
            if l.startswith('buffer') and z: a(z.pop(0))
            a(l)
        for l in z: a(l)
        F = self.V_F
        a('v_lshrrev_b32 v%d, 4, v0', T); a('v_sub_u32 v%d, 0, v%d', T, T); a('v_bfe_u32 v%d, v0, 1, 1', F)
        a('v_xor_b32 v%d, v%d, v%d', T, T, F); a('v_and_b32 v%d, 3, v%d', T, T); a('v_lshlrev_b32 v%d, 4, v%d', T, T)
        a('v_lshrrev_b32 v%d, 2, v0', F); a('v_lshl_add_u32 v%d, v%d, 6, v%d', T, F, T)
        a('v_and_b32 v%d, 1, v0', F); a('v_lshl_add_u32 v%d, v%d, 3, v%d', T, F, T)
        a('s_lshl_b32 s%d, s%d, 13', S_T2, S_J); a('v_add_u32 v%d, s%d, v%d', self.V_A, S_T2, T)
        a('v_xor_b32 v%d, 32, v%d', self.V_A2, self.V_A)
        a('v_lshlrev_b32 v%d, %d, v0', self.V_PA, 2 if self.PL else 4); a('v_add_u32 v%d, %d, v%d', self.V_PA, L_P, self.V_PA)
        if cfg.get('stamp') and cfg.get('sthead') == 1: stamp_mid(a, 8)
        if self.T1L: a('s_waitcnt vmcnt(%d)', KP0)
        a('s_barrier')
        for pre, ins in self.dma(0, 16):
            for x in pre: a(x)
            a(ins)
        for it in self.dma_adv():
            for x in it: a(x)
        for db in range(min(self.RP-1, cfg['lap'])):
            for o in self.vread(db, 0): a(o.text)
        a('s_waitcnt vmcnt(%d)', cfg['dv']); a('s_barrier')
        for qb in range(NQ): [a(x.text) for x in self.preads(qb, 0)]
        if cfg.get('stamp'): stamp_mid(a, 9)
        a('s_mov_b32 s%d, 2', S_T); a('s_add_u32 s%d, s%d, 2', S_N, S_N)
        a('s_waitcnt lgkmcnt(0)')
        b0 = self.pv_body(0); b1 = self.pv_body(1)
        a('.p2align 6') if cfg.get('align',1) else None
        a.label('L_ploop')
        resolve(a, b0, b1)
        a('s_cbranch_scc1 L_pend')
        resolve(a, b1, b0)
        a('s_cbranch_scc1 L_ploop')
        a.label('L_pend')
        if cfg.get('stamp'): stamp_mid(a, 10)
        if cfg.get('fuse3', 1): self.pv_tail(); (self.tail2 if cfg.get('hyb', 1) else self.tail)()
        else: self.pv_tail_old()
        a.label('L_prec0'); a('s_mov_b32 s%d, 0', S_RET); a('s_branch L_precx')
        a.label('L_prec1'); a('s_mov_b32 s%d, 1', S_RET)
        a.label('L_precx')
        a('s_waitcnt lgkmcnt(0)'); a('s_barrier')
        X = self.V_PX
        self.read_x(X)
        for qb in range(NQ):
            a('v_max3_f32 v%d, v%d, v%d, 0', X+2*qb, X+2*qb, X+2*qb+1)
            a('v_sub_f32 v%d, 0, v%d', X+2*qb, X+2*qb); a('v_exp_f32 v%d, v%d', X+2*qb, X+2*qb)
        a('s_nop 7')
        E = 24
        for f in range(8*NQ):
            qb = f//8
            if f < self.NFV:
                for r in range(8): a('v_mul_f32 %s, %s, v%d', self.O(f, r), self.O(f, r), X+2*qb)
            else:
                for r in range(8): a('v_accvgpr_read_b32 v%d, %s', E+r, self.O(f, r))
                for r in range(8): a('v_mul_f32 v%d, v%d, v%d', E+r, E+r, X+2*qb)
                for r in range(8): a('v_accvgpr_write_b32 %s, v%d', self.O(f, r), E+r)
        a('s_barrier')
        a('s_cmp_eq_u32 s%d, 0', S_RET); a('s_cbranch_scc0 L_precy')
        for qb in range(NQ): [a(x.text) for x in self.preads(qb, 1)]
        a('s_waitcnt lgkmcnt(0)'); a('s_cmp_eq_u32 s%d, s%d', S_T, S_N); a('s_branch L_pback0')
        a.label('L_precy')
        for qb in range(NQ): [a(x.text) for x in self.preads(qb, 0)]
        a('s_waitcnt lgkmcnt(0)'); a('s_cmp_lg_u32 s%d, s%d', S_T, S_N); a('s_branch L_pback1')
    def qprime(self):
        a = self.a; NQ = self.NQ; n = self.n; T = self.V_T
        assert NQ == 5
        RA = 64; DD = 16; PK = 8; BA = 2; WA = 56; S_AP = S_T3; S_X = S_T1
        ONE = self.cfg.get('one', 1)
        tr = self.tr0 if ONE else Trace(); ops = []
        LN2 = self.cfg.get('ln2', 1); KSC = ' sc1' if (LN2 and self.cfg.get('ksc', 1)) else ''
        Xs = [128+16*q for q in range(5)]
        if ONE: pass
        elif LN2:
            ops += ln_lane_addr(58, 59, S_W, 1)
            ops += ['s_lshl_b32 s%d, s%d, 14' % (S_X, S_RB), 's_lshl_b32 s%d, s%d, 9' % (S_T2, S_SP), 's_add_u32 s%d, s%d, s%d' % (S_T0, S_X, S_T2), 's_xor_b32 s%d, s%d, 512' % (S_T2, S_T0)]
            ops += ['s_mov_b32 s60, s%d' % S_T0, 's_mov_b32 s61, s%d' % S_T2, 'v_mov_b32 v55, v58']
            X0 = self.cfg.get('x0', 3) if self.cfg.get('lnb', 1) else 5
            xlate = []
            for q in range(5):
                l = [Op('buffer_load_dwordx4 %s, v55, s[12:15], s%d offen offset:%d' % (vr(Xs[q]+4*k,4), 61 if k & 2 else 60, (k & 1)*256), prod=(('X', q), k)) for k in range(4)]
                if q < 4: l += ['s_add_u32 s60, s60, 16384', 's_add_u32 s61, s61, 16384']
                if q < X0: ops += l
                else: xlate.append(l)
        else:
            ops += ['s_mul_i32 s%d, s%d, 20480' % (S_T2, S_W), 's_lshl_b32 s%d, s%d, 14' % (S_X, S_RB), 's_add_u32 s%d, s%d, s%d' % (S_X, S_X, S_T2)]
            for d in range(20):
                if d % 4 == 0: ops += ['s_add_u32 m0, s%d, %d' % (S_T2, L_ST + d*1024), 's_add_u32 s%d, s%d, %d' % (S_T0, S_X, d*1024)]
                ops.append(Op('buffer_load_dwordx4 v%d, s[%d:%d], s%d offen offset:%d lds' % (self.V_L16, S_WS, S_WS+3, S_T0, (d%4)*1024), prod='XS'))
        ops += ['s_mov_b32 s%d, s6' % S_AP] if ONE else ['s_lshl_b32 s%d, s%d, 17' % (S_AP, S_W), 's_add_u32 s%d, s%d, 0x%x' % (S_AP, S_AP, WS_MF)]
        RO = 16 if ONE else 0
        def aload(f):
            o = [Op('buffer_load_dwordx4 %s, v%d, s[%d:%d], s%d offen offset:%d%s' % (vr(RA+4*((f+RO) % 32),4), self.V_L16, S_WS, S_WS+3, S_AP, (f%4)*1024, ' sc1' if ONE else ''), prod=('A', f))]
            return o, (['s_add_u32 s%d, s%d, 4096' % (S_AP, S_AP)] if f % 4 == 3 else [])
        LNB = LN2 and self.cfg.get('lnb', 1)
        A0 = self.cfg.get('qa0', 0 if LNB else (16 if LN2 else 8))
        if ONE: A0 = self.cfg.get('qla', 16)
        for f in range(14 if ONE else 0, A0):
            o, s_ = aload(f); ops += o + s_
        if self.cfg.get('stamp') and self.cfg.get('sthead') == 1: ops.append(stamp_op(1))
        tr.run('pre', ops); tr.emit(a, 'pre')
        if self.cfg.get('fuse3', 1): self.tail_sgprs()
        h_frag_addr(a, BA, T); a('v_add_u32 v%d, %d, v%d', BA, L_ST, BA); a('v_add_u32 v%d, 0x10000, v%d', BA+1, BA)
        a('s_lshl_b32 s%d, s%d, 12', S_T2, S_W); a('s_add_u32 s%d, s%d, %d', S_T2, S_T2, L_ST)
        a('v_add_u32 v%d, s%d, v%d', WA, S_T2, self.V_L16); a('v_add_u32 v%d, 0x10000, v%d', WA+1, WA)
        a('v_mov_b32 v%d, -1', T); a('ds_write_b32 v%d, v%d', self.V_FA, T); a('s_waitcnt lgkmcnt(0)')
        a('s_lshl_b32 s%d, s%d, 14', S_T2, S_W); a('s_add_u32 s%d, s%d, s%d', S_X, S_SRC, S_T2)
        def pos(g):
            G = g//(2*NQ); w = g % (2*NQ); return w//2, 2*G + ((w & 1) ^ ((w//2) & self.SN))
        def bread(g):
            qb, kk = pos(g); off = qb*16384 + kk*1024
            return Op('ds_read_b128 %s, v%d offset:%d' % (self.R(4*(kk*NQ+qb),4), BA + off//65536, off % 65536), prod=('B', g))
        def ep(i):
            o = []
            for qb in range(NQ):
                D = DD + 20*(i & 1) + 4*qb; P = PK + 2*(qb % 4); off = qb*16384 + (i >> 1)*1024 + 8*(i & 1)
                o += ['v_cvt_pk_bf16_f32 v%d, v%d, v%d' % (P, D, D+1), 'v_cvt_pk_bf16_f32 v%d, v%d, v%d' % (P+1, D+2, D+3),
                      'ds_write_b64 v%d, %s offset:%d' % (WA + off//65536, vr(P,2), off % 65536)]
            return o
        PRE = 10
        ops = []
        if LN2 and not ONE:
            ops += ln_h_addr(58, 59, S_W) + ['s_lshl_b32 s%d, s%d, 13' % (S_T0, S_SP), 'v_add_u32 v58, s%d, v58' % S_T0, 'v_add_u32 v60, %d, v58' % L_ST, 'v_xor_b32 v61, 0x2000, v60',
                                             'v_add_u32 v62, 0x10000, v60', 'v_add_u32 v63, 0x10000, v61', 's_lshl_b32 s%d, s%d, 14' % (S_RET, S_RB)]
            def wr(q, k, reg):
                off = q*16384 + (k & 1)*4096
                r = ['ds_write_b128 v%d, %s offset:%d' % (60 + (k >> 1) + 2*(off//65536), vr(reg,4), off % 65536)]
                if k < 2 and not (self.cfg.get('noxst') and q): r += ['s_add_u32 s%d, s%d, %d' % (S_T0 if q & 1 else S_SPIN, S_RET, off), Op('buffer_store_dwordx4 %s, v58, s[%d:%d], s%d offen%s' % (vr(reg,4), S_WS, S_WS+3, S_T0 if q & 1 else S_SPIN, '' if self.cfg.get('xplain') else ' sc1'), prod='XST')]
                return r
            if LNB:
                cnt = self.cfg.get('lnx', [0, 0, 6, 5, 5]); ex = []
                for q in range(5):
                    e = xlate.pop(0) if xlate else []
                    for c in range(cnt[q]):
                        assert A0 < 16 + 4*q
                        o_, s_ = aload(A0); e += o_ + s_; A0 += 1
                    ex.append(e)
                ops += ln80b(Xs, 16, 48, 'X', S_MK, 54, wr, ex)
            else: ops += ln80(Xs, [16, 208], [48, 240], 'X', S_MK, wr)
            if self.cfg.get('stamp') and self.cfg.get('sthead'): ops.append(stamp_op(5))
        if LN2:
            ops += ['s_lshl_b32 s%d, s3, 7' % S_RET, 's_add_u32 s%d, s%d, 0x%x' % (S_RET, S_RET, WS_FLG + 128*FLG_X),
                    's_mul_i32 s%d, s%d, 50' % (S_T0, S_SP), 'v_min_u32 v58, 51, v0', 'v_add_u32 v58, s%d, v58' % S_T0, 'v_min_u32 v58, 0x63, v58',
                    'v_lshl_add_u32 v58, v58, 1, s%d' % S_B, 's_xor_b32 s%d, s3, 2' % S_T0, 'v_cmp_eq_u32 vcc, 63, v0', 'v_mov_b32 v59, s%d' % S_T0, 's_nop 0', 'v_cndmask_b32 v58, v58, v59, vcc', 'v_lshlrev_b32 v58, 7, v58', 'v_add_u32 v58, 0x%x, v58' % (WS_FLG + 128*FLG_X), 'v_min_u32 v60, 1, v0', 'v_lshlrev_b32 v60, 30, v60', 'v_mov_b32 v62, s7', 's_getreg_b32 s%d, hwreg(HW_REG_XCC_ID, 0, 4)' % S_SAME, 'v_mov_b32 v63, s%d' % S_SAME,
                    's_cmp_eq_u32 s%d, 0' % S_W, 's_cselect_b32 s%d, s%d, 0x%x' % (S_RET, S_RET, WS_SIZE)]
        ops += [Op('s_barrier', need=['ALLL'] if LN2 else ['XS'])] + [bread(g) for g in range(PRE)]
        QLA = self.cfg.get('qla', 16); assert A0 <= QLA
        for f in range(A0, QLA):
            o, s_ = aload(f); ops += o + s_
        for i in range(8):
            if self.cfg.get('stamp') and self.cfg.get('sthead') == 1 and i in (0,1,2,6): ops.append(stamp_op({0:2,1:3,2:4,6:6}[i]))
            if self.cfg.get('stamp') and self.cfg.get('sthead') == 2 and i == 1: ops.append(stamp_op(8))
            fx = [[] for _ in range(n)]
            for G in range(8):
                for h in range(2):
                    f = 16*i + QLA + 2*G + h; gp = 2*NQ*G + 5*h
                    if f < 128:
                        o, s_ = aload(f); fx[gp] += o; fx[gp+1] += s_
                    d = 16*(i-6) + 2*G + h - self.cfg.get('qd0', 12)
                    if 0 <= d < 16:
                        if d % 4 == 0: fx[gp+1] += ['s_add_u32 m0, s%d, %d' % (S_T2, d*1024), 's_add_u32 s%d, s%d, %d' % (S_T0, S_X, d*1024)]
                        fx[gp+2].append('buffer_load_dwordx4 v%d, s[%d:%d], s%d offen offset:%d%s lds' % (self.V_L16, S_WS, S_WS+3, S_T0, (d%4)*1024, KSC))
                nxt = 16*i + 2*G + 3
                if nxt < 128: fx[2*NQ*G + 8].append(Op(None, need=[('A', nxt)]))
            if i == 0:
                for g in range(n - PRE): fx[g].insert(0, bread(g+PRE))
            if i == 1: fx[2].append('s_barrier')
            if LN2 and i == self.cfg.get('xfb', 2):
                fx[72].append(Op('s_barrier', need=['XST'])); fx[73].append('buffer_store_dwordx2 v[62:63], v60, s[%d:%d], s%d offen sc1' % (S_WS, S_WS+3, S_RET))
            if LN2 and i == 5: fx[33].append(self.poll_load(58, 'XF'))
            if LN2 and i == 6:
                fx[1].append(Op('v_cmp_ne_u32 vcc, s7, v%d' % self.V_F, need=['XF'])); fx[3] += ['s_cbranch_vccnz L_spinX', 'L_okX:']
                fx[13].append(Op('buffer_load_dword v59, v58, s[%d:%d], 0 offen offset:4 sc1' % (S_WS, S_WS+3), prod='XC'))
            if i: fx = spread(fx, ep(i-1), n, 4)
            for g in range(n):
                qb, kk = pos(g); D = vr(DD + 20*(i & 1) + 4*qb, 4)
                need = [('A', 16*i+kk)] + ([('B', g | 1)] if i == 0 else [])
                ops.append(Op('%s %s, %s, %s, %s' % (MF, D, vr(RA+4*((16*i+kk+RO) % 32),4), self.R(4*(kk*NQ+qb),4), D if (g >= 2*NQ or g & 1) else '0'), need=need))
                ops += oplist(fx[g])
        ops += ep(7) + [Op('s_barrier', need=['ALLV', 'ALLL'])]
        if LN2: ops += ['v_readlane_b32 s%d, v59, 63' % S_T0, 's_nop 0', 's_cmp_eq_u32 s%d, s%d' % (S_T0, S_SAME), 's_cselect_b32 s%d, %d, 0' % (S_SAME, 0 if self.cfg.get('forceslow') else 1)]
        tr.run('main', ops); tr.emit(a, 'main')
    def qprime6(self):
        a = self.a; NQ = self.NQ; n = self.n; T = self.V_T; cfg = self.cfg
        RA = 64; DD = 16; BA = 2; WA = 56; WS0 = 8; S_AP = S_T3; S_X = S_T1; S_QO = 60; S_QI = 61; S_QL = 62; S_QF = 63; S_J1 = 44
        PKF = 64
        T1L = cfg.get('t1l', 1); ND = 8 if T1L else 16
        NB = 6; NF = 16*NB; QLA = 16; st1 = cfg.get('stamp') and cfg.get('sthead') == 1; st2 = cfg.get('stamp') and cfg.get('sthead') == 2
        tr = self.tr0
        reg = lambda f: vr(128 + 4*(f % 16) if (f//16) % 2 == 0 or (f % 16) < 5 else 64 + 4*(f % 16), 4)
        def aload(f):
            o = [Op('buffer_load_dwordx4 %s, v%d, s[%d:%d], s%d offen offset:%d sc1' % (self.areg(f), self.V_L16, S_WS, S_WS+3, S_AP, (f%4)*1024), prod=('A', f))]
            if f == 31: return o, ['s_mov_b32 s%d, s%d' % (S_AP, S_J1)]
            return o, (['s_add_u32 s%d, s%d, 4096' % (S_AP, S_AP)] if f % 4 == 3 else [])
        self.areg = lambda f: vr(84 + 4*((f + 11) % 27), 4)
        ops = ['s_mov_b32 s%d, s6' % S_AP]
        for f in range(14, QLA):
            o, s_ = aload(f); ops += o + s_
        t = Asm(); h_frag_addr(t, BA, T); ops += t.lines + ['v_add_u32 v%d, %d, v%d' % (BA, L_ST, BA), 'v_add_u32 v%d, 0x10000, v%d' % (BA+1, BA)]
        def pos(g):
            G = g//(2*NQ); w = g % (2*NQ); return w//2, 2*G + ((w & 1) ^ ((w//2) & self.SN))
        def bread(g):
            qb, kk = pos(g); off = qb*16384 + kk*1024
            return Op('ds_read_b128 %s, v%d offset:%d' % (self.R(4*(kk*NQ+qb),4), BA + off//65536, off % 65536), prod=('B', g))
        PRE = 10
        ops += [Op('s_barrier', need=['ALLL'])] + [bread(g) for g in range(PRE)]
        t = Asm(); sv = self.a; self.a = t; self.tail_sgprs(); self.a = sv
        su = t.lines + ['s_lshl_b32 s%d, s%d, 17' % (S_J1, S_W), 's_add_u32 s%d, s%d, 0x%x' % (S_J1, S_J1, WS_MF + 32768),
              's_lshl_b32 s%d, s%d, 12' % (S_T2, S_W), 's_add_u32 s%d, s%d, %d' % (S_T2, S_T2, L_ST),
              'v_add_u32 v%d, s%d, v%d' % (WA, S_T2, self.V_L16), 'v_add_u32 v%d, 0x10000, v%d' % (WA+1, WA),
              's_mul_i32 s%d, s%d, 3072' % (S_T0, S_SP), 'v_add_u32 v%d, s%d, v%d' % (WS0, S_T0, WA), 'v_add_u32 v%d, s%d, v%d' % (WS0+1, S_T0, WA+1),
              's_sub_u32 s%d, s%d, s%d' % (S_QL, S_T2, S_T0), 's_add_u32 s%d, s%d, 3072' % (S_QL, S_QL),
              's_lshl_b32 s%d, s3, 2' % S_T0, 's_add_u32 s%d, s%d, s%d' % (S_T0, S_T0, S_W), 's_mul_i32 s%d, s%d, 5120' % (S_QO, S_T0), 's_add_u32 s%d, s%d, 0x%x' % (S_QO, S_QO, WS_QX),
              's_xor_b32 s%d, s%d, 8' % (S_T0, S_T0), 's_mul_i32 s%d, s%d, 5120' % (S_QI, S_T0), 's_add_u32 s%d, s%d, 0x%x' % (S_QI, S_QI, WS_QX),
              's_lshl_b32 s%d, s3, 7' % S_RET, 's_add_u32 s%d, s%d, 0x%x' % (S_QF, S_RET, WS_FLG + 128*FLG_Q), 's_add_u32 s%d, s%d, 0x%x' % (S_RET, S_RET, WS_FLG + 128*FLG_X),
              's_xor_b32 s%d, s%d, 256' % (S_T0, S_QF), 'v_mov_b32 v59, s%d' % S_T0,
              's_mul_i32 s%d, s%d, 50' % (S_T0, S_SP), 'v_min_u32 v58, 51, v0', 'v_add_u32 v58, s%d, v58' % S_T0, 'v_min_u32 v58, 0x63, v58',
              'v_lshl_add_u32 v58, v58, 1, s%d' % S_B, 'v_lshlrev_b32 v58, 7, v58', 'v_add_u32 v58, 0x%x, v58' % (WS_FLG + 128*FLG_X),
              'v_or_b32 v60, s%d, v0' % S_W, 'v_min_u32 v60, 1, v60', 'v_lshlrev_b32 v60, 30, v60', 'v_mov_b32 v61, s7', 'v_mov_b32 v62, -1',
              's_lshl_b32 s%d, s%d, %d' % (S_T2, S_W, 13 if T1L else 14), 's_add_u32 s%d, s%d, s%d' % (S_X, S_SRC, S_T2)]
        assert (WS_FLG + 128*FLG_Q) % 512 == 0
        ops += [x for x in su if x.startswith('s_') and False]
        def ep(i):
            o = []
            for qb in range(NQ):
                D = DD + 20*(i & 1) + 4*qb
                if i < 2: P = PKF + 4*qb + 2*i; off = qb*16384 + 8*i; wa = WS0
                else: P = 10 + 2*(qb % 3); off = qb*16384 + (i >> 1)*1024 + 8*(i & 1); wa = WA
                o += ['v_cvt_pk_bf16_f32 v%d, v%d, v%d' % (P, D, D+1), 'v_cvt_pk_bf16_f32 v%d, v%d, v%d' % (P+1, D+2, D+3),
                      'ds_write_b64 v%d, %s offset:%d' % (wa + off//65536, vr(P,2), off % 65536)]
                if i == 1:
                    if qb == 4: o.append('s_add_u32 s%d, s%d, 4096' % (S_QO, S_QO))
                    o.append(Op('buffer_store_dwordx4 %s, v%d, s[%d:%d], s%d offen offset:%d sc1' % (vr(PKF+4*qb,4), self.V_L16, S_WS, S_WS+3, S_QO, (qb % 4)*1024), prod='QST'))
            return o
        XB = cfg.get('q6x', (1, 72)); QB = cfg.get('q6q', (3, 22)); XP = cfg.get('q6xp', (3, 43)); XC = cfg.get('q6xc', (4, 1))
        QP = cfg.get('q6qp', (4, 33)); QC = cfg.get('q6qc', (5, 1)); D0 = cfg.get('q6d', 12 if T1L else 4)
        fl = lambda sreg: 'buffer_store_dword v61, v60, s[%d:%d], s%d offen sc1' % (S_WS, S_WS+3, sreg)
        nf = [QLA]
        for i in range(NB):
            if st1 and i in (0,1,2,4): ops.append(stamp_op({0:2,1:3,2:4,4:6}[i]))
            if st2 and i == 1: ops.append(stamp_op(8))
            fx = [[] for _ in range(n)]
            for G in range(8):
                for h in range(2):
                    gp = 2*NQ*G + 5*h
                    if nf[0] < NF:
                        o, s_ = aload(nf[0]); fx[gp] += o; fx[gp+1] += s_; nf[0] += 1
                    if i == 1 and h == 1 and G < cfg.get('q6r', 0):
                        o, s_ = aload(nf[0]); fx[gp+2] += o; fx[gp+3] += s_; nf[0] += 1
                    assert nf[0] - (16*i + 2*G) <= 27
                    d = 16*(i-4) + 2*G + h - D0
                    if 0 <= d < ND:
                        if d % 4 == 0: fx[gp+1] += ['s_add_u32 m0, s%d, %d' % (S_T2, d*1024), 's_add_u32 s%d, s%d, %d' % (S_T0, S_X, d*1024)]
                        fx[gp+2].append('buffer_load_dwordx4 v%d, s[%d:%d], s%d offen offset:%d sc1 lds' % (self.V_L16, S_WS, S_WS+3, S_T0, (d%4)*1024))
                nxt = 16*i + 2*G + 3
                if nxt < NF: fx[2*NQ*G + 8].append(Op(None, need=[('A', nxt)]))
            if i == 0:
                for g in range(n - PRE): fx[g].insert(0, bread(g+PRE))
            if i == 1: fx[2].append('s_barrier'); fx[3].append('ds_write_b32 v%d, v62' % self.V_FA)
            if i == XB[0]: fx[XB[1]].append(Op('s_barrier', need=['XST'])); fx[XB[1]+1].append(fl(S_RET))
            if i == QB[0]: fx[QB[1]].append(Op('s_barrier', need=['QST'])); fx[QB[1]+1].append(fl(S_QF))
            if i == XP[0]: fx[XP[1]].append(self.poll_load(58, 'XF'))
            if i == XC[0]: fx[XC[1]].append(Op('v_cmp_ne_u32 vcc, s7, v%d' % self.V_F, need=['XF'])); fx[XC[1]+2] += ['s_cbranch_vccnz L_spinX', 'L_okX:']
            if i == QP[0]: fx[QP[1]].append(self.poll_load(59, 'QF'))
            if i == QC[0]:
                fx[QC[1]].append(Op('v_cmp_ne_u32 vcc, s7, v%d' % self.V_F, need=['QF'])); fx[QC[1]+2] += ['s_cbranch_vccnz L_spinQ', 'L_okQ:']
                g0 = max(QC[1]+4, 5*(D0 + ND - 16*(i-4)))
                g0 += (-g0) % 5
                for qb in range(NQ):
                    fx[g0+5*qb-1] += ['s_add_u32 m0, s%d, %d' % (S_QL, qb*16384), 's_add_u32 s%d, s%d, %d' % (S_T0, S_QI, qb*1024)]
                    fx[g0+5*qb].append('buffer_load_dwordx4 v%d, s[%d:%d], s%d offen sc1 lds' % (self.V_L16, S_WS, S_WS+3, S_T0))
            fx = spread(fx, ep(i-1), n, 4) if i else spread(fx, su, n, 0, None, 2)
            for g in range(n):
                qb, kk = pos(g); D = vr(DD + 20*(i & 1) + 4*qb, 4)
                need = [('A', 16*i+kk)] + ([('B', g | 1)] if i == 0 else [])
                ops.append(Op('%s %s, %s, %s, %s' % (MF, D, self.areg(16*i+kk), self.R(4*(kk*NQ+qb),4), D if (g >= 2*NQ or g & 1) else '0'), need=need))
                ops += oplist(fx[g])
        ops += ep(NB-1) + [Op('s_barrier', need=['ALLV', 'ALLL'])]
        tr.run('main', ops); tr.emit(a, 'main')
    def gen_body(self):
        a = self.a; cfg = self.cfg; NQ = self.NQ; NS = self.NS; T = self.V_T
        a('s_and_b32 s%d, s3, 1', S_B); a('s_bfe_u32 s%d, s3, 0x10001', S_SP); a('s_lshr_b32 s%d, s3, 2', S_QT)
        a('s_mul_i32 s%d, s%d, %d', S_RB, S_QT, NQ); a('s_sub_u32 s%d, 249, s%d', S_NV, S_RB)
        a('s_mul_i32 s%d, s%d, 250', S_T0, S_B); a('s_add_u32 s%d, s%d, s%d', S_RB, S_RB, S_T0)
        per = cfg.get('per', 63)
        a('s_mul_i32 s%d, s%d, %d', S_T1, S_SP, per); a('s_sub_u32 s%d, 125, s%d', S_N, S_T1); a('s_min_u32 s%d, s%d, %d', S_N, S_N, per)
        a('s_mul_i32 s%d, s%d, 125', S_T0, S_B); a('s_add_u32 s%d, s%d, s%d', S_T1, S_T1, S_T0)
        a(('s_lshr_b32 s%d, s%d, 1' if cfg.get('roles', 0) else 's_and_b32 s%d, s%d, 1') % (S_J, S_W))
        a('s_lshl_b32 s%d, s%d, 15', S_SRC, S_T1); a('s_add_u32 s%d, s%d, s%d', S_T1, S_T1, S_N); a('s_lshl_b32 s%d, s%d, 15', S_END, S_T1)
        assert WS_XA == 0
        a('s_mov_b32 s%d, 0x%x', S_THR, 0x40004000 if self.W2 else f2u(2.0**cfg.get('thr', 40)))
        a('v_mov_b32 v%d, %d', self.V_FA, L_FLAG)
        a('s_lshl_b32 s%d, s%d, 2', S_T2, S_J); a('s_add_u32 s%d, s%d, %d', S_T2, S_T2, L_X); a('v_lshl_add_u32 v%d, v0, 3, s%d', self.V_XA, S_T2)
        if cfg.get('one', 1) and cfg.get('q6', 1): self.qprime6()
        else: self.qprime()
        if cfg.get('stamp'): stamp_mid(a, 7)
        self.T1L = cfg.get('one', 1) and cfg.get('q6', 1) and cfg.get('t1l', 1)
        a('s_lshl_b32 s%d, s%d, 14', S_DST, S_J); a('s_add_u32 s%d, s%d, %d', S_DST, S_DST, (1 if self.T1L else 2)*32768)
        a('s_add_u32 s%d, s%d, s%d', S_SRC, S_SRC, S_DST); a('s_mov_b32 s%d, s%d', S_SRCV, S_SRC)
        a('s_bitcmp1_b32 s%d, %d', S_W, 0 if cfg.get('roles', 0) else 1); a('s_cbranch_scc1 L_pv')
        sk = 65536 if self.T1L else 32768
        a('s_add_u32 s%d, s%d, %d', S_SRC, S_SRC, sk); a('s_add_u32 s%d, s%d, %d', S_DST, S_DST, sk); a('s_mov_b32 s%d, s%d', S_SRCV, S_SRC)
        self.qk_path()
        a.label('L_pv')
        self.pv_path()

DEFCFG = dict(NQ=5, NS=2, ringq=8, ringp=8, bq=4, fq=5, dq=6, bp=23, pw=2, dpend=48, laq=1, lap=7, dv=4, dp0=0, dqe=8, w32=0)
```

```python
from asmlib import *
from layout import *
from gen_k0 import srd, h_frag_addr
MF='v_mfma_f32_16x16x32_bf16'
S_WS=8; S_W=20
C1 = 2*0.7978845608028654*1.4426950408889634; C2 = C1*0.044715
L_DW=81920; L_SX=92160; L_DUM=96256; L_XS=102400
NQ=5; n=80
def R(i, k=1): return ar(i, k) if i < 256 else vr(192 + i - 256, k)
SN = [1]
def pos(g):
    G = g//10; w = g % 10; return w//2, 2*G + ((w & 1) ^ ((w//2) & SN[0]))
p2 = lambda r: vr(r, 2)

class Conv:
    L16=1; HA=2; PH=4; XV=5; GA=6; DA=11; XA=12; XR=17; RS=18; U0=28; U1=48; U2=68; DD=88; RA=128
    S_C=21; S_R0=22; S_TB=23; S_AP=24; S_CNT=25; S_T0=26; S_T1=27; S_MK=28; S_OUT=29; S_JMP=30; S_TILE=31
    S_PG=32; S_PU=33; S_PZ=34; S_T3=35; S_M=36
    S_XP=42; S_XL=43; S_FL=44; S_XD=45; S_K=46; S_ONE=48
    def __init__(self, a, cfg): self.a = a; self.cfg = cfg; SN[0] = cfg.get('snake', 1)
    def aload(self, kk, blk):
        return Op('buffer_load_dwordx4 %s, v%d, s[%d:%d], s%d offen offset:%d%s' % (vr(self.RA+4*kk,4), self.L16, S_WS, S_WS+3, self.S_AP, (kk%4)*1024, self.cfg.get('apol', ' sc1')), prod=('A', blk, kk))
    def block(self, blk, par, stream=(), bread=None, jump=None, extra=None, g0=2, tail=()):
        fx = [[] for _ in range(n)]
        for G in range(8):
            for h in range(2):
                kk = (2*G + h - 2) % 16; gp = 10*G + 5*h
                fx[gp].append(self.aload(kk, blk if G == 0 else blk+1))
                if kk % 4 == 3:
                    fx[gp+1] += (jump if (kk == 15 and jump) else ['s_add_u32 s%d, s%d, 4096' % (self.S_AP, self.S_AP)])
            fx[10*G+8].append(Op(None, need=[('A', blk if G < 7 else blk+1, (2*G+3) % 16)]))
        if extra:
            for g, o in extra: fx[g] += oplist(o)
        ops = []; PRE = 10
        if bread is not None:
            def rd(g):
                qb, kk = pos(g); off = qb*16384 + kk*1024
                return Op('ds_read_b128 %s, v%d offset:%d' % (R(4*(kk*NQ+qb),4), bread[off//65536], off % 65536), prod=('B', blk, g))
            ops += [rd(g) for g in range(PRE)]
            for g in range(n-PRE): fx[g].insert(0, rd(g+PRE))
        if stream: fx = (spread_dp if self.cfg.get('dp', 1) else spread)(fx, stream, n, g0)
        for g in range(n):
            qb, kk = pos(g); D = vr(self.DD + 20*par + 4*qb, 4)
            need = [('A', blk, kk)] + ([('B', blk, g | 1)] if bread is not None else [])
            ops.append(Op('%s %s, %s, %s, %s' % (MF, D, vr(self.RA+4*kk,4), R(4*(kk*NQ+qb),4), D if (g >= 10 or g & 1) else '0'), need=need))
            ops += oplist(fx[g])
        if self.cfg.get('show'): print('blk', blk, est_cycles([Op(o.text, need=o.need if kind_of(o) != 'M' else []) for o in ops]))
        return ops + oplist(list(tail))
    def P1(self, D, T, m):
        K = sr(self.S_K, 2)
        return (['v_pk_mul_f32 %s, %s, %s' % (p2(T+r), p2(D+r), p2(D+r)) for r in range(0, m, 2)] +
                ['v_pk_fma_f32 %s, %s, %s, %s op_sel:[0,0,1] op_sel_hi:[1,0,1]' % (p2(T+r), p2(T+r), K, K) for r in range(0, m, 2)] +
                ['v_pk_mul_f32 %s, %s, %s' % (p2(T+r), p2(T+r), p2(D+r)) for r in range(0, m, 2)])
    def E1(self, T, m): return ['v_exp_f32 v%d, v%d' % (T+r, T+r) for r in range(m)]
    def E2(self, T, m): return ['v_rcp_f32 v%d, v%d' % (T+r, T+r) for r in range(m)]
    def P2(self, T, m, pk=True):
        if pk: return ['v_pk_add_f32 %s, %s, %s' % (p2(T+r), p2(T+r), sr(self.S_ONE, 2)) for r in range(0, m, 2)]
        return ['v_add_f32 v%d, 1.0, v%d' % (T+r, T+r) for r in range(m)]
    def mul(self, D, T, pk=True):
        if pk: return ['v_pk_mul_f32 %s, %s, %s' % (p2(D+r), p2(D+r), p2(T+r)) for r in (0, 2)]
        return ['v_mul_f32 v%d, v%d, v%d' % (D+r, D+r, T+r) for r in range(4)]
    def adv_g(self, d): return ['v_add_u32 v%d, %d, v%d' % (self.GA+q, d, self.GA+q) for q in range(NQ)]
    def ep_g(self, t):
        o = []; PK = self.U0; S1 = self.U1; S2 = self.U2; T = self.RS
        def fin(qb):
            D = self.DD + 20*t + 4*qb; P = PK + 4*qb + 2*t
            r = ['v_cvt_pk_bf16_f32 v%d, v%d, v%d' % (P, D, D+1), 'v_cvt_pk_bf16_f32 v%d, v%d, v%d' % (P+1, D+2, D+3),
                 'ds_write_b64 v%d, %s offset:%d' % (self.GA+qb, vr(P,2), 8*t)]
            if self.cfg.get('g128', 1): r = r[:2] + (['ds_write_b128 v%d, %s' % (self.GA+qb, vr(PK+4*qb,4))] if t else [])
            if t:
                F = vr(PK+4*qb,4)
                r += ['v_add_u32 v%d, 1024, v%d' % (self.GA+qb, self.GA+qb),
                      '%s %s, %s, %s, %s' % (MF, vr(S1+4*qb,4), vr(self.XA,4), F, vr(S1+4*qb,4)),
                      '%s %s, %s, %s, %s' % (MF, vr(S2+4*qb,4), F, F, vr(S2+4*qb,4))]
            return r
        late = []
        for q0, m in ((0, 8), (2, 8), (4, 4)):
            D = self.DD + 20*t + 4*q0
            o += self.P1(D, T, m) + late + self.E1(T, m) + self.P2(T, m, False) + self.E2(T, m)
            late = []
            for j in range(m//4):
                o += self.mul(D+4*j, T+4*j, self.cfg.get('gm', 0) and q0 < 4); late += fin(q0+j)
        return o + late
    def ep_u(self, t, blk):
        GN = self.U0; DW = self.U1; TA = self.U2; TB = self.U2+8; CV = self.U2+16; RAW = self.U2+8
        D = lambda q: self.DD + 20*t + 4*q
        rd = [Op('ds_read_b64 %s, v%d offset:%d' % (vr(RAW+2*q,2), self.GA+q, 8*t), prod=('G', blk, q)) for q in range(NQ)]
        rw = [Op('ds_read_b128 %s, v%d offset:%d' % (vr(DW+4*k,4), self.DA, k*2048 + 16*t), prod=('DW', blk, k)) for k in range(5)]
        un = []
        for q in range(NQ):
            for h in range(2): un += ['v_lshlrev_b32 v%d, 16, v%d' % (GN+4*q+2*h, RAW+2*q+h), 'v_and_b32 v%d, s%d, v%d' % (GN+4*q+2*h+1, self.S_MK, RAW+2*q+h)]
        norm = ['v_pk_fma_f32 %s, %s, %s, %s op_sel:[0,0,1] op_sel_hi:[1,0,1]' % (p2(GN+4*q+r), p2(GN+4*q+r), p2(self.RS+2*q), p2(self.RS+2*q)) for q in range(NQ) for r in (0, 2)]
        def cpk(q):
            r_ = ['v_pk_mul_f32 %s, %s, %s' % (p2(CV+r), p2(GN+4*q+r), p2(DW+8+r)) for r in (0, 2)]
            for k in (3, 4, 1, 0):
                if 0 <= q+k-2 <= 4: r_ += ['v_pk_fma_f32 %s, %s, %s, %s' % (p2(CV+r), p2(GN+4*(q+k-2)+r), p2(DW+4*k+r), p2(CV+r)) for r in (0, 2)]
            return r_
        def cdpp(q):
            r_ = []
            for k in (3, 4, 1, 0):
                q2 = q+k-2
                if q2 < 0: r_ += ['v_fmac_f32_dpp v%d, v%d, v%d row_shr:1 row_mask:0xf bank_mask:0xf bound_ctrl:0' % (CV+r, GN+4*(q2+5)+r, DW+4*k+r) for r in range(4)]
                if q2 > 4: r_ += ['v_fmac_f32_dpp v%d, v%d, v%d row_shl:1 row_mask:0xf bank_mask:0xf bound_ctrl:0' % (CV+r, GN+4*(q2-5)+r, DW+4*k+r) for r in range(4)]
            return r_
        def fin(q):
            d = D(q)
            r_ = ['v_cvt_pk_bf16_f32 v%d, v%d, v%d' % (d, d, d+1), 'v_cvt_pk_bf16_f32 v%d, v%d, v%d' % (d+1, d+2, d+3), 'ds_write_b64 v%d, %s offset:%d' % (self.GA+q, vr(d,2), 8*t)]
            if t: r_.append('v_add_u32 v%d, 1024, v%d' % (self.GA+q, self.GA+q))
            return r_
        m = self.mul
        o = rd + self.P1(D(0), TA, 8) + self.E1(TA, 8)
        un[0] = Op(un[0], need=[('G', blk, 4)])
        for i in range(5): o += [rw[i], un[i]]
        o += un[5:]
        o += self.P2(TA, 8) + norm + self.P1(D(2), TB, 8) + [Op(None, need=[('DW', blk, 4)])] + cpk(0)
        o += self.E2(TA, 8) + self.E1(TB, 8) + cdpp(0)
        o += m(D(0), CV) + self.P2(TB, 8) + m(D(0), TA) + cpk(1)
        o += self.E2(TB, 8) + fin(0) + cdpp(1)
        o += m(D(1), CV) + m(D(2), TB) + m(D(1), TA+4) + self.P1(D(4), TA, 4) + cpk(2) + m(D(3), TB+4) + m(D(2), CV) + cpk(3)
        o += self.E1(TA, 4) + fin(1) + fin(2) + cdpp(3)
        o += self.P2(TA, 4) + m(D(3), CV) + cpk(4)
        o += self.E2(TA, 4) + fin(3) + cdpp(4) + m(D(4), TA, False) + m(D(4), CV, False) + fin(4)
        if t: o.append('v_add_u32 v%d, 128, v%d' % (self.DA, self.DA))
        return o
    def xdma(self, tag):
        g = [(['s_add_u32 m0, s%d, %d' % (self.S_XD, q*1024), 's_add_u32 s%d, s%d, %d' % (self.S_T3, self.S_XP, q*16384)],
              Op('buffer_load_dwordx4 v%d, s[16:19], s%d offen lds' % (self.XV, self.S_T3), prod=('XD', tag))) for q in range(NQ)]
        return g, ['s_add_u32 s%d, s%d, 64' % (self.S_XP, self.S_XP), 's_add_u32 s%d, s%d, 5120' % (self.S_XD, self.S_XD)]
    def ep_z(self, t, tag=None):
        o = []; PK = self.U0; XF = self.U2; T = self.U1
        if t == 0:
            o += [Op('ds_read_b128 %s, v%d offset:%d' % (vr(XF+4*q,4), self.XR, q*1024), prod=('XF', tag, q), need=[('XD', tag)] if q == 0 else []) for q in range(NQ)]
        for qb in range(NQ):
            D = self.DD + 20*t + 4*qb; P = PK + 4*qb + 2*t
            for h in range(2):
                o += [Op('v_lshlrev_b32 v%d, 16, v%d' % (T+2*h, XF+4*qb+2*t+h), need=[('XF', tag, qb)] if (t == 0 and h == 0) else []),
                      'v_and_b32 v%d, s%d, v%d' % (T+2*h+1, self.S_MK, XF+4*qb+2*t+h)]
            for r in range(4): o.append('v_add_f32 v%d, v%d, v%d' % (D+r, D+r, T+r))
            o += ['v_cvt_pk_bf16_f32 v%d, v%d, v%d' % (P, D, D+1), 'v_cvt_pk_bf16_f32 v%d, v%d, v%d' % (P+1, D+2, D+3)]
            if t: o += ['s_add_u32 s%d, s%d, %d' % (self.S_T3, self.S_OUT, qb*16384),
                        Op('buffer_store_dwordx4 %s, v%d, s[%d:%d], s%d offen%s' % (vr(PK+4*qb,4), self.L16, S_WS, S_WS+3, self.S_T3, '' if self.cfg.get('xp_plainb') else ' sc1'), prod='BST')]
        if t: o.append('s_add_u32 s%d, s%d, 1024' % (self.S_OUT, self.S_OUT))
        return o
    def flag_store(self):
        T = self.RS+8
        return ['v_or_b32 v%d, s%d, v0' % (T, S_W), 'v_min_u32 v%d, 1, v%d' % (T, T), 'v_lshlrev_b32 v%d, 30, v%d' % (T, T), 'v_mov_b32 v%d, s7' % (T+1),
                'buffer_store_dword v%d, v%d, s[%d:%d], s%d offen sc1' % (T+1, T, S_WS, S_WS+3, self.S_FL)]
    def stage_addr(self):
        T = self.U1+8
        o = ['v_lshrrev_b32 v%d, 2, v0' % T, 'v_mul_u32_u24 v%d, 5, v%d' % (T, T), 's_add_u32 s%d, s%d, 4000' % (self.S_JMP, self.S_R0), 'v_add_u32 v%d, s%d, v%d' % (T, self.S_JMP, T),
             'v_lshrrev_b32 v%d, 4, v%d' % (T+1, self.XV), 's_movk_i32 s%d, 4000' % self.S_JMP, 'v_mov_b32 v%d, 7999' % (T+4)]
        for q in range(NQ):
            X = self.XA+q
            o += ['v_add_u32 v%d, %d, v%d' % (T+2, q, T), 'v_med3_i32 v%d, v%d, s%d, v%d' % (T+2, T+2, self.S_JMP, T+4),
                  'v_lshrrev_b32 v%d, 2, v%d' % (T+3, T+2), 'v_sub_u32 v%d, 0, v%d' % (T+3, T+3), 'v_xor_b32 v%d, v%d, v%d' % (T+3, T+3, T+1),
                  'v_and_b32 v%d, 3, v%d' % (T+3, T+3), 'v_and_b32 v%d, 15, v%d' % (X, T+2), 'v_lshl_add_u32 v%d, v%d, 2, v%d' % (T+3, X, T+3),
                  'v_lshrrev_b32 v%d, 4, v%d' % (X, T+2), 'v_lshl_add_u32 v%d, v%d, 10, v%d' % (X, X, T+3), 'v_lshlrev_b32 v%d, 4, v%d' % (X, X)]
        return o
    def stage_dma(self, tag):
        g = [(['s_add_u32 m0, s%d, %d' % (self.S_JMP, q*16384)], Op('buffer_load_dwordx4 v%d, s[%d:%d], s%d offen sc1 lds' % (self.XA+q, S_WS, S_WS+3, self.S_T0), prod=tag)) for q in range(NQ)]
        return g, ['s_add_u32 s%d, s%d, 1024' % (self.S_T0, self.S_T0), 's_add_u32 s%d, s%d, 1024' % (self.S_JMP, self.S_JMP)]
    def place(self, gm, gaps):
        g, post = gm; ex = []
        for (pre, o), gp in zip(g, gaps): ex += [(gp-1, pre), (gp, [o])]
        return ex + [(gaps[len(g)-1]+1, post)]
    def stats(self, tile):
        S1 = self.U1; S2 = self.U2; T = self.U0; M = self.S_M
        o = ['v_and_b32 v%d, 15, v0' % T, 'v_lshrrev_b32 v%d, 2, v%d' % (T+1, T), 'v_lshrrev_b32 v%d, 4, v0' % (T+2),
             'v_cmp_eq_u32 vcc, v%d, v%d' % (T+1, T+2), 'v_lshlrev_b32 v%d, 5, v%d' % (T+1, T), 'v_add_u32 v%d, %d, v%d' % (T+1, L_SX, T+1),
             's_lshl_b32 s%d, s%d, 3' % (self.S_T0, S_W), 'v_add_u32 v%d, s%d, v%d' % (T+2, self.S_T0, T+1), 'v_mov_b32 v%d, %d' % (T+3, L_DUM),
             'v_cndmask_b32 v%d, v%d, v%d, vcc' % (T+2, T+3, T+2)]
        for q in range(NQ):
            d = S1+4*q+1
            o += ['v_cndmask_b32 v%d, v%d, v%d, s[%d:%d]' % (d, S2+4*q, S2+4*q+1, M, M+1),
                  'v_cndmask_b32 v%d, v%d, v%d, s[%d:%d]' % (d, d, S2+4*q+2, M+2, M+3),
                  'v_cndmask_b32 v%d, v%d, v%d, s[%d:%d]' % (d, d, S2+4*q+3, M+4, M+5),
                  'ds_write_b64 v%d, %s offset:%d' % (T+2, vr(S1+4*q,2), q*512)]
        t = self.XA; P = self.XA+4
        if self.cfg.get('dmh', 0):
            o += ['s_lshl_b32 s%d, s%d, 13' % (self.S_JMP, S_W), 's_add_u32 s%d, s%d, 0x%x' % (self.S_JMP, self.S_JMP, WS_FLG + 128*FLG_X), 'v_lshl_add_u32 v%d, v0, 7, s%d' % (P, self.S_JMP)]
        else:
          DMV = self.cfg.get('dmv', 1)
          o += ['v_and_b32 v%d, 3, v0' % t] + (['v_lshlrev_b32 v%d, 7, v0' % P, 'v_add_u32 v%d, 0x%x, v%d' % (P, WS_FLG + 128*(FLG_X+200), P)] if DMV else
                ['v_min_u32 v%d, 2, v%d' % (P, t), 'v_lshlrev_b32 v%d, 7, v%d' % (P, P), 'v_add_u32 v%d, 0x%x, v%d' % (P, WS_FLG + 128*FLG_D, P)])
          o += [
              's_max_i32 s%d, s%d, 0' % (self.S_JMP, self.S_R0), 's_mul_i32 s%d, s%d, 52429' % (self.S_JMP, self.S_JMP), 's_lshr_b32 s%d, s%d, 22' % (self.S_JMP, self.S_JMP),
              's_lshl_b32 s%d, s%d, 1' % (self.S_JMP, self.S_JMP), 'v_and_b32 v%d, 4, v0' % (t+1), 'v_cmp_gt_u32 vcc, 48, v0' if DMV else 'v_cmp_eq_u32 vcc, 0, v%d' % (t+1),
              'v_add_u32 v%d, s%d, v%d' % (t, self.S_JMP, t), 'v_min_u32 v%d, 0x63, v%d' % (t, t),
              'v_lshlrev_b32 v%d, 8, v%d' % (t, t), 'v_add_u32 v%d, 0x%x, v%d' % (t, WS_FLG + 128*(FLG_X+1), t), 'v_cndmask_b32 v%d, v%d, v%d, vcc' % (P, t, P)]
        o.append(Op('s_barrier', need=['ALLL']))
        for q in range(NQ):
            o += [Op('ds_read_b128 %s, v%d offset:%d' % (vr(S1+8*q,4), T+1, q*512), prod=('SA', tile, q)),
                  Op('ds_read_b128 %s, v%d offset:%d' % (vr(S1+8*q+4,4), T+1, q*512+16), prod=('SB', tile, q))]
        o += self.adv_g(-4096)
        o += ['v_mul_u32_u24 v%d, 5, v%d' % (T, T), 'v_add_u32 v%d, s%d, v%d' % (T, self.S_R0, T), 'v_mov_b32 v%d, 0x%x' % (T+4, f2u(1/512.)),
              's_add_u32 s%d, s%d, 2' % (self.S_XP, self.S_R0), 's_add_u32 s%d, s%d, s%d' % (self.S_XP, self.S_XP, self.S_TB), 's_lshl_b32 s%d, s%d, 10' % (self.S_XP, self.S_XP),
              's_lshr_b32 s%d, s%d, 4' % (self.S_JMP, self.S_T1), 's_add_u32 s%d, s%d, s%d' % (self.S_XP, self.S_XP, self.S_JMP), 's_mov_b32 s%d, s%d' % (self.S_XD, self.S_XL)]
        for q in range(NQ):
            A = S1+8*q
            o += [Op('v_pk_add_f32 %s, %s, %s' % (p2(A), p2(A), p2(A+2)), need=[('SB', tile, q)]), 'v_pk_add_f32 %s, %s, %s' % (p2(A+4), p2(A+4), p2(A+6)),
                  'v_add_u32 v%d, %d, v%d' % (T+2, q, T), 'v_pk_add_f32 %s, %s, %s' % (p2(A), p2(A), p2(A+4)), 'v_cmp_gt_u32 vcc, 0xfa0, v%d' % (T+2),
                  'v_pk_mul_f32 %s, %s, %s op_sel_hi:[1,0]' % (p2(A), p2(A), p2(T+4)),
                  'v_fma_f32 v%d, -v%d, v%d, v%d' % (A+1, A, A, A+1), 'v_max_f32 v%d, 0, v%d' % (A+1, A+1), 'v_add_f32 v%d, 0x%x, v%d' % (A+1, f2u(1e-5), A+1),
                  'v_rsq_f32 v%d, v%d' % (A+1, A+1), 's_nop 0',
                  'v_cndmask_b32 v%d, 0, v%d, vcc' % (self.RS+2*q, A+1), 'v_mul_f32 v%d, -v%d, v%d' % (self.RS+2*q+1, A, self.RS+2*q)]
        return o
    def wdm_unit(self):
        LA = 98304; RG = 192; D = 92
        t = Asm(); srd(t, 64, 50, 51, 524288)
        t('s_sub_u32 s21, s3, 200'); t('s_and_b32 s22, s21, 15'); t('s_lshr_b32 s23, s21, 4')
        t('s_lshl_b32 s24, s22, 15'); t('s_lshl_b32 s25, s20, 8'); t('s_add_u32 s24, s24, s25'); t('s_add_u32 s25, s24, 4096')
        t('s_lshl_b32 s26, s20, 12'); t('s_add_u32 s26, s26, %d', LA)
        o = t.lines
        for tt in range(2):
            for e in range(4): o += ['s_add_u32 m0, s26, %d' % (tt*16384 + e*960), 's_nop 0', Op('buffer_load_dwordx4 v4, s[64:67], s%d offen offset:%d lds' % (24+tt, e*64), prod='UA')]
        o += ['s_mul_i32 s23, s23, 12', 's_mul_i32 s27, s20, 3', 's_add_u32 s23, s23, s27', 's_lshl_b32 s22, s22, 10', 's_add_u32 s22, s22, 0x%x' % WS_WDMF]
        for nb in range(3):
            o += ['s_add_u32 s27, s23, %d' % nb, 's_min_u32 s34, s27, 31', 's_lshl_b32 s34, s34, 14', 's_add_u32 s%d, s34, 0x%x' % (28+nb, WS_WMF + 0x80000),
                  's_add_u32 s34, s34, s22', 's_cmp_lt_u32 s27, 32', 's_cselect_b32 s%d, s34, 0x%x' % (31+nb, WS_SIZE)]
        o.append('s_barrier')
        def bl(e):
            l = [Op('buffer_load_dwordx4 %s, v1, s[8:11], s%d offen offset:%d sc1' % (ar(12*e+4*nb,4), 28+nb, (e%4)*1024), prod=('UB', e)) for nb in range(3)]
            if e % 4 == 3: l += ['s_add_u32 s%d, s%d, 4096' % (28+nb, 28+nb) for nb in range(3)]
            return l
        for e in range(8): o += bl(e)
        t = Asm(); h_frag_addr(t, 2, 3); t('v_add_u32 v2, %d, v2', LA); o += t.lines
        rd = lambda e: [Op('ds_read_b128 %s, v2 offset:%d' % (vr(RG+8*(e % 8)+4*tt,4), tt*16384 + e*1024), prod=('UF', e)) for tt in range(2)]
        o.append(Op('s_barrier', need=['UA']))
        for e in range(4): o += rd(e)
        for e in range(16):
            if e+8 < 16: o += bl(e+8)
            if e+4 < 16: o += rd(e+4)
            for nb in range(3):
                for tt in range(2):
                    d = vr(D+8*nb+4*tt, 4)
                    o.append(Op('%s %s, %s, %s, %s' % (MF, d, vr(RG+8*(e % 8)+4*tt,4), ar(12*e+4*nb,4), d if e else '0'), need=[('UB', e), ('UF', e)]))
        o.append('s_nop 7')
        for nb in range(3):
            b = D+8*nb
            o += ['v_cvt_pk_bf16_f32 v%d, v%d, v%d' % (b+x, b+2*x, b+2*x+1) for x in range(4)]
            o.append(Op('buffer_store_dwordx4 %s, v1, s[8:11], s%d offen sc1' % (vr(b,4), 31+nb), prod='XST'))
        return o
    def gen(self):
        a = self.a; cfg = self.cfg; T = self.U2; tr = self.tr0; S = self
        DMV = cfg.get('dmv', 1) and not cfg.get('dmh', 0)
        pre = S.wdm_unit() if (DMV and not cfg.get('xp_nounit')) else []
        pre += ['s_lshl_b32 s%d, s%d, 8' % (S.S_T0, S_W), 'v_lshl_add_u32 v%d, v0, 2, s%d' % (T, S.S_T0), 's_mov_b32 s%d, 4096' % S.S_JMP]
        for k in range(5): pre.append(Op('buffer_load_dword v%d, v%d, s[12:15], %s offen offset:%d' % (S.U0+k, T, '0' if k < 4 else 's%d' % S.S_JMP, (k%4)*1024), prod=('DWL', k)))
        if cfg.get('wpf', 0):
            pre += ['s_sub_u32 s21, s3, 200', 's_lshl_b32 s21, s21, 2', 's_add_u32 s21, s21, s20', 's_lshr_b32 s22, s21, 6',
                    's_cmp_eq_u32 s22, 1', 's_cselect_b32 s60, s44, s50', 's_cselect_b32 s61, s45, s51', 's_cmp_eq_u32 s22, 2', 's_cselect_b32 s60, s42, s60', 's_cselect_b32 s61, s43, s61',
                    's_and_b32 s61, s61, 0xffff', 's_cmp_eq_u32 s22, 3', 's_cselect_b32 s62, 0, 0x80000', 's_mov_b32 s63, 0x20000',
                    's_and_b32 s21, s21, 63', 's_lshl_b32 s21, s21, 13', 'v_lshlrev_b32 v%d, 7, v0' % S.XR, 'buffer_load_dword v%d, v%d, s[60:63], s21 offen' % (S.XR, S.XR)]
        pre += ['s_sub_u32 s%d, s3, 200' % S.S_C, 's_mul_i32 s%d, s%d, 76' % (S.S_R0, S.S_C), 's_sub_u32 s%d, s%d, 2' % (S.S_R0, S.S_R0),
                's_mov_b32 s%d, 0' % S.S_TB, 's_mov_b32 s%d, 0' % S.S_TILE, 's_lshl_b32 s%d, s%d, 12' % (S.S_T1, S_W),
                's_mul_i32 s%d, s%d, 15360' % (S.S_XL, S_W), 's_add_u32 s%d, s%d, %d' % (S.S_XL, S.S_XL, L_XS), 's_lshl_b32 s%d, s3, 7' % S.S_FL, 's_add_u32 s%d, s%d, 0x%x' % (S.S_FL, S.S_FL, WS_FLG + 128*FLG_X if (cfg.get('dmh', 0) or DMV) else WS_SIZE),
                's_lshl_b32 s%d, s%d, 17' % (S.S_PU, S_W), 's_add_u32 s%d, s%d, 0x%x' % (S.S_PZ, S.S_PU, WS_WDMF),
                's_add_u32 s%d, s%d, 0x%x' % (S.S_PU, S.S_PU, WS_WUPF), 's_add_u32 s%d, s%d, 0x80000' % (S.S_PG, S.S_PU), 's_mov_b32 s%d, s6' % S.S_AP,
                's_mov_b32 s%d, 0xffff0000' % S.S_MK, 's_mov_b32 s%d, 0x%x' % (S.S_K, f2u(-C2)), 's_mov_b32 s%d, 0x%x' % (S.S_K+1, f2u(-C1)),
                's_mov_b32 s%d, 1.0' % S.S_ONE, 's_mov_b32 s%d, 1.0' % (S.S_ONE+1)]
        tmp = Asm(); h_frag_addr(tmp, S.HA, T+1); pre += tmp.lines
        pre += ['v_add_u32 v%d, 0x10000, v%d' % (S.HA+1, S.HA)]
        tr.run('pre', pre)
        su = ['v_add_u32 v%d, 0x10000, v%d' % (S.PH, S.L16),
              'v_lshrrev_b32 v%d, 4, v0' % (T+2), 'v_sub_u32 v%d, 0, v%d' % (T+1, T+2), 'v_xor_b32 v%d, v%d, v0' % (T+1, T+1), 'v_and_b32 v%d, 3, v%d' % (T+1, T+1),
              'v_lshlrev_b32 v%d, 4, v%d' % (T+1, T+1), 'v_lshrrev_b32 v%d, 2, v0' % S.XV, 'v_lshl_add_u32 v%d, v%d, 10, v%d' % (S.XV, S.XV, T+1),
              'v_and_b32 v%d, 15, v0' % (T+1), 'v_mul_u32_u24 v%d, 5, v%d' % (T+1, T+1),
              'v_lshl_add_u32 v%d, v%d, 8, s%d' % (T+3, T+2, S.S_T1), 's_lshr_b32 s%d, s%d, 3' % (S.S_JMP, S.S_T1), 's_add_u32 s%d, s%d, %d' % (S.S_JMP, S.S_JMP, L_DW),
              'v_lshl_add_u32 v%d, v%d, 5, s%d' % (S.DA, T+2, S.S_JMP)]
        for q in range(NQ):
            su += ['v_add_u32 v%d, %d, v%d' % (T+2, q-2, T+1)]
            if q < 2: su += ['v_min_u32 v%d, %d, v%d' % (T+2, 78+q, T+2)]
            su += ['v_and_b32 v%d, 15, v%d' % (T+4, T+2), 'v_lshl_add_u32 v%d, v%d, 4, v%d' % (T+4, T+4, T+3),
                   'v_lshrrev_b32 v%d, 4, v%d' % (T+2, T+2), 'v_lshl_add_u32 v%d, v%d, 14, v%d' % (S.GA+q, T+2, T+4)]
        su += ['v_and_b32 v%d, 3, v0' % (T+1)] + ['v_cmp_eq_u32 s[%d:%d], %d, v%d' % (S.S_M+2*i, S.S_M+2*i+1, i+1, T+1) for i in range(3)]
        dwo = ['v_lshlrev_b32 v%d, 1, v%d' % (T, T), 'v_add_u32 v%d, %d, v%d' % (T, L_DW, T)]
        for k in range(5):
            dwo += [Op('v_lshlrev_b32 v%d, 16, v%d' % (S.U1+2*k, S.U0+k), need=[('DWL', k)]), 'v_and_b32 v%d, s%d, v%d' % (S.U1+2*k+1, S.S_MK, S.U0+k),
                    'ds_write_b64 v%d, %s offset:%d' % (T, vr(S.U1+2*k,2), k*2048)]
        SAL = cfg.get('sal', 1); L_SA = 94720
        if SAL: su += S.stage_addr() + ['v_lshlrev_b32 v%d, 2, v0' % (T+1), 'v_add_u32 v%d, %d, v%d' % (T+1, L_SA, T+1)] + ['ds_write_b32 v%d, v%d offset:%d' % (T+1, S.XA+q, q*256) for q in range(NQ)]
        tr.run('pre2', su + dwo)
        sel = lambda tgt: ['s_add_u32 s%d, s%d, 4096' % (S.S_AP, S.S_AP), 's_cmp_eq_u32 s%d, 3' % S.S_CNT, 's_cselect_b32 s%d, s%d, s%d' % (S.S_AP, tgt, S.S_AP)]
        inc = 's_add_u32 s%d, s%d, 1' % (S.S_CNT, S.S_CNT)
        blk = 0
        for tile in range(2):
            init = ['v_mov_b32 v%d, 0x3f803f80' % (S.XA+r) for r in range(4)] + ['v_mov_b32 v%d, 0' % (S.U1+r) for r in range(40)]
            tr.run('g0', [Op('s_barrier', need=[('XS', tile), 'ALLL']), 's_mov_b32 s%d, 0' % S.S_CNT] +
                   S.block(blk, 0, stream=init, bread=(S.HA, S.HA+1), tail=[Op('s_barrier', need=['BST'] if tile else ['XST'])] + S.flag_store())); blk += 1
            for it in range(4):
                tr.run('g1', S.block(blk, 1, stream=S.ep_g(0), jump=sel(S.S_PU))); blk += 1
                tr.run('g2', S.block(blk, 0, stream=S.ep_g(1), tail=[inc, 's_cmp_lt_u32 s%d, 4' % S.S_CNT])); blk += 1
            tr.run('stats', S.stats(tile) + ['s_mov_b32 s%d, 0' % S.S_CNT])
            for it in range(4):
                tr.run('u1', S.block(blk, 1, stream=S.ep_u(0, blk), jump=sel(S.S_PZ), g0=1, tail=['s_cmp_eq_u32 s%d, 3' % S.S_CNT])); blk += 1
                if it < 3:
                    ex = [(3, [Op('buffer_load_dword v%d, v%d, s[%d:%d], 0 offen sc1' % (S.XA+1, S.XA+4, S_WS, S_WS+3), prod=('DF', blk))])]
                    ex += S.place(S.xdma((tile, it)), [13, 23, 33, 43, 53])
                    tl = [Op('v_cmp_ne_u32 vcc, s7, v%d' % (S.XA+1), need=[('DF', blk)]), inc, 's_cmp_eq_u32 s%d, 3' % S.S_CNT, 's_cselect_b64 vcc, vcc, 0', 's_cbranch_vccnz L_c_spin']
                    tr.run('u2', S.block(blk, 0, stream=S.ep_u(1, blk), g0=1, extra=ex, tail=tl)); blk += 1
            tr.run('u3', S.ep_u(1, ('e', tile)))
            z0s = S.adv_g(-4096) + ['v_add_u32 v%d, -512, v%d' % (S.DA, S.DA), 'v_add_u32 v%d, s%d, v%d' % (S.XR, S.S_XL, S.HA)]
            zt = []
            if SAL:
                z0s += ['v_lshlrev_b32 v%d, 2, v0' % S.U1, 'v_add_u32 v%d, %d, v%d' % (S.U1, L_SA, S.U1)]
                zt = [(71+q+(q > 3), [Op('ds_read_b32 v%d, v%d offset:%d' % (S.XA+q, S.U1, q*256), prod=('SAD', tile))]) for q in range(NQ)]
            else: z0s += S.stage_addr()
            tr.run('z0', [Op('s_barrier', need=['ALLL']), 's_mov_b32 s%d, 0' % S.S_CNT, 's_mul_i32 s%d, s%d, 53' % (S.S_FL, S.S_TILE), 's_add_u32 s%d, s%d, s%d' % (S.S_FL, S.S_FL, S.S_C),
                          's_mul_i32 s%d, s%d, 81920' % (S.S_OUT, S.S_FL), 's_add_u32 s%d, s%d, s%d' % (S.S_OUT, S.S_OUT, S.S_T1), 's_add_u32 s%d, s%d, 0x%x' % (S.S_OUT, S.S_OUT, WS_SIZE if cfg.get('xp_nobs') else WS_BASE),
                          's_lshl_b32 s%d, s%d, 7' % (S.S_FL, S.S_FL), 's_add_u32 s%d, s%d, 0x%x' % (S.S_FL, S.S_FL, WS_FLG + 128*FLG_C), 's_mov_b32 s%d, s%d' % (S.S_XD, S.S_XL),
                          's_cmp_eq_u32 s%d, %d' % (S.S_TILE, 5 if cfg.get('xp_nostg') else 0), 's_cselect_b32 s%d, s%d, 0x%x' % (S.S_T0, S.S_T1, WS_SIZE)]
                   + S.block(blk, 0, stream=z0s, bread=(S.L16, S.PH), extra=zt, tail=['s_mov_b32 s%d, s%d' % (S.S_JMP, S.S_T1), 's_barrier'])); blk += 1
            sg = [13, 23, 33, 43, 53]
            xg, xpost = S.xdma((tile, 3)); xg[0][1].need = [('XF', (tile, 0), 4)]
            sd0 = S.stage_dma(('XS', tile+1))
            if SAL: sd0[0][0][1].need = [('SAD', tile)]
            tr.run('z1a', S.block(blk, 1, stream=S.ep_z(0, (tile, 0)), extra=S.place(sd0, sg) + S.place((xg, []), [58-1, 63, 68-1, 73, 78-1]))); blk += 1
            for it in range(3):
                tr.run('z2', S.block(blk, 0, stream=S.ep_z(1), tail=[inc, 's_cmp_eq_u32 s%d, 3' % S.S_CNT, 's_movk_i32 s%d, 5120' % S.S_T3, 's_cselect_b32 s%d, -10240, s%d' % (S.S_T3, S.S_T3),
                                                                    'v_add_u32 v%d, s%d, v%d' % (S.XR, S.S_T3, S.XR)])); blk += 1
                tr.run('z1', S.block(blk, 1, stream=S.ep_z(0, (tile, it+1)), extra=S.place(S.stage_dma(('XS', tile+1)), sg), jump=sel(S.S_PG), tail=['s_cmp_lt_u32 s%d, 3' % S.S_CNT])); blk += 1
            tr.run('z3', ['s_nop 1'] + S.ep_z(1) + ['s_mov_b32 s%d, 4000' % S.S_TB, 's_add_u32 s%d, s%d, 1' % (S.S_TILE, S.S_TILE), 's_cmp_lt_u32 s%d, 2' % S.S_TILE])
        def E(k, st=None):
            if st and cfg.get('stamp') and cfg.get('sthead') != 2:
                a('s_cmp_eq_u32 s%d, 0', S.S_TILE); a('s_cbranch_scc0 L_c_s%da', st); stamp_mid(a, st); a('s_branch L_c_s%db', st)
                a.label('L_c_s%da' % st); stamp_mid(a, st+5); a.label('L_c_s%db' % st)
            tr.emit(a, k)
        def lpf(cond):
            a(cond); a('s_cbranch_scc1 L_c_nopf')
            a('s_lshr_b32 s60, s2, 3'); a('s_and_b32 s60, s60, 3'); a('s_lshl_b32 s60, s60, 2'); a('s_add_u32 s60, s60, s20')
            a('s_lshl_b32 s61, s60, 15'); a('s_add_u32 s61, s61, 0x%x', WS_WVOF); a('v_lshlrev_b32 v%d, 7, v0', S.XA)
            for i in range(4): a('buffer_load_dword v%d, v%d, s[8:11], s61 offen', S.XA+3, S.XA); a('s_add_u32 s61, s61, 8192')
            a('s_getpc_b64 s[64:65]'); a.label('L_pc1'); a('s_sub_u32 s64, s64, L_pc1-L_qfin1'); a('s_subb_u32 s65, s65, 0'); a('s_and_b32 s65, s65, 0xffff')
            a('s_mov_b32 s66, L_prec0-L_qfin1'); a('s_mov_b32 s67, 0x20000'); a('s_lshl_b32 s60, s60, 11'); a('v_lshlrev_b32 v%d, 5, v0', S.XA+2)
            a('buffer_load_dword v%d, v%d, s[64:67], s60 offen', S.XA+3, S.XA+2)
            a('s_waitcnt vmcnt(0)') if cfg.get('lpfw', 0) else None
            a.label('L_c_nopf')
        E('pre'); E('pre2')
        a.label('L_c_tile'); E('g0', 1)
        a.label('L_c_g'); E('g1'); E('g2'); a('s_cbranch_scc1 L_c_g')
        E('stats', 2)
        a.label('L_c_u')
        if cfg.get('lpf', 1) == 2: a('s_lshl_b32 s60, s%d, 2', S.S_TILE); a('s_add_u32 s60, s60, s%d', S.S_CNT); lpf('s_cmp_lg_u32 s60, %d' % (4 + cfg.get('lpi', 2)))
        E('u1'); a('s_cbranch_scc1 L_c_u3'); E('u2'); a('s_branch L_c_u')
        a.label('L_c_u3')
        if cfg.get('lpf', 1) == 1: lpf('s_cmp_eq_u32 s%d, 0' % S.S_TILE)
        E('u3', 3); E('z0', 4); E('z1a', 5)
        a.label('L_c_z'); E('z2'); E('z1'); a('s_cbranch_scc1 L_c_z')
        E('z3')
        a('s_cbranch_scc1 L_c_tile')
        a('s_waitcnt vmcnt(0)'); a('s_barrier')
        for x in S.flag_store(): a(x)
        a('s_branch L_k2_fin')
        a.label('L_c_spin'); a('s_mov_b32 s%d, 0', S.S_JMP)
        a.label('L_c_spin_l')
        a('buffer_load_dword v%d, v%d, s[%d:%d], 0 offen sc1', S.XA+1, S.XA+4, S_WS, S_WS+3); a('s_waitcnt vmcnt(0)')
        a('v_cmp_ne_u32 vcc, s7, v%d', S.XA+1); a('s_cbranch_vccz L_c_u')
        a('s_add_u32 s%d, s%d, 1', S.S_JMP, S.S_JMP); a('s_cmp_lt_u32 s%d, 0x40000', S.S_JMP); a('s_cbranch_scc1 L_c_spin_l')
        a('s_branch L_c_u')
```

```python
from asmlib import *
from layout import *
from gen_k0 import srd, h_frag_addr, QSCALE
from gen_ln import *
MF='v_mfma_f32_16x16x32_bf16'
XS = [192, 208, 224, 240, 112]
def entry(a, cfg):
    a('s_load_dwordx16 s[36:51], s[0:1], 0'); a('s_load_dwordx8 s[52:59], s[0:1], 64')
    a('v_lshrrev_b32 v1, 6, v0'); a('v_and_b32 v0, 63, v0'); a('v_readfirstlane_b32 s20, v1'); a('v_lshlrev_b32 v1, 4, v0')
    if cfg.get('ipf', 1):
        a('s_getpc_b64 s[72:73]'); a.label('L_pc0'); a('s_and_b32 s73, s73, 0xffff'); a('s_mov_b32 s74, L_code_end-L_pc0'); a('s_mov_b32 s75, 0x20000')
        a('s_lshr_b32 s21, s2, 3'); a('s_lshl_b32 s21, s21, 2'); a('s_add_u32 s21, s21, s20'); a('s_lshl_b32 s21, s21, 10')
        a('buffer_load_dword v7, v1, s[72:75], s21 offen')
    MAP = cfg.get('map', 2)
    if MAP == 3:
        a('s_lshr_b32 s21, s2, 3'); a('s_and_b32 s22, s2, 1')
        if cfg.get('swp', 0): a('s_xor_b32 s22, s22, 1')
        a('s_bfe_u32 s24, s2, 0x10001'); a('s_mul_i32 s24, s24, 25'); a('s_add_u32 s24, s24, s21'); a('s_lshl_b32 s24, s24, 1'); a('s_or_b32 s24, s24, s22')
        a('s_lshl_b32 s24, s24, 1'); a('s_bfe_u32 s25, s2, 0x10002'); a('s_or_b32 s24, s24, s25')
        a('s_and_b32 s25, s2, 7'); a('s_mul_i32 s25, s25, 7'); a('s_add_u32 s25, s25, s21'); a('s_add_u32 s25, s25, 175')
        a('s_cmp_lt_u32 s21, 25'); a('s_cselect_b32 s3, s24, s25')
    else:
        a('s_lshr_b32 s21, s2, 3'); a('s_and_b32 s22, s2, 1')
        if cfg.get('swp', 0): a('s_xor_b32 s22, s22, 1')
        a('s_lshl_b32 s23, s22, 1'); a('s_sub_u32 s23, 26, s23')
        a('s_bfe_u32 s24, s2, 0x10001'); a('s_mul_i32 s24, s24, 25'); a('s_mul_i32 s25, s22, 13'); a('s_add_u32 s24, s24, s25')
        a('s_lshl_b32 s24, s24, 1'); a('s_add_u32 s24, s24, s21'); a('s_lshl_b32 s24, s24, 1'); a('s_bfe_u32 s25, s2, 0x10002'); a('s_or_b32 s24, s24, s25')
        a('s_bfe_u32 s25, s2, 0x20001'); a('s_mul_i32 s25, s25, 14'); a('s_mul_i32 s26, s22, 6'); a('s_add_u32 s25, s25, s26')
        a('s_add_u32 s25, s25, s21'); a('s_sub_u32 s25, s25, s23'); a('s_add_u32 s25, s25, 200')
        a('s_cmp_lt_u32 s21, s23'); a('s_cselect_b32 s3, s24, s25')
    for x, y in cfg.get('spx', [(253, 213), (254, 227), (255, 241)]):
        a('s_cmp_eq_u32 s3, %d', x); a('s_cselect_b32 s24, %d, s3', y); a('s_cmp_eq_u32 s3, %d', y); a('s_cselect_b32 s3, %d, s24', x)
    a('v_lshrrev_b32 v2, 4, v0'); a('v_sub_u32 v4, 0, v2'); a('v_xor_b32 v4, v4, v0'); a('v_and_b32 v4, 3, v4'); a('v_lshlrev_b32 v4, 4, v4')
    a('v_lshl_add_u32 v4, v2, 13, v4'); a('v_bfe_u32 v5, v0, 2, 2'); a('v_lshl_add_u32 v4, v5, 10, v4')
    a('s_and_b32 s23, s2, 3'); a('s_lshl_b32 s23, s23, 2'); a('s_bfe_u32 s21, s2, 0x20003'); a('s_add_u32 s23, s23, s21')
    a('s_bfe_u32 s22, s2, 0x10002'); a('s_lshl_b32 s22, s22, 3'); a('s_lshr_b32 s21, s2, 5'); a('s_add_u32 s22, s22, s21')
    a('s_lshl_b32 s21, s20, 8'); a('s_lshl_b32 s24, s23, 15'); a('s_add_u32 s24, s24, s21'); a('s_add_u32 s25, s24, 4096')
    a('s_lshl_b32 s26, s22, 15'); a('s_add_u32 s26, s26, s21'); a('s_add_u32 s27, s26, 4096')
    a('s_sub_u32 s21, s3, 200'); a('s_cmp_lt_u32 s21, %d', 56 if cfg.get('dmh', 0) else 53)
    a('s_cselect_b32 s33, 0x18000, 0'); a('s_mov_b32 s31, 147456'); a('s_cselect_b32 s31, 81920, s31')
    a('s_lshl_b32 s32, s20, 14'); a('s_add_u32 s32, s32, s33'); a('s_lshl_b32 s21, s20, 11'); a('s_add_u32 s31, s31, s21')
    a('s_waitcnt lgkmcnt(0)')
    srd(a, 60, 38, 39, 524288); srd(a, 64, 40, 41, 524288)

def head_a(cfg):
    stamp = cfg.get('stamp') and cfg.get('sthead') == 2
    o = []
    if stamp: o.append(stamp_op(1))
    order = [(2*ep+h, rb) for ep in range(2) for rb in range(4) for h in range(2)] if cfg.get('hord', 1) else [(e, rb) for e in range(4) for rb in range(4)]
    if 1:
        for e, rb in order:
            o += ['s_add_u32 m0, s32, %d' % ((e*4+rb)*1024 - e*64), 's_nop 0',
                  Op('buffer_load_dwordx4 v4, s[%d:%d], s%d offen offset:%d lds' % (60+4*(rb >> 1), 63+4*(rb >> 1), 24+rb, e*64), prod=('D', e))]
    t = Asm()
    t('s_add_u32 s4, s58, 0x%x', WS_FLG + 128*FLG_E); t('s_addc_u32 s5, s59, 0'); t('s_load_dword s7, s[4:5], 0')
    srd(t, 8, 58, 59, WS_SIZE); srd(t, 72, 36, 37, 8192000)
    t('s_lshl_b32 s30, s22, 4'); t('s_add_u32 s30, s30, s23'); t('s_lshr_b32 s24, s30, 6')
    t('s_bfe_u32 s25, s30, 0x10004'); t('s_lshl_b32 s25, s25, 3'); t('s_bfe_u32 s26, s30, 0x10003'); t('s_add_u32 s25, s25, s26')
    t('s_lshl_b32 s26, s24, 1'); t('s_add_u32 s25, s25, s26'); t('s_and_b32 s26, s30, 7')
    t('s_bfe_u32 s27, s30, 0x20003'); t('s_lshl_b32 s24, s24, 2'); t('s_add_u32 s27, s27, s24')
    t('s_bitcmp0_b32 s30, 5')
    t('s_cselect_b32 s34, s25, s26'); t('s_cselect_b32 s35, s26, s27')
    t('s_cselect_b32 s68, s46, s52'); t('s_cselect_b32 s69, s47, s53'); t('s_cselect_b32 s28, 11, 10')
    SP2 = cfg.get('sp2', 0)
    t('s_mov_b32 s29, 0x%x', WS_SIZE if SP2 else WS_WMF); t('s_cselect_b32 s29, 0x%x, s29', WS_WUPF)
    if SP2: t('s_cselect_b32 s70, 0x100000, 0')
    else: t('s_mov_b32 s70, 0x%x', 0x80000 if cfg.get('dmh', 0) else 0x100000); t('s_cselect_b32 s70, 0x100000, s70')
    if cfg.get('xp_not'): t('s_mov_b32 s70, 0'); t('s_mov_b32 s29, 0x%x', WS_SIZE)
    t('s_and_b32 s69, s69, 0xffff'); t('s_mov_b32 s71, 0x20000')
    t('s_lshl_b32 s34, s34, 1'); t('s_and_b32 s21, s20, 1'); t('s_add_u32 s34, s34, s21')
    t('s_lshl_b32 s35, s35, 1'); t('s_lshr_b32 s21, s20, 1'); t('s_add_u32 s35, s35, s21')
    t('v_lshrrev_b32 v5, 2, v0'); t('v_lshlrev_b32 v5, s28, v5'); t('v_and_b32 v6, 3, v0'); t('v_lshl_add_u32 v5, v6, 4, v5')
    t('s_add_u32 s21, s28, 5'); t('s_lshl_b32 s24, s35, s21'); t('s_lshl_b32 s21, s34, 6'); t('s_add_u32 s24, s24, s21')
    t('s_lshl_b32 s21, 16, s28'); t('s_add_u32 s25, s24, s21')
    o += t.lines
    TL = cfg.get('tl', 0)
    tdm = []
    for b in range(2): tdm += ['s_add_u32 m0, s31, %d' % (b*1024), 's_nop 0', Op('buffer_load_dwordx4 v5, s[68:71], s%d offen lds' % ((18 if TL else 24)+b), prod='T')]
    if TL: o += ['s_mov_b32 s18, s24', 's_mov_b32 s19, s25']
    else: o += tdm
    t = Asm()
    t('s_lshr_b32 s24, s3, 2'); t('s_mul_i32 s24, s24, 80'); t('s_and_b32 s25, s3, 1'); t('s_mul_i32 s25, s25, 4000'); t('s_add_u32 s24, s24, s25')
    t('s_sub_u32 s25, s3, 200'); t('s_mul_i32 s25, s25, 76'); t('s_sub_u32 s25, s25, 2'); t('s_cmp_lt_u32 s3, 253'); t('s_cselect_b32 s25, s25, 0x4000')
    t('s_bfe_u32 s14, s3, 0x10001'); t('s_lshl_b32 s12, s24, 10')
    t('s_cmp_lt_u32 s3, 200')
    if cfg.get('xp_nocx'): t('s_mov_b32 s25, 0x4000')
    t('s_cselect_b32 s24, s24, s25'); t('s_cselect_b32 s26, 1, 5'); t('s_mov_b32 s27, 1024'); t('s_cselect_b32 s27, 0x4000, s27'); t('s_cselect_b32 s14, s14, 0')
    t('s_cselect_b32 s12, s12, 0x%x', WS_SIZE); t('s_cselect_b32 s13, 0x10000, 0')
    t('s_mov_b32 s6, 0x%x', WS_WUPF + 0x80000); t('s_cselect_b32 s6, 0x%x, s6', WS_MF)
    o += t.lines
    la = ln_lane_addr(12, 13, 20, 1); la = [x.replace('v_mul_u32_u24 v12, 1, v12', 'v_mul_u32_u24 v12, s26, v12') for x in la]
    o += la + ['s_lshl_b32 s24, s24, 10', 'v_add_u32 v12, s24, v12', 's_lshl_b32 s16, s14, 9', 's_xor_b32 s17, s16, 512']
    xl = []
    for q in range(5):
        if q: o.append('v_add_u32 v%d, s27, v%d' % (12+q, 11+q))
        xl.append([Op('buffer_load_dwordx4 %s, v%d, s[72:75], s%d offen offset:%d' % (vr(XS[q]+4*k,4), 12+q, 17 if k & 2 else 16, (k & 1)*256), prod=(('X', q), k)) for k in range(4)])
    X0 = cfg.get('x0', 0)
    for l in xl[:X0]: o += l
    if stamp: o.append(stamp_op(2))
    t = Asm(); h_frag_addr(t, 2, 3); t('v_add_u32 v2, s32, v2')
    t('v_and_b32 v6, 15, v0'); t('v_lshlrev_b32 v6, 4, v6'); t('v_lshrrev_b32 v3, 4, v0'); t('v_lshl_add_u32 v6, v3, 9, v6'); t('v_add_u32 v6, s31, v6')
    o += t.lines
    F = 128; D0 = 76; FS = cfg.get('fs', 7)
    for e in range(4):
        for rb in range(4): o.append(Op('ds_read_b128 %s, v2 offset:%d' % (vr(F+16*e+4*rb,4), (e*4+rb)*1024), need=[('D', e)], prod=('F', e)))
    X1 = cfg.get('x1', 2)
    for e in range(4):
        if X0+e < X1: o += xl[X0+e]
        for t2 in range(2):
            for t_ in range(2):
                D = vr(D0+8*t2+4*t_, 4)
                o.append(Op('%s %s, %s, %s, %s' % (MF, D, vr(F+16*e+4*t_,4), vr(F+16*e+8+4*t2,4), D if e else '0'), need=[('F', e)]))
    if TL == 1: o += tdm
    TA = cfg.get('ta', 0)
    trd = [Op('ds_read_b64_tr_b16 %s, v6 offset:%d' % (vr(92+4*t2+2*jj,2), jj*256 + t2*8), need=['T'], prod=('TT', t2)) for t2 in range(0 if TL else 2) for jj in range(2)]
    if not TA: o += trd
    o += ['v_add_u32 v22, s32, v1', 's_and_b32 s21, s20, 1', 's_lshl_b32 s24, s21, 11', 's_add_u32 s24, s24, s33', 'v_add_u32 v23, s24, v1',
          's_lshl_b32 s22, s22, 1', 's_add_u32 s22, s22, s21', 's_lshl_b32 s22, s22, 14', 's_lshl_b32 s23, s23, 10', 's_add_u32 s22, s22, s23', 's_add_u32 s22, s22, 0x%x' % WS_MF,
          's_cmp_lt_u32 s20, 2', 's_cselect_b32 s22, s22, 0x%x' % WS_SIZE]
    for c in range(4): o.append('ds_write_b128 v22, %s offset:%d' % (vr(D0+4*c,4), c*1024))
    o += ['s_lshr_b32 s21, s35, 4', 's_lshl_b32 s21, s21, 19', 's_add_u32 s29, s29, s21', 's_and_b32 s21, s35, 15', 's_lshl_b32 s21, s21, 10',
          's_add_u32 s29, s29, s21', 's_lshl_b32 s21, s34, 15', 's_add_u32 s24, s29, s21']
    if cfg.get('dmh', 0): o += ['s_cmp_lt_u32 s35, 16', 's_cselect_b32 s24, s24, 0x%x' % WS_SIZE]
    o += ['s_add_u32 s25, s24, 16384']
    o.append(Op('s_barrier', need=['ALLL']))
    G = 128
    for w in range(4):
        for c in range(2): o.append(Op('ds_read_b128 %s, v23 offset:%d' % (vr(G+8*w+4*c,4), w*16384 + c*1024), prod=('R', w)))
    if TL: o += ['s_mov_b32 s34, s24', 's_mov_b32 s35, s25']
    tst = [Op('buffer_store_dwordx4 %s, v1, s[8:11], s%d offen sc1' % (vr(92+4*t2,4), 24+t2), need=[('TT', t2)], prod='P0') for t2 in range(0 if TL else 2)]
    if not TA: o += tst
    o += ['v_mov_b32 v60, 0x%x' % f2u(QSCALE), 's_add_u32 s7, s7, 0x9e3779b9', 'v_min_u32 v20, 1, v0', 'v_lshlrev_b32 v20, 30, v20', 'v_mov_b32 v21, s7',
          's_lshl_b32 s30, s30, %d' % FS, 's_add_u32 s30, s30, 0x%x' % (WS_FLG + 128*FLG_0), 's_cmp_eq_u32 s20, 0', 's_cselect_b32 s30, s30, 0x%x' % WS_SIZE,
          's_lshl_b32 s21, s20, %d' % (6+FS), 's_add_u32 s21, s21, 0x%x' % (WS_FLG + 128*FLG_0), 'v_lshl_add_u32 v18, v0, %d, s21' % FS]
    if TL: o += ['s_cmp_lt_u32 s3, 200', 's_cselect_b32 s21, 0, 0x%x' % (128*(FLG_1-FLG_0)), 'v_add_u32 v18, s21, v18', 's_add_u32 s29, s30, 0x%x' % (128*(FLG_1-FLG_0))]
    for w in range(1, 4):
        for r in range(4): o.append(Op('v_pk_add_f32 %s, %s, %s' % (vr(G+2*r,2), vr(G+2*r,2), vr(G+8*w+2*r,2)), need=[('R', w)]))
    for r in range(4): o.append('v_pk_mul_f32 %s, %s, v[60:61] op_sel_hi:[1,0]' % (vr(G+2*r,2), vr(G+2*r,2)))
    for r in range(4): o.append('v_cvt_pk_bf16_f32 v%d, v%d, v%d' % (G+r, G+2*r, G+2*r+1))
    o.append(Op('buffer_store_dwordx4 %s, v1, s[8:11], s22 offen sc1' % vr(G,4), prod='P0'))
    if TA: o += trd + tst
    if TL == 2: o += tdm
    if stamp: o.append(stamp_op(3))
    return o, xl[max(X0, X1):]
FLAG0 = 'buffer_store_dword v21, v20, s[8:11], s30 offen sc1'
FLAG1 = 'buffer_store_dword v21, v20, s[8:11], s29 offen sc1'
def t_reads(): return [Op('ds_read_b64_tr_b16 %s, v6 offset:%d' % (vr(28+4*t2+2*jj,2), jj*256 + t2*8), need=['T'], prod=('TT', t2)) for t2 in range(2) for jj in range(2)]
def t_stores(): return [Op('buffer_store_dwordx4 %s, v1, s[8:11], s%d offen sc1' % (vr(28+4*t2,4), 34+t2), need=[('TT', t2)], prod='P1') for t2 in range(2)]
POLL0 = 'buffer_load_dword v19, v18, s[8:11], 0 offen sc1'
def spin0(a, name, back):
    a.label(name); a('s_mov_b32 s21, 0'); a.label(name + '_l')
    a(POLL0); a('s_waitcnt vmcnt(0)'); a('v_cmp_ne_u32 vcc, s7, v19'); a('s_cbranch_vccz %s', back)
    a('s_add_u32 s21, s21, 1'); a('s_cmp_lt_u32 s21, 0x40000'); a('s_cbranch_scc1 %s_l', name); a('s_branch %s', back)
def head_b(cfg, xlate, atag):
    stamp = cfg.get('stamp') and cfg.get('sthead') == 2
    o = ln_h_addr(17, 3, 20) + ['s_lshl_b32 s21, s14, 13', 'v_add_u32 v17, s21, v17', 'v_add_u32 v8, s13, v17', 'v_xor_b32 v9, 0x2000, v8',
                                'v_add_u32 v10, 0x10000, v8', 'v_add_u32 v11, 0x10000, v9', 's_mov_b32 s15, 0xffff0000',
                                's_lshl_b32 s21, s20, 17', 's_add_u32 s6, s6, s21', Op('v_mov_b32 v66, 0x3f803f80')]
    if cfg.get('q6', 1): o += ['s_mul_i32 s21, s14, 98304', 's_add_u32 s6, s6, s21']
    def wr(q, k, reg):
        off = q*16384 + (k & 1)*4096
        r = [Op('ds_write_b128 v%d, %s offset:%d' % (8 + (k >> 1) + 2*(off//65536), vr(reg,4), off % 65536), prod=('XS', 0))]
        if k < 2: r += ['s_add_u32 s24, s12, %d' % off, Op('buffer_store_dwordx4 %s, v17, s[8:11], s24 offen sc1' % vr(reg,4), prod='XST')]
        return r
    al = []
    for f in range(14):
        al.append(Op('buffer_load_dwordx4 %s, v1, s[8:11], s6 offen offset:%d sc1' % (vr(128+4*f,4), (f%4)*1024), prod=atag(f)))
        if f % 4 == 3: al.append('s_add_u32 s6, s6, 4096')
    PF = cfg.get('hpf', 0); PP = cfg.get('hpp', 3); PC = cfg.get('hpc', 3)
    xlate = list(xlate); XM = cfg.get('xm', 3); xflag = []
    if XM == 1:
        for l in xlate: o += l
        xlate = []
    elif XM == 2: xflag = [x for l in xlate for x in l]; xlate = []
    elif XM == 3: xlate = [xlate[0] + xlate[1]] + xlate[2:]
    elif XM == 4: o += xlate[0]; xflag = [x for l in xlate[1:] for x in l]; xlate = []
    elif XM == 5: o += xlate[0]; xlate = xlate[1:]
    DMH = cfg.get('dmh', 0); dml = [[] for _ in range(5)]
    if DMH:
        t = Asm(); srd(t, 60, 50, 51, 524288); srd(t, 64, 52, 53, 1048576)
        t('s_and_b32 s23, s3, 15'); t('s_lshr_b32 s22, s3, 4'); t('s_lshl_b32 s21, s20, 8'); t('s_lshl_b32 s26, s23, 15'); t('s_add_u32 s26, s26, s21'); t('s_add_u32 s27, s26, 4096')
        t('s_lshl_b32 s28, s20, 17'); t('s_lshl_b32 s21, s22, 6'); t('s_add_u32 s28, s28, s21'); t('s_add_u32 s28, s28, 0x80000')
        t('v_lshrrev_b32 v5, 2, v0'); t('v_lshlrev_b32 v5, 10, v5'); t('v_and_b32 v3, 3, v0'); t('v_lshl_add_u32 v5, v3, 4, v5')
        t('s_sub_u32 s21, s32, s31'); t('v_add_u32 v6, s21, v6')
        t('s_and_b32 s21, s20, 1'); t('s_lshl_b32 s22, s22, 1'); t('s_add_u32 s22, s22, s21'); t('s_lshl_b32 s22, s22, 14'); t('s_lshl_b32 s23, s23, 10'); t('s_add_u32 s22, s22, s23')
        t('s_add_u32 s22, s22, 0x%x', WS_WDMF); t('s_cmp_lt_u32 s20, 2'); t('s_cselect_b32 s22, s22, 0x%x', WS_SIZE)
        o += t.lines
        dl = []
        for rb in range(2):
            for e in range(4): dl.append(Op('buffer_x\ns_add_u32 m0, s32, %d\ns_nop 0\nbuffer_load_dwordx4 v4, s[60:63], s%d offen offset:%d lds' % ((e*4+rb)*1024 - e*64, 26+rb, e*64), prod='D2'))
        for e in range(4):
            for b in range(2): dl.append(Op('buffer_x\ns_add_u32 m0, s32, %d\ns_add_u32 s29, s28, %d\nbuffer_load_dwordx4 v5, s[64:67], s29 offen lds' % ((e*4+2+b)*1024, (2*e+b)*16384), prod='D2'))
        cnt = cfg.get('dmc', [0, 6, 10, 0, 0])
        for q in range(5): dml[q] = dl[:cnt[q]]; dl = dl[cnt[q]:]
        assert not dl and all(c == 0 for c in cnt[:PF+1])
    for q in range(5):
        p = ln_pass1(XS[q], 76, 60, ('X', q), 15, 66, (lambda k, reg, q=q: wr(q, k, reg)))
        ex = oplist(xlate.pop(0)) if xlate else []
        ex += dml[q]
        if q == cfg.get('upq', 2) and cfg.get('upf', 0) and cfg.get('dmv', 1) and not DMH:
            o += ['s_mov_b32 s60, s50', 's_and_b32 s61, s51, 0xffff', 's_sub_u32 s21, s3, 200', 's_cmp_lt_u32 s21, 48', 's_cselect_b32 s62, 0x80000, 0', 's_mov_b32 s63, 0x20000',
                  's_and_b32 s21, s21, 15', 's_lshl_b32 s21, s21, 2', 's_add_u32 s21, s21, s20', 's_lshl_b32 s22, s21, 13', 'v_lshlrev_b32 v24, 7, v0']
            ex.append(Op('buffer_load_dword v24, v24, s[60:63], s22 offen'))
        if q == PC+1: ex += oplist(al); al = []
        nd = sum(1 for x in ex if kind_of(x) == 'D'); step = max(1, len(p)//(nd+1))
        for i, x in enumerate(p):
            if cfg.get('tl', 0):
                if q == cfg.get('tq', 1) and i == 0: o += t_reads()
                if q == cfg.get('tq', 1) and i == 20: o += t_stores()
                if (q, i) == cfg.get('tf', (2, 60)): o += [Op('s_barrier', need=['P1']), FLAG1]
            if q == PP and i == cfg.get('hpi', 0): o.append(Op(POLL0, prod='F0'))
            if q == PF and i == cfg.get('hfi', 80):
                o += [Op('s_barrier', need=['P0']), FLAG0] + xflag
                if stamp: o.append(stamp_op(4))
            o.append(x)
            if ex and i % step == step-1:
                o.append(ex.pop(0))
                while ex and kind_of(ex[0]) != 'D': o.append(ex.pop(0))
        o += ex
        if q == PF and cfg.get('hfi', 80) >= len(p):
            o += [Op('s_barrier', need=['P0']), FLAG0]
            if stamp: o.append(stamp_op(4))
        if q == PC:
            o += [Op('v_cmp_ne_u32 vcc, s7, v19', need=['F0']), 's_cbranch_vccnz L_spin0', 'L_ok0:']
            if stamp: o.append(stamp_op(5))
    o += al
    if DMH:
        D0 = 76; G = 28
        for e in range(4):
            for rb in range(2): o.append(Op('ds_read_b128 %s, v2 offset:%d' % (ar(16*e+4*rb,4), (e*4+rb)*1024), need=['D2'], prod=('F2', e)))
            for t2 in range(2):
                for jj in range(2): o.append(Op('ds_read_b64_tr_b16 %s, v6 offset:%d' % (ar(16*e+8+4*t2+2*jj,2), (e*4+2)*1024 + jj*256 + t2*8), prod=('F2', e)))
            for ee in ([e-1] if 0 < e < 3 else ([2, 3] if e == 3 else [])):
                for t2 in range(2):
                    for t_ in range(2):
                        D = vr(D0+8*t2+4*t_, 4)
                        o.append(Op('%s %s, %s, %s, %s' % (MF, D, ar(16*ee+4*t_,4), ar(16*ee+8+4*t2,4), D if ee else '0'), need=[('F2', ee)]))
        o.append('s_nop 4')
        for c in range(4): o.append('ds_write_b128 v22, %s offset:%d' % (vr(D0+4*c,4), c*1024))
        o.append(Op('s_barrier', need=['ALLL']))
        for w in range(4):
            for c in range(2): o.append(Op('ds_read_b128 %s, v23 offset:%d' % (vr(G+8*w+4*c,4), w*16384 + c*1024), prod=('R2', w)))
        for w in range(1, 4):
            for r in range(4): o.append(Op('v_pk_add_f32 %s, %s, %s' % (vr(G+2*r,2), vr(G+2*r,2), vr(G+8*w+2*r,2)), need=[('R2', w)]))
        for r in range(4): o.append('v_cvt_pk_bf16_f32 v%d, v%d, v%d' % (24+r, G+2*r, G+2*r+1))
        o.append(Op('buffer_store_dwordx4 v[24:27], v1, s[8:11], s22 offen sc1', prod='XST'))
    if stamp: o.append(stamp_op(6))
    return o
```

```python
from asmlib import *
from layout import *
from gen_k0 import srd, h_frag_addr
from gen_ln import *

S_WS=8
S_W=20; S_J=21; S_B=23; S_SP=24; S_QT=25; S_N=26; S_T=27
S_SRC=28; S_DST=29; S_END=30; S_SRCV=31
S_T0=34; S_T1=35; S_T2=36; S_T3=37; S_RET=38; S_RB=39; S_THR=41; S_NV=42
S_WP=48; S_FO=52; S_PP=53; S_PS=54; S_BS=55; S_OP=56; S_SPIN=57; S_LP=58; S_MK=59; S_SAME=43; S_PP2=45; S_WB=46; S_NR=47
L_X2=151552; L_PAR=81920
L_ST=65536; L_P=131072; L_X=147456; L_FLAG=159744
MF='v_mfma_f32_16x16x32_bf16'

class Attn:
    def __init__(self, a, cfg):
        self.a = a; self.cfg = cfg
        self.NQ = NQ = cfg['NQ']; self.NS = cfg['NS']
        self.vb = 256 - max(0, 64*NQ - 256)
        self.n = 16*NQ; self.SN = cfg.get('snake', 1)
        self.EA = cfg.get('ea', 0) if (cfg.get('hyb', 1) and not cfg.get('two', 0)) else 0
        self.WL = cfg.get('wl', 1) and cfg.get('hyb', 1) and cfg.get('one', 1)
        self.TWP = 0 if self.WL else cfg.get('twp', 10 if (cfg.get('hyb', 1) and cfg.get('two', 0)) else 6)
        self.V_L16=1; self.V_A=2; self.V_PA=3; self.V_XA=4; self.V_F=5; self.V_FA=6; self.V_T=7
        r = 8
        self.V_E=r; r+=8
        self.V_PK=r; r+=4
        self.V_NEGM=r; r+=4*NQ
        self.V_S=r; r+=8*NQ
        self.RQ = cfg['ringq']; self.V_RQ=r; r+=4*self.RQ
        self.V_L=r; r+=NQ
        self.V_TS=r; r+=NQ
        self.V_PF=r; r+=2
        self.W2 = cfg.get('w2', 1); self.PL = self.W2 and cfg.get('pl', 1)
        self.V_EE=r; r+=4*NQ
        self.V_P2=r; r+=2*NQ
        assert r <= self.vb, r
        self.V_A2 = 8; self.V_PX = 10; self.NFV = 28
        r = 8*(8*NQ - self.NFV)
        self.RP = cfg['ringp']; self.A_RP = r; r += 4*self.RP
        self.A_PP = r; r += 8*NQ
        assert r <= 256
    def O(self, f, off=0, n=1):
        return vr(32+8*f+off, n) if f < self.NFV else ar(8*(f-self.NFV)+off, n)
    def R(self, i, n=1):
        return ar(i, n) if i < 256 else vr(self.vb + i - 256, n)
    def dma(self, d0, cnt):
        g = []
        for x in range(cnt):
            d = d0 + x; pre = []
            if d % 4 == 0 or x == 0:
                pre = ['s_add_u32 m0, s%d, %d' % (S_DST, (d//4)*4096), 's_add_u32 s%d, s%d, %d' % (S_T0, S_SRC if self.WL else S_SRCV, (d//4)*4096)]
            g.append((pre, 'buffer_load_dwordx4 v%d, s[%d:%d], s%d offen offset:%d%s lds' % (self.V_L16, S_WS, S_WS+3, S_T0, (d%4)*1024, self.cfg.get('kpol', ' sc1'))))
        return g
    def dma_adv(self):
        return [['s_add_u32 s%d, s%d, 32768' % (S_SRC, S_SRC), 's_add_u32 s%d, s%d, 32768' % (S_DST, S_DST)],
                ['s_and_b32 s%d, s%d, 0x1ffff' % (S_DST, S_DST)],
                ['s_cmp_eq_u32 s%d, s%d' % (S_SRC, S_END), 's_cselect_b32 s%d, s%d, s%d' % (S_SRC, S_WB, S_SRC)] if self.WL else
                ['s_cmp_lt_u32 s%d, s%d' % (S_SRC, S_END), 's_cselect_b32 s%d, s%d, 0x%x' % (S_SRCV, S_SRC, WS_SIZE)]]
    def place_dma(self, G, d0, cnt, g0, g1, pf=False, pfp=None):
        if cnt == 0: return []
        prev = None; lst = self.dma(d0, cnt)
        for i, (pre, ins) in enumerate(lst):
            lo = g0 + (i*(g1-g0))//cnt
            if pre:
                t1 = G.asap(Task('S', pre[0], [(prev,1)] if prev else [], lo=max(g0, lo-2) if prev is None else g0))
                t2 = G.asap(Task('S', pre[1], [(t1,0)]))
                prev = t2
            prev = G.asap(Task('D', ins, [(prev,1)], lo=lo))
            if i == pfp: prev = G.asap(Task('D', 'buffer_load_dword v23, v22, s[%d:%d], s%d offen' % (S_WS, S_WS+3, S_SRCV), [(prev,1)]))
        if pf: prev = G.asap(Task('D', 'buffer_load_dword v%d, v%d, s[%d:%d], s%d offen' % (self.V_PF+1, self.V_PF, S_WS, S_WS+3, S_SRCV), [(prev,1)]))
        self.last_dma = prev.gap
        adv = self.dma_adv()
        for x in adv[0] + adv[1]: prev = G.asap(Task('S', x, [(prev, 1 if prev.kind == 'D' else 0)]))
        return [(G.asap(Task('SS', adv[2], [(prev,1)])), 1)]
    def kread(self, kk, par):
        return Op('ds_read_b128 %s, v%d offset:%d' % (vr(self.V_RQ+4*(kk % self.RQ),4), self.V_A, par*32768 + kk*1024), prod=('K', par, kk))
    def qk_mfma(self, g, par, first=False):
        NQ = self.NQ
        G = g//(2*NQ); w = g % (2*NQ); qb = w//2; kk = 2*G + ((w & 1) ^ (qb & self.SN))
        D = vr(self.V_S + 4*NQ*par + 4*qb, 4)
        C = D if (G or w & 1) else ('0' if first else vr(self.V_NEGM+4*qb,4))
        need = [('K', par, kk)] if w < 2 else []
        return Op('%s %s, %s, %s, %s' % (MF, D, vr(self.V_RQ+4*(kk % self.RQ),4), self.R(4*(kk*NQ+qb),4), C), need=need)
    def softmax_groups(self, sp):
        NQ = self.NQ; E = self.V_E; out = []
        if self.W2:
            for qb in range(NQ):
                S = self.V_S + 4*NQ*sp + 4*qb; E = self.V_EE + 4*qb; PK = self.V_P2 + 2*qb
                out += [['v_exp_f32 v%d, v%d' % (E+r, S+r)] for r in range(4)]
                out.append(['v_cvt_pk_bf16_f32 v%d, v%d, v%d' % (PK+h, E+2*h, E+2*h+1) for h in range(2)])
                out.append([self.pwrite(sp, qb, h) for h in range(2)])
            return out
        for qb in range(NQ):
            S = self.V_S + 4*NQ*sp + 4*qb; PK = self.V_PK + 2*(qb & 1); TS = self.V_TS+qb
            for r in range(4): out.append(['v_exp_f32 v%d, v%d' % (E+r, S+r)])
            out.append(['v_add_f32 v%d, v%d, v%d' % (TS, E, E+1), 'v_cvt_pk_bf16_f32 v%d, v%d, v%d' % (PK, E, E+1)])
            out.append(['v_add_f32 v%d, v%d, v%d' % (self.V_T, E+2, E+3), 'v_cvt_pk_bf16_f32 v%d, v%d, v%d' % (PK+1, E+2, E+3)])
            out.append(['v_add_f32 v%d, v%d, v%d' % (TS, TS, self.V_T),
                        Op('ds_write_b64 v%d, %s offset:%d' % (self.V_PA, vr(PK,2), (sp*NQ+qb)*1024), prod=('PW', sp, qb))])
        return out
    def pwrite(self, sp, qb, h):
        return Op('ds_write_b32 v%d, v%d offset:%d' % (self.V_PA, self.V_P2+2*qb+h, (sp*self.NQ+qb)*1024 + (256 if self.PL else 4)*h), prod=('PW' if h else 'PW0', sp, qb))
    def ladds(self, qb):
        M = self.V_L+qb
        if self.W2: return ['v_add_f32 v%d, v%d, v%d' % (M, M, self.V_EE+4*qb+r) for r in range(4)]
        return ['v_add_f32 v%d, v%d, v%d' % (M, M, self.V_TS+qb)]
    def check_groups(self, tag):
        NQ = self.NQ; TS = self.V_TS; T = self.V_T
        if self.W2:
            P = self.V_P2
            m = ['v_or3_b32 v%d, v%d, v%d, v%d' % (T, P, P+1, P+2)] + ['v_or3_b32 v%d, v%d, v%d, v%d' % (T, T, P+i, P+i+1) for i in (3, 5, 7)]
            m += ['v_bitop3_b32 v%d, v%d, v%d, s%d bitop3:0xa8' % (T, T, P+9, S_THR), 'v_cmp_ne_u32 vcc, 0, v%d' % T]
            return [m[i:i+2] for i in range(0, 6, 2)] + [['s_cbranch_vccnz L_setflag%s' % tag, 'L_flagset%s:' % tag]]
        m = ['v_max3_f32 v%d, v%d, v%d, v%d' % (T, TS, TS+1, TS+2)]
        i = 3
        while i < NQ:
            if i+1 < NQ: m.append('v_max3_f32 v%d, v%d, v%d, v%d' % (T, T, TS+i, TS+i+1)); i += 2
            else: m.append('v_max_f32 v%d, v%d, v%d' % (T, T, TS+i)); i += 1
        m.append('v_cmp_lt_f32 vcc, s%d, v%d' % (S_THR, T))
        out = [m[i:i+2] for i in range(0, len(m), 2)]
        out.append(['s_cbranch_vccnz L_setflag%s' % tag, 'L_flagset%s:' % tag])
        return out
    def flag_read(self, par): return Op('ds_read_b32 v%d, v%d' % (self.V_F, self.V_FA), prod=('F', par))
    def softmax_tasks(self, sp):
        NQ = self.NQ; cfg = self.cfg; tasks = []; hist = []
        for qb in range(NQ):
            E = self.V_E + 4*(qb & 1)
            S = self.V_S + 4*NQ*sp + 4*qb; PK = self.V_PK + 2*(qb & 1); TS = self.V_TS+qb
            old = hist[qb-2] if qb >= 2 else None
            e = []
            for r in range(4):
                dep = [(e[-1],1)] if e else ([(hist[-1]['e'],1)] if hist else [])
                if old: dep += [(old['a01' if r < 2 else 'af'],1), (old['c01' if r < 2 else 'c23'],1)]
                e.append(Task('E', 'v_exp_f32 v%d, v%d' % (E+r, S+r), dep))
            a01 = Task('V', 'v_add_f32 v%d, v%d, v%d' % (TS, E, E+1), [(e[1],1)])
            c01 = Task('V', 'v_cvt_pk_bf16_f32 v%d, v%d, v%d' % (PK, E, E+1), [(e[1],1)] + ([(old['w'],1)] if old else []))
            a2 = Task('V', 'v_add_f32 v%d, v%d, v%d' % (TS, TS, E+2), [(e[2],1),(a01,0)])
            c23 = Task('V', 'v_cvt_pk_bf16_f32 v%d, v%d, v%d' % (PK+1, E+2, E+3), [(e[3],1)] + ([(old['w'],1)] if old else []))
            af = Task('V', 'v_add_f32 v%d, v%d, v%d' % (TS, TS, E+3), [(e[3],1),(a2,0)])
            off = (sp*NQ+qb)*1024
            if cfg.get('w32', 1):
                w0 = Task('W', Op('ds_write_b32 v%d, v%d offset:%d' % (self.V_PA, PK, off), prod=('PW0', sp, qb)), [(c01,1)] + ([(hist[-1]['w'],1)] if hist else []))
                w = Task('W', Op('ds_write_b32 v%d, v%d offset:%d' % (self.V_PA, PK+1, off+4), prod=('PW', sp, qb)), [(c23,1),(w0,1)])
                ws = [w0, w]
            else:
                w = Task('W', Op(('ds_write_b32 v%d, v%d offset:%d' % (self.V_PA, PK + (qb & 1), off + 4*(qb & 1))) if cfg.get('xp_w1') else 'ds_write_b64 v%d, %s offset:%d' % (self.V_PA, vr(PK,2), off), prod=('PW', sp, qb)), [(c01,1),(c23,1)] + ([(hist[-1]['w'],1)] if hist else []))
                ws = [w]
            hist.append(dict(e=e[3], a01=a01, c01=c01, c23=c23, af=af, w=w))
            tasks.append((e, [a01, c01, a2, c23, af], ws))
        return tasks, hist
    def qk_body(self, par, first=False):
        NQ = self.NQ; n = self.n; cfg = self.cfg
        G = Gaps(n)
        LA = min(self.RQ//2 - 1, cfg['laq'])
        for gi in range(8):
            G2 = gi + LA; p2 = par; pos = 2*NQ*gi
            if G2 >= 8: G2 -= 8; p2 = par ^ 1
            if G2 == 0 and par == 1: G.put(Task('V', 'v_xor_b32 v%d, 0x10000, v%d' % (self.V_A, self.V_A)), pos-1)
            G.put(Task('R', self.kread(2*G2, p2)), pos); G.put(Task('R', self.kread(2*G2+1, p2)), pos+cfg.get('kd',1))
            g1 = (gi+1) % 8
            if not (first and gi == 7):
                G.put(Task('S', Op(None, need=[('K', par if gi < 7 else par^1, 2*g1+1)])), pos+2*NQ-1)
        if not first:
            if self.W2:
                sp = par ^ 1; ee = []; cv = []; ww = []
                for i in range(4*NQ): ee.append(Task('E', 'v_exp_f32 v%d, v%d' % (self.V_EE+i, self.V_S+4*NQ*sp+i), [(ee[-1],1)] if ee else []))
                for i in range(2*NQ):
                    cv.append(Task('V', 'v_cvt_pk_bf16_f32 v%d, v%d, v%d' % (self.V_P2+i, self.V_EE+2*i, self.V_EE+2*i+1), [(ee[2*i+1],1)]))
                    ww.append(Task('W', self.pwrite(sp, i//2, i & 1), [(cv[i],1)] + ([(ww[-1],1)] if ww else [])))
                ck = self.check_groups(str(par)); flat = [x for it in ck[:-1] for x in it]; cks = []
                for i, x in enumerate(flat): cks.append(Task('V', x, [(cv[j],0) for j in range(min(2*NQ, 3+2*i))] + ([(cks[-1],0)] if cks else [])))
                br = Task('B', ck[-1], [(cks[-1], 2)])
                plan = cfg.get('w2p', '..EEEEEEEEccEWEWECEEccEWEWEWEEccEEWWWCWOooOW')
                q = {'E': list(ee), 'c': list(cv), 'W': list(ww), 'o': list(cks)}
                for g, ch in enumerate(plan):
                    for k in {'.': '', 'C': 'cc', 'O': 'oo'}.get(ch, ch):
                        t = q[k].pop(0)
                        assert all(d.gap is not None and d.gap + dist <= g for d, dist in t.deps), (g, t.ops)
                        G.put(t, g)
                assert not any(q.values()), {k: len(v) for k, v in q.items()}
                G.asap(br); hist = [dict(w=ww[-1])]
            else:
                tk, hist = self.softmax_tasks(par ^ 1)
                order = []
                for q in range(NQ):
                    order += tk[q][0][:2]
                    if q: order += tk[q-1][1][2:] + tk[q-1][2][-1:]
                    order += tk[q][0][2:] + tk[q][1][:2] + tk[q][2][:-1]
                order += tk[NQ-1][1][2:] + tk[NQ-1][2][-1:]
                ck = self.check_groups(str(par))
                flat = [x for it in ck[:-1] for x in it]
                prev = None; cks = []
                for i, x in enumerate(flat):
                    dep = [(hist[q]['af'],0) for q in range(min(NQ-1, 2+2*i)+1)] + ([(prev,0)] if prev else [])
                    prev = Task('V', x, dep); cks.append(prev)
                br = Task('B', ck[-1][1:] if cfg.get('xp_nb') else ck[-1], [(prev, 2)])
                G.listsched(order[:-1] + cks + order[-1:] + [br])
            bar = G.asap(Task('X', [Op(None, need=[('PW', par^1, NQ-1)], extra=('vmcnt(1)' if (cfg.get('kpf', 0) and not cfg.get('kpp', 1)) else 'vmcnt(0)') if cfg['dq'] else ''), 's_barrier'], [(br,1),(hist[-1]['w'], cfg['bq'])]))
            assert bar.gap < 2*NQ*(8-LA-(cfg['dv']+1)//2), (bar.gap, LA)
            fr = G.asap(Task('R', self.flag_read(par), [(bar,1)]))
            fw = G.asap(Task('SV', [Op(None, need=[('F', par)]), 'v_cmp_eq_u32 vcc, s%d, v%d' % (S_T, self.V_F)], [(fr, cfg['fq'])]))
            b2 = G.asap(Task('B', ['s_cbranch_vccnz L_qrec%d' % par, 'L_qback%d:' % par][1 if cfg.get('xp_nb') else 0:], [(fw,2)]))
            if not self.W2:
                for q in range(NQ): G.asap(Task('V', 'v_add_f32 v%d, v%d, v%d' % (self.V_L+q, self.V_L+q, self.V_TS+q), [(b2,1)]))
            if cfg.get('wpl', 1) and (par or not self.WL): G.asap(Task('D', 'buffer_load_dword v%d, v%d, s[%d:%d], 0 offen sc1' % (self.V_PF+1, self.V_PF, S_WS, S_WS+3), [(b2, cfg.get('wpd', 14))]))
            dd = self.place_dma(G, 0, cfg['dq'], bar.gap+1, n-cfg['dqe'], cfg.get('kpf', 0) and not cfg.get('kpp', 1))
            inc = G.asap(Task('SS', ['s_add_u32 s%d, s%d, 1' % (S_T, S_T), ('s_cmp_eq_u32 s%d, s%d' if par else 's_cmp_lg_u32 s%d, s%d') % (S_T, S_N)], [(b2,1)]+dd, lo=n-3))
            if self.W2:
                ad = [self.ladds(q) for q in range(NQ)]; prev = b2
                for r in range(4):
                    for q in range(NQ): prev = G.asap(Task('V', ad[q][r], [(prev, 1 if prev is b2 else 0)]))
            if cfg.get('show'): print('QK', par, G.show())
        ops = []
        for g in range(n):
            ops.append(self.qk_mfma(g, par, first)); ops += G.ops(g)
        return ops
    def rowmax_exchange(self, sp):
        a = self.a; NQ = self.NQ; T = self.V_T
        for qb in range(NQ):
            S = self.V_S + 4*NQ*sp + 4*qb; M = self.V_TS+qb
            a('v_max3_f32 v%d, v%d, v%d, v%d', M, S, S+1, S+2); a('v_max_f32 v%d, v%d, v%d', M, M, S+3)
            for ins in ['v_permlane16_swap_b32', 'v_permlane32_swap_b32']:
                a('v_mov_b32 v%d, v%d', T, M); a('s_nop 1'); a('%s v%d, v%d', ins, T, M); a('v_max_f32 v%d, v%d, v%d', M, M, T)
            if self.W2: a('v_add_f32 v%d, 0x%x, v%d', M, f2u(float(self.cfg.get('thr', 40))), M)
            a('ds_write_b32 v%d, v%d offset:%d', self.V_XA, M, qb*512)
    def read_x(self, dst):
        a = self.a
        a('v_and_b32 v%d, 0xfffffffb, v%d', self.V_T, self.V_XA)
        for qb in range(self.NQ): a('ds_read_b64 %s, v%d offset:%d', vr(dst+2*qb,2), self.V_T, qb*512)
        a('s_waitcnt lgkmcnt(0)')
    def emit_flat(self, groups):
        for it in groups:
            for o in oplist(it): self.a(o.text)
            if it and not isinstance(it[0], Op) and it[0].startswith('v_exp'): pass
    def qk_path(self):
        a = self.a; NQ = self.NQ; cfg = self.cfg; T = self.V_T
        h_frag_addr(a, self.V_A, T)
        a('s_lshl_b32 s%d, s%d, 14', S_T2, S_J); a('v_add_u32 v%d, s%d, v%d', self.V_A, S_T2, self.V_A)
        QA = self.V_E
        a('v_add_u32 v%d, %d, v%d', QA, L_ST, self.V_L16); a('v_add_u32 v%d, %d, v%d', QA+1, L_ST+65536, self.V_L16)
        LA = min(self.RQ//2 - 1, cfg['laq'])
        def qread(g):
            G = g//(2*NQ); w = g % (2*NQ); qb = w//2; kk = 2*G + ((w & 1) ^ (qb & self.SN)); off = qb*16384 + kk*1024
            return Op('ds_read_b128 %s, v%d offset:%d' % (self.R(4*(kk*NQ+qb),4), QA + off//65536, off % 65536), prod=('Q', g))
        PRE = 10
        ops = [self.kread(kk, 0) for kk in range(2*LA)] + [qread(g) for g in range(PRE)]
        ops += ['s_lshl_b32 s%d, s%d, %d' % (S_T2, S_J, 9 if self.PL else 3), 's_add_u32 s%d, s%d, %d' % (S_T2, S_T2, L_P), 'v_lshl_add_u32 v%d, v0, %d, s%d' % (self.V_PA, 2 if self.PL else 4, S_T2)]
        ops += ['v_mov_b32 v%d, 0' % (self.V_L+q) for q in range(NQ)]
        ops += ['s_and_b32 s%d, s%d, 7' % (S_T2, S_QT), 's_lshl_b32 s%d, s%d, 11' % (S_T2, S_T2), 's_add_u32 s%d, s%d, %d' % (S_T2, S_T2, 32768*cfg.get('kpf', 0)), 'v_lshl_add_u32 v%d, v0, 5, s%d' % (self.V_PF, S_T2)]
        if cfg.get('wpl', 1):
            assert cfg.get('kpp', 1)
            ops += ['v_lshrrev_b32 v%d, 4, v0' % self.V_PF, 'v_min_u32 v%d, 2, v%d' % (self.V_PF, self.V_PF), 'v_lshlrev_b32 v%d, 7, v%d' % (self.V_PF, self.V_PF), 'v_add_u32 v%d, 0x%x, v%d' % (self.V_PF, WS_FLG + 128*FLG_W, self.V_PF)]
        g = 0; late = []
        for o in self.qk_body(0, first=True):
            if self.T1L and o.prod and o.prod[0] == 'K' and o.prod[1] == 1: late.append(o)
            elif o.text and o.text.startswith(MF):
                if g % 2 == 0: o.need = o.need + [('Q', g+1)]
                ops.append(o)
                if g + PRE < self.n: ops.append(qread(g+PRE))
                g += 1
            else: ops.append(o)
        resolve(a, oplist(ops), [])
        if cfg.get('stamp') and cfg.get('sthead') == 1: stamp_mid(a, 8)
        M = self.V_TS; X = self.V_S + 4*NQ
        a('v_and_b32 v%d, 0xfffffffb, v%d', T, self.V_XA)
        for qb in range(NQ):
            S = self.V_S + 4*qb
            a('v_max3_f32 v%d, v%d, v%d, v%d', M+qb, S, S+1, S+2); a('v_max_f32 v%d, v%d, v%d', M+qb, M+qb, S+3); a('v_mov_b32 v%d, v%d', X+qb, M+qb)
        for qb in range(NQ): a('v_permlane16_swap_b32 v%d, v%d', X+qb, M+qb)
        for qb in range(NQ): a('v_max_f32 v%d, v%d, v%d', M+qb, M+qb, X+qb); a('v_mov_b32 v%d, v%d', X+qb, M+qb)
        for qb in range(NQ): a('v_permlane32_swap_b32 v%d, v%d', X+qb, M+qb)
        for qb in range(NQ): a('v_max_f32 v%d, v%d, v%d', M+qb, M+qb, X+qb)
        for qb in range(NQ if self.W2 else 0): a('v_add_f32 v%d, 0x%x, v%d', M+qb, f2u(float(cfg.get('thr', 40))), M+qb)
        for qb in range(NQ): a('ds_write_b32 v%d, v%d offset:%d', self.V_XA, M+qb, qb*512)
        a('s_waitcnt lgkmcnt(0)'); a('s_barrier')
        for qb in range(NQ): a('ds_read_b64 %s, v%d offset:%d', vr(X+2*qb,2), T, qb*512)
        for o in late: a(o.text)
        for qb in range(NQ):
            N_ = self.V_NEGM+4*qb; S = self.V_S+4*qb
            a('s_waitcnt lgkmcnt(%d)', NQ-1-qb+len(late))
            a('v_min_f32 v%d, -v%d, -v%d', N_, X+2*qb, X+2*qb+1); a('v_mov_b32 v%d, v%d', N_+1, N_)
            a('v_pk_mov_b32 %s, %s, %s', vr(N_+2,2), vr(N_,2), vr(N_,2))
            for r in (0, 2): a('v_pk_add_f32 %s, %s, %s', vr(S+r,2), vr(S+r,2), vr(N_,2))
        a('s_waitcnt lgkmcnt(0)')
        if cfg.get('stamp'): stamp_mid(a, 9)
        a('s_mov_b32 s%d, 1', S_T)
        if self.WL: a('s_mov_b32 s%d, s%d', S_NR, S_N); a('s_mov_b32 s%d, %d', S_N, cfg.get('wlt', 57))
        b0 = self.qk_body(0); b1 = self.qk_body(1)
        a('.p2align 6') if cfg.get('align',1) else None
        for i in range(cfg.get('qsh', 0)): a('s_nop 0')
        a.label('L_qloop')
        resolve(a, b1, b0)
        a('s_cbranch_scc1 L_qfin0')
        resolve(a, b0, b1)
        a('s_cbranch_scc1 L_qloop')
        for par in (1, 0):
            a.label('L_qfin%d' % par)
            if self.WL and par == 1: a('s_cmp_lg_u32 s%d, s%d', S_T, S_NR); a('s_cbranch_scc1 L_qmid')
            a('s_nop 3')
            for it in self.softmax_groups(par ^ 1) + self.check_groups('f%d' % par):
                for o in oplist(it): a(o.text)
            a('s_waitcnt vmcnt(0) lgkmcnt(0)'); a('s_barrier')
            a(self.flag_read(par).text); a('s_waitcnt lgkmcnt(0)')
            a('v_cmp_eq_u32 vcc, s%d, v%d', S_T, self.V_F)
            a('s_cbranch_vccnz L_qrecf%d', par); a.label('L_qbackf%d' % par)
            if par == 1: a('s_branch L_qend')
        a.label('L_qend')
        if cfg.get('fuse3', 1): self.qk_tail()
        else: self.qk_tail_old()
        for tag in ['0', '1', 'f0', 'f1']:
            a.label('L_setflag%s' % tag)
            a('v_mov_b32 v%d, s%d', T, S_T); a('ds_write_b32 v%d, v%d', self.V_FA, T); a('s_waitcnt lgkmcnt(0)')
            a('s_branch L_flagset%s', tag)
        for par in (0, 1):
            sp = par ^ 1
            a.label('L_qrecf%d' % par); a('s_mov_b32 s%d, 1', S_RET); a('s_branch L_qrecx%d', par)
            a.label('L_qrec%d' % par); a('s_mov_b32 s%d, 0', S_RET)
            a.label('L_qrecx%d' % par)
            a('s_nop 15')
            self.rowmax_exchange(sp)
            a('s_waitcnt lgkmcnt(0)'); a('s_barrier')
            a('v_and_b32 v%d, 0xfffffffb, v%d', self.V_F, self.V_XA)
            for qb in range(NQ):
                E = self.V_E
                a('ds_read_b64 %s, v%d offset:%d', vr(E,2), self.V_F, qb*512); a('s_waitcnt lgkmcnt(0)')
                a('v_max3_f32 v%d, v%d, v%d, 0', T, E, E+1)
                a('v_sub_f32 v%d, 0, v%d', E, T); a('v_exp_f32 v%d, v%d', E, E)
                for r in range(4):
                    for base in (self.V_S, self.V_S+4*NQ, self.V_NEGM):
                        a('v_sub_f32 v%d, v%d, v%d', base+4*qb+r, base+4*qb+r, T)
                a('v_mul_f32 v%d, v%d, v%d', self.V_L+qb, self.V_L+qb, E)
            for it in self.softmax_groups(sp):
                for o in oplist(it): a(o.text)
            a('s_waitcnt lgkmcnt(0)'); a('s_barrier')
            a('s_cmp_eq_u32 s%d, 0', S_RET); a('s_cbranch_scc1 L_qback%d', par); a('s_branch L_qbackf%d', par)
    def pv_tail_old(self):
        a = self.a; NQ = self.NQ; cfg = self.cfg; T = self.V_T
        a('s_mul_i32 s%d, s%d, 500', S_T0, S_SP); a('s_add_u32 s%d, s%d, s%d', S_T0, S_T0, S_RB)
        a('s_lshl_b32 s%d, s%d, 14', S_T0, S_T0); a('s_lshl_b32 s%d, s%d, 13', S_T1, S_J)
        a('s_add_u32 s%d, s%d, s%d', S_T0, S_T0, S_T1); a('s_add_u32 s%d, s%d, %d', S_T0, S_T0, WS_PART)
        RBK = cfg.get('rb2', 0)
        if RBK: a('v_lshlrev_b32 v%d, 7, v0', self.V_F); a('s_mov_b32 s%d, s%d', S_T2, S_T0)
        for f in range(8*NQ):
            qb, k2 = f//8, f % 8
            if f < self.NFV: b = 32+8*f
            else:
                b = 12 + 8*(f & 1)
                for r in range(8): a('v_accvgpr_read_b32 v%d, %s', b+r, self.O(f, r))
            for r in range(4): a('v_cvt_pk_bf16_f32 v%d, v%d, v%d', b+r, b+2*r, b+2*r+1)
            if k2 == 4: a('s_add_u32 s%d, s%d, 4096', S_T0, S_T0)
            a('buffer_store_dwordx4 %s, v%d, s[%d:%d], s%d offen offset:%d%s', vr(b,4), self.V_L16, S_WS, S_WS+3, S_T0, (k2%4)*1024, ' sc1' if cfg.get('sc2', 1) else '')
            if k2 == 7: a('s_add_u32 s%d, s%d, %d', S_T0, S_T0, 16384-4096)
        if RBK:
            for qb in range(NQ):
                a('s_waitcnt vmcnt(%d)', 8*(NQ-1-qb) + qb)
                a('buffer_load_dword v%d, v%d, s[%d:%d], s%d offen', T, self.V_F, S_WS, S_WS+3, S_T2); a('s_add_u32 s%d, s%d, 16384', S_T2, S_T2)
        a('s_branch L_k2_fin')
    def qk_tail_old(self):
        a = self.a; NQ = self.NQ; cfg = self.cfg; T = self.V_T
        if cfg.get('pf3', 1):
            F = self.V_F; E = self.V_E
            a('v_lshlrev_b32 v%d, 7, v0', F)
            a('s_lshl_b32 s%d, s%d, 1', S_T0, S_SP); a('s_add_u32 s%d, s%d, s%d', S_T0, S_T0, S_J); a('s_mul_i32 s%d, s%d, 20480', S_T0, S_T0)
            a('s_lshl_b32 s%d, s%d, 14', S_T1, S_RB); a('s_add_u32 s%d, s%d, s%d', S_T0, S_T0, S_T1)
            a('s_lshr_b32 s%d, s2, 3', S_T1); a('s_lshl_b32 s%d, s%d, 1', S_T1, S_T1); a('s_add_u32 s%d, s%d, s%d', S_T1, S_T1, S_J)
            a('s_cmp_lt_u32 s%d, 32', S_T1); a('s_cselect_b32 s%d, s%d, 0x4000', S_T1, S_T1)
            a('s_lshl_b32 s%d, s%d, 14', S_T1, S_T1); a('s_add_u32 s%d, s%d, 0x%x', S_T1, S_T1, WS_WVOF)
            for i in range(2):
                a('buffer_load_dword v%d, v%d, s[%d:%d], s%d offen', E+i, F, S_WS, S_WS+3, S_T1); a('s_add_u32 s%d, s%d, 8192', S_T1, S_T1)
            for i in range(3):
                a('buffer_load_dword v%d, v%d, s[12:15], s%d offen', E+2+i, F, S_T0); a('s_add_u32 s%d, s%d, %d', S_T0, S_T0, 8192 if i == 0 else 4096)
        for qb in range(NQ):
            M = self.V_L+qb
            [a(x) for x in self.ladds(qb)]
            for ins in ['v_permlane16_swap_b32', 'v_permlane32_swap_b32']:
                a('v_mov_b32 v%d, v%d', T, M); a('s_nop 1'); a('%s v%d, v%d', ins, T, M); a('v_add_f32 v%d, v%d, v%d', M, M, T)
            a('ds_write_b32 v%d, v%d offset:%d', self.V_XA, M, qb*512)
        a('s_waitcnt lgkmcnt(0)'); a('s_barrier')
        if cfg.get('stamp'): stamp_mid(a, 10)
        a('s_cmp_lg_u32 s%d, 0', S_J); a('s_cbranch_scc1 L_k2_fin')
        X = self.V_S
        self.read_x(X)
        a('s_mul_i32 s%d, s%d, 500', S_T0, S_SP); a('s_add_u32 s%d, s%d, s%d', S_T0, S_T0, S_RB)
        a('s_lshl_b32 s%d, s%d, 7', S_T0, S_T0); a('s_add_u32 s%d, s%d, %d', S_T0, S_T0, WS_LSE)
        a('v_and_b32 v%d, 15, v0', self.V_F); a('v_lshlrev_b32 v%d, 3, v%d', self.V_F, self.V_F)
        for qb in range(NQ):
            a('v_add_f32 v%d, v%d, v%d', X+2*qb, X+2*qb, X+2*qb+1); a('v_mov_b32 v%d, v%d', X+2*qb+1, self.V_NEGM+4*qb)
            a('buffer_store_dwordx2 %s, v%d, s[%d:%d], s%d offen offset:%d', vr(X+2*qb,2), self.V_F, S_WS, S_WS+3, S_T0, qb*128)
        a('s_branch L_k2_fin')
    T_ST=10; T_CO=20; T_CP=25; T_A0=32; T_A1=112; T_BR=144; T_BF=176; T_R=216; T_PK=232; T_OT=240
    def wreg(self, kk, nb):
        if self.WL: kk = {8: 10, 9: 11, 10: 8, 11: 9}.get(kk, kk)
        return ar((96 + 16*kk + 4*nb) % 256, 4)
    def wload(self, kk):
        if self.WL:
            return ['s_add_u32 s%d, s%d, %d' % (S_WP+1, S_WP, (kk >> 2)*32768 + (kk & 3)*4096)] + \
                   [Op('buffer_load_dwordx4 %s, v%d, s[%d:%d], s%d offen offset:%d sc1' % (self.wreg(kk, nb), self.V_L16, S_WS, S_WS+3, S_WP+1, nb*1024), prod=('W', kk)) for nb in range(4)]
        r = [Op('buffer_load_dwordx4 %s, v%d, s[%d:%d], s%d offen offset:%d sc1' % (self.wreg(kk, nb), self.V_L16, S_WS, S_WS+3, S_WP+nb, (kk%4)*1024), prod=('W', kk)) for nb in range(4)]
        if kk % 4 == 3: r += ['s_add_u32 s%d, s%d, 4096' % (S_WP+nb, S_WP+nb) for nb in range(4)]
        return r
    def tail_sgprs(self):
        a = self.a
        a('s_lshl_b32 s%d, s%d, 2', S_T0, S_SP); a('s_add_u32 s%d, s%d, s%d', S_T0, S_T0, S_W)
        a('s_lshl_b32 s%d, s%d, 16', S_WP, S_T0); a('s_add_u32 s%d, s%d, 0x%x', S_WP, S_WP, WS_WVOF)
        if self.cfg.get('xp_now'): a('s_mov_b32 s%d, 0x%x', S_WP, WS_SIZE)
        if self.WL:
            assert not self.cfg.get('roles', 0)
            a('s_lshr_b32 s%d, s%d, 1', S_WP, S_T0); a('s_lshl_b32 s%d, s%d, 17', S_WP, S_WP); a('s_lshl_b32 s%d, s%d, 14', S_WB, S_J)
            a('s_add_u32 s%d, s%d, s%d', S_END, S_END, S_WB); a('s_add_u32 s%d, s%d, s%d', S_WP, S_WP, S_WB); a('s_add_u32 s%d, s%d, 0x%x', S_WP, S_WP, WS_WVOF)
            a('s_or_b32 s%d, s%d, 0x20000', S_WB, S_WP)
        for i in range(1, 1 if self.WL else 4): a('s_add_u32 s%d, s%d, %d', S_WP+i, S_WP, i*16384)
        a('s_lshl_b32 s%d, s%d, 14', S_T1, S_RB)
        a('s_lshl_b32 s%d, s%d, 7', S_OP, S_T0); a('s_add_u32 s%d, s%d, s%d', S_OP, S_OP, S_T1)
        CV2 = self.cfg.get('one', 1) and self.cfg.get('cv2', 1)
        if CV2: a('s_mul_i32 s%d, s%d, %d', S_T1, S_B, 53*81920)
        a('s_lshl_b32 s%d, s%d, 11', S_BS, S_T0); a('s_add_u32 s%d, s%d, s%d', S_BS, S_BS, S_T1); a('s_add_u32 s%d, s%d, 0x%x', S_BS, S_BS, WS_BASE)
        a('s_xor_b32 s%d, s%d, 1', S_T0, S_SP); a('s_mul_i32 s%d, s%d, 500', S_T0, S_T0); a('s_add_u32 s%d, s%d, s%d', S_T0, S_T0, S_RB)
        a('s_lshl_b32 s%d, s%d, 7', S_PS, S_T0); a('s_add_u32 s%d, s%d, 0x%x', S_PS, S_PS, WS_LSE)
        a('s_lshl_b32 s%d, s%d, 12', S_LP, S_W)
        a('s_lshl_b32 s%d, s%d, 14', S_PP, S_T0); a('s_add_u32 s%d, s%d, 0x%x', S_PP, S_PP, WS_PART); a('s_mov_b32 s%d, s%d', S_PP2, S_PP)
        a('s_lshl_b32 s%d, s3, 1', S_FO); a('s_add_u32 s%d, s%d, s%d', S_FO, S_FO, S_J); a('s_lshl_b32 s%d, s%d, 7', S_FO, S_FO); a('s_add_u32 s%d, s%d, 0x%x', S_FO, S_FO, WS_FLG)
        a('s_mov_b32 s%d, 0xffff0000', S_MK)
    def poll_load(self, va, tag): return Op('buffer_load_dword v%d, v%d, s[%d:%d], 0 offen sc1' % (self.V_F, va, S_WS, S_WS+3), prod=tag)
    def spin(self, name, va):
        a = self.a
        a.label('L_spin%s' % name); a('s_mov_b32 s%d, 0', S_SPIN)
        a.label('L_spin%s_l' % name)
        a(self.poll_load(va, None).text); a('s_waitcnt vmcnt(0)'); a('v_cmp_ne_u32 vcc, s7, v%d', self.V_F)
        a('s_cbranch_vccz L_ok%s', name)
        a('s_add_u32 s%d, s%d, 1', S_SPIN, S_SPIN); a('s_cmp_lt_u32 s%d, 0x40000', S_SPIN); a('s_cbranch_scc1 L_spin%s_l', name)
        a('s_branch L_ok%s', name)
    def read_stats(self):
        a = self.a; NQ = self.NQ; ST = self.T_ST
        a('v_and_b32 v%d, 0xfffffffb, v%d', self.V_T, self.V_XA)
        for qb in range(NQ):
            a('ds_read_b64 %s, v%d offset:%d', vr(ST+2*qb,2), self.V_T, qb*512); a('ds_read_b32 v%d, v%d offset:%d', self.T_CO+qb, self.V_T, L_X2-L_X + qb*512)
        a('s_waitcnt lgkmcnt(0)')
        for qb in range(NQ):
            a('v_add_f32 v%d, v%d, v%d', ST+2*qb, ST+2*qb, ST+2*qb+1); a('v_mov_b32 v%d, v%d', ST+2*qb+1, self.T_CO+qb)
    def qk_tail(self):
        a = self.a; NQ = self.NQ; cfg = self.cfg; T = self.V_T
        W1 = cfg.get('tw1', 8)
        if cfg.get('wpl', 1):
            WA = self.V_PF
            if not self.WL: a('v_cmp_ne_u32 vcc, s7, v%d', self.V_PF+1); a('s_cbranch_vccnz L_spinW'); a.label('L_okW')
            wq = []
            for kk in range(W1): wq += oplist(self.wload(kk))
            def pop(c):
                for i in range(c):
                    while wq and kind_of(wq[0]) == 'S': a(wq.pop(0).text)
                    if wq: a(wq.pop(0).text)
                    while wq and kind_of(wq[0]) == 'S': a(wq.pop(0).text)
            for qb in range(NQ):
                M = self.V_L+qb
                [a(x) for x in self.ladds(qb)]
                for ins in ['v_permlane16_swap_b32', 'v_permlane32_swap_b32']:
                    a('v_mov_b32 v%d, v%d', T, M); a('s_nop 0'); a('s_nop 0') if not wq else pop(2); a('%s v%d, v%d', ins, T, M); a('v_add_f32 v%d, v%d, v%d', M, M, T)
                a('ds_write_b32 v%d, v%d offset:%d', self.V_XA, M, qb*512)
                a('ds_write_b32 v%d, v%d offset:%d', self.V_XA, self.V_NEGM+4*qb, L_X2-L_X + qb*512)
                pop(2)
            pop(64)
        else:
            WA = self.V_E
            a('v_and_b32 v%d, 3, v0', WA); a('v_min_u32 v%d, %d, v%d', WA, 2 if cfg.get('lean', 1) else 1, WA); a('v_lshlrev_b32 v%d, 7, v%d', WA, WA); a('v_add_u32 v%d, 0x%x, v%d', WA, WS_FLG + 128*FLG_W, WA)
            a(self.poll_load(WA, None).text)
            for qb in range(NQ):
                M = self.V_L+qb
                [a(x) for x in self.ladds(qb)]
                for ins in ['v_permlane16_swap_b32', 'v_permlane32_swap_b32']:
                    a('v_mov_b32 v%d, v%d', T, M); a('s_nop 1'); a('%s v%d, v%d', ins, T, M); a('v_add_f32 v%d, v%d, v%d', M, M, T)
                a('ds_write_b32 v%d, v%d offset:%d', self.V_XA, M, qb*512)
                a('ds_write_b32 v%d, v%d offset:%d', self.V_XA, self.V_NEGM+4*qb, L_X2-L_X + qb*512)
            a('s_waitcnt vmcnt(0)'); a('v_cmp_ne_u32 vcc, s7, v%d', self.V_F); a('s_cbranch_vccnz L_spinW'); a.label('L_okW')
            W1 = cfg.get('tw1', 8)
            for kk in range(W1):
                for o in oplist(self.wload(kk)): a(o.text)
        a('s_waitcnt lgkmcnt(0)'); a('s_barrier')
        self.read_stats()
        a('s_barrier')
        if cfg.get('stamp') and not cfg.get('sthead'): stamp_mid(a, 1)
        a('s_cmp_lg_u32 s%d, 0', S_J); a('s_cbranch_scc1 L_qt1')
        a('s_mul_i32 s%d, s%d, 500', S_T0, S_SP); a('s_add_u32 s%d, s%d, s%d', S_T0, S_T0, S_RB)
        a('s_lshl_b32 s%d, s%d, 7', S_T0, S_T0); a('s_add_u32 s%d, s%d, %d', S_T0, S_T0, WS_LSE)
        a('v_and_b32 v%d, 15, v0', T); a('v_lshlrev_b32 v%d, 3, v%d', T, T)
        for qb in range(NQ): a('buffer_store_dwordx2 %s, v%d, s[%d:%d], s%d offen offset:%d sc1', vr(self.T_ST+2*qb,2), T, S_WS, S_WS+3, S_T0, qb*128)
        a.label('L_qt1')
        a('s_branch L_tailq')
        if self.WL:
            a.label('L_qmid'); a('v_cmp_ne_u32 vcc, s7, v%d', self.V_PF+1); a('s_mov_b32 s%d, s%d', S_N, S_NR); a('s_cbranch_vccnz L_spinW'); a.label('L_okW'); a('s_branch L_qloop')
        self.spin('W', WA)
        if cfg.get('ln2', 1): self.spin('X', 58)
        if cfg.get('one', 1) and cfg.get('q6', 1): self.spin('Q', 59)
    def pv_tail(self):
        a = self.a; NQ = self.NQ; cfg = self.cfg; T = self.V_T
        if self.WL:
            for i in range(3):
                a('s_add_u32 s%d, s%d, %d', S_T0, S_DST, (i+1)*32768); a('s_and_b32 s%d, s%d, 0x1ffff', S_T0, S_T0); a('v_add_u32 v%d, s%d, v%d', 10+i, S_T0, self.V_L16)
            wr = ['ds_read_b128 %s, v%d offset:%d' % (self.wreg(kk, nb), 10 + (kk >> 2), (kk & 3)*4096 + nb*1024) for kk in list(range(8)) + [10, 11] for nb in range(4)]
        WI = cfg.get('wi', 8) if self.WL else 0
        if self.WL and not WI:
            for i, x in enumerate(wr):
                if i == 32: a('s_waitcnt vmcnt(0)')
                a(x)
        if not WI:
            a('s_waitcnt vmcnt(0) lgkmcnt(0)'); a('s_barrier')
            if cfg.get('stamp') and not cfg.get('sthead'): stamp_mid(a, 1)
        a('s_mul_i32 s%d, s%d, 500', S_T0, S_SP); a('s_add_u32 s%d, s%d, s%d', S_T0, S_T0, S_RB)
        a('s_lshl_b32 s%d, s%d, 14', S_T0, S_T0); a('s_lshl_b32 s%d, s%d, 13', S_T1, S_J)
        a('s_add_u32 s%d, s%d, s%d', S_T0, S_T0, S_T1); a('s_add_u32 s%d, s%d, %d', S_RET, S_T0, WS_PART)
        a('v_add_u32 v2, s%d, v%d', S_T1, self.V_L16); a('v_add_u32 v3, 0x10000, v2')
        tr = self.tr = Trace(); o = []
        if self.WL: tr.run('w0', [Op('buffer_load w', prod=('W', kk)) for kk in list(range(8)) + [10, 11]] + [Op(None, need=['ALLV'])])
        wq = []
        for kk in range(self.TWP): wq += oplist(self.wload(kk))
        WD = cfg.get('twd', 0)
        safe = [10, 11, 12, 13] + list(range(18, 27))
        cand = safe + list(range(self.NFV, 8*NQ))
        H = cfg.get('thold', 0 if cfg.get('hyb', 1) else 8)
        held = set(cand[(i*len(cand))//H] for i in range(H)) if H else set()
        self.held = []; FAST = cfg.get('fast', 0)
        def pstore(f, reg):
            qb, k2 = f//8, f % 8
            return ['s_add_u32 s%d, s%d, %d' % (S_T3, S_RET, qb*16384 + (k2//4)*4096),
                    Op('buffer_store_dwordx4 %s, v%d, s[%d:%d], s%d offen offset:%d%s' % (vr(reg,4), self.V_L16, S_WS, S_WS+3, S_T3, (k2%4)*1024, cfg['xp_ps'] if 'xp_ps' in cfg else ('' if FAST else ' sc1')), prod=('PS', f))]
        TWO = self.TWO = cfg.get('hyb', 1) and cfg.get('two', 0); pend = []
        if TWO: held = set(range(16, 8*NQ)); slot = {f: 80+4*i for i, f in enumerate([16, 17, 27] + list(range(self.NFV, 8*NQ)))}
        for f in range(8*NQ):
            qb, k2 = f//8, f % 8
            if TWO:
                b = 32 + 8*(f if f < self.NFV else (f - self.NFV) % 6); d = slot.get(f, b)
                if f >= self.NFV:
                    for r in range(8): o.append('v_accvgpr_read_b32 v%d, %s' % (b+r, self.O(f, r)))
            elif f < self.NFV: b = d = 32 + 8*f
            else:
                b = 32 + 8*((f - self.NFV) % 8); d = 32 + 8*safe[f - self.NFV] + 4
                for r in range(8): o.append('v_accvgpr_read_b32 v%d, %s' % (b+r, self.O(f, r)))
            for r in range(4): o.append('v_cvt_pk_bf16_f32 v%d, v%d, v%d' % (d+r, b+2*r, b+2*r+1))
            off = qb*16384 + k2*1024
            dw = Op('ds_write_b128 v%d, %s offset:%d' % (2 + off//65536, vr(d,4), off % 65536), prod=('CVW', f))
            if f < WI:
                pend.append(dw); c = -(-40//WI); o += wr[c*f:c*f+c]
                if f == 0: o.append('s_waitcnt vmcnt(0)')
            else:
                if WI and f == WI: o += [Op('s_barrier', need=['ALLL'])] + ([stamp_op(1)] if (cfg.get('stamp') and not cfg.get('sthead')) else [])
                o.append(dw)
                if pend: o.append(pend.pop(0))
            if TWO and f == 17: o.append(Op('s_barrier', need=[('CVW', 15)]))
            if TWO and f < 16: pass
            elif f in held: self.held += pstore(f, d)
            elif not (cfg.get('xp_nost') and f >= cfg.get('xp_nost')): o += pstore(f, d)
            if self.EA and f == cfg.get('eaf', 26):
                o += ['v_min_u32 v30, 1, v0', 'v_lshlrev_b32 v30, 30, v30', 'v_mov_b32 v31, s7', 's_add_u32 s%d, s%d, %d' % (S_T3, S_FO, 128*FLG_B),
                      Op('buffer_store_dword v31, v30, s[%d:%d], s%d offen sc1' % (S_WS, S_WS+3, S_T3), need=[('PS', 8*self.EA-1)])]
            for rep in range(cfg.get('twr', 1 if TWO else 2)):
                if f >= WD and wq:
                    o.append(wq.pop(0))
                    while wq and kind_of(wq[0]) == 'S': o.append(wq.pop(0))
        o += wq
        tr.run('cv', o); tr.emit(a, 'cv')
        if not cfg.get('hyb', 1): self.read_stats()
    def tail(self):
        a = self.a; NQ = self.NQ; cfg = self.cfg; tr = self.tr; stamp = cfg.get('stamp') and not cfg.get('sthead')
        ST = self.T_ST; CO = self.T_CO; CP = self.T_CP; A0 = self.T_A0; A1 = self.T_A1; BR = self.T_BR; BF = self.T_BF; RR = self.T_R; PK = self.T_PK; OT = self.T_OT
        L16 = self.V_L16; F = self.V_F
        n = 320
        class FX:
            def __init__(s): s.fx = [[] for _ in range(n)]
            def putd(s, lst, g, step=4):
                fx = s.fx
                for x in oplist(lst):
                    if kind_of(x) == 'D':
                        g += 1
                        while (step > 2 and g % step != 2) or (step == 2 and g % 2 == 0) or any(kind_of(y) in ('R','D','B','V') for y in oplist(fx[g])): g += 1
                        fx[g].append(x); g += 1
                    else: fx[g].append(x)
                return g
            def check(s, g, tag, name):
                fx = s.fx
                while fx[g] or fx[g+2]: g += 1
                fx[g] += [Op('v_cmp_ne_u32 vcc, s7, v%d' % F, need=[tag])]; fx[g+2] += ['s_cbranch_vccnz L_spin%s' % name, 'L_ok%s:' % name]
                return g+2
        def rd1(i):
            G, qb, h = i//10, (i % 10)//2, i & 1; off = qb*16384 + (2*G+h)*1024
            return Op('ds_read_b128 %s, v%d offset:%d' % (vr(BR+4*(i % 8),4), 2 if off >= 65536 else L16, off % 65536), prod=('B1', i))
        t = Asm(); h_frag_addr(t, 6, 8)
        su = ['v_add_u32 v3, %d, v%d' % (L_PAR, L16), 'v_add_u32 v4, %d, v%d' % (L_PAR+65536, L16)] + t.lines
        su += ['v_add_u32 v6, s%d, v6' % S_LP, 'v_add_u32 v8, s%d, v%d' % (S_LP, L16),
               'v_lshrrev_b32 v7, 4, v0', 'v_sub_u32 v7, 0, v7', 'v_xor_b32 v7, v7, v0', 'v_and_b32 v7, 3, v7', 'v_lshlrev_b32 v7, 4, v7',
               'v_lshrrev_b32 v9, 2, v0', 'v_lshl_add_u32 v7, v9, 10, v7',
               's_xor_b32 s%d, s3, 2' % S_T1, 's_lshl_b32 s%d, s%d, 8' % (S_T1, S_T1), 's_add_u32 s%d, s%d, 0x%x' % (S_T1, S_T1, WS_FLG),
               'v_and_b32 v9, 1, v0', 'v_lshl_add_u32 v9, v9, 7, s%d' % S_T1,
               'v_and_b32 v252, 15, v0', 'v_lshlrev_b32 v252, 3, v252']
        suq = ['s_mul_i32 s%d, s%d, %d' % (S_T1, S_QT, 80*55189), 's_add_u32 s%d, s%d, %d' % (S_T2, S_T1, 79*55189),
               's_lshr_b32 s%d, s%d, 22' % (S_T1, S_T1), 's_lshr_b32 s%d, s%d, 22' % (S_T2, S_T2),
               'v_and_b32 v250, 3, v0', 'v_add_u32 v250, s%d, v250' % S_T1, 'v_min_u32 v250, s%d, v250' % S_T2,
               's_mul_i32 s%d, s%d, %d' % (S_T1, S_B, 53*128), 's_add_u32 s%d, s%d, 0x%x' % (S_T1, S_T1, WS_FLG + 128*FLG_C),
               'v_lshl_add_u32 v250, v250, 7, s%d' % S_T1, 's_lshl_b32 s%d, s%d, 13' % (S_T2, S_J), 's_add_u32 s%d, s%d, s%d' % (S_PP, S_PP, S_T2)]
        if cfg.get('xp_nodma'): suq.append('s_mov_b32 s%d, 0x%x' % (S_PP, WS_SIZE))
        CV2 = cfg.get('one', 1) and cfg.get('cv2', 1); sub = []; BAR = [249, 251, 253, 254, 255]
        if CV2:
            sub = ['s_mul_i32 s%d, s%d, 80' % (S_SPIN, S_QT), 'v_and_b32 v232, 15, v0', 'v_add_u32 v232, s%d, v232' % S_SPIN, 'v_lshrrev_b32 v233, 4, v0', 'v_lshlrev_b32 v233, 8, v233']
            for q in range(NQ):
                d = BAR[q]
                sub += ['v_add_u32 v234, %d, v232' % (16*q), 'v_mul_u32_u24 v235, 0xd795, v234', 'v_lshrrev_b32 v235, 22, v235', 'v_lshl_add_u32 v234, v235, 2, v234',
                        'v_and_b32 v235, 15, v234', 'v_lshl_add_u32 v235, v235, 4, v233', 'v_lshrrev_b32 v234, 4, v234', 'v_lshl_add_u32 v%d, v234, 14, v235' % d]
        ld = [Op('buffer_load_dwordx2 %s, v252, s[%d:%d], s%d offen offset:%d sc1' % (vr(RR+2*q,2), S_WS, S_WS+3, S_PS, q*128), prod='PST') for q in range(NQ)]
        GC = cfg.get('tgc', 36)
        def gemm1(role):
            X = FX(); o = []
            if role == 'q': o += su + suq + sub
            o += ['v_add_u32 v2, 0x10000, v%d' % L16, Op('s_barrier', need=['ALLL', 'ALLV'] if role == 'q' else ['ALLL'])]
            if stamp: o.append(stamp_op(2))
            o += [rd1(i) for i in range(6)]
            for i in range(6, 80): X.fx[4*(i-6)].append(rd1(i))
            if role == 'p':
                g = X.putd(self.held, 0, cfg.get('ths', 4))
                GF = self.GF = g + cfg.get('tgf', 30); GF += (-GF) % 4
                X.fx[GF-1] += [Op(None, need=['ALLV'])] + ([stamp_op(3)] if stamp else [])
                late = []
                for kk in range(cfg.get('twp', 6), 16): late += self.wload(kk)
                fl = 'buffer_store_dword v31, v30, s[%d:%d], s%d offen' % (S_WS, S_WS+3, S_FO)
                if cfg.get('fast', 0):
                    X.fx[GF-2].append('s_cmp_eq_u32 s%d, 0' % S_SAME)
                    self.flag_text = fl
                    fl = Op('buffer_x\ns_cbranch_scc1 L_rel\n%s%s\nL_rel_back:\ns_nop 0' % (fl, '' if cfg.get('fastflag', 1) else ' sc1'))
                else: fl += ' sc1'
                g = X.putd([fl] + late, GF-1, 2)
                g = X.putd([self.poll_load(9, 'PF')], max(g, cfg.get('tpp', 210)))
                X.fx[1] += ['v_min_u32 v30, 1, v0', 'v_lshlrev_b32 v30, 30, v30', 'v_mov_b32 v31, s7']
                g = X.check(g+GC, 'PF', 'P2')
                X.putd(ld, g, 2); X.fx[n-1].append(Op(None, need=['PST']))
                X.fx = spread(X.fx, su, n, 3, GF-2)
                X.fx = spread(X.fx, sub, n, GF+2, 208)
            else:
                late = []
                for kk in range(cfg.get('tw1', 8), 16): late += self.wload(kk)
                g = X.putd(late, 0, cfg.get('tqs', 2))
                g = X.putd([self.poll_load(9, 'PF')], max(g, self.GF + cfg.get('tgp', 30)))
                g = X.check(g+GC, 'PF', 'P')
                if stamp: X.fx[g].append(stamp_op(3))
                dm = []
                for q in range(NQ):
                    for k in range(8):
                        if k % 4 == 0: dm += ['s_add_u32 m0, s%d, %d' % (S_T2, L_PAR + q*16384 + k*1024), 's_add_u32 s%d, s%d, %d' % (S_T0, S_PP, q*16384 + k*1024)]
                        dm.append(Op('buffer_load_dwordx4 v%d, s[%d:%d], s%d offen offset:%d%s lds' % (L16, S_WS, S_WS+3, S_T0, (k%4)*1024, '' if cfg.get('xp_plainld') else ' sc1'), prod=('PD', q)))
                NP = cfg.get('tnp', 3); ST = cfg.get('tps', 4)
                g = X.putd(dm[:12], g+1, cfg.get('tps0', 2))
                g = X.putd(ld + [self.poll_load(250, 'CF')], g, 2)
                g = X.putd(dm[12:12*NP], g, ST)
                X.check(max(g, n-8), 'CF', 'C')
            for g in range(n):
                G, qb, nb, h = g//40, (g % 40)//8, (g % 8)//2, g & 1
                h ^= nb & self.SN
                i = 10*G + 2*qb + h; kk = 2*G + h; D = vr(A0 + 16*qb + 4*nb, 4)
                o.append(Op('%s %s, %s, %s, %s' % (MF, D, self.wreg(kk, nb), vr(BR+4*(i % 8),4), D if (G or g & 1) else '0'), need=[('B1', i | 1), ('W', kk | 1)]))
                o += oplist(X.fx[g])
                if stamp and cfg.get('stg1') and g in (80, 160, 240): o.append(stamp_op({80:7, 160:9, 240:10}[g]))
            return o
        tr.run('g1p', gemm1('p'))
        trq = Trace(tr.static); trq.run('x', [Op('buffer_load w', prod=('W', kk)) for kk in range(cfg.get('tw1', 8))] + ['ds_x']); trq.run('g1q', gemm1('q'))
        tr.lenient = ('PD',)
        o = []; X = FX(); putd = X.putd
        if stamp: o.append(stamp_op(4))
        o += ['s_add_u32 s%d, s%d, s%d' % (S_WP, S_PP2, S_LP), Op('s_barrier', need=[('PD', 1)])]
        if stamp: o.append(stamp_op(5))
        def rd2(i):
            off = (i//16)*16384 + (i % 16)*1024
            return Op('ds_read_b128 %s, v%d offset:%d' % (vr(BR+4*(i % 8),4), 4 if off >= 65536 else 3, off % 65536), prod=('B2', i))
        fx = X.fx
        o += [rd2(i) for i in range(6)]
        for i in range(6, 80): fx[4*(i-6)].append(rd2(i))
        NP = cfg.get('tnp', 3)
        if NP >= 3: fx[4*26-2].append(Op('s_barrier', need=[('PD', NP-1)]))
        for q in range(max(NP, 2), NQ): fx[4*(16*q-6)-2].append(Op('s_barrier', need=[('PE', q)]))
        bl = []
        for c in range(2*NQ):
            if CV2: bl.append(Op('buffer_load_dwordx4 %s, v%d, s[%d:%d], s%d offen offset:%d sc1' % (vr(BF+4*c,4), BAR[c >> 1], S_WS, S_WS+3, S_BS, (c & 1)*1024), prod=('BF', c)))
            else: bl += ['s_add_u32 s%d, s%d, %d' % (S_T0, S_BS, (c >> 1)*16384), Op('buffer_load_dwordx4 %s, v%d, s[%d:%d], s%d offen offset:%d sc1' % (vr(BF+4*c,4), L16, S_WS, S_WS+3, S_T0, (c & 1)*1024), prod=('BF', c))]
        def pe(q):
            return ['s_add_u32 m0, s%d, %d' % (S_LP, L_PAR + q*16384), 's_add_u32 s%d, s%d, %d' % (S_T0, S_WP, q*16384)] + \
                   [Op('buffer_load_dwordx4 v%d, s[%d:%d], s%d offen offset:%d sc1 lds' % (L16, S_WS, S_WS+3, S_T0, k*1024), prod=('PE', q)) for k in range(4)]
        if NP < NQ:
            assert CV2
            seq = bl[:2]
            for q in range(1, NQ):
                if NP+q-1 < NQ: seq = seq + pe(NP+q-1)
                seq = seq + bl[2*q:2*q+2]
            putd(seq, 0, cfg.get('tp2', 8))
        else: putd(bl, 0)
        wt = []
        for q in range(NQ):
            l0, m0, l1, m1, t0 = ST+2*q, ST+2*q+1, RR+2*q, RR+2*q+1, 248
            wt += [Op('v_min_f32 v%d, v%d, v%d' % (t0, m0, m1), need=['PST']), 'v_sub_f32 v%d, v%d, v%d' % (m0, t0, m0), 'v_sub_f32 v%d, v%d, v%d' % (m1, t0, m1),
                   'v_exp_f32 v%d, v%d' % (m0, m0), 'v_exp_f32 v%d, v%d' % (m1, m1), 'v_mul_f32 v%d, v%d, v%d' % (l0, l0, m0), 'v_fmac_f32 v%d, v%d, v%d' % (l0, l1, m1),
                   'v_rcp_f32 v%d, v%d' % (l0, l0), 's_nop 0', 'v_mul_f32 v%d, v%d, v%d' % (CO+q, m0, l0), 'v_mul_f32 v%d, v%d, v%d' % (CP+q, m1, l0)]
        def ep_a(q):
            r = []
            for p in range(2):
                for x in range(4):
                    r += [Op('v_lshlrev_b32 v%d, 16, v%d' % (RR+8*p+2*x, BF+8*q+4*p+x), need=[('BF', 2*q+p)]), 'v_and_b32 v%d, s%d, v%d' % (RR+8*p+2*x+1, S_MK, BF+8*q+4*p+x)]
            return r + ['v_fmac_f32 v%d, v%d, v%d' % (RR+x, A0+16*q+x, CO+q) for x in range(16)]
        def ep_b(q):
            r = []
            for p in range(2):
                r += ['v_fmac_f32 v%d, v%d, v%d' % (RR+8*p+x, A1+16*(q & 1)+8*p+x, CP+q) for x in range(8)]
                r += ['v_cvt_pk_bf16_f32 v%d, v%d, v%d' % (PK+4*p+x, RR+8*p+2*x, RR+8*p+2*x+1) for x in range(4)]
                r += ['ds_write_b128 v6, %s offset:%d' % (vr(PK+4*p,4), p*1024), Op('ds_read_b128 %s, v8 offset:%d' % (vr(OT+4*p,4), p*1024), prod=('OT', q, p))]
            return r
        def ep_c(q):
            return ['s_add_u32 s%d, s%d, %d' % (S_T1, S_OP, q*16384)] + [Op('buffer_store_dwordx4 %s, v7, s[16:19], s%d offen offset:%d%s' % (vr(OT+4*p,4), S_T1, p*64, ' sc1' if cfg.get('sc3', 0) else ''), need=[('OT', q, p)]) for p in range(2)]
        fx = spread(fx, wt, n, 2, 64)
        fx = spread(fx, ep_a(0) + ep_b(0) + ep_a(1) + ep_c(0), n, 64+1, 128)
        for q in range(1, NQ-1): fx = spread(fx, ep_b(q) + ep_a(q+1) + ep_c(q), n, 64*(q+1)+8, 64*(q+2))
        for g in range(n):
            qb, G, nb, h = g//64, (g % 64)//8, (g % 8)//2, g & 1
            h ^= nb & self.SN
            kk = 2*G + h; i = 16*qb + kk; D = vr(A1 + 16*(qb & 1) + 4*nb, 4)
            o.append(Op('%s %s, %s, %s, %s' % (MF, D, self.wreg(kk, nb), vr(BR+4*(i % 8),4), D if (G or g & 1) else '0'), need=[('B2', i | 1)]))
            o += oplist(fx[g])
            if stamp and g == 128: o.append(stamp_op(6))
        if stamp: o.append(stamp_op(8))
        o += ['s_nop 5'] + ep_b(NQ-1) + ep_c(NQ-1)
        tr.run('t', o); trq.run('t', o)
        if cfg.get('xp_nodma'): a('s_nop 0')
        tr.emit(a, 'g1p'); a.label('L_tail2'); tr.emit(a, 't')
        a('s_branch L_k2_fin')
        a.label('L_tailq'); tr.emit(a, 'g1q'); a('s_branch L_tail2')
        self.spin('P', 9); self.spin('P2', 9); self.spin('C', 250)
        if cfg.get('fast', 0):
            a.label('L_rel'); a('buffer_wbl2 sc1'); a('s_waitcnt vmcnt(0)'); a(self.flag_text + ' sc1'); a('s_branch L_rel_back')
    def tail2(self):
        a = self.a; NQ = self.NQ; cfg = self.cfg; tr = self.tr; stamp = cfg.get('stamp') and not cfg.get('sthead')
        ST = self.T_ST; CW = 20; A0 = self.T_A0; NH = cfg.get('nh', 3); PR = A0+16*NH; A1 = self.T_A1; BR = self.T_BR; BF = self.T_BF; RR = self.T_R; PK = self.T_PK; OT = self.T_OT
        L16 = self.V_L16; F = self.V_F; n1 = 64*NH; n = 320; L_PS = 155648; BAR = [249, 251, 253, 254, 255]
        ND = cfg.get('nd', 3 if self.EA else 2)
        class FX:
            def __init__(s, m): s.fx = [[] for _ in range(m)]
            def putd(s, lst, g, step=4):
                fx = s.fx
                for x in oplist(lst):
                    if kind_of(x) == 'D':
                        g += 1
                        while any(kind_of(y) in ('R','D','B','V','X') for y in oplist(fx[g])): g += 1
                        fx[g].append(x); g += step-1
                    else: fx[g].append(x)
                return g
            def check(s, g, tag, name):
                fx = s.fx
                while fx[g] or fx[g+2]: g += 1
                fx[g] += [Op('v_cmp_ne_u32 vcc, s7, v%d' % F, need=[tag])]; fx[g+2] += ['s_cbranch_vccnz L_spin%s' % name, 'L_ok%s:' % name]
                return g+2
        def rd1(i):
            G, qb, h = i//(2*NH), (i % (2*NH))//2, i & 1
            return Op('ds_read_b128 %s, v%d offset:%d' % (vr(BR+4*(i % 8),4), L16, qb*16384 + (2*G+h)*1024), prod=('B1', i))
        t = Asm(); h_frag_addr(t, 6, 8)
        su = ['v_add_u32 v2, 0x10000, v%d' % L16, 'v_add_u32 v3, %d, v%d' % (L_PAR, L16)] + t.lines
        su += ['v_add_u32 v6, s%d, v6' % S_LP, 'v_add_u32 v8, s%d, v%d' % (S_LP, L16), 'v_add_u32 v4, 0x10000, v8',
               'v_lshrrev_b32 v7, 4, v0', 'v_sub_u32 v7, 0, v7', 'v_xor_b32 v7, v7, v0', 'v_and_b32 v7, 3, v7', 'v_lshlrev_b32 v7, 4, v7',
               'v_lshrrev_b32 v9, 2, v0', 'v_lshl_add_u32 v7, v9, 10, v7',
               'v_and_b32 v252, 15, v0', 'v_lshlrev_b32 v252, 3, v252', 'v_add_u32 v252, %d, v252' % L_PS,
               's_mul_i32 s%d, s%d, %d' % (S_T1, S_QT, 80*55189), 's_add_u32 s%d, s%d, %d' % (S_T2, S_T1, 79*55189),
               's_lshr_b32 s%d, s%d, 22' % (S_T1, S_T1), 's_lshr_b32 s%d, s%d, 22' % (S_T2, S_T2),
               'v_and_b32 v250, 3, v0', 'v_add_u32 v250, s%d, v250' % S_T1, 'v_min_u32 v250, s%d, v250' % S_T2,
               's_mul_i32 s%d, s%d, %d' % (S_T1, S_B, 53*128), 's_add_u32 s%d, s%d, 0x%x' % (S_T1, S_T1, WS_FLG + 128*FLG_C),
               'v_lshl_add_u32 v250, v250, 7, s%d' % S_T1]
        suq = ['s_xor_b32 s%d, s3, 2' % S_T1, 's_lshl_b32 s%d, s%d, 8' % (S_T1, S_T1), 's_add_u32 s%d, s%d, 0x%x' % (S_T1, S_T1, WS_FLG),
               'v_and_b32 v9, 1, v0', 'v_lshl_add_u32 v9, v9, 7, s%d' % S_T1,
               's_lshl_b32 s%d, s%d, 13' % (S_T2, S_J), 's_add_u32 s%d, s%d, s%d' % (S_PP, S_PP, S_T2)]
        sub = ['s_mul_i32 s%d, s%d, 80' % (S_SPIN, S_QT), 'v_and_b32 v236, 15, v0', 'v_add_u32 v236, s%d, v236' % S_SPIN, 'v_lshrrev_b32 v237, 4, v0', 'v_lshlrev_b32 v237, 8, v237']
        for q in range(NQ):
            sub += ['v_add_u32 v238, %d, v236' % (16*q), 'v_mul_u32_u24 v239, 0xd795, v238', 'v_lshrrev_b32 v239, 22, v239', 'v_lshl_add_u32 v238, v239, 2, v238',
                    'v_and_b32 v239, 15, v238', 'v_lshl_add_u32 v239, v239, 4, v237', 'v_lshrrev_b32 v238, 4, v238', 'v_lshl_add_u32 v%d, v238, 14, v239' % BAR[q]]
        own = ['v_and_b32 v9, 0xfffffffb, v%d' % self.V_XA]
        for q in range(NQ): own += ['ds_read_b64 %s, v9 offset:%d' % (vr(ST+2*q,2), q*512), Op('ds_read_b32 v%d, v9 offset:%d' % (CW+q, L_X2-L_X + q*512), prod=('OS', q))]
        own2 = []
        for q in range(NQ): own2 += [Op('v_add_f32 v%d, v%d, v%d' % (ST+2*q, ST+2*q, ST+2*q+1), need=[('OS', q)]), 'v_mov_b32 v%d, v%d' % (ST+2*q+1, CW+q)]
        def gemm1(role):
            X = FX(n1); o = []
            TWO = self.TWO; WQ = cfg.get('tw1', 8)
            fv = ['v_min_u32 v30, 1, v0', 'v_lshlrev_b32 v30, 30, v30', 'v_mov_b32 v31, s7']
            fl = 'buffer_store_dword v31, v30, s[%d:%d], s%d offen sc1' % (S_WS, S_WS+3, S_FO)
            if role == 'q':
                if TWO:
                    for kk in range(WQ, WQ + cfg.get('tw2', 2)): o += self.wload(kk)
                    WQ += cfg.get('tw2', 2)
                o += su + suq + sub
                if TWO:
                    o += fv + ['s_mul_i32 s%d, s%d, 500' % (S_T0, S_SP), 's_add_u32 s%d, s%d, s%d' % (S_T0, S_T0, S_RB), 's_add_u32 s%d, s%d, s%d' % (S_T0, S_T0, S_J),
                               's_lshl_b32 s%d, s%d, 14' % (S_T0, S_T0), 's_add_u32 s%d, s%d, 0x%x' % (S_T0, S_T0, WS_PART),
                               's_lshl_b32 s%d, s%d, 14' % (S_T1, S_J), 'v_add_u32 v248, s%d, v%d' % (S_T1, L16), 's_barrier']
                    o += [Op('ds_read_b128 %s, v248 offset:%d' % (vr(32+4*k,4), k*1024), prod=('QR', k)) for k in range(16)]
                    for k in range(16):
                        o.append(Op('buffer_store_dwordx4 %s, v%d, s[%d:%d], s%d offen offset:%d sc1' % (vr(32+4*k,4), L16, S_WS, S_WS+3, S_T0, (k%4)*1024), need=[('QR', k)]))
                        if k % 4 == 3: o.append('s_add_u32 s%d, s%d, 4096' % (S_T0, S_T0))
            def pdm(q):
                dm = []
                for k in range(8):
                    if k % 4 == 0: dm += ['s_add_u32 m0, s%d, %d' % (S_T2, L_PAR + q*16384 + k*1024), 's_add_u32 s%d, s%d, %d' % (S_T0, S_PP, q*16384 + k*1024)]
                    dm.append(Op('buffer_load_dwordx4 v%d, s[%d:%d], s%d offen offset:%d%s lds' % (L16, S_WS, S_WS+3, S_T0, (k%4)*1024, cfg.get('xp_pl', ' sc1')), prod=('PD', q)))
                return dm
            if role == 'q' and self.EA:
                for kk in range(WQ, WQ + cfg.get('tw2', 2)): o += self.wload(kk)
                WQ += cfg.get('tw2', 2)
                o += ['v_add_u32 v248, %d, v9' % (128*FLG_B), Op('s_branch L_spinA', need=['ALLV']), 'L_okA:']
                for q in range(self.EA): o += pdm(q)
            o.append(Op('s_barrier', need=['ALLL', 'ALLV'] if (role == 'q' and not TWO and not self.EA) else ['ALLL']))
            if stamp: o.append(stamp_op(2))
            o += [rd1(i) for i in range(6)]
            for i in range(6, 16*NH): X.fx[4*(i-6)].append(rd1(i))
            late = []
            for kk in ((8, 9, 12, 13, 14, 15) if (role == 'p' and self.WL) else range(self.TWP if role == 'p' else WQ, 16)): late += self.wload(kk)
            if role == 'p' and TWO:
                X.fx[1] += fv
                g = X.putd(late, 1, 2)
                g = X.putd(self.held, g, cfg.get('ths', 4))
                GB = min(n1-4, g + cfg.get('tgb', 40)); GB -= GB % 4
                X.fx[GB-1] += ['s_add_u32 s%d, s%d, %d' % (S_FO, S_FO, 128*FLG_B), Op(None, need=['ALLV'])] + ([stamp_op(3)] if stamp else [])
                X.putd([fl], GB-1)
                X.fx = spread(X.fx, own + own2 + su + sub + suq[:5], n1, 2, n1, 3)
            elif role == 'p':
                X.fx[1] += ['v_min_u32 v30, 1, v0', 'v_lshlrev_b32 v30, 30, v30', 'v_mov_b32 v31, s7']
                g = X.putd(self.held, 1, cfg.get('ths', 2))
                GF = self.GF = g + cfg.get('tgf', 28); GF += (-GF) % 4
                X.fx[GF-1] += [Op(None, need=['ALLV'])] + ([stamp_op(3)] if stamp else [])
                g = X.putd(['buffer_store_dword v31, v30, s[%d:%d], s%d offen%s' % (S_WS, S_WS+3, S_FO, cfg.get('xp_fl', ' sc1'))] + late, GF-1, 2)
                X.fx = spread(X.fx, own, n1, 2, GF-1)
                X.fx = spread(X.fx, own2 + su + sub, n1, GF+2, n1, 3)
            else:
                if TWO:
                    GA = cfg.get('tga', 24)
                    X.fx[GA-1].append(Op(None, need=['ALLV']))
                    nl = cfg.get('tnl', 14)
                    g = X.putd([fl] + late[:nl] + [self.poll_load(9, 'PF')], GA-1, 2)
                    X.putd(late[nl:], g, 2)
                else:
                    g = X.putd(late, 0, 2)
                    g = X.putd([self.poll_load(9, 'PF')], max(g, self.GF + cfg.get('tgp', 20)))
                g = X.check(g + cfg.get('tgc', 28), 'PF', 'P')
                if stamp: X.fx[g].append(stamp_op(3))
                sd = ['s_mov_b32 m0, %d' % L_PS, Op('buffer_load_dwordx4 v%d, s[%d:%d], s%d offen sc1 lds' % (L16, S_WS, S_WS+3, S_PS), prod=('PD', 0))]
                g = X.putd((pdm(0) if not self.EA else []) + sd, g+1, cfg.get('tps0', 2))
                for q in range(max(1, self.EA), ND): g = X.putd(pdm(q), g, cfg.get('tps', 4))
            for g in range(n1):
                G, qb, nb, h = g//(8*NH), (g % (8*NH))//8, (g % 8)//2, g & 1
                h ^= nb & self.SN
                i = 2*NH*G + 2*qb + h; kk = 2*G + h; D = vr(A0 + 16*qb + 4*nb, 4)
                o.append(Op('%s %s, %s, %s, %s' % (MF, D, self.wreg(kk, nb), vr(BR+4*(i % 8),4), D if (G or g & 1) else '0'), need=[('B1', i | 1), ('W', kk | 1)]))
                o += oplist(X.fx[g])
            return o
        tr.run('g1p', gemm1('p'))
        trq = Trace(tr.static); trq.run('x', [Op('buffer_load w', prod=('W', kk)) for kk in range(cfg.get('tw1', 8))] + ['ds_x']); trq.run('g1q', gemm1('q'))
        tr.lenient = ('PD',)
        o = []; X = FX(n); fx = X.fx
        if stamp: o.append(stamp_op(4))
        o += ['s_add_u32 s%d, s%d, s%d' % (S_WP, S_PP2, S_LP), Op('s_barrier', need=[('PD', 0)])]
        if stamp: o.append(stamp_op(5))
        def rd2(i):
            q = i//16; off = q*16384 + (i % 16)*1024
            return Op('ds_read_b128 %s, v%d offset:%d' % (vr(BR+4*(i % 8),4), 3 if q < NH else (2 if off >= 65536 else L16), off % 65536), prod=('B2', i))
        o += [rd2(i) for i in range(6)]
        for i in range(6, 80): fx[4*(i-6)].append(rd2(i))
        for q in range(1, NQ): fx[4*(16*q-6)-2].append(Op('s_barrier', need=[('PD' if q < ND else ('PE' if q < NH else 'CW'), q)]))
        seq = []
        for q in range(ND, NH):
            seq += ['s_add_u32 m0, s%d, %d' % (S_LP, L_PAR + q*16384), 's_add_u32 s%d, s%d, %d' % (S_T0, S_WP, q*16384)]
            seq += [Op('buffer_load_dwordx4 v%d, s[%d:%d], s%d offen offset:%d%s lds' % (L16, S_WS, S_WS+3, S_T0, k*1024, cfg.get('xp_pl', ' sc1')), prod=('PE', q)) for k in range(4)]
        pr = lambda q: ['s_add_u32 s%d, s%d, %d' % (S_T0, S_WP, q*16384)] + [Op('buffer_load_dwordx4 %s, v%d, s[%d:%d], s%d offen offset:%d%s' % (vr(PR+16*(q-NH)+4*k,4), L16, S_WS, S_WS+3, S_T0, k*1024, cfg.get('xp_pl', ' sc1')), prod=('PR', q, k)) for k in range(4)]
        if self.TWO:
            fx[1].append('v_add_u32 v9, %d, v9' % (128*FLG_B))
            g = X.putd([self.poll_load(9, 'BFL')], cfg.get('tbp', 4))
            g = X.check(g + cfg.get('tbc', 28), 'BFL', 'B')
            g = X.putd(seq + pr(3) + pr(4), g+1, cfg.get('tp2', 4))
        else: g = X.putd({3: lambda: pr(3) + seq + pr(4), 4: lambda: pr(4) + seq, 2: lambda: pr(2) + seq + pr(3) + pr(4)}[NH](), 1, cfg.get('tp2', 6))
        g = X.putd([self.poll_load(250, 'CF')], max(g, cfg.get('tcp', 110)))
        g = X.check(g + cfg.get('tgc', 28), 'CF', 'C')
        X.putd([Op('buffer_load_dwordx4 %s, v%d, s[%d:%d], s%d offen offset:%d sc1' % (vr(BF+4*c,4), BAR[c >> 1], S_WS, S_WS+3, S_BS, (c & 1)*1024), prod=('BF', c)) for c in range(2*NQ)], g, cfg.get('tp3', 4))
        wt = [Op('ds_read_b64 %s, v252 offset:%d' % (vr(RR+2*q,2), q*128), prod=('PST', q)) for q in range(NQ)]
        for q in range(NQ):
            l0, m0, l1, m1, t0 = ST+2*q, ST+2*q+1, RR+2*q, RR+2*q+1, 248
            wt += [Op('v_min_f32 v%d, v%d, v%d' % (t0, m0, m1), need=[('PST', q)]), 'v_sub_f32 v%d, v%d, v%d' % (m0, t0, m0), 'v_sub_f32 v%d, v%d, v%d' % (m1, t0, m1),
                   'v_exp_f32 v%d, v%d' % (m0, m0), 'v_exp_f32 v%d, v%d' % (m1, m1), 'v_mul_f32 v%d, v%d, v%d' % (l0, l0, m0), 'v_fmac_f32 v%d, v%d, v%d' % (l0, l1, m1),
                   'v_rcp_f32 v%d, v%d' % (l0, l0), 's_nop 0', 'v_mul_f32 v%d, v%d, v%d' % (CW+2*q, m0, l0), 'v_mul_f32 v%d, v%d, v%d' % (CW+2*q+1, m1, l0)]
        unp = lambda d, s_, need=(): [Op('v_lshlrev_b32 v%d, 16, v%d' % (d, s_), need=list(need)), 'v_and_b32 v%d, s%d, v%d' % (d+1, S_MK, s_)]
        def mix(q):
            return ['v_mul_f32 v%d, v%d, v%d' % (A0+16*q+x, A0+16*q+x, CW+2*q) for x in range(16)] + \
                   ['v_fmac_f32 v%d, v%d, v%d' % (A0+16*q+x, A1+16*(q & 1)+x, CW+2*q+1) for x in range(16)]
        def comb(q):
            ad = lambda k: (4 if q == 4 else 8, (q*16384 + k*1024) % 65536)
            rd = lambda k: Op('ds_read_b128 %s, v%d offset:%d' % ((vr(OT+4*(k & 1),4),) + ad(k)), prod=('CO', q, k))
            r = [rd(0), rd(1)]; C = vr(CW+2*q, 2)
            for k in range(4):
                for x in range(4): r += unp(RR+8+2*x, PR+16*(q-NH)+4*k+x, [('PR', q, k)] if x == 0 else [])
                for x in range(4): r += unp(RR+2*x, OT+4*(k & 1)+x, [('CO', q, k)] if x == 0 else [])
                r += ['v_pk_mul_f32 %s, %s, %s op_sel:[0,1] op_sel_hi:[1,1]' % (vr(RR+8+2*x,2), vr(RR+8+2*x,2), C) for x in range(4)]
                r += ['v_pk_fma_f32 %s, %s, %s, %s op_sel_hi:[1,0,1]' % (vr(RR+2*x,2), vr(RR+2*x,2), C, vr(RR+8+2*x,2)) for x in range(4)]
                if k < 2: r.append(rd(k+2))
                r += ['v_cvt_pk_bf16_f32 v%d, v%d, v%d' % (PK+4*(k & 1)+x, RR+2*x, RR+2*x+1) for x in range(4)]
                r.append(Op('ds_write_b128 v%d, %s offset:%d' % (ad(k)[0], vr(PK+4*(k & 1),4), ad(k)[1]), prod=('CW', q)))
            return r
        def fin_a(q):
            r = []
            for p in range(2):
                for x in range(4): r += unp(RR+8*p+2*x, BF+8*q+4*p+x, [('BF', 2*q+p)] if x == 0 else [])
            return r
        def fin_b(q, pk=False):
            r = []; S = A0+16*q if q < NH else A1+16*(q & 1)
            for p in range(2):
                if pk: r += ['v_pk_add_f32 %s, %s, %s' % (vr(RR+8*p+x,2), vr(RR+8*p+x,2), vr(S+8*p+x,2)) for x in range(0, 8, 2)]
                else: r += ['v_add_f32 v%d, v%d, v%d' % (RR+8*p+x, RR+8*p+x, S+8*p+x) for x in range(8)]
                r += ['v_cvt_pk_bf16_f32 v%d, v%d, v%d' % (PK+4*p+x, RR+8*p+2*x, RR+8*p+2*x+1) for x in range(4)]
                r += ['ds_write_b128 v6, %s offset:%d' % (vr(PK+4*p,4), p*1024), Op('ds_read_b128 %s, v8 offset:%d' % (vr(OT+4*p,4), p*1024), prod=('OT', q, p))]
            return r
        def fin_c(q):
            return ['s_add_u32 s%d, s%d, %d' % (S_T1, S_OP, q*16384)] + [Op('buffer_store_dwordx4 %s, v7, s[16:19], s%d offen offset:%d%s' % (vr(OT+4*p,4), S_T1, p*64, cfg.get('opol', ' nt') if q < cfg.get('sc3', 5) else ''), need=[('OT', q, p)]) for p in range(2)]
        W0, W1, W2 = cfg.get('tw', (88, 160, 226) if self.TWO else (64, 140, 212))
        fa = lambda q: fin_a(q) + (fin_c(q-1) if q else []) + fin_b(q)
        if NH == 4:
            E0, E1, E2 = cfg.get('te', (56, 127, 170))
            fx = spread(fx, wt, n, 2, E0)
            fx = spread(fx, comb(4) + mix(0), n, E0, E1)
            fx = spread(fx, mix(1), n, 130, E2)
            fx = spread(fx, fa(0) + mix(2) + fa(1), n, E2, 256)
            fx = spread(fx, fa(2) + mix(3) + fa(3) + fin_a(4) + fin_c(3), n, 256, n)
        elif NH == 2:
            E0 = cfg.get('te', 40)
            fx = spread(fx, wt, n, 2, E0)
            fx = spread(fx, comb(2), n, E0, 100)
            fx = spread(fx, mix(0) + comb(3), n, 100, 164)
            fx = spread(fx, mix(1) + comb(4), n, 164, 226)
            fx = spread(fx, fin_a(2) + fin_b(2), n, 226, 256)
            fx = spread(fx, fin_a(0) + fin_c(2) + fin_b(0) + fa(1) + fin_a(3) + fin_c(1) + fin_b(3) + fin_a(4) + fin_c(3), n, 256, n)
        elif cfg.get('even', 1) and not self.TWO:
            sp_ = spread_dp if cfg.get('tdp', 1) else spread
            E0, E1, E2 = cfg.get('te', (56, 127, 191))
            fx = sp_(fx, wt, n, 2, E0)
            fx = sp_(fx, comb(3) + mix(0), n, E0, E1)
            fx = sp_(fx, comb(4) + mix(1), n, E1, E2)
            fx = sp_(fx, fin_a(0) + fin_b(0) + mix(2) + fin_c(0) + fin_a(1) + fin_b(1) + fin_a(2) + fin_c(1) + fin_b(2) + fin_a(3) + fin_c(2) + fin_b(3) + fin_a(4) + fin_c(3), n, E2, n)
        else:
            fx = spread(fx, wt, n, 2, 64)
            fx = spread(fx, mix(0) + comb(3), n, W0, W1)
            fx = spread(fx, mix(1) + comb(4), n, W1, W2)
            fx = spread(fx, mix(2) + fin_a(0) + fin_b(0), n, W2, 256)
            fx = spread(fx, fin_a(1) + fin_c(0) + fin_b(1) + fin_a(2) + fin_c(1) + fin_b(2) + fin_a(3) + fin_c(2) + fin_b(3) + fin_a(4) + fin_c(3), n, 256, n)
        where = lambda txt: [g for g in range(n) for y in oplist(fx[g]) if y.text == txt][0]
        for q in range(NH):
            m = mix(q); assert where(m[16]) >= 64*(q+1)+6 and where(m[-1]) < 64*(q+2), (q, where(m[16]), where(m[-1]))
        assert where(fin_b(3)[0]) >= 256+8
        for g in range(n):
            qb, G, nb, h = g//64, (g % 64)//8, (g % 8)//2, g & 1
            h ^= nb & self.SN
            kk = 2*G + h; i = 16*qb + kk; D = vr(A1 + 16*(qb & 1) + 4*nb, 4)
            o.append(Op('%s %s, %s, %s, %s' % (MF, D, self.wreg(kk, nb), vr(BR+4*(i % 8),4), D if (G or g & 1) else '0'), need=[('B2', i | 1)]))
            o += oplist(fx[g])
            if stamp and g == 128: o.append(stamp_op(6))
        if stamp: o.append(stamp_op(8))
        if cfg.get('show'): print('gemm2 est', est_cycles([Op(y.text, need=y.need if kind_of(y) != 'M' else []) for y in oplist(o)]))
        o += ['s_nop 5'] + fin_b(NQ-1, True) + fin_c(NQ-1)
        tr.run('t', o); trq.run('t', o)
        tr.emit(a, 'g1p'); a.label('L_tail2'); tr.emit(a, 't')
        a('s_branch L_k2_fin')
        a.label('L_tailq'); tr.emit(a, 'g1q'); a('s_branch L_tail2')
        self.spin('P', 9)
        if self.TWO: self.spin('B', 9)
        if self.EA: self.spin('A', 248)
        if cfg.get('xp_noc'): a.label('L_spinC'); a('s_branch L_okC')
        else: self.spin('C', 250)
    def vread(self, db, par):
        return [Op('ds_read_b64_tr_b16 %s, v%d offset:%d' % (ar(self.A_RP+4*(db % self.RP)+2*jj,2), self.V_A2 if db & 1 else self.V_A, par*32768 + jj*16384 + (db >> 1)*1024), prod=('V', par, db)) for jj in range(2)]
    def preads(self, qb, par):
        if not self.PL: return [self.pread(qb, par)]
        o = 4*(par*self.NQ+qb)
        return [Op('ds_read2st64_b32 %s, v%d offset0:%d offset1:%d' % (ar(self.A_PP+4*self.NQ*par+4*qb+2*h,2), self.V_PA, o+2*h, o+2*h+1), prod=('P', par, qb)) for h in range(2)]
    def pread(self, qb, par):
        return Op('ds_read_b128 %s, v%d offset:%d' % (ar(self.A_PP+4*self.NQ*par+4*qb,4), self.V_PA, (par*self.NQ+qb)*1024), prod=('P', par, qb))
    def pv_body(self, par):
        NQ = self.NQ; n = self.n; cfg = self.cfg
        G = Gaps(n)
        LA = min(self.RP - 1, cfg['lap']); W = cfg['pw']; PP = cfg.get('kpf', 0) and cfg.get('kpp', 1)
        for db in range(16):
            d2 = db + LA; p2 = par
            if d2 >= 16: d2 -= 16; p2 ^= 1
            VD = cfg.get('vd', 1) if db < 15 else 1
            if d2 == 0 and par == 1: G.put(Task('V', 'v_xor_b32 v%d, 0x10000, v%d' % (self.V_A, self.V_A)), NQ*(db-1)+VD)
            if d2 == 1 and par == 1: G.put(Task('V', 'v_xor_b32 v%d, 0x10000, v%d' % (self.V_A2, self.V_A2)), NQ*(db-1)+VD)
            r = self.vread(d2, p2)
            G.put(Task('R', r[0]), NQ*db); G.put(Task('R', r[1]), NQ*db+VD)
            if (db+1) % W == 0 and db < 15:
                G.put(Task('S', Op(None, need=[('V', par, db+W)])), NQ*db)
        gb = n - cfg['bp']
        while not G.fits(gb, 'X'): gb -= 1
        assert gb > NQ*(15-LA)+1, (gb, LA)
        bar = G.put(Task('X', [Op(None, need=[('V', par, 15)], extra='vmcnt(%d)' % (cfg['dv'] + (1 if PP else 0)) if cfg['dq'] < 16 else ''), 's_barrier']), gb)
        prev = fr = G.asap(Task('R', self.flag_read(par), [(bar,1)]))
        for qb in range(NQ):
            for x in self.preads(qb, par ^ 1): prev = G.asap(Task('R', x, [(prev,1)]))
        fw = G.put(Task('SV', [Op(None, need=[('F', par)]), 'v_cmp_eq_u32 vcc, s%d, v%d' % (S_T, self.V_F)]), n-3)
        G.put(Task('SSS', ['s_add_u32 s%d, s%d, 1' % (S_T, S_T), ('s_cmp_lg_u32 s%d, s%d' if par else 's_cmp_eq_u32 s%d, s%d') % (S_T, S_N),
                           Op(None, need=[('P', par^1, NQ-1), ('V', par^1, W-1)])]), n-2)
        G.put(Task('B', ['s_cbranch_vccnz L_prec%d' % par, 'L_pback%d:' % par]), n-1)
        dd = self.place_dma(G, cfg['dq'], 16-cfg['dq'], cfg['dp0'], cfg['dpend'], False, (15-cfg['dq']-cfg['dv']+cfg.get('kpo', cfg['dv'])) if PP else None)
        assert all(t.gap < gb for t, _ in dd)
        if cfg.get('show'): print('PV', par, G.show())
        ops = []
        for g in range(n):
            db, qb = g//NQ, g % NQ
            need = []
            if qb == 0: need.append(('V', par, db))
            if db & self.SN: qb = NQ-1-qb
            if g < NQ: need.append(('P', par, qb))
            D = self.O(8*qb + (db >> 1), 4*(db & 1), 4)
            ops.append(Op('%s %s, %s, %s, %s' % (MF, D, ar(self.A_RP+4*(db % self.RP),4), ar(self.A_PP+4*NQ*par+4*qb,4), D), need=need))
            ops += G.ops(g)
        return ops
    def pv_path(self):
        a = self.a; NQ = self.NQ; cfg = self.cfg; T = self.V_T
        b = Asm()
        if self.T1L:
            for pre, ins in self.dma(0, 16):
                for x in pre: b(x)
                b(ins)
            for it in self.dma_adv():
                for x in it: b(x)
        KP0 = cfg.get('kpf', 0)+1 if cfg.get('kpf', 0) else cfg.get('kp0', 0)
        if KP0:
            a('s_and_b32 s%d, s%d, 7', S_T2, S_QT); a('s_lshl_b32 s%d, s%d, 11', S_T2, S_T2); a('v_lshl_add_u32 v10, v0, 5, s%d', S_T2)
            a('v_add_u32 v22, %d, v10', 32768*cfg.get('kpf', 0))
            for i in range(KP0):
                b('s_add_u32 s%d, s%d, %d', S_T2, S_SRC, 32768*i); b('buffer_load_dword v11, v10, s[%d:%d], s%d offen', S_WS, S_WS+3, S_T2)
        for r in range(4): a('v_mov_b32 v%d, 0', 12+r)
        a('s_nop 1')
        z = ['v_mfma_f32_32x32x16_bf16 %s, v[12:15], v[12:15], 0' % self.O(f, 0, 16) for f in range(0, 8*NQ, 2)]
        for l in b.lines:
            if l.startswith('buffer') and z: a(z.pop(0))
            a(l)
        for l in z: a(l)
        F = self.V_F
        a('v_lshrrev_b32 v%d, 4, v0', T); a('v_sub_u32 v%d, 0, v%d', T, T); a('v_bfe_u32 v%d, v0, 1, 1', F)
        a('v_xor_b32 v%d, v%d, v%d', T, T, F); a('v_and_b32 v%d, 3, v%d', T, T); a('v_lshlrev_b32 v%d, 4, v%d', T, T)
        a('v_lshrrev_b32 v%d, 2, v0', F); a('v_lshl_add_u32 v%d, v%d, 6, v%d', T, F, T)
        a('v_and_b32 v%d, 1, v0', F); a('v_lshl_add_u32 v%d, v%d, 3, v%d', T, F, T)
        a('s_lshl_b32 s%d, s%d, 13', S_T2, S_J); a('v_add_u32 v%d, s%d, v%d', self.V_A, S_T2, T)
        a('v_xor_b32 v%d, 32, v%d', self.V_A2, self.V_A)
        a('v_lshlrev_b32 v%d, %d, v0', self.V_PA, 2 if self.PL else 4); a('v_add_u32 v%d, %d, v%d', self.V_PA, L_P, self.V_PA)
        if cfg.get('stamp') and cfg.get('sthead') == 1: stamp_mid(a, 8)
        if self.T1L: a('s_waitcnt vmcnt(%d)', KP0)
        a('s_barrier')
        for pre, ins in self.dma(0, 16):
            for x in pre: a(x)
            a(ins)
        for it in self.dma_adv():
            for x in it: a(x)
        for db in range(min(self.RP-1, cfg['lap'])):
            for o in self.vread(db, 0): a(o.text)
        a('s_waitcnt vmcnt(%d)', cfg['dv']); a('s_barrier')
        for qb in range(NQ): [a(x.text) for x in self.preads(qb, 0)]
        if cfg.get('stamp'): stamp_mid(a, 9)
        a('s_mov_b32 s%d, 2', S_T); a('s_add_u32 s%d, s%d, 2', S_N, S_N)
        a('s_waitcnt lgkmcnt(0)')
        b0 = self.pv_body(0); b1 = self.pv_body(1)
        a('.p2align 6') if cfg.get('align',1) else None
        for i in range(cfg.get('psh', 0)): a('s_nop 0')
        a.label('L_ploop')
        resolve(a, b0, b1)
        a('s_cbranch_scc1 L_pend')
        resolve(a, b1, b0)
        a('s_cbranch_scc1 L_ploop')
        a.label('L_pend')
        if cfg.get('stamp'): stamp_mid(a, 10)
        if cfg.get('fuse3', 1): self.pv_tail(); (self.tail2 if cfg.get('hyb', 1) else self.tail)()
        else: self.pv_tail_old()
        a.label('L_prec0'); a('s_mov_b32 s%d, 0', S_RET); a('s_branch L_precx')
        a.label('L_prec1'); a('s_mov_b32 s%d, 1', S_RET)
        a.label('L_precx')
        a('s_waitcnt lgkmcnt(0)'); a('s_barrier')
        X = self.V_PX
        self.read_x(X)
        for qb in range(NQ):
            a('v_max3_f32 v%d, v%d, v%d, 0', X+2*qb, X+2*qb, X+2*qb+1)
            a('v_sub_f32 v%d, 0, v%d', X+2*qb, X+2*qb); a('v_exp_f32 v%d, v%d', X+2*qb, X+2*qb)
        a('s_nop 7')
        E = 24
        for f in range(8*NQ):
            qb = f//8
            if f < self.NFV:
                for r in range(8): a('v_mul_f32 %s, %s, v%d', self.O(f, r), self.O(f, r), X+2*qb)
            else:
                for r in range(8): a('v_accvgpr_read_b32 v%d, %s', E+r, self.O(f, r))
                for r in range(8): a('v_mul_f32 v%d, v%d, v%d', E+r, E+r, X+2*qb)
                for r in range(8): a('v_accvgpr_write_b32 %s, v%d', self.O(f, r), E+r)
        a('s_barrier')
        a('s_cmp_eq_u32 s%d, 0', S_RET); a('s_cbranch_scc0 L_precy')
        for qb in range(NQ): [a(x.text) for x in self.preads(qb, 1)]
        a('s_waitcnt lgkmcnt(0)'); a('s_cmp_eq_u32 s%d, s%d', S_T, S_N); a('s_branch L_pback0')
        a.label('L_precy')
        for qb in range(NQ): [a(x.text) for x in self.preads(qb, 0)]
        a('s_waitcnt lgkmcnt(0)'); a('s_cmp_lg_u32 s%d, s%d', S_T, S_N); a('s_branch L_pback1')
    def qprime(self):
        a = self.a; NQ = self.NQ; n = self.n; T = self.V_T
        assert NQ == 5
        RA = 64; DD = 16; PK = 8; BA = 2; WA = 56; S_AP = S_T3; S_X = S_T1
        ONE = self.cfg.get('one', 1)
        tr = self.tr0 if ONE else Trace(); ops = []
        LN2 = self.cfg.get('ln2', 1); KSC = ' sc1' if (LN2 and self.cfg.get('ksc', 1)) else ''
        Xs = [128+16*q for q in range(5)]
        if ONE: pass
        elif LN2:
            ops += ln_lane_addr(58, 59, S_W, 1)
            ops += ['s_lshl_b32 s%d, s%d, 14' % (S_X, S_RB), 's_lshl_b32 s%d, s%d, 9' % (S_T2, S_SP), 's_add_u32 s%d, s%d, s%d' % (S_T0, S_X, S_T2), 's_xor_b32 s%d, s%d, 512' % (S_T2, S_T0)]
            ops += ['s_mov_b32 s60, s%d' % S_T0, 's_mov_b32 s61, s%d' % S_T2, 'v_mov_b32 v55, v58']
            X0 = self.cfg.get('x0', 3) if self.cfg.get('lnb', 1) else 5
            xlate = []
            for q in range(5):
                l = [Op('buffer_load_dwordx4 %s, v55, s[12:15], s%d offen offset:%d' % (vr(Xs[q]+4*k,4), 61 if k & 2 else 60, (k & 1)*256), prod=(('X', q), k)) for k in range(4)]
                if q < 4: l += ['s_add_u32 s60, s60, 16384', 's_add_u32 s61, s61, 16384']
                if q < X0: ops += l
                else: xlate.append(l)
        else:
            ops += ['s_mul_i32 s%d, s%d, 20480' % (S_T2, S_W), 's_lshl_b32 s%d, s%d, 14' % (S_X, S_RB), 's_add_u32 s%d, s%d, s%d' % (S_X, S_X, S_T2)]
            for d in range(20):
                if d % 4 == 0: ops += ['s_add_u32 m0, s%d, %d' % (S_T2, L_ST + d*1024), 's_add_u32 s%d, s%d, %d' % (S_T0, S_X, d*1024)]
                ops.append(Op('buffer_load_dwordx4 v%d, s[%d:%d], s%d offen offset:%d lds' % (self.V_L16, S_WS, S_WS+3, S_T0, (d%4)*1024), prod='XS'))
        ops += ['s_mov_b32 s%d, s6' % S_AP] if ONE else ['s_lshl_b32 s%d, s%d, 17' % (S_AP, S_W), 's_add_u32 s%d, s%d, 0x%x' % (S_AP, S_AP, WS_MF)]
        RO = 16 if ONE else 0
        def aload(f):
            o = [Op('buffer_load_dwordx4 %s, v%d, s[%d:%d], s%d offen offset:%d%s' % (vr(RA+4*((f+RO) % 32),4), self.V_L16, S_WS, S_WS+3, S_AP, (f%4)*1024, ' sc1' if ONE else ''), prod=('A', f))]
            return o, (['s_add_u32 s%d, s%d, 4096' % (S_AP, S_AP)] if f % 4 == 3 else [])
        LNB = LN2 and self.cfg.get('lnb', 1)
        A0 = self.cfg.get('qa0', 0 if LNB else (16 if LN2 else 8))
        if ONE: A0 = self.cfg.get('qla', 16)
        for f in range(14 if ONE else 0, A0):
            o, s_ = aload(f); ops += o + s_
        if self.cfg.get('stamp') and self.cfg.get('sthead') == 1: ops.append(stamp_op(1))
        tr.run('pre', ops); tr.emit(a, 'pre')
        if self.cfg.get('fuse3', 1): self.tail_sgprs()
        h_frag_addr(a, BA, T); a('v_add_u32 v%d, %d, v%d', BA, L_ST, BA); a('v_add_u32 v%d, 0x10000, v%d', BA+1, BA)
        a('s_lshl_b32 s%d, s%d, 12', S_T2, S_W); a('s_add_u32 s%d, s%d, %d', S_T2, S_T2, L_ST)
        a('v_add_u32 v%d, s%d, v%d', WA, S_T2, self.V_L16); a('v_add_u32 v%d, 0x10000, v%d', WA+1, WA)
        a('v_mov_b32 v%d, -1', T); a('ds_write_b32 v%d, v%d', self.V_FA, T); a('s_waitcnt lgkmcnt(0)')
        a('s_lshl_b32 s%d, s%d, 14', S_T2, S_W); a('s_add_u32 s%d, s%d, s%d', S_X, S_SRC, S_T2)
        def pos(g):
            G = g//(2*NQ); w = g % (2*NQ); return w//2, 2*G + ((w & 1) ^ ((w//2) & self.SN))
        def bread(g):
            qb, kk = pos(g); off = qb*16384 + kk*1024
            return Op('ds_read_b128 %s, v%d offset:%d' % (self.R(4*(kk*NQ+qb),4), BA + off//65536, off % 65536), prod=('B', g))
        def ep(i):
            o = []
            for qb in range(NQ):
                D = DD + 20*(i & 1) + 4*qb; P = PK + 2*(qb % 4); off = qb*16384 + (i >> 1)*1024 + 8*(i & 1)
                o += ['v_cvt_pk_bf16_f32 v%d, v%d, v%d' % (P, D, D+1), 'v_cvt_pk_bf16_f32 v%d, v%d, v%d' % (P+1, D+2, D+3),
                      'ds_write_b64 v%d, %s offset:%d' % (WA + off//65536, vr(P,2), off % 65536)]
            return o
        PRE = 10
        ops = []
        if LN2 and not ONE:
            ops += ln_h_addr(58, 59, S_W) + ['s_lshl_b32 s%d, s%d, 13' % (S_T0, S_SP), 'v_add_u32 v58, s%d, v58' % S_T0, 'v_add_u32 v60, %d, v58' % L_ST, 'v_xor_b32 v61, 0x2000, v60',
                                             'v_add_u32 v62, 0x10000, v60', 'v_add_u32 v63, 0x10000, v61', 's_lshl_b32 s%d, s%d, 14' % (S_RET, S_RB)]
            def wr(q, k, reg):
                off = q*16384 + (k & 1)*4096
                r = ['ds_write_b128 v%d, %s offset:%d' % (60 + (k >> 1) + 2*(off//65536), vr(reg,4), off % 65536)]
                if k < 2 and not (self.cfg.get('noxst') and q): r += ['s_add_u32 s%d, s%d, %d' % (S_T0 if q & 1 else S_SPIN, S_RET, off), Op('buffer_store_dwordx4 %s, v58, s[%d:%d], s%d offen%s' % (vr(reg,4), S_WS, S_WS+3, S_T0 if q & 1 else S_SPIN, '' if self.cfg.get('xplain') else ' sc1'), prod='XST')]
                return r
            if LNB:
                cnt = self.cfg.get('lnx', [0, 0, 6, 5, 5]); ex = []
                for q in range(5):
                    e = xlate.pop(0) if xlate else []
                    for c in range(cnt[q]):
                        assert A0 < 16 + 4*q
                        o_, s_ = aload(A0); e += o_ + s_; A0 += 1
                    ex.append(e)
                ops += ln80b(Xs, 16, 48, 'X', S_MK, 54, wr, ex)
            else: ops += ln80(Xs, [16, 208], [48, 240], 'X', S_MK, wr)
            if self.cfg.get('stamp') and self.cfg.get('sthead'): ops.append(stamp_op(5))
        if LN2:
            ops += ['s_lshl_b32 s%d, s3, 7' % S_RET, 's_add_u32 s%d, s%d, 0x%x' % (S_RET, S_RET, WS_FLG + 128*FLG_X),
                    's_mul_i32 s%d, s%d, 50' % (S_T0, S_SP), 'v_min_u32 v58, 51, v0', 'v_add_u32 v58, s%d, v58' % S_T0, 'v_min_u32 v58, 0x63, v58',
                    'v_lshl_add_u32 v58, v58, 1, s%d' % S_B, 's_xor_b32 s%d, s3, 2' % S_T0, 'v_cmp_eq_u32 vcc, 63, v0', 'v_mov_b32 v59, s%d' % S_T0, 's_nop 0', 'v_cndmask_b32 v58, v58, v59, vcc', 'v_lshlrev_b32 v58, 7, v58', 'v_add_u32 v58, 0x%x, v58' % (WS_FLG + 128*FLG_X), 'v_min_u32 v60, 1, v0', 'v_lshlrev_b32 v60, 30, v60', 'v_mov_b32 v62, s7', 's_getreg_b32 s%d, hwreg(HW_REG_XCC_ID, 0, 4)' % S_SAME, 'v_mov_b32 v63, s%d' % S_SAME,
                    's_cmp_eq_u32 s%d, 0' % S_W, 's_cselect_b32 s%d, s%d, 0x%x' % (S_RET, S_RET, WS_SIZE)]
        ops += [Op('s_barrier', need=['ALLL'] if LN2 else ['XS'])] + [bread(g) for g in range(PRE)]
        QLA = self.cfg.get('qla', 16); assert A0 <= QLA
        for f in range(A0, QLA):
            o, s_ = aload(f); ops += o + s_
        for i in range(8):
            if self.cfg.get('stamp') and self.cfg.get('sthead') == 1 and i in (0,1,2,6): ops.append(stamp_op({0:2,1:3,2:4,6:6}[i]))
            if self.cfg.get('stamp') and self.cfg.get('sthead') == 2 and i == 1: ops.append(stamp_op(8))
            fx = [[] for _ in range(n)]
            for G in range(8):
                for h in range(2):
                    f = 16*i + QLA + 2*G + h; gp = 2*NQ*G + 5*h
                    if f < 128:
                        o, s_ = aload(f); fx[gp] += o; fx[gp+1] += s_
                    d = 16*(i-6) + 2*G + h - self.cfg.get('qd0', 12)
                    if 0 <= d < 16:
                        if d % 4 == 0: fx[gp+1] += ['s_add_u32 m0, s%d, %d' % (S_T2, d*1024), 's_add_u32 s%d, s%d, %d' % (S_T0, S_X, d*1024)]
                        fx[gp+2].append('buffer_load_dwordx4 v%d, s[%d:%d], s%d offen offset:%d%s lds' % (self.V_L16, S_WS, S_WS+3, S_T0, (d%4)*1024, KSC))
                nxt = 16*i + 2*G + 3
                if nxt < 128: fx[2*NQ*G + 8].append(Op(None, need=[('A', nxt)]))
            if i == 0:
                for g in range(n - PRE): fx[g].insert(0, bread(g+PRE))
            if i == 1: fx[2].append('s_barrier')
            if LN2 and i == self.cfg.get('xfb', 2):
                fx[72].append(Op('s_barrier', need=['XST'])); fx[73].append('buffer_store_dwordx2 v[62:63], v60, s[%d:%d], s%d offen sc1' % (S_WS, S_WS+3, S_RET))
            if LN2 and i == 5: fx[33].append(self.poll_load(58, 'XF'))
            if LN2 and i == 6:
                fx[1].append(Op('v_cmp_ne_u32 vcc, s7, v%d' % self.V_F, need=['XF'])); fx[3] += ['s_cbranch_vccnz L_spinX', 'L_okX:']
                fx[13].append(Op('buffer_load_dword v59, v58, s[%d:%d], 0 offen offset:4 sc1' % (S_WS, S_WS+3), prod='XC'))
            if i: fx = spread(fx, ep(i-1), n, 4)
            for g in range(n):
                qb, kk = pos(g); D = vr(DD + 20*(i & 1) + 4*qb, 4)
                need = [('A', 16*i+kk)] + ([('B', g | 1)] if i == 0 else [])
                ops.append(Op('%s %s, %s, %s, %s' % (MF, D, vr(RA+4*((16*i+kk+RO) % 32),4), self.R(4*(kk*NQ+qb),4), D if (g >= 2*NQ or g & 1) else '0'), need=need))
                ops += oplist(fx[g])
        ops += ep(7) + [Op('s_barrier', need=['ALLV', 'ALLL'])]
        if LN2: ops += ['v_readlane_b32 s%d, v59, 63' % S_T0, 's_nop 0', 's_cmp_eq_u32 s%d, s%d' % (S_T0, S_SAME), 's_cselect_b32 s%d, %d, 0' % (S_SAME, 0 if self.cfg.get('forceslow') else 1)]
        tr.run('main', ops); tr.emit(a, 'main')
    def qprime6(self):
        a = self.a; NQ = self.NQ; n = self.n; T = self.V_T; cfg = self.cfg
        RA = 64; DD = 16; BA = 2; WA = 56; WS0 = 8; S_AP = S_T3; S_X = S_T1; S_QO = 60; S_QI = 61; S_QL = 62; S_QF = 63; S_J1 = 44
        PKF = 64
        T1L = cfg.get('t1l', 1); ND = 8 if T1L else 16
        NB = 6; NF = 16*NB; QLA = 16; st1 = cfg.get('stamp') and cfg.get('sthead') == 1; st2 = cfg.get('stamp') and cfg.get('sthead') == 2
        tr = self.tr0
        reg = lambda f: vr(128 + 4*(f % 16) if (f//16) % 2 == 0 or (f % 16) < 5 else 64 + 4*(f % 16), 4)
        def aload(f):
            o = [Op('buffer_load_dwordx4 %s, v%d, s[%d:%d], s%d offen offset:%d sc1' % (self.areg(f), self.V_L16, S_WS, S_WS+3, S_AP, (f%4)*1024), prod=('A', f))]
            if f == 31: return o, ['s_mov_b32 s%d, s%d' % (S_AP, S_J1)]
            return o, (['s_add_u32 s%d, s%d, 4096' % (S_AP, S_AP)] if f % 4 == 3 else [])
        self.areg = lambda f: vr(84 + 4*((f + 11) % 27), 4)
        ops = ['s_mov_b32 s%d, s6' % S_AP]
        for f in range(14, QLA):
            o, s_ = aload(f); ops += o + s_
        t = Asm(); h_frag_addr(t, BA, T); ops += t.lines + ['v_add_u32 v%d, %d, v%d' % (BA, L_ST, BA), 'v_add_u32 v%d, 0x10000, v%d' % (BA+1, BA)]
        def pos(g):
            G = g//(2*NQ); w = g % (2*NQ); return w//2, 2*G + ((w & 1) ^ ((w//2) & self.SN))
        def bread(g):
            qb, kk = pos(g); off = qb*16384 + kk*1024
            return Op('ds_read_b128 %s, v%d offset:%d' % (self.R(4*(kk*NQ+qb),4), BA + off//65536, off % 65536), prod=('B', g))
        PRE = 10
        ops += [Op('s_barrier', need=['ALLL'])] + [bread(g) for g in range(PRE)]
        t = Asm(); sv = self.a; self.a = t; self.tail_sgprs(); self.a = sv
        su = t.lines + ['s_lshl_b32 s%d, s%d, 17' % (S_J1, S_W), 's_add_u32 s%d, s%d, 0x%x' % (S_J1, S_J1, WS_MF + 32768),
              's_lshl_b32 s%d, s%d, 12' % (S_T2, S_W), 's_add_u32 s%d, s%d, %d' % (S_T2, S_T2, L_ST),
              'v_add_u32 v%d, s%d, v%d' % (WA, S_T2, self.V_L16), 'v_add_u32 v%d, 0x10000, v%d' % (WA+1, WA),
              's_mul_i32 s%d, s%d, 3072' % (S_T0, S_SP), 'v_add_u32 v%d, s%d, v%d' % (WS0, S_T0, WA), 'v_add_u32 v%d, s%d, v%d' % (WS0+1, S_T0, WA+1),
              's_sub_u32 s%d, s%d, s%d' % (S_QL, S_T2, S_T0), 's_add_u32 s%d, s%d, 3072' % (S_QL, S_QL),
              's_lshl_b32 s%d, s3, 2' % S_T0, 's_add_u32 s%d, s%d, s%d' % (S_T0, S_T0, S_W), 's_mul_i32 s%d, s%d, 5120' % (S_QO, S_T0), 's_add_u32 s%d, s%d, 0x%x' % (S_QO, S_QO, WS_QX),
              's_xor_b32 s%d, s%d, 8' % (S_T0, S_T0), 's_mul_i32 s%d, s%d, 5120' % (S_QI, S_T0), 's_add_u32 s%d, s%d, 0x%x' % (S_QI, S_QI, WS_QX),
              's_lshl_b32 s%d, s3, 7' % S_RET, 's_add_u32 s%d, s%d, 0x%x' % (S_QF, S_RET, WS_FLG + 128*FLG_Q), 's_add_u32 s%d, s%d, 0x%x' % (S_RET, S_RET, WS_FLG + 128*FLG_X),
              's_xor_b32 s%d, s%d, 256' % (S_T0, S_QF), 'v_mov_b32 v59, s%d' % S_T0,
              's_mul_i32 s%d, s%d, 50' % (S_T0, S_SP), 'v_min_u32 v58, 51, v0', 'v_add_u32 v58, s%d, v58' % S_T0, 'v_min_u32 v58, 0x63, v58',
              'v_lshl_add_u32 v58, v58, 1, s%d' % S_B, 'v_lshlrev_b32 v58, 7, v58', 'v_add_u32 v58, 0x%x, v58' % (WS_FLG + 128*FLG_X),
              'v_or_b32 v60, s%d, v0' % S_W, 'v_min_u32 v60, 1, v60', 'v_lshlrev_b32 v60, 30, v60', 'v_mov_b32 v61, s7', 'v_mov_b32 v62, -1',
              's_lshl_b32 s%d, s%d, %d' % (S_T2, S_W, 13 if T1L else 14), 's_add_u32 s%d, s%d, s%d' % (S_X, S_SRC, S_T2)]
        assert (WS_FLG + 128*FLG_Q) % 512 == 0
        ops += [x for x in su if x.startswith('s_') and False]
        def ep(i):
            o = []
            for qb in range(NQ):
                D = DD + 20*(i & 1) + 4*qb
                if i < 2: P = PKF + 4*qb + 2*i; off = qb*16384 + 8*i; wa = WS0
                else: P = 10 + 2*(qb % 3); off = qb*16384 + (i >> 1)*1024 + 8*(i & 1); wa = WA
                o += ['v_cvt_pk_bf16_f32 v%d, v%d, v%d' % (P, D, D+1), 'v_cvt_pk_bf16_f32 v%d, v%d, v%d' % (P+1, D+2, D+3),
                      'ds_write_b64 v%d, %s offset:%d' % (wa + off//65536, vr(P,2), off % 65536)]
                if i == 1:
                    if qb == 4: o.append('s_add_u32 s%d, s%d, 4096' % (S_QO, S_QO))
                    o.append(Op('buffer_store_dwordx4 %s, v%d, s[%d:%d], s%d offen offset:%d sc1' % (vr(PKF+4*qb,4), self.V_L16, S_WS, S_WS+3, S_QO, (qb % 4)*1024), prod='QST'))
            return o
        XB = cfg.get('q6x', (1, 72)); QB = cfg.get('q6q', (3, 22)); XP = cfg.get('q6xp', (3, 43)); XC = cfg.get('q6xc', (4, 1))
        QP = cfg.get('q6qp', (4, 33)); QC = cfg.get('q6qc', (5, 1)); D0 = cfg.get('q6d', 12 if T1L else 4)
        fl = lambda sreg: 'buffer_store_dword v61, v60, s[%d:%d], s%d offen sc1' % (S_WS, S_WS+3, sreg)
        nf = [QLA]
        for i in range(NB):
            if st1 and i in (0,1,2,4): ops.append(stamp_op({0:2,1:3,2:4,4:6}[i]))
            if st2 and i == 1: ops.append(stamp_op(8))
            fx = [[] for _ in range(n)]
            for G in range(8):
                for h in range(2):
                    gp = 2*NQ*G + 5*h
                    if nf[0] < NF:
                        o, s_ = aload(nf[0]); fx[gp] += o; fx[gp+1] += s_; nf[0] += 1
                    if i == 1 and h == 1 and G < cfg.get('q6r', 0):
                        o, s_ = aload(nf[0]); fx[gp+2] += o; fx[gp+3] += s_; nf[0] += 1
                    assert nf[0] - (16*i + 2*G) <= 27
                    d = 16*(i-4) + 2*G + h - D0
                    if 0 <= d < ND:
                        if d % 4 == 0: fx[gp+1] += ['s_add_u32 m0, s%d, %d' % (S_T2, d*1024), 's_add_u32 s%d, s%d, %d' % (S_T0, S_X, d*1024)]
                        fx[gp+2].append('buffer_load_dwordx4 v%d, s[%d:%d], s%d offen offset:%d sc1 lds' % (self.V_L16, S_WS, S_WS+3, S_T0, (d%4)*1024))
                nxt = 16*i + 2*G + 3
                if nxt < NF: fx[2*NQ*G + 8].append(Op(None, need=[('A', nxt)]))
            if i == 0:
                for g in range(n - PRE): fx[g].insert(0, bread(g+PRE))
            if i == 1: fx[2].append('s_barrier'); fx[3].append('ds_write_b32 v%d, v62' % self.V_FA)
            if i == XB[0]: fx[XB[1]].append(Op('s_barrier', need=['XST'])); fx[XB[1]+1].append(fl(S_RET))
            if i == QB[0]: fx[QB[1]].append(Op('s_barrier', need=['QST'])); fx[QB[1]+1].append(fl(S_QF))
            if i == XP[0]: fx[XP[1]].append(self.poll_load(58, 'XF'))
            if i == XC[0]: fx[XC[1]].append(Op('v_cmp_ne_u32 vcc, s7, v%d' % self.V_F, need=['XF'])); fx[XC[1]+2] += ['s_cbranch_vccnz L_spinX', 'L_okX:']
            if i == QP[0]: fx[QP[1]].append(self.poll_load(59, 'QF'))
            if i == QC[0]:
                fx[QC[1]].append(Op('v_cmp_ne_u32 vcc, s7, v%d' % self.V_F, need=['QF'])); fx[QC[1]+2] += ['s_cbranch_vccnz L_spinQ', 'L_okQ:']
                g0 = max(QC[1]+4, 5*(D0 + ND - 16*(i-4)))
                g0 += (-g0) % 5
                for qb in range(NQ):
                    fx[g0+5*qb-1] += ['s_add_u32 m0, s%d, %d' % (S_QL, qb*16384), 's_add_u32 s%d, s%d, %d' % (S_T0, S_QI, qb*1024)]
                    fx[g0+5*qb].append('buffer_load_dwordx4 v%d, s[%d:%d], s%d offen sc1 lds' % (self.V_L16, S_WS, S_WS+3, S_T0))
            fx = spread(fx, ep(i-1), n, 4) if i else spread(fx, su, n, 0, None, 2)
            for g in range(n):
                qb, kk = pos(g); D = vr(DD + 20*(i & 1) + 4*qb, 4)
                need = [('A', 16*i+kk)] + ([('B', g | 1)] if i == 0 else [])
                ops.append(Op('%s %s, %s, %s, %s' % (MF, D, self.areg(16*i+kk), self.R(4*(kk*NQ+qb),4), D if (g >= 2*NQ or g & 1) else '0'), need=need))
                ops += oplist(fx[g])
        ops += ep(NB-1) + [Op('s_barrier', need=['ALLV', 'ALLL'])]
        tr.run('main', ops); tr.emit(a, 'main')
    def gen_body(self):
        a = self.a; cfg = self.cfg; NQ = self.NQ; NS = self.NS; T = self.V_T
        a('s_and_b32 s%d, s3, 1', S_B); a('s_bfe_u32 s%d, s3, 0x10001', S_SP); a('s_lshr_b32 s%d, s3, 2', S_QT)
        a('s_mul_i32 s%d, s%d, %d', S_RB, S_QT, NQ); a('s_sub_u32 s%d, 249, s%d', S_NV, S_RB)
        a('s_mul_i32 s%d, s%d, 250', S_T0, S_B); a('s_add_u32 s%d, s%d, s%d', S_RB, S_RB, S_T0)
        per = cfg.get('per', 63)
        a('s_mul_i32 s%d, s%d, %d', S_T1, S_SP, per); a('s_sub_u32 s%d, 125, s%d', S_N, S_T1); a('s_min_u32 s%d, s%d, %d', S_N, S_N, per)
        a('s_mul_i32 s%d, s%d, 125', S_T0, S_B); a('s_add_u32 s%d, s%d, s%d', S_T1, S_T1, S_T0)
        a(('s_lshr_b32 s%d, s%d, 1' if cfg.get('roles', 0) else 's_and_b32 s%d, s%d, 1') % (S_J, S_W))
        a('s_lshl_b32 s%d, s%d, 15', S_SRC, S_T1); a('s_add_u32 s%d, s%d, s%d', S_T1, S_T1, S_N); a('s_lshl_b32 s%d, s%d, 15', S_END, S_T1)
        assert WS_XA == 0
        a('s_mov_b32 s%d, 0x%x', S_THR, 0x40004000 if self.W2 else f2u(2.0**cfg.get('thr', 40)))
        a('v_mov_b32 v%d, %d', self.V_FA, L_FLAG)
        a('s_lshl_b32 s%d, s%d, 2', S_T2, S_J); a('s_add_u32 s%d, s%d, %d', S_T2, S_T2, L_X); a('v_lshl_add_u32 v%d, v0, 3, s%d', self.V_XA, S_T2)
        if cfg.get('one', 1) and cfg.get('q6', 1): self.qprime6()
        else: self.qprime()
        if cfg.get('stamp'): stamp_mid(a, 7)
        self.T1L = cfg.get('one', 1) and cfg.get('q6', 1) and cfg.get('t1l', 1)
        a('s_lshl_b32 s%d, s%d, 14', S_DST, S_J); a('s_add_u32 s%d, s%d, %d', S_DST, S_DST, (1 if self.T1L else 2)*32768)
        a('s_add_u32 s%d, s%d, s%d', S_SRC, S_SRC, S_DST); a('s_mov_b32 s%d, s%d', S_SRCV, S_SRC)
        a('s_bitcmp1_b32 s%d, %d', S_W, 0 if cfg.get('roles', 0) else 1); a('s_cbranch_scc1 L_pv')
        sk = 65536 if self.T1L else 32768
        a('s_add_u32 s%d, s%d, %d', S_SRC, S_SRC, sk); a('s_add_u32 s%d, s%d, %d', S_DST, S_DST, sk); a('s_mov_b32 s%d, s%d', S_SRCV, S_SRC)
        self.qk_path()
        a.label('L_pv')
        self.pv_path()

DEFCFG = dict(NQ=5, NS=2, ringq=8, ringp=8, bq=4, fq=5, dq=6, bp=23, pw=2, dpend=48, laq=1, lap=7, dv=4, dp0=0, dqe=8, w32=0)
```

```python
from asmlib import *
from layout import *
from gen_k0 import srd, h_frag_addr
MF='v_mfma_f32_16x16x32_bf16'
S_WS=8; S_W=20
C1 = 2*0.7978845608028654*1.4426950408889634; C2 = C1*0.044715
L_DW=81920; L_SX=92160; L_DUM=96256; L_XS=102400
NQ=5; n=80
def R(i, k=1): return ar(i, k) if i < 256 else vr(192 + i - 256, k)
SN = [1]
def pos(g):
    G = g//10; w = g % 10; return w//2, 2*G + ((w & 1) ^ ((w//2) & SN[0]))
p2 = lambda r: vr(r, 2)

class Conv:
    L16=1; HA=2; PH=4; XV=5; GA=6; DA=11; XA=12; XR=17; RS=18; U0=28; U1=48; U2=68; DD=88; RA=128
    S_C=21; S_R0=22; S_TB=23; S_AP=24; S_CNT=25; S_T0=26; S_T1=27; S_MK=28; S_OUT=29; S_JMP=30; S_TILE=31
    S_PG=32; S_PU=33; S_PZ=34; S_T3=35; S_M=36
    S_XP=42; S_XL=43; S_FL=44; S_XD=45; S_K=46; S_ONE=48
    def __init__(self, a, cfg): self.a = a; self.cfg = cfg; SN[0] = cfg.get('snake', 1)
    def aload(self, kk, blk):
        return Op('buffer_load_dwordx4 %s, v%d, s[%d:%d], s%d offen offset:%d%s' % (vr(self.RA+4*kk,4), self.L16, S_WS, S_WS+3, self.S_AP, (kk%4)*1024, self.cfg.get('apol', ' sc1')), prod=('A', blk, kk))
    def block(self, blk, par, stream=(), bread=None, jump=None, extra=None, g0=2, tail=()):
        fx = [[] for _ in range(n)]
        for G in range(8):
            for h in range(2):
                kk = (2*G + h - 2) % 16; gp = 10*G + 5*h
                fx[gp].append(self.aload(kk, blk if G == 0 else blk+1))
                if kk % 4 == 3:
                    fx[gp+1] += (jump if (kk == 15 and jump) else ['s_add_u32 s%d, s%d, 4096' % (self.S_AP, self.S_AP)])
            fx[10*G+8].append(Op(None, need=[('A', blk if G < 7 else blk+1, (2*G+3) % 16)]))
        if extra:
            for g, o in extra: fx[g] += oplist(o)
        ops = []; PRE = 10
        if bread is not None:
            def rd(g):
                qb, kk = pos(g); off = qb*16384 + kk*1024
                return Op('ds_read_b128 %s, v%d offset:%d' % (R(4*(kk*NQ+qb),4), bread[off//65536], off % 65536), prod=('B', blk, g))
            ops += [rd(g) for g in range(PRE)]
            for g in range(n-PRE): fx[g].insert(0, rd(g+PRE))
        if stream: fx = (spread_dp if self.cfg.get('dp', 1) else spread)(fx, stream, n, g0)
        for g in range(n):
            qb, kk = pos(g); D = vr(self.DD + 20*par + 4*qb, 4)
            need = [('A', blk, kk)] + ([('B', blk, g | 1)] if bread is not None else [])
            ops.append(Op('%s %s, %s, %s, %s' % (MF, D, vr(self.RA+4*kk,4), R(4*(kk*NQ+qb),4), D if (g >= 10 or g & 1) else '0'), need=need))
            ops += oplist(fx[g])
        if self.cfg.get('show'): print('blk', blk, est_cycles([Op(o.text, need=o.need if kind_of(o) != 'M' else []) for o in ops]))
        return ops + oplist(list(tail))
    def P1(self, D, T, m):
        K = sr(self.S_K, 2)
        return (['v_pk_mul_f32 %s, %s, %s' % (p2(T+r), p2(D+r), p2(D+r)) for r in range(0, m, 2)] +
                ['v_pk_fma_f32 %s, %s, %s, %s op_sel:[0,0,1] op_sel_hi:[1,0,1]' % (p2(T+r), p2(T+r), K, K) for r in range(0, m, 2)] +
                ['v_pk_mul_f32 %s, %s, %s' % (p2(T+r), p2(T+r), p2(D+r)) for r in range(0, m, 2)])
    def E1(self, T, m): return ['v_exp_f32 v%d, v%d' % (T+r, T+r) for r in range(m)]
    def E2(self, T, m): return ['v_rcp_f32 v%d, v%d' % (T+r, T+r) for r in range(m)]
    def P2(self, T, m, pk=True):
        if pk: return ['v_pk_add_f32 %s, %s, %s' % (p2(T+r), p2(T+r), sr(self.S_ONE, 2)) for r in range(0, m, 2)]
        return ['v_add_f32 v%d, 1.0, v%d' % (T+r, T+r) for r in range(m)]
    def mul(self, D, T, pk=True):
        if pk: return ['v_pk_mul_f32 %s, %s, %s' % (p2(D+r), p2(D+r), p2(T+r)) for r in (0, 2)]
        return ['v_mul_f32 v%d, v%d, v%d' % (D+r, D+r, T+r) for r in range(4)]
    def adv_g(self, d): return ['v_add_u32 v%d, %d, v%d' % (self.GA+q, d, self.GA+q) for q in range(NQ)]
    def ep_g(self, t):
        o = []; PK = self.U0; S1 = self.U1; S2 = self.U2; T = self.RS
        def fin(qb):
            D = self.DD + 20*t + 4*qb; P = PK + 4*qb + 2*t
            r = ['v_cvt_pk_bf16_f32 v%d, v%d, v%d' % (P, D, D+1), 'v_cvt_pk_bf16_f32 v%d, v%d, v%d' % (P+1, D+2, D+3),
                 'ds_write_b64 v%d, %s offset:%d' % (self.GA+qb, vr(P,2), 8*t)]
            if self.cfg.get('g128', 1): r = r[:2] + (['ds_write_b128 v%d, %s' % (self.GA+qb, vr(PK+4*qb,4))] if t else [])
            if t:
                F = vr(PK+4*qb,4)
                r += ['v_add_u32 v%d, 1024, v%d' % (self.GA+qb, self.GA+qb),
                      '%s %s, %s, %s, %s' % (MF, vr(S1+4*qb,4), vr(self.XA,4), F, vr(S1+4*qb,4)),
                      '%s %s, %s, %s, %s' % (MF, vr(S2+4*qb,4), F, F, vr(S2+4*qb,4))]
            return r
        late = []
        for q0, m in ((0, 8), (2, 8), (4, 4)):
            D = self.DD + 20*t + 4*q0
            o += self.P1(D, T, m) + late + self.E1(T, m) + self.P2(T, m, False) + self.E2(T, m)
            late = []
            for j in range(m//4):
                o += self.mul(D+4*j, T+4*j, self.cfg.get('gm', 0) and q0 < 4); late += fin(q0+j)
        return o + late
    def ep_u(self, t, blk):
        GN = self.U0; DW = self.U1; TA = self.U2; TB = self.U2+8; CV = self.U2+16; RAW = self.U2+8
        D = lambda q: self.DD + 20*t + 4*q
        rd = [Op('ds_read_b64 %s, v%d offset:%d' % (vr(RAW+2*q,2), self.GA+q, 8*t), prod=('G', blk, q)) for q in range(NQ)]
        rw = [Op('ds_read_b128 %s, v%d offset:%d' % (vr(DW+4*k,4), self.DA, k*2048 + 16*t), prod=('DW', blk, k)) for k in range(5)]
        un = []
        for q in range(NQ):
            for h in range(2): un += ['v_lshlrev_b32 v%d, 16, v%d' % (GN+4*q+2*h, RAW+2*q+h), 'v_and_b32 v%d, s%d, v%d' % (GN+4*q+2*h+1, self.S_MK, RAW+2*q+h)]
        norm = ['v_pk_fma_f32 %s, %s, %s, %s op_sel:[0,0,1] op_sel_hi:[1,0,1]' % (p2(GN+4*q+r), p2(GN+4*q+r), p2(self.RS+2*q), p2(self.RS+2*q)) for q in range(NQ) for r in (0, 2)]
        def cpk(q):
            r_ = ['v_pk_mul_f32 %s, %s, %s' % (p2(CV+r), p2(GN+4*q+r), p2(DW+8+r)) for r in (0, 2)]
            for k in (3, 4, 1, 0):
                if 0 <= q+k-2 <= 4: r_ += ['v_pk_fma_f32 %s, %s, %s, %s' % (p2(CV+r), p2(GN+4*(q+k-2)+r), p2(DW+4*k+r), p2(CV+r)) for r in (0, 2)]
            return r_
        def cdpp(q):
            r_ = []
            for k in (3, 4, 1, 0):
                q2 = q+k-2
                if q2 < 0: r_ += ['v_fmac_f32_dpp v%d, v%d, v%d row_shr:1 row_mask:0xf bank_mask:0xf bound_ctrl:0' % (CV+r, GN+4*(q2+5)+r, DW+4*k+r) for r in range(4)]
                if q2 > 4: r_ += ['v_fmac_f32_dpp v%d, v%d, v%d row_shl:1 row_mask:0xf bank_mask:0xf bound_ctrl:0' % (CV+r, GN+4*(q2-5)+r, DW+4*k+r) for r in range(4)]
            return r_
        def fin(q):
            d = D(q)
            r_ = ['v_cvt_pk_bf16_f32 v%d, v%d, v%d' % (d, d, d+1), 'v_cvt_pk_bf16_f32 v%d, v%d, v%d' % (d+1, d+2, d+3), 'ds_write_b64 v%d, %s offset:%d' % (self.GA+q, vr(d,2), 8*t)]
            if t: r_.append('v_add_u32 v%d, 1024, v%d' % (self.GA+q, self.GA+q))
            return r_
        m = self.mul
        o = rd + self.P1(D(0), TA, 8) + self.E1(TA, 8)
        un[0] = Op(un[0], need=[('G', blk, 4)])
        for i in range(5): o += [rw[i], un[i]]
        o += un[5:]
        o += self.P2(TA, 8) + norm + self.P1(D(2), TB, 8) + [Op(None, need=[('DW', blk, 4)])] + cpk(0)
        o += self.E2(TA, 8) + self.E1(TB, 8) + cdpp(0)
        o += m(D(0), CV) + self.P2(TB, 8) + m(D(0), TA) + cpk(1)
        o += self.E2(TB, 8) + fin(0) + cdpp(1)
        o += m(D(1), CV) + m(D(2), TB) + m(D(1), TA+4) + self.P1(D(4), TA, 4) + cpk(2) + m(D(3), TB+4) + m(D(2), CV) + cpk(3)
        o += self.E1(TA, 4) + fin(1) + fin(2) + cdpp(3)
        o += self.P2(TA, 4) + m(D(3), CV) + cpk(4)
        o += self.E2(TA, 4) + fin(3) + cdpp(4) + m(D(4), TA, False) + m(D(4), CV, False) + fin(4)
        if t: o.append('v_add_u32 v%d, 128, v%d' % (self.DA, self.DA))
        return o
    def xdma(self, tag):
        g = [(['s_add_u32 m0, s%d, %d' % (self.S_XD, q*1024), 's_add_u32 s%d, s%d, %d' % (self.S_T3, self.S_XP, q*16384)],
              Op('buffer_load_dwordx4 v%d, s[16:19], s%d offen lds' % (self.XV, self.S_T3), prod=('XD', tag))) for q in range(NQ)]
        return g, ['s_add_u32 s%d, s%d, 64' % (self.S_XP, self.S_XP), 's_add_u32 s%d, s%d, 5120' % (self.S_XD, self.S_XD)]
    def ep_z(self, t, tag=None):
        o = []; PK = self.U0; XF = self.U2; T = self.U1
        if t == 0:
            o += [Op('ds_read_b128 %s, v%d offset:%d' % (vr(XF+4*q,4), self.XR, q*1024), prod=('XF', tag, q), need=[('XD', tag)] if q == 0 else []) for q in range(NQ)]
        for qb in range(NQ):
            D = self.DD + 20*t + 4*qb; P = PK + 4*qb + 2*t
            for h in range(2):
                o += [Op('v_lshlrev_b32 v%d, 16, v%d' % (T+2*h, XF+4*qb+2*t+h), need=[('XF', tag, qb)] if (t == 0 and h == 0) else []),
                      'v_and_b32 v%d, s%d, v%d' % (T+2*h+1, self.S_MK, XF+4*qb+2*t+h)]
            for r in range(4): o.append('v_add_f32 v%d, v%d, v%d' % (D+r, D+r, T+r))
            o += ['v_cvt_pk_bf16_f32 v%d, v%d, v%d' % (P, D, D+1), 'v_cvt_pk_bf16_f32 v%d, v%d, v%d' % (P+1, D+2, D+3)]
            if t: o += ['s_add_u32 s%d, s%d, %d' % (self.S_T3, self.S_OUT, qb*16384),
                        Op('buffer_store_dwordx4 %s, v%d, s[%d:%d], s%d offen%s' % (vr(PK+4*qb,4), self.L16, S_WS, S_WS+3, self.S_T3, '' if self.cfg.get('xp_plainb') else ' sc1'), prod='BST')]
        if t: o.append('s_add_u32 s%d, s%d, 1024' % (self.S_OUT, self.S_OUT))
        return o
    def flag_store(self):
        T = self.RS+8
        return ['v_or_b32 v%d, s%d, v0' % (T, S_W), 'v_min_u32 v%d, 1, v%d' % (T, T), 'v_lshlrev_b32 v%d, 30, v%d' % (T, T), 'v_mov_b32 v%d, s7' % (T+1),
                'buffer_store_dword v%d, v%d, s[%d:%d], s%d offen sc1' % (T+1, T, S_WS, S_WS+3, self.S_FL)]
    def stage_addr(self):
        T = self.U1+8
        o = ['v_lshrrev_b32 v%d, 2, v0' % T, 'v_mul_u32_u24 v%d, 5, v%d' % (T, T), 's_add_u32 s%d, s%d, 4000' % (self.S_JMP, self.S_R0), 'v_add_u32 v%d, s%d, v%d' % (T, self.S_JMP, T),
             'v_lshrrev_b32 v%d, 4, v%d' % (T+1, self.XV), 's_movk_i32 s%d, 4000' % self.S_JMP, 'v_mov_b32 v%d, 7999' % (T+4)]
        for q in range(NQ):
            X = self.XA+q
            o += ['v_add_u32 v%d, %d, v%d' % (T+2, q, T), 'v_med3_i32 v%d, v%d, s%d, v%d' % (T+2, T+2, self.S_JMP, T+4),
                  'v_lshrrev_b32 v%d, 2, v%d' % (T+3, T+2), 'v_sub_u32 v%d, 0, v%d' % (T+3, T+3), 'v_xor_b32 v%d, v%d, v%d' % (T+3, T+3, T+1),
                  'v_and_b32 v%d, 3, v%d' % (T+3, T+3), 'v_and_b32 v%d, 15, v%d' % (X, T+2), 'v_lshl_add_u32 v%d, v%d, 2, v%d' % (T+3, X, T+3),
                  'v_lshrrev_b32 v%d, 4, v%d' % (X, T+2), 'v_lshl_add_u32 v%d, v%d, 10, v%d' % (X, X, T+3), 'v_lshlrev_b32 v%d, 4, v%d' % (X, X)]
        return o
    def stage_dma(self, tag):
        g = [(['s_add_u32 m0, s%d, %d' % (self.S_JMP, q*16384)], Op('buffer_load_dwordx4 v%d, s[%d:%d], s%d offen sc1 lds' % (self.XA+q, S_WS, S_WS+3, self.S_T0), prod=tag)) for q in range(NQ)]
        return g, ['s_add_u32 s%d, s%d, 1024' % (self.S_T0, self.S_T0), 's_add_u32 s%d, s%d, 1024' % (self.S_JMP, self.S_JMP)]
    def place(self, gm, gaps):
        g, post = gm; ex = []
        for (pre, o), gp in zip(g, gaps): ex += [(gp-1, pre), (gp, [o])]
        return ex + [(gaps[len(g)-1]+1, post)]
    def stats(self, tile):
        S1 = self.U1; S2 = self.U2; T = self.U0; M = self.S_M
        o = ['v_and_b32 v%d, 15, v0' % T, 'v_lshrrev_b32 v%d, 2, v%d' % (T+1, T), 'v_lshrrev_b32 v%d, 4, v0' % (T+2),
             'v_cmp_eq_u32 vcc, v%d, v%d' % (T+1, T+2), 'v_lshlrev_b32 v%d, 5, v%d' % (T+1, T), 'v_add_u32 v%d, %d, v%d' % (T+1, L_SX, T+1),
             's_lshl_b32 s%d, s%d, 3' % (self.S_T0, S_W), 'v_add_u32 v%d, s%d, v%d' % (T+2, self.S_T0, T+1), 'v_mov_b32 v%d, %d' % (T+3, L_DUM),
             'v_cndmask_b32 v%d, v%d, v%d, vcc' % (T+2, T+3, T+2)]
        for q in range(NQ):
            d = S1+4*q+1
            o += ['v_cndmask_b32 v%d, v%d, v%d, s[%d:%d]' % (d, S2+4*q, S2+4*q+1, M, M+1),
                  'v_cndmask_b32 v%d, v%d, v%d, s[%d:%d]' % (d, d, S2+4*q+2, M+2, M+3),
                  'v_cndmask_b32 v%d, v%d, v%d, s[%d:%d]' % (d, d, S2+4*q+3, M+4, M+5),
                  'ds_write_b64 v%d, %s offset:%d' % (T+2, vr(S1+4*q,2), q*512)]
        t = self.XA; P = self.XA+4
        if self.cfg.get('dmh', 0):
            o += ['s_lshl_b32 s%d, s%d, 13' % (self.S_JMP, S_W), 's_add_u32 s%d, s%d, 0x%x' % (self.S_JMP, self.S_JMP, WS_FLG + 128*FLG_X), 'v_lshl_add_u32 v%d, v0, 7, s%d' % (P, self.S_JMP)]
        else:
          DMV = self.cfg.get('dmv', 1)
          o += ['v_and_b32 v%d, 3, v0' % t] + (['v_lshlrev_b32 v%d, 7, v0' % P, 'v_add_u32 v%d, 0x%x, v%d' % (P, WS_FLG + 128*(FLG_X+200), P)] if DMV else
                ['v_min_u32 v%d, 2, v%d' % (P, t), 'v_lshlrev_b32 v%d, 7, v%d' % (P, P), 'v_add_u32 v%d, 0x%x, v%d' % (P, WS_FLG + 128*FLG_D, P)])
          o += [
              's_max_i32 s%d, s%d, 0' % (self.S_JMP, self.S_R0), 's_mul_i32 s%d, s%d, 52429' % (self.S_JMP, self.S_JMP), 's_lshr_b32 s%d, s%d, 22' % (self.S_JMP, self.S_JMP),
              's_lshl_b32 s%d, s%d, 1' % (self.S_JMP, self.S_JMP), 'v_and_b32 v%d, 4, v0' % (t+1), 'v_cmp_gt_u32 vcc, 48, v0' if DMV else 'v_cmp_eq_u32 vcc, 0, v%d' % (t+1),
              'v_add_u32 v%d, s%d, v%d' % (t, self.S_JMP, t), 'v_min_u32 v%d, 0x63, v%d' % (t, t),
              'v_lshlrev_b32 v%d, 8, v%d' % (t, t), 'v_add_u32 v%d, 0x%x, v%d' % (t, WS_FLG + 128*(FLG_X+1), t), 'v_cndmask_b32 v%d, v%d, v%d, vcc' % (P, t, P)]
        o.append(Op('s_barrier', need=['ALLL']))
        for q in range(NQ):
            o += [Op('ds_read_b128 %s, v%d offset:%d' % (vr(S1+8*q,4), T+1, q*512), prod=('SA', tile, q)),
                  Op('ds_read_b128 %s, v%d offset:%d' % (vr(S1+8*q+4,4), T+1, q*512+16), prod=('SB', tile, q))]
        o += self.adv_g(-4096)
        o += ['v_mul_u32_u24 v%d, 5, v%d' % (T, T), 'v_add_u32 v%d, s%d, v%d' % (T, self.S_R0, T), 'v_mov_b32 v%d, 0x%x' % (T+4, f2u(1/512.)),
              's_add_u32 s%d, s%d, 2' % (self.S_XP, self.S_R0), 's_add_u32 s%d, s%d, s%d' % (self.S_XP, self.S_XP, self.S_TB), 's_lshl_b32 s%d, s%d, 10' % (self.S_XP, self.S_XP),
              's_lshr_b32 s%d, s%d, 4' % (self.S_JMP, self.S_T1), 's_add_u32 s%d, s%d, s%d' % (self.S_XP, self.S_XP, self.S_JMP), 's_mov_b32 s%d, s%d' % (self.S_XD, self.S_XL)]
        for q in range(NQ):
            A = S1+8*q
            o += [Op('v_pk_add_f32 %s, %s, %s' % (p2(A), p2(A), p2(A+2)), need=[('SB', tile, q)]), 'v_pk_add_f32 %s, %s, %s' % (p2(A+4), p2(A+4), p2(A+6)),
                  'v_add_u32 v%d, %d, v%d' % (T+2, q, T), 'v_pk_add_f32 %s, %s, %s' % (p2(A), p2(A), p2(A+4)), 'v_cmp_gt_u32 vcc, 0xfa0, v%d' % (T+2),
                  'v_pk_mul_f32 %s, %s, %s op_sel_hi:[1,0]' % (p2(A), p2(A), p2(T+4)),
                  'v_fma_f32 v%d, -v%d, v%d, v%d' % (A+1, A, A, A+1), 'v_max_f32 v%d, 0, v%d' % (A+1, A+1), 'v_add_f32 v%d, 0x%x, v%d' % (A+1, f2u(1e-5), A+1),
                  'v_rsq_f32 v%d, v%d' % (A+1, A+1), 's_nop 0',
                  'v_cndmask_b32 v%d, 0, v%d, vcc' % (self.RS+2*q, A+1), 'v_mul_f32 v%d, -v%d, v%d' % (self.RS+2*q+1, A, self.RS+2*q)]
        return o
    def wdm_unit(self):
        LA = 98304; RG = 192; D = 92
        t = Asm(); srd(t, 64, 50, 51, 524288)
        t('s_sub_u32 s21, s3, 200'); t('s_and_b32 s22, s21, 15'); t('s_lshr_b32 s23, s21, 4')
        t('s_lshl_b32 s24, s22, 15'); t('s_lshl_b32 s25, s20, 8'); t('s_add_u32 s24, s24, s25'); t('s_add_u32 s25, s24, 4096')
        t('s_lshl_b32 s26, s20, 12'); t('s_add_u32 s26, s26, %d', LA)
        o = t.lines
        for tt in range(2):
            for e in range(4): o += ['s_add_u32 m0, s26, %d' % (tt*16384 + e*960), 's_nop 0', Op('buffer_load_dwordx4 v4, s[64:67], s%d offen offset:%d lds' % (24+tt, e*64), prod='UA')]
        o += ['s_mul_i32 s23, s23, 12', 's_mul_i32 s27, s20, 3', 's_add_u32 s23, s23, s27', 's_lshl_b32 s22, s22, 10', 's_add_u32 s22, s22, 0x%x' % WS_WDMF]
        for nb in range(3):
            o += ['s_add_u32 s27, s23, %d' % nb, 's_min_u32 s34, s27, 31', 's_lshl_b32 s34, s34, 14', 's_add_u32 s%d, s34, 0x%x' % (28+nb, WS_WMF + 0x80000),
                  's_add_u32 s34, s34, s22', 's_cmp_lt_u32 s27, 32', 's_cselect_b32 s%d, s34, 0x%x' % (31+nb, WS_SIZE)]
        o.append('s_barrier')
        def bl(e):
            l = [Op('buffer_load_dwordx4 %s, v1, s[8:11], s%d offen offset:%d sc1' % (ar(12*e+4*nb,4), 28+nb, (e%4)*1024), prod=('UB', e)) for nb in range(3)]
            if e % 4 == 3: l += ['s_add_u32 s%d, s%d, 4096' % (28+nb, 28+nb) for nb in range(3)]
            return l
        for e in range(8): o += bl(e)
        t = Asm(); h_frag_addr(t, 2, 3); t('v_add_u32 v2, %d, v2', LA); o += t.lines
        rd = lambda e: [Op('ds_read_b128 %s, v2 offset:%d' % (vr(RG+8*(e % 8)+4*tt,4), tt*16384 + e*1024), prod=('UF', e)) for tt in range(2)]
        o.append(Op('s_barrier', need=['UA']))
        for e in range(4): o += rd(e)
        for e in range(16):
            if e+8 < 16: o += bl(e+8)
            if e+4 < 16: o += rd(e+4)
            for nb in range(3):
                for tt in range(2):
                    d = vr(D+8*nb+4*tt, 4)
                    o.append(Op('%s %s, %s, %s, %s' % (MF, d, vr(RG+8*(e % 8)+4*tt,4), ar(12*e+4*nb,4), d if e else '0'), need=[('UB', e), ('UF', e)]))
        o.append('s_nop 7')
        for nb in range(3):
            b = D+8*nb
            o += ['v_cvt_pk_bf16_f32 v%d, v%d, v%d' % (b+x, b+2*x, b+2*x+1) for x in range(4)]
            o.append(Op('buffer_store_dwordx4 %s, v1, s[8:11], s%d offen sc1' % (vr(b,4), 31+nb), prod='XST'))
        return o
    def gen(self):
        a = self.a; cfg = self.cfg; T = self.U2; tr = self.tr0; S = self
        DMV = cfg.get('dmv', 1) and not cfg.get('dmh', 0)
        pre = S.wdm_unit() if (DMV and not cfg.get('xp_nounit')) else []
        pre += ['s_lshl_b32 s%d, s%d, 8' % (S.S_T0, S_W), 'v_lshl_add_u32 v%d, v0, 2, s%d' % (T, S.S_T0), 's_mov_b32 s%d, 4096' % S.S_JMP]
        for k in range(5): pre.append(Op('buffer_load_dword v%d, v%d, s[12:15], %s offen offset:%d' % (S.U0+k, T, '0' if k < 4 else 's%d' % S.S_JMP, (k%4)*1024), prod=('DWL', k)))
        if cfg.get('wpf', 0):
            pre += ['s_sub_u32 s21, s3, 200', 's_lshl_b32 s21, s21, 2', 's_add_u32 s21, s21, s20', 's_lshr_b32 s22, s21, 6',
                    's_cmp_eq_u32 s22, 1', 's_cselect_b32 s60, s44, s50', 's_cselect_b32 s61, s45, s51', 's_cmp_eq_u32 s22, 2', 's_cselect_b32 s60, s42, s60', 's_cselect_b32 s61, s43, s61',
                    's_and_b32 s61, s61, 0xffff', 's_cmp_eq_u32 s22, 3', 's_cselect_b32 s62, 0, 0x80000', 's_mov_b32 s63, 0x20000',
                    's_and_b32 s21, s21, 63', 's_lshl_b32 s21, s21, 13', 'v_lshlrev_b32 v%d, 7, v0' % S.XR, 'buffer_load_dword v%d, v%d, s[60:63], s21 offen' % (S.XR, S.XR)]
        pre += ['s_sub_u32 s%d, s3, 200' % S.S_C, 's_mul_i32 s%d, s%d, 76' % (S.S_R0, S.S_C), 's_sub_u32 s%d, s%d, 2' % (S.S_R0, S.S_R0),
                's_mov_b32 s%d, 0' % S.S_TB, 's_mov_b32 s%d, 0' % S.S_TILE, 's_lshl_b32 s%d, s%d, 12' % (S.S_T1, S_W),
                's_mul_i32 s%d, s%d, 15360' % (S.S_XL, S_W), 's_add_u32 s%d, s%d, %d' % (S.S_XL, S.S_XL, L_XS), 's_lshl_b32 s%d, s3, 7' % S.S_FL, 's_add_u32 s%d, s%d, 0x%x' % (S.S_FL, S.S_FL, WS_FLG + 128*FLG_X if (cfg.get('dmh', 0) or DMV) else WS_SIZE),
                's_lshl_b32 s%d, s%d, 17' % (S.S_PU, S_W), 's_add_u32 s%d, s%d, 0x%x' % (S.S_PZ, S.S_PU, WS_WDMF),
                's_add_u32 s%d, s%d, 0x%x' % (S.S_PU, S.S_PU, WS_WUPF), 's_add_u32 s%d, s%d, 0x80000' % (S.S_PG, S.S_PU), 's_mov_b32 s%d, s6' % S.S_AP,
                's_mov_b32 s%d, 0xffff0000' % S.S_MK, 's_mov_b32 s%d, 0x%x' % (S.S_K, f2u(-C2)), 's_mov_b32 s%d, 0x%x' % (S.S_K+1, f2u(-C1)),
                's_mov_b32 s%d, 1.0' % S.S_ONE, 's_mov_b32 s%d, 1.0' % (S.S_ONE+1)]
        tmp = Asm(); h_frag_addr(tmp, S.HA, T+1); pre += tmp.lines
        pre += ['v_add_u32 v%d, 0x10000, v%d' % (S.HA+1, S.HA)]
        tr.run('pre', pre)
        su = ['v_add_u32 v%d, 0x10000, v%d' % (S.PH, S.L16),
              'v_lshrrev_b32 v%d, 4, v0' % (T+2), 'v_sub_u32 v%d, 0, v%d' % (T+1, T+2), 'v_xor_b32 v%d, v%d, v0' % (T+1, T+1), 'v_and_b32 v%d, 3, v%d' % (T+1, T+1),
              'v_lshlrev_b32 v%d, 4, v%d' % (T+1, T+1), 'v_lshrrev_b32 v%d, 2, v0' % S.XV, 'v_lshl_add_u32 v%d, v%d, 10, v%d' % (S.XV, S.XV, T+1),
              'v_and_b32 v%d, 15, v0' % (T+1), 'v_mul_u32_u24 v%d, 5, v%d' % (T+1, T+1),
              'v_lshl_add_u32 v%d, v%d, 8, s%d' % (T+3, T+2, S.S_T1), 's_lshr_b32 s%d, s%d, 3' % (S.S_JMP, S.S_T1), 's_add_u32 s%d, s%d, %d' % (S.S_JMP, S.S_JMP, L_DW),
              'v_lshl_add_u32 v%d, v%d, 5, s%d' % (S.DA, T+2, S.S_JMP)]
        for q in range(NQ):
            su += ['v_add_u32 v%d, %d, v%d' % (T+2, q-2, T+1)]
            if q < 2: su += ['v_min_u32 v%d, %d, v%d' % (T+2, 78+q, T+2)]
            su += ['v_and_b32 v%d, 15, v%d' % (T+4, T+2), 'v_lshl_add_u32 v%d, v%d, 4, v%d' % (T+4, T+4, T+3),
                   'v_lshrrev_b32 v%d, 4, v%d' % (T+2, T+2), 'v_lshl_add_u32 v%d, v%d, 14, v%d' % (S.GA+q, T+2, T+4)]
        su += ['v_and_b32 v%d, 3, v0' % (T+1)] + ['v_cmp_eq_u32 s[%d:%d], %d, v%d' % (S.S_M+2*i, S.S_M+2*i+1, i+1, T+1) for i in range(3)]
        dwo = ['v_lshlrev_b32 v%d, 1, v%d' % (T, T), 'v_add_u32 v%d, %d, v%d' % (T, L_DW, T)]
        for k in range(5):
            dwo += [Op('v_lshlrev_b32 v%d, 16, v%d' % (S.U1+2*k, S.U0+k), need=[('DWL', k)]), 'v_and_b32 v%d, s%d, v%d' % (S.U1+2*k+1, S.S_MK, S.U0+k),
                    'ds_write_b64 v%d, %s offset:%d' % (T, vr(S.U1+2*k,2), k*2048)]
        SAL = cfg.get('sal', 1); L_SA = 94720
        if SAL: su += S.stage_addr() + ['v_lshlrev_b32 v%d, 2, v0' % (T+1), 'v_add_u32 v%d, %d, v%d' % (T+1, L_SA, T+1)] + ['ds_write_b32 v%d, v%d offset:%d' % (T+1, S.XA+q, q*256) for q in range(NQ)]
        tr.run('pre2', su + dwo)
        sel = lambda tgt: ['s_add_u32 s%d, s%d, 4096' % (S.S_AP, S.S_AP), 's_cmp_eq_u32 s%d, 3' % S.S_CNT, 's_cselect_b32 s%d, s%d, s%d' % (S.S_AP, tgt, S.S_AP)]
        inc = 's_add_u32 s%d, s%d, 1' % (S.S_CNT, S.S_CNT)
        blk = 0
        for tile in range(2):
            init = ['v_mov_b32 v%d, 0x3f803f80' % (S.XA+r) for r in range(4)] + ['v_mov_b32 v%d, 0' % (S.U1+r) for r in range(40)]
            tr.run('g0', [Op('s_barrier', need=[('XS', tile), 'ALLL']), 's_mov_b32 s%d, 0' % S.S_CNT] +
                   S.block(blk, 0, stream=init, bread=(S.HA, S.HA+1), tail=[Op('s_barrier', need=['BST'] if tile else ['XST'])] + S.flag_store())); blk += 1
            for it in range(4):
                tr.run('g1', S.block(blk, 1, stream=S.ep_g(0), jump=sel(S.S_PU))); blk += 1
                tr.run('g2', S.block(blk, 0, stream=S.ep_g(1), tail=[inc, 's_cmp_lt_u32 s%d, 4' % S.S_CNT])); blk += 1
            tr.run('stats', S.stats(tile) + ['s_mov_b32 s%d, 0' % S.S_CNT])
            for it in range(4):
                tr.run('u1', S.block(blk, 1, stream=S.ep_u(0, blk), jump=sel(S.S_PZ), g0=1, tail=['s_cmp_eq_u32 s%d, 3' % S.S_CNT])); blk += 1
                if it < 3:
                    ex = [(3, [Op('buffer_load_dword v%d, v%d, s[%d:%d], 0 offen sc1' % (S.XA+1, S.XA+4, S_WS, S_WS+3), prod=('DF', blk))])]
                    ex += S.place(S.xdma((tile, it)), [13, 23, 33, 43, 53])
                    tl = [Op('v_cmp_ne_u32 vcc, s7, v%d' % (S.XA+1), need=[('DF', blk)]), inc, 's_cmp_eq_u32 s%d, 3' % S.S_CNT, 's_cselect_b64 vcc, vcc, 0', 's_cbranch_vccnz L_c_spin']
                    tr.run('u2', S.block(blk, 0, stream=S.ep_u(1, blk), g0=1, extra=ex, tail=tl)); blk += 1
            tr.run('u3', S.ep_u(1, ('e', tile)))
            z0s = S.adv_g(-4096) + ['v_add_u32 v%d, -512, v%d' % (S.DA, S.DA), 'v_add_u32 v%d, s%d, v%d' % (S.XR, S.S_XL, S.HA)]
            zt = []
            if SAL:
                z0s += ['v_lshlrev_b32 v%d, 2, v0' % S.U1, 'v_add_u32 v%d, %d, v%d' % (S.U1, L_SA, S.U1)]
                zt = [(71+q+(q > 3), [Op('ds_read_b32 v%d, v%d offset:%d' % (S.XA+q, S.U1, q*256), prod=('SAD', tile))]) for q in range(NQ)]
            else: z0s += S.stage_addr()
            tr.run('z0', [Op('s_barrier', need=['ALLL']), 's_mov_b32 s%d, 0' % S.S_CNT, 's_mul_i32 s%d, s%d, 53' % (S.S_FL, S.S_TILE), 's_add_u32 s%d, s%d, s%d' % (S.S_FL, S.S_FL, S.S_C),
                          's_mul_i32 s%d, s%d, 81920' % (S.S_OUT, S.S_FL), 's_add_u32 s%d, s%d, s%d' % (S.S_OUT, S.S_OUT, S.S_T1), 's_add_u32 s%d, s%d, 0x%x' % (S.S_OUT, S.S_OUT, WS_SIZE if cfg.get('xp_nobs') else WS_BASE),
                          's_lshl_b32 s%d, s%d, 7' % (S.S_FL, S.S_FL), 's_add_u32 s%d, s%d, 0x%x' % (S.S_FL, S.S_FL, WS_FLG + 128*FLG_C), 's_mov_b32 s%d, s%d' % (S.S_XD, S.S_XL),
                          's_cmp_eq_u32 s%d, %d' % (S.S_TILE, 5 if cfg.get('xp_nostg') else 0), 's_cselect_b32 s%d, s%d, 0x%x' % (S.S_T0, S.S_T1, WS_SIZE)]
                   + S.block(blk, 0, stream=z0s, bread=(S.L16, S.PH), extra=zt, tail=['s_mov_b32 s%d, s%d' % (S.S_JMP, S.S_T1), 's_barrier'])); blk += 1
            sg = [13, 23, 33, 43, 53]
            xg, xpost = S.xdma((tile, 3)); xg[0][1].need = [('XF', (tile, 0), 4)]
            sd0 = S.stage_dma(('XS', tile+1))
            if SAL: sd0[0][0][1].need = [('SAD', tile)]
            tr.run('z1a', S.block(blk, 1, stream=S.ep_z(0, (tile, 0)), extra=S.place(sd0, sg) + S.place((xg, []), [58-1, 63, 68-1, 73, 78-1]))); blk += 1
            for it in range(3):
                tr.run('z2', S.block(blk, 0, stream=S.ep_z(1), tail=[inc, 's_cmp_eq_u32 s%d, 3' % S.S_CNT, 's_movk_i32 s%d, 5120' % S.S_T3, 's_cselect_b32 s%d, -10240, s%d' % (S.S_T3, S.S_T3),
                                                                    'v_add_u32 v%d, s%d, v%d' % (S.XR, S.S_T3, S.XR)])); blk += 1
                tr.run('z1', S.block(blk, 1, stream=S.ep_z(0, (tile, it+1)), extra=S.place(S.stage_dma(('XS', tile+1)), sg), jump=sel(S.S_PG), tail=['s_cmp_lt_u32 s%d, 3' % S.S_CNT])); blk += 1
            tr.run('z3', ['s_nop 1'] + S.ep_z(1) + ['s_mov_b32 s%d, 4000' % S.S_TB, 's_add_u32 s%d, s%d, 1' % (S.S_TILE, S.S_TILE), 's_cmp_lt_u32 s%d, 2' % S.S_TILE])
        def E(k, st=None):
            if st and cfg.get('stamp') and cfg.get('sthead') != 2:
                a('s_cmp_eq_u32 s%d, 0', S.S_TILE); a('s_cbranch_scc0 L_c_s%da', st); stamp_mid(a, st); a('s_branch L_c_s%db', st)
                a.label('L_c_s%da' % st); stamp_mid(a, st+5); a.label('L_c_s%db' % st)
            tr.emit(a, k)
        def lpf(cond):
            a(cond); a('s_cbranch_scc1 L_c_nopf')
            a('s_lshr_b32 s60, s2, 3'); a('s_and_b32 s60, s60, 3'); a('s_lshl_b32 s60, s60, 2'); a('s_add_u32 s60, s60, s20')
            a('s_lshl_b32 s61, s60, 15'); a('s_add_u32 s61, s61, 0x%x', WS_WVOF); a('v_lshlrev_b32 v%d, 7, v0', S.XA)
            for i in range(4): a('buffer_load_dword v%d, v%d, s[8:11], s61 offen', S.XA+3, S.XA); a('s_add_u32 s61, s61, 8192')
            a('s_getpc_b64 s[64:65]'); a.label('L_pc1'); a('s_sub_u32 s64, s64, L_pc1-L_qfin1'); a('s_subb_u32 s65, s65, 0'); a('s_lshl_b32 s60, s60, 11')
            a('v_lshl_add_u32 v%d, v0, 5, s60', S.XA); a('v_min_u32 v%d, L_prec0-L_qfin1, v%d', S.XA, S.XA); a('v_mov_b32 v%d, s65', S.XA+1)
            a('v_add_co_u32 v%d, vcc, s64, v%d', S.XA, S.XA); a('s_nop 1'); a('v_addc_co_u32 v%d, vcc, 0, v%d, vcc', S.XA+1, S.XA+1)
            a('global_load_dword v%d, v[%d:%d], off', S.XA+3, S.XA, S.XA+1)
            a('s_waitcnt vmcnt(0)') if cfg.get('lpfw', 0) else None
            a.label('L_c_nopf')
        E('pre'); E('pre2')
        a.label('L_c_tile'); E('g0', 1)
        a.label('L_c_g'); E('g1'); E('g2'); a('s_cbranch_scc1 L_c_g')
        E('stats', 2)
        a.label('L_c_u')
        if cfg.get('lpf', 1) == 2: a('s_lshl_b32 s60, s%d, 2', S.S_TILE); a('s_add_u32 s60, s60, s%d', S.S_CNT); lpf('s_cmp_lg_u32 s60, %d' % (4 + cfg.get('lpi', 2)))
        E('u1'); a('s_cbranch_scc1 L_c_u3'); E('u2'); a('s_branch L_c_u')
        a.label('L_c_u3')
        if cfg.get('lpf', 1) == 1: lpf('s_cmp_eq_u32 s%d, 0' % S.S_TILE)
        E('u3', 3); E('z0', 4); E('z1a', 5)
        a.label('L_c_z'); E('z2'); E('z1'); a('s_cbranch_scc1 L_c_z')
        E('z3')
        a('s_cbranch_scc1 L_c_tile')
        a('s_waitcnt vmcnt(0)'); a('s_barrier')
        for x in S.flag_store(): a(x)
        a('s_branch L_k2_fin')
        a.label('L_c_spin'); a('s_mov_b32 s%d, 0', S.S_JMP)
        a.label('L_c_spin_l')
        a('buffer_load_dword v%d, v%d, s[%d:%d], 0 offen sc1', S.XA+1, S.XA+4, S_WS, S_WS+3); a('s_waitcnt vmcnt(0)')
        a('v_cmp_ne_u32 vcc, s7, v%d', S.XA+1); a('s_cbranch_vccz L_c_u')
        a('s_add_u32 s%d, s%d, 1', S.S_JMP, S.S_JMP); a('s_cmp_lt_u32 s%d, 0x40000', S.S_JMP); a('s_cbranch_scc1 L_c_spin_l')
        a('s_branch L_c_u')
```

```python
from asmlib import *
from layout import *
from gen_k0 import srd, h_frag_addr, QSCALE
from gen_ln import *
MF='v_mfma_f32_16x16x32_bf16'
XS = [192, 208, 224, 240, 112]
def entry(a, cfg):
    a('s_load_dwordx16 s[36:51], s[0:1], 0'); a('s_load_dwordx8 s[52:59], s[0:1], 64')
    a('v_lshrrev_b32 v1, 6, v0'); a('v_and_b32 v0, 63, v0'); a('v_readfirstlane_b32 s20, v1'); a('v_lshlrev_b32 v1, 4, v0')
    if cfg.get('ipf', 1):
        a('s_getpc_b64 s[72:73]'); a.label('L_pc0')
        a('s_lshr_b32 s21, s2, 3'); a('s_lshl_b32 s21, s21, 2'); a('s_add_u32 s21, s21, s20'); a('s_lshl_b32 s21, s21, 10')
        a('v_add_u32 v8, s21, v1'); a('v_min_u32 v8, L_code_end-L_pc0, v8'); a('v_mov_b32 v9, s73')
        a('v_add_co_u32 v8, vcc, s72, v8'); a('s_nop 1'); a('v_addc_co_u32 v9, vcc, 0, v9, vcc')
        a('global_load_dword v7, v[8:9], off')
    MAP = cfg.get('map', 2)
    if MAP == 3:
        a('s_lshr_b32 s21, s2, 3'); a('s_and_b32 s22, s2, 1')
        if cfg.get('swp', 0): a('s_xor_b32 s22, s22, 1')
        a('s_bfe_u32 s24, s2, 0x10001'); a('s_mul_i32 s24, s24, 25'); a('s_add_u32 s24, s24, s21'); a('s_lshl_b32 s24, s24, 1'); a('s_or_b32 s24, s24, s22')
        a('s_lshl_b32 s24, s24, 1'); a('s_bfe_u32 s25, s2, 0x10002'); a('s_or_b32 s24, s24, s25')
        a('s_and_b32 s25, s2, 7'); a('s_mul_i32 s25, s25, 7'); a('s_add_u32 s25, s25, s21'); a('s_add_u32 s25, s25, 175')
        a('s_cmp_lt_u32 s21, 25'); a('s_cselect_b32 s3, s24, s25')
    else:
        a('s_lshr_b32 s21, s2, 3'); a('s_and_b32 s22, s2, 1')
        if cfg.get('swp', 0): a('s_xor_b32 s22, s22, 1')
        a('s_lshl_b32 s23, s22, 1'); a('s_sub_u32 s23, 26, s23')
        a('s_bfe_u32 s24, s2, 0x10001'); a('s_mul_i32 s24, s24, 25'); a('s_mul_i32 s25, s22, 13'); a('s_add_u32 s24, s24, s25')
        a('s_lshl_b32 s24, s24, 1'); a('s_add_u32 s24, s24, s21'); a('s_lshl_b32 s24, s24, 1'); a('s_bfe_u32 s25, s2, 0x10002'); a('s_or_b32 s24, s24, s25')
        a('s_bfe_u32 s25, s2, 0x20001'); a('s_mul_i32 s25, s25, 14'); a('s_mul_i32 s26, s22, 6'); a('s_add_u32 s25, s25, s26')
        a('s_add_u32 s25, s25, s21'); a('s_sub_u32 s25, s25, s23'); a('s_add_u32 s25, s25, 200')
        a('s_cmp_lt_u32 s21, s23'); a('s_cselect_b32 s3, s24, s25')
    for x, y in cfg.get('spx', [(253, 213), (254, 227), (255, 241)]):
        a('s_cmp_eq_u32 s3, %d', x); a('s_cselect_b32 s24, %d, s3', y); a('s_cmp_eq_u32 s3, %d', y); a('s_cselect_b32 s3, %d, s24', x)
    a('v_lshrrev_b32 v2, 4, v0'); a('v_sub_u32 v4, 0, v2'); a('v_xor_b32 v4, v4, v0'); a('v_and_b32 v4, 3, v4'); a('v_lshlrev_b32 v4, 4, v4')
    a('v_lshl_add_u32 v4, v2, 13, v4'); a('v_bfe_u32 v5, v0, 2, 2'); a('v_lshl_add_u32 v4, v5, 10, v4')
    a('s_and_b32 s23, s2, 3'); a('s_lshl_b32 s23, s23, 2'); a('s_bfe_u32 s21, s2, 0x20003'); a('s_add_u32 s23, s23, s21')
    a('s_bfe_u32 s22, s2, 0x10002'); a('s_lshl_b32 s22, s22, 3'); a('s_lshr_b32 s21, s2, 5'); a('s_add_u32 s22, s22, s21')
    a('s_lshl_b32 s21, s20, 8'); a('s_lshl_b32 s24, s23, 15'); a('s_add_u32 s24, s24, s21'); a('s_add_u32 s25, s24, 4096')
    a('s_lshl_b32 s26, s22, 15'); a('s_add_u32 s26, s26, s21'); a('s_add_u32 s27, s26, 4096')
    a('s_sub_u32 s21, s3, 200'); a('s_cmp_lt_u32 s21, %d', 56 if cfg.get('dmh', 0) else 53)
    a('s_cselect_b32 s33, 0x18000, 0'); a('s_mov_b32 s31, 147456'); a('s_cselect_b32 s31, 81920, s31')
    a('s_lshl_b32 s32, s20, 14'); a('s_add_u32 s32, s32, s33'); a('s_lshl_b32 s21, s20, 11'); a('s_add_u32 s31, s31, s21')
    a('s_waitcnt lgkmcnt(0)')
    srd(a, 60, 38, 39, 524288); srd(a, 64, 40, 41, 524288)

def head_a(cfg):
    stamp = cfg.get('stamp') and cfg.get('sthead') == 2
    o = []
    if stamp: o.append(stamp_op(1))
    order = [(2*ep+h, rb) for ep in range(2) for rb in range(4) for h in range(2)] if cfg.get('hord', 1) else [(e, rb) for e in range(4) for rb in range(4)]
    if 1:
        for e, rb in order:
            o += ['s_add_u32 m0, s32, %d' % ((e*4+rb)*1024 - e*64), 's_nop 0',
                  Op('buffer_load_dwordx4 v4, s[%d:%d], s%d offen offset:%d lds' % (60+4*(rb >> 1), 63+4*(rb >> 1), 24+rb, e*64), prod=('D', e))]
    if stamp and cfg.get('st7'): o.append(stamp_op(7))
    t = Asm()
    t('s_add_u32 s4, s58, 0x%x', WS_FLG + 128*FLG_E); t('s_addc_u32 s5, s59, 0'); t('s_load_dword s7, s[4:5], 0')
    srd(t, 8, 58, 59, WS_SIZE); srd(t, 72, 36, 37, 8192000)
    t('s_lshl_b32 s30, s22, 4'); t('s_add_u32 s30, s30, s23'); t('s_lshr_b32 s24, s30, 6')
    t('s_bfe_u32 s25, s30, 0x10004'); t('s_lshl_b32 s25, s25, 3'); t('s_bfe_u32 s26, s30, 0x10003'); t('s_add_u32 s25, s25, s26')
    t('s_lshl_b32 s26, s24, 1'); t('s_add_u32 s25, s25, s26'); t('s_and_b32 s26, s30, 7')
    t('s_bfe_u32 s27, s30, 0x20003'); t('s_lshl_b32 s24, s24, 2'); t('s_add_u32 s27, s27, s24')
    t('s_bitcmp0_b32 s30, 5')
    t('s_cselect_b32 s34, s25, s26'); t('s_cselect_b32 s35, s26, s27')
    t('s_cselect_b32 s68, s46, s52'); t('s_cselect_b32 s69, s47, s53'); t('s_cselect_b32 s28, 11, 10')
    SP2 = cfg.get('sp2', 0)
    t('s_mov_b32 s29, 0x%x', WS_SIZE if SP2 else WS_WMF); t('s_cselect_b32 s29, 0x%x, s29', WS_WUPF)
    if SP2: t('s_cselect_b32 s70, 0x100000, 0')
    else: t('s_mov_b32 s70, 0x%x', 0x80000 if cfg.get('dmh', 0) else 0x100000); t('s_cselect_b32 s70, 0x100000, s70')
    if cfg.get('xp_not'): t('s_mov_b32 s70, 0'); t('s_mov_b32 s29, 0x%x', WS_SIZE)
    t('s_and_b32 s69, s69, 0xffff'); t('s_mov_b32 s71, 0x20000')
    t('s_lshl_b32 s34, s34, 1'); t('s_and_b32 s21, s20, 1'); t('s_add_u32 s34, s34, s21')
    t('s_lshl_b32 s35, s35, 1'); t('s_lshr_b32 s21, s20, 1'); t('s_add_u32 s35, s35, s21')
    t('v_lshrrev_b32 v5, 2, v0'); t('v_lshlrev_b32 v5, s28, v5'); t('v_and_b32 v6, 3, v0'); t('v_lshl_add_u32 v5, v6, 4, v5')
    t('s_add_u32 s21, s28, 5'); t('s_lshl_b32 s24, s35, s21'); t('s_lshl_b32 s21, s34, 6'); t('s_add_u32 s24, s24, s21')
    t('s_lshl_b32 s21, 16, s28'); t('s_add_u32 s25, s24, s21')
    o += t.lines
    TL = cfg.get('tl', 0)
    tdm = []
    for b in range(2): tdm += ['s_add_u32 m0, s31, %d' % (b*1024), 's_nop 0', Op('buffer_load_dwordx4 v5, s[68:71], s%d offen lds' % ((18 if TL else 24)+b), prod='T')]
    if TL: o += ['s_mov_b32 s18, s24', 's_mov_b32 s19, s25']
    else: o += tdm
    t = Asm()
    t('s_lshr_b32 s24, s3, 2'); t('s_mul_i32 s24, s24, 80'); t('s_and_b32 s25, s3, 1'); t('s_mul_i32 s25, s25, 4000'); t('s_add_u32 s24, s24, s25')
    t('s_sub_u32 s25, s3, 200'); t('s_mul_i32 s25, s25, 76'); t('s_sub_u32 s25, s25, 2'); t('s_cmp_lt_u32 s3, 253'); t('s_cselect_b32 s25, s25, 0x4000')
    t('s_bfe_u32 s14, s3, 0x10001'); t('s_lshl_b32 s12, s24, 10')
    t('s_cmp_lt_u32 s3, 200')
    if cfg.get('xp_nocx'): t('s_mov_b32 s25, 0x4000')
    t('s_cselect_b32 s24, s24, s25'); t('s_cselect_b32 s26, 1, 5'); t('s_mov_b32 s27, 1024'); t('s_cselect_b32 s27, 0x4000, s27'); t('s_cselect_b32 s14, s14, 0')
    t('s_cselect_b32 s12, s12, 0x%x', WS_SIZE); t('s_cselect_b32 s13, 0x10000, 0')
    t('s_mov_b32 s6, 0x%x', WS_WUPF + 0x80000); t('s_cselect_b32 s6, 0x%x, s6', WS_MF)
    o += t.lines
    la = ln_lane_addr(12, 13, 20, 1); la = [x.replace('v_mul_u32_u24 v12, 1, v12', 'v_mul_u32_u24 v12, s26, v12') for x in la]
    o += la + ['s_lshl_b32 s24, s24, 10', 'v_add_u32 v12, s24, v12', 's_lshl_b32 s16, s14, 9', 's_xor_b32 s17, s16, 512']
    xl = []
    for q in range(5):
        if q: o.append('v_add_u32 v%d, s27, v%d' % (12+q, 11+q))
        xl.append([Op('buffer_load_dwordx4 %s, v%d, s[72:75], s%d offen offset:%d' % (vr(XS[q]+4*k,4), 12+q, 17 if k & 2 else 16, (k & 1)*256), prod=(('X', q), k)) for k in range(4)])
    X0 = cfg.get('x0', 0)
    for l in xl[:X0]: o += l
    if stamp: o.append(stamp_op(2))
    t = Asm(); h_frag_addr(t, 2, 3); t('v_add_u32 v2, s32, v2')
    t('v_and_b32 v6, 15, v0'); t('v_lshlrev_b32 v6, 4, v6'); t('v_lshrrev_b32 v3, 4, v0'); t('v_lshl_add_u32 v6, v3, 9, v6'); t('v_add_u32 v6, s31, v6')
    o += t.lines
    F = 128; D0 = 76; FS = cfg.get('fs', 7)
    for e in range(4):
        for rb in range(4): o.append(Op('ds_read_b128 %s, v2 offset:%d' % (vr(F+16*e+4*rb,4), (e*4+rb)*1024), need=[('D', e)], prod=('F', e)))
    if stamp and cfg.get('st7'): o.append(stamp_op(8))
    X1 = cfg.get('x1', 2)
    for e in range(4):
        if X0+e < X1: o += xl[X0+e]
        for t2 in range(2):
            for t_ in range(2):
                D = vr(D0+8*t2+4*t_, 4)
                o.append(Op('%s %s, %s, %s, %s' % (MF, D, vr(F+16*e+4*t_,4), vr(F+16*e+8+4*t2,4), D if e else '0'), need=[('F', e)]))
    if TL == 1: o += tdm
    TA = cfg.get('ta', 0)
    trd = [Op('ds_read_b64_tr_b16 %s, v6 offset:%d' % (vr(92+4*t2+2*jj,2), jj*256 + t2*8), need=['T'], prod=('TT', t2)) for t2 in range(0 if TL else 2) for jj in range(2)]
    if not TA: o += trd
    o += ['v_add_u32 v22, s32, v1', 's_and_b32 s21, s20, 1', 's_lshl_b32 s24, s21, 11', 's_add_u32 s24, s24, s33', 'v_add_u32 v23, s24, v1',
          's_lshl_b32 s22, s22, 1', 's_add_u32 s22, s22, s21', 's_lshl_b32 s22, s22, 14', 's_lshl_b32 s23, s23, 10', 's_add_u32 s22, s22, s23', 's_add_u32 s22, s22, 0x%x' % WS_MF,
          's_cmp_lt_u32 s20, 2', 's_cselect_b32 s22, s22, 0x%x' % WS_SIZE]
    for c in range(4): o.append('ds_write_b128 v22, %s offset:%d' % (vr(D0+4*c,4), c*1024))
    o += ['s_lshr_b32 s21, s35, 4', 's_lshl_b32 s21, s21, 19', 's_add_u32 s29, s29, s21', 's_and_b32 s21, s35, 15', 's_lshl_b32 s21, s21, 10',
          's_add_u32 s29, s29, s21', 's_lshl_b32 s21, s34, 15', 's_add_u32 s24, s29, s21']
    if cfg.get('dmh', 0): o += ['s_cmp_lt_u32 s35, 16', 's_cselect_b32 s24, s24, 0x%x' % WS_SIZE]
    o += ['s_add_u32 s25, s24, 16384']
    if stamp and cfg.get('st7'): o.append(stamp_op(9))
    o.append(Op('s_barrier', need=['ALLL']))
    if stamp and cfg.get('st7'): o.append(stamp_op(10))
    G = 128
    for w in range(4):
        for c in range(2): o.append(Op('ds_read_b128 %s, v23 offset:%d' % (vr(G+8*w+4*c,4), w*16384 + c*1024), prod=('R', w)))
    if TL: o += ['s_mov_b32 s34, s24', 's_mov_b32 s35, s25']
    tst = [Op('buffer_store_dwordx4 %s, v1, s[8:11], s%d offen sc1' % (vr(92+4*t2,4), 24+t2), need=[('TT', t2)], prod='P0') for t2 in range(0 if TL else 2)]
    if not TA: o += tst
    o += ['v_mov_b32 v60, 0x%x' % f2u(QSCALE), 's_add_u32 s7, s7, 0x9e3779b9', 'v_min_u32 v20, 1, v0', 'v_lshlrev_b32 v20, 30, v20', 'v_mov_b32 v21, s7',
          's_lshl_b32 s30, s30, %d' % FS, 's_add_u32 s30, s30, 0x%x' % (WS_FLG + 128*FLG_0), 's_cmp_eq_u32 s20, 0', 's_cselect_b32 s30, s30, 0x%x' % WS_SIZE,
          's_lshl_b32 s21, s20, %d' % (6+FS), 's_add_u32 s21, s21, 0x%x' % (WS_FLG + 128*FLG_0), 'v_lshl_add_u32 v18, v0, %d, s21' % FS]
    if TL: o += ['s_cmp_lt_u32 s3, 200', 's_cselect_b32 s21, 0, 0x%x' % (128*(FLG_1-FLG_0)), 'v_add_u32 v18, s21, v18', 's_add_u32 s29, s30, 0x%x' % (128*(FLG_1-FLG_0))]
    for w in range(1, 4):
        for r in range(4): o.append(Op('v_pk_add_f32 %s, %s, %s' % (vr(G+2*r,2), vr(G+2*r,2), vr(G+8*w+2*r,2)), need=[('R', w)]))
    for r in range(4): o.append('v_pk_mul_f32 %s, %s, v[60:61] op_sel_hi:[1,0]' % (vr(G+2*r,2), vr(G+2*r,2)))
    for r in range(4): o.append('v_cvt_pk_bf16_f32 v%d, v%d, v%d' % (G+r, G+2*r, G+2*r+1))
    o.append(Op('buffer_store_dwordx4 %s, v1, s[8:11], s22 offen sc1' % vr(G,4), prod='P0'))
    if TA: o += trd + tst
    if TL == 2: o += tdm
    if stamp: o.append(stamp_op(3))
    return o, xl[max(X0, X1):]
FLAG0 = 'buffer_store_dword v21, v20, s[8:11], s30 offen sc1'
FLAG1 = 'buffer_store_dword v21, v20, s[8:11], s29 offen sc1'
def t_reads(): return [Op('ds_read_b64_tr_b16 %s, v6 offset:%d' % (vr(28+4*t2+2*jj,2), jj*256 + t2*8), need=['T'], prod=('TT', t2)) for t2 in range(2) for jj in range(2)]
def t_stores(): return [Op('buffer_store_dwordx4 %s, v1, s[8:11], s%d offen sc1' % (vr(28+4*t2,4), 34+t2), need=[('TT', t2)], prod='P1') for t2 in range(2)]
POLL0 = 'buffer_load_dword v19, v18, s[8:11], 0 offen sc1'
def spin0(a, name, back):
    a.label(name); a('s_mov_b32 s21, 0'); a.label(name + '_l')
    a(POLL0); a('s_waitcnt vmcnt(0)'); a('v_cmp_ne_u32 vcc, s7, v19'); a('s_cbranch_vccz %s', back)
    a('s_add_u32 s21, s21, 1'); a('s_cmp_lt_u32 s21, 0x40000'); a('s_cbranch_scc1 %s_l', name); a('s_branch %s', back)
def head_b(cfg, xlate, atag):
    stamp = cfg.get('stamp') and cfg.get('sthead') == 2
    o = ln_h_addr(17, 3, 20) + ['s_lshl_b32 s21, s14, 13', 'v_add_u32 v17, s21, v17', 'v_add_u32 v8, s13, v17', 'v_xor_b32 v9, 0x2000, v8',
                                'v_add_u32 v10, 0x10000, v8', 'v_add_u32 v11, 0x10000, v9', 's_mov_b32 s15, 0xffff0000',
                                's_lshl_b32 s21, s20, 17', 's_add_u32 s6, s6, s21', Op('v_mov_b32 v66, 0x3f803f80')]
    if cfg.get('q6', 1): o += ['s_mul_i32 s21, s14, 98304', 's_add_u32 s6, s6, s21']
    def wr(q, k, reg):
        off = q*16384 + (k & 1)*4096
        r = [Op('ds_write_b128 v%d, %s offset:%d' % (8 + (k >> 1) + 2*(off//65536), vr(reg,4), off % 65536), prod=('XS', 0))]
        if k < 2: r += ['s_add_u32 s24, s12, %d' % off, Op('buffer_store_dwordx4 %s, v17, s[8:11], s24 offen sc1' % vr(reg,4), prod='XST')]
        return r
    al = []
    for f in range(14):
        al.append(Op('buffer_load_dwordx4 %s, v1, s[8:11], s6 offen offset:%d sc1' % (vr(128+4*f,4), (f%4)*1024), prod=atag(f)))
        if f % 4 == 3: al.append('s_add_u32 s6, s6, 4096')
    PF = cfg.get('hpf', 0); PP = cfg.get('hpp', 3); PC = cfg.get('hpc', 3)
    xlate = list(xlate); XM = cfg.get('xm', 3); xflag = []
    if XM == 1:
        for l in xlate: o += l
        xlate = []
    elif XM == 2: xflag = [x for l in xlate for x in l]; xlate = []
    elif XM == 3: xlate = [xlate[0] + xlate[1]] + xlate[2:]
    elif XM == 4: o += xlate[0]; xflag = [x for l in xlate[1:] for x in l]; xlate = []
    elif XM == 5: o += xlate[0]; xlate = xlate[1:]
    DMH = cfg.get('dmh', 0); dml = [[] for _ in range(5)]
    if DMH:
        t = Asm(); srd(t, 60, 50, 51, 524288); srd(t, 64, 52, 53, 1048576)
        t('s_and_b32 s23, s3, 15'); t('s_lshr_b32 s22, s3, 4'); t('s_lshl_b32 s21, s20, 8'); t('s_lshl_b32 s26, s23, 15'); t('s_add_u32 s26, s26, s21'); t('s_add_u32 s27, s26, 4096')
        t('s_lshl_b32 s28, s20, 17'); t('s_lshl_b32 s21, s22, 6'); t('s_add_u32 s28, s28, s21'); t('s_add_u32 s28, s28, 0x80000')
        t('v_lshrrev_b32 v5, 2, v0'); t('v_lshlrev_b32 v5, 10, v5'); t('v_and_b32 v3, 3, v0'); t('v_lshl_add_u32 v5, v3, 4, v5')
        t('s_sub_u32 s21, s32, s31'); t('v_add_u32 v6, s21, v6')
        t('s_and_b32 s21, s20, 1'); t('s_lshl_b32 s22, s22, 1'); t('s_add_u32 s22, s22, s21'); t('s_lshl_b32 s22, s22, 14'); t('s_lshl_b32 s23, s23, 10'); t('s_add_u32 s22, s22, s23')
        t('s_add_u32 s22, s22, 0x%x', WS_WDMF); t('s_cmp_lt_u32 s20, 2'); t('s_cselect_b32 s22, s22, 0x%x', WS_SIZE)
        o += t.lines
        dl = []
        for rb in range(2):
            for e in range(4): dl.append(Op('buffer_x\ns_add_u32 m0, s32, %d\ns_nop 0\nbuffer_load_dwordx4 v4, s[60:63], s%d offen offset:%d lds' % ((e*4+rb)*1024 - e*64, 26+rb, e*64), prod='D2'))
        for e in range(4):
            for b in range(2): dl.append(Op('buffer_x\ns_add_u32 m0, s32, %d\ns_add_u32 s29, s28, %d\nbuffer_load_dwordx4 v5, s[64:67], s29 offen lds' % ((e*4+2+b)*1024, (2*e+b)*16384), prod='D2'))
        cnt = cfg.get('dmc', [0, 6, 10, 0, 0])
        for q in range(5): dml[q] = dl[:cnt[q]]; dl = dl[cnt[q]:]
        assert not dl and all(c == 0 for c in cnt[:PF+1])
    for q in range(5):
        p = ln_pass1(XS[q], 76, 60, ('X', q), 15, 66, (lambda k, reg, q=q: wr(q, k, reg)))
        ex = oplist(xlate.pop(0)) if xlate else []
        ex += dml[q]
        if q == cfg.get('upq', 2) and cfg.get('upf', 0) and cfg.get('dmv', 1) and not DMH:
            o += ['s_mov_b32 s60, s50', 's_and_b32 s61, s51, 0xffff', 's_sub_u32 s21, s3, 200', 's_cmp_lt_u32 s21, 48', 's_cselect_b32 s62, 0x80000, 0', 's_mov_b32 s63, 0x20000',
                  's_and_b32 s21, s21, 15', 's_lshl_b32 s21, s21, 2', 's_add_u32 s21, s21, s20', 's_lshl_b32 s22, s21, 13', 'v_lshlrev_b32 v24, 7, v0']
            ex.append(Op('buffer_load_dword v24, v24, s[60:63], s22 offen'))
        if q == PC+1: ex += oplist(al); al = []
        nd = sum(1 for x in ex if kind_of(x) == 'D'); step = max(1, len(p)//(nd+1))
        for i, x in enumerate(p):
            if cfg.get('tl', 0):
                if q == cfg.get('tq', 1) and i == 0: o += t_reads()
                if q == cfg.get('tq', 1) and i == 20: o += t_stores()
                if (q, i) == cfg.get('tf', (2, 60)): o += [Op('s_barrier', need=['P1']), FLAG1]
            if q == PP and i == cfg.get('hpi', 0): o.append(Op(POLL0, prod='F0'))
            if q == PF and i == cfg.get('hfi', 80):
                o += [Op('s_barrier', need=['P0']), FLAG0] + xflag
                if stamp: o.append(stamp_op(4))
            o.append(x)
            if ex and i % step == step-1:
                o.append(ex.pop(0))
                while ex and kind_of(ex[0]) != 'D': o.append(ex.pop(0))
        o += ex
        if q == PF and cfg.get('hfi', 80) >= len(p):
            o += [Op('s_barrier', need=['P0']), FLAG0]
            if stamp: o.append(stamp_op(4))
        if q == PC:
            o += [Op('v_cmp_ne_u32 vcc, s7, v19', need=['F0']), 's_cbranch_vccnz L_spin0', 'L_ok0:']
            if stamp: o.append(stamp_op(5))
    o += al
    if DMH:
        D0 = 76; G = 28
        for e in range(4):
            for rb in range(2): o.append(Op('ds_read_b128 %s, v2 offset:%d' % (ar(16*e+4*rb,4), (e*4+rb)*1024), need=['D2'], prod=('F2', e)))
            for t2 in range(2):
                for jj in range(2): o.append(Op('ds_read_b64_tr_b16 %s, v6 offset:%d' % (ar(16*e+8+4*t2+2*jj,2), (e*4+2)*1024 + jj*256 + t2*8), prod=('F2', e)))
            for ee in ([e-1] if 0 < e < 3 else ([2, 3] if e == 3 else [])):
                for t2 in range(2):
                    for t_ in range(2):
                        D = vr(D0+8*t2+4*t_, 4)
                        o.append(Op('%s %s, %s, %s, %s' % (MF, D, ar(16*ee+4*t_,4), ar(16*ee+8+4*t2,4), D if ee else '0'), need=[('F2', ee)]))
        o.append('s_nop 4')
        for c in range(4): o.append('ds_write_b128 v22, %s offset:%d' % (vr(D0+4*c,4), c*1024))
        o.append(Op('s_barrier', need=['ALLL']))
        for w in range(4):
            for c in range(2): o.append(Op('ds_read_b128 %s, v23 offset:%d' % (vr(G+8*w+4*c,4), w*16384 + c*1024), prod=('R2', w)))
        for w in range(1, 4):
            for r in range(4): o.append(Op('v_pk_add_f32 %s, %s, %s' % (vr(G+2*r,2), vr(G+2*r,2), vr(G+8*w+2*r,2)), need=[('R2', w)]))
        for r in range(4): o.append('v_cvt_pk_bf16_f32 v%d, v%d, v%d' % (24+r, G+2*r, G+2*r+1))
        o.append(Op('buffer_store_dwordx4 v[24:27], v1, s[8:11], s22 offen sc1', prod='XST'))
    if stamp: o.append(stamp_op(6))
    return o
```

```python
from asmlib import *
from layout import *
from gen_k0 import srd, h_frag_addr
from gen_ln import *

S_WS=8
S_W=20; S_J=21; S_B=23; S_SP=24; S_QT=25; S_N=26; S_T=27
S_SRC=28; S_DST=29; S_END=30; S_SRCV=31
S_T0=34; S_T1=35; S_T2=36; S_T3=37; S_RET=38; S_RB=39; S_THR=41; S_NV=42
S_WP=48; S_FO=52; S_PP=53; S_PS=54; S_BS=55; S_OP=56; S_SPIN=57; S_LP=58; S_MK=59; S_SAME=43; S_PP2=45; S_WB=46; S_NR=47
L_X2=151552; L_PAR=81920
L_ST=65536; L_P=131072; L_X=147456; L_FLAG=159744
MF='v_mfma_f32_16x16x32_bf16'

class Attn:
    def __init__(self, a, cfg):
        self.a = a; self.cfg = cfg
        self.NQ = NQ = cfg['NQ']; self.NS = cfg['NS']
        self.vb = 256 - max(0, 64*NQ - 256)
        self.n = 16*NQ; self.SN = cfg.get('snake', 1); self.S2 = cfg.get('s2', 1); self.PV2 = cfg.get('pv2', 1); self.CH = cfg.get('ch', 2)
        self.EA = cfg.get('ea', 0) if (cfg.get('hyb', 1) and not cfg.get('two', 0)) else 0
        self.WL = cfg.get('wl', 1) and cfg.get('hyb', 1) and cfg.get('one', 1)
        self.TWP = 0 if self.WL else cfg.get('twp', 10 if (cfg.get('hyb', 1) and cfg.get('two', 0)) else 6)
        self.V_L16=1; self.V_A=2; self.V_PA=3; self.V_XA=4; self.V_F=5; self.V_FA=6; self.V_T=7
        r = 8
        self.V_E=r; r+=8
        self.V_PK=r; r+=4
        self.V_NEGM=r; r+=4*NQ
        self.V_S=r; r+=8*NQ
        self.RQ = cfg['ringq']; self.V_RQ=r; r+=4*self.RQ
        self.V_L=r; r+=NQ
        self.V_TS=r; r+=NQ
        self.V_PF=r; r+=2
        self.W2 = cfg.get('w2', 1); self.PL = self.W2 and cfg.get('pl', 1)
        self.V_EE=r; r+=4*NQ
        self.V_P2=r; r+=2*NQ
        assert r <= self.vb, r
        self.V_A2 = 8; self.V_PX = 10; self.NFV = 28
        r = 8*(8*NQ - self.NFV)
        self.RP = cfg['ringp']; self.A_RP = r; r += 4*self.RP
        self.A_PP = r; r += 8*NQ
        assert r <= 256
    def pos(self, g, ch=2):
        NQ = self.NQ; G = g//(ch*NQ); w = g % (ch*NQ); qb = w//ch
        kk = ch*G + ((w % ch) ^ ((ch-1)*(qb & self.SN)))
        if self.S2 and not G & 1: qb = NQ-1-qb
        return qb, kk
    def O(self, f, off=0, n=1):
        return vr(32+8*f+off, n) if f < self.NFV else ar(8*(f-self.NFV)+off, n)
    def R(self, i, n=1):
        return ar(i, n) if i < 256 else vr(self.vb + i - 256, n)
    def dma(self, d0, cnt):
        g = []
        for x in range(cnt):
            d = d0 + x; pre = []
            if d % 4 == 0 or x == 0:
                pre = ['s_add_u32 m0, s%d, %d' % (S_DST, (d//4)*4096), 's_add_u32 s%d, s%d, %d' % (S_T0, S_SRC if self.WL else S_SRCV, (d//4)*4096)]
            g.append((pre, 'buffer_load_dwordx4 v%d, s[%d:%d], s%d offen offset:%d%s lds' % (self.V_L16, S_WS, S_WS+3, S_T0, (d%4)*1024, self.cfg.get('kpol', ' sc1'))))
        return g
    def dma_adv(self):
        return [['s_add_u32 s%d, s%d, 32768' % (S_SRC, S_SRC), 's_add_u32 s%d, s%d, 32768' % (S_DST, S_DST)],
                ['s_and_b32 s%d, s%d, 0x1ffff' % (S_DST, S_DST)],
                ['s_cmp_eq_u32 s%d, s%d' % (S_SRC, S_END), 's_cselect_b32 s%d, s%d, s%d' % (S_SRC, S_WB, S_SRC)] if self.WL else
                ['s_cmp_lt_u32 s%d, s%d' % (S_SRC, S_END), 's_cselect_b32 s%d, s%d, 0x%x' % (S_SRCV, S_SRC, WS_SIZE)]]
    def place_dma(self, G, d0, cnt, g0, g1, pf=False, pfp=None):
        if cnt == 0: return []
        prev = None; lst = self.dma(d0, cnt)
        for i, (pre, ins) in enumerate(lst):
            lo = g0 + (i*(g1-g0))//cnt
            if pre:
                t1 = G.asap(Task('S', pre[0], [(prev,1)] if prev else [], lo=max(g0, lo-2) if prev is None else g0))
                t2 = G.asap(Task('S', pre[1], [(t1,0)]))
                prev = t2
            prev = G.asap(Task('D', ins, [(prev,1)], lo=lo))
            if i == pfp: prev = G.asap(Task('D', 'buffer_load_dword v23, v22, s[%d:%d], s%d offen' % (S_WS, S_WS+3, S_SRC if self.WL else S_SRCV), [(prev,1)]))
        if pf: prev = G.asap(Task('D', 'buffer_load_dword v%d, v%d, s[%d:%d], s%d offen' % (self.V_PF+1, self.V_PF, S_WS, S_WS+3, S_SRCV), [(prev,1)]))
        self.last_dma = prev.gap
        adv = self.dma_adv()
        for x in adv[0] + adv[1]: prev = G.asap(Task('S', x, [(prev, 1 if prev.kind == 'D' else 0)]))
        return [(G.asap(Task('SS', adv[2], [(prev,1)])), 1)]
    def place_dma_at(self, G, d0, gaps, s0):
        lst = self.dma(d0, len(gaps)); ds = [G.put(Task('D', ins), g) for (pre, ins), g in zip(lst, gaps)]
        def scal():
            for i, (pre, ins) in enumerate(lst):
                for x in pre:
                    t = G.asap(Task('S', x, lo=gaps[i-1]+1 if i else s0)); assert t.gap < gaps[i], (t.gap, gaps[i])
            prev = ds[-1]; adv = self.dma_adv()
            for x in adv[0] + adv[1]: prev = G.asap(Task('S', x, [(prev, 1 if prev.kind == 'D' else 0)]))
            return [(G.asap(Task('SS', adv[2], [(prev,1)])), 1)]
        return scal
    def kread(self, kk, par):
        return Op('ds_read_b128 %s, v%d offset:%d' % (vr(self.V_RQ+4*(kk % self.RQ),4), self.V_A, par*32768 + kk*1024), prod=('K', par, kk))
    def qk_mfma(self, g, par, first=False):
        NQ = self.NQ
        ch = self.CH; G = g//(ch*NQ); w = g % (ch*NQ); qb, kk = self.pos(g, ch)
        D = vr(self.V_S + 4*NQ*par + 4*qb, 4)
        C = D if (G or w % ch) else ('0' if first else vr(self.V_NEGM+4*qb,4))
        need = [('K', par, kk)] if w < ch else []
        return Op('%s %s, %s, %s, %s' % (MF, D, vr(self.V_RQ+4*(kk % self.RQ),4), self.R(4*(kk*NQ+qb),4), C), need=need)
    def softmax_groups(self, sp):
        NQ = self.NQ; E = self.V_E; out = []
        if self.W2:
            for qb in range(NQ):
                S = self.V_S + 4*NQ*sp + 4*qb; E = self.V_EE + 4*qb; PK = self.V_P2 + 2*qb
                out += [['v_exp_f32 v%d, v%d' % (E+r, S+r)] for r in range(4)]
                out.append(['v_cvt_pk_bf16_f32 v%d, v%d, v%d' % (PK+h, E+2*h, E+2*h+1) for h in range(2)])
                out.append([self.pwrite(sp, qb, h) for h in range(2)])
            return out
        for qb in range(NQ):
            S = self.V_S + 4*NQ*sp + 4*qb; PK = self.V_PK + 2*(qb & 1); TS = self.V_TS+qb
            for r in range(4): out.append(['v_exp_f32 v%d, v%d' % (E+r, S+r)])
            out.append(['v_add_f32 v%d, v%d, v%d' % (TS, E, E+1), 'v_cvt_pk_bf16_f32 v%d, v%d, v%d' % (PK, E, E+1)])
            out.append(['v_add_f32 v%d, v%d, v%d' % (self.V_T, E+2, E+3), 'v_cvt_pk_bf16_f32 v%d, v%d, v%d' % (PK+1, E+2, E+3)])
            out.append(['v_add_f32 v%d, v%d, v%d' % (TS, TS, self.V_T),
                        Op('ds_write_b64 v%d, %s offset:%d' % (self.V_PA, vr(PK,2), (sp*NQ+qb)*1024), prod=('PW', sp, qb))])
        return out
    def pwrite(self, sp, qb, h):
        return Op('ds_write_b32 v%d, v%d offset:%d' % (self.V_PA, self.V_P2+2*qb+h, (sp*self.NQ+qb)*1024 + (256 if self.PL else 4)*h), prod=('PW' if h else 'PW0', sp, qb))
    def ladds(self, qb):
        M = self.V_L+qb
        if self.W2: return ['v_add_f32 v%d, v%d, v%d' % (M, M, self.V_EE+4*qb+r) for r in range(4)]
        return ['v_add_f32 v%d, v%d, v%d' % (M, M, self.V_TS+qb)]
    def check_groups(self, tag):
        NQ = self.NQ; TS = self.V_TS; T = self.V_T
        if self.W2:
            P = self.V_P2
            m = ['v_or3_b32 v%d, v%d, v%d, v%d' % (T, P, P+1, P+2)] + ['v_or3_b32 v%d, v%d, v%d, v%d' % (T, T, P+i, P+i+1) for i in (3, 5, 7)]
            m += ['v_bitop3_b32 v%d, v%d, v%d, s%d bitop3:0xa8' % (T, T, P+9, S_THR), 'v_cmp_ne_u32 vcc, 0, v%d' % T]
            return [m[i:i+2] for i in range(0, 6, 2)] + [['s_cbranch_vccnz L_setflag%s' % tag, 'L_flagset%s:' % tag]]
        m = ['v_max3_f32 v%d, v%d, v%d, v%d' % (T, TS, TS+1, TS+2)]
        i = 3
        while i < NQ:
            if i+1 < NQ: m.append('v_max3_f32 v%d, v%d, v%d, v%d' % (T, T, TS+i, TS+i+1)); i += 2
            else: m.append('v_max_f32 v%d, v%d, v%d' % (T, T, TS+i)); i += 1
        m.append('v_cmp_lt_f32 vcc, s%d, v%d' % (S_THR, T))
        out = [m[i:i+2] for i in range(0, len(m), 2)]
        out.append(['s_cbranch_vccnz L_setflag%s' % tag, 'L_flagset%s:' % tag])
        return out
    def flag_read(self, par): return Op('ds_read_b32 v%d, v%d' % (self.V_F, self.V_FA), prod=('F', par))
    def softmax_tasks(self, sp):
        NQ = self.NQ; cfg = self.cfg; tasks = []; hist = []
        for qb in range(NQ):
            E = self.V_E + 4*(qb & 1)
            S = self.V_S + 4*NQ*sp + 4*qb; PK = self.V_PK + 2*(qb & 1); TS = self.V_TS+qb
            old = hist[qb-2] if qb >= 2 else None
            e = []
            for r in range(4):
                dep = [(e[-1],1)] if e else ([(hist[-1]['e'],1)] if hist else [])
                if old: dep += [(old['a01' if r < 2 else 'af'],1), (old['c01' if r < 2 else 'c23'],1)]
                e.append(Task('E', 'v_exp_f32 v%d, v%d' % (E+r, S+r), dep))
            a01 = Task('V', 'v_add_f32 v%d, v%d, v%d' % (TS, E, E+1), [(e[1],1)])
            c01 = Task('V', 'v_cvt_pk_bf16_f32 v%d, v%d, v%d' % (PK, E, E+1), [(e[1],1)] + ([(old['w'],1)] if old else []))
            a2 = Task('V', 'v_add_f32 v%d, v%d, v%d' % (TS, TS, E+2), [(e[2],1),(a01,0)])
            c23 = Task('V', 'v_cvt_pk_bf16_f32 v%d, v%d, v%d' % (PK+1, E+2, E+3), [(e[3],1)] + ([(old['w'],1)] if old else []))
            af = Task('V', 'v_add_f32 v%d, v%d, v%d' % (TS, TS, E+3), [(e[3],1),(a2,0)])
            off = (sp*NQ+qb)*1024
            if cfg.get('w32', 1):
                w0 = Task('W', Op('ds_write_b32 v%d, v%d offset:%d' % (self.V_PA, PK, off), prod=('PW0', sp, qb)), [(c01,1)] + ([(hist[-1]['w'],1)] if hist else []))
                w = Task('W', Op('ds_write_b32 v%d, v%d offset:%d' % (self.V_PA, PK+1, off+4), prod=('PW', sp, qb)), [(c23,1),(w0,1)])
                ws = [w0, w]
            else:
                w = Task('W', Op(('ds_write_b32 v%d, v%d offset:%d' % (self.V_PA, PK + (qb & 1), off + 4*(qb & 1))) if cfg.get('xp_w1') else 'ds_write_b64 v%d, %s offset:%d' % (self.V_PA, vr(PK,2), off), prod=('PW', sp, qb)), [(c01,1),(c23,1)] + ([(hist[-1]['w'],1)] if hist else []))
                ws = [w]
            hist.append(dict(e=e[3], a01=a01, c01=c01, c23=c23, af=af, w=w))
            tasks.append((e, [a01, c01, a2, c23, af], ws))
        return tasks, hist
    def qk_body(self, par, first=False):
        NQ = self.NQ; n = self.n; cfg = self.cfg
        G = Gaps(n)
        LA = min(self.RQ//2 - 1, cfg['laq'])
        C4 = self.CH == 4
        if C4:
            kp = cfg.get('k4', [[4, 5, 12, 13], [20, 21, 28, 29], [47, 48, 49, 50], [60, 61, 68, 69]])
            for gi in range(4):
                G2 = (gi+1) % 4; p2 = par ^ (gi == 3)
                if gi == 3 and par == 1: G.put(Task('V', 'v_xor_b32 v%d, 0x10000, v%d' % (self.V_A, self.V_A)), 59)
                for h in range(4): G.put(Task('R', self.kread(4*G2+h, p2)), kp[gi][h])
                if not (first and gi == 3): G.put(Task('S', Op(None, need=[('K', p2, 4*G2+3)])), 20*gi+19)
        for gi in range(0 if C4 else 8):
            G2 = gi + LA; p2 = par; pos = 2*NQ*gi
            if G2 >= 8: G2 -= 8; p2 = par ^ 1
            if G2 == 0 and par == 1: G.put(Task('V', 'v_xor_b32 v%d, 0x10000, v%d' % (self.V_A, self.V_A)), pos-1)
            G.put(Task('R', self.kread(2*G2, p2)), pos); G.put(Task('R', self.kread(2*G2+1, p2)), pos+cfg.get('kd',1))
            g1 = (gi+1) % 8
            if not (first and gi == 7):
                G.put(Task('S', Op(None, need=[('K', par if gi < 7 else par^1, 2*g1+1)])), pos+2*NQ-1)
        if not first:
            if self.W2:
                sp = par ^ 1; ee = []; cv = []; ww = []
                for i in range(4*NQ): ee.append(Task('E', 'v_exp_f32 v%d, v%d' % (self.V_EE+i, self.V_S+4*NQ*sp+i), [(ee[-1],1)] if ee else []))
                for i in range(2*NQ):
                    cv.append(Task('V', 'v_cvt_pk_bf16_f32 v%d, v%d, v%d' % (self.V_P2+i, self.V_EE+2*i, self.V_EE+2*i+1), [(ee[2*i+1],1)]))
                    ww.append(Task('W', self.pwrite(sp, i//2, i & 1), [(cv[i],1)] + ([(ww[-1],1)] if ww else [])))
                ck = self.check_groups(str(par)); flat = [x for it in ck[:-1] for x in it]; cks = []
                for i, x in enumerate(flat): cks.append(Task('V', x, [(cv[j],0) for j in range(min(2*NQ, 3+2*i))] + ([(cks[-1],0)] if cks else [])))
                br = Task('B', ck[-1], [(cks[-1], 2)])
                plan = cfg.get('w2p', 'EEEEccEWEWEEccEWEWEEccEWEWEEccEWEWEECWOOOW' if C4 else '..EEEEEEEEccEWEWECEEccEWEWEWEEccEEWWWCWOooOW')
                q = {'E': list(ee), 'c': list(cv), 'W': list(ww), 'o': list(cks)}
                for g, ch in enumerate(plan):
                    for k in {'.': '', 'C': 'cc', 'O': 'oo'}.get(ch, ch):
                        t = q[k].pop(0)
                        assert all(d.gap is not None and d.gap + dist <= g for d, dist in t.deps), (g, t.ops)
                        G.put(t, g)
                assert not any(q.values()), {k: len(v) for k, v in q.items()}
                G.asap(br); hist = [dict(w=ww[-1])]
            else:
                tk, hist = self.softmax_tasks(par ^ 1)
                order = []
                for q in range(NQ):
                    order += tk[q][0][:2]
                    if q: order += tk[q-1][1][2:] + tk[q-1][2][-1:]
                    order += tk[q][0][2:] + tk[q][1][:2] + tk[q][2][:-1]
                order += tk[NQ-1][1][2:] + tk[NQ-1][2][-1:]
                ck = self.check_groups(str(par))
                flat = [x for it in ck[:-1] for x in it]
                prev = None; cks = []
                for i, x in enumerate(flat):
                    dep = [(hist[q]['af'],0) for q in range(min(NQ-1, 2+2*i)+1)] + ([(prev,0)] if prev else [])
                    prev = Task('V', x, dep); cks.append(prev)
                br = Task('B', ck[-1][1:] if cfg.get('xp_nb') else ck[-1], [(prev, 2)])
                G.listsched(order[:-1] + cks + order[-1:] + [br])
            bar = G.asap(Task('X', [Op(None, need=[('PW', par^1, NQ-1)], extra=('vmcnt(1)' if (cfg.get('kpf', 0) and not cfg.get('kpp', 1)) else 'vmcnt(0)') if cfg['dq'] else ''), 's_barrier'], [(br,1),(hist[-1]['w'], cfg['bq'])]))
            assert bar.gap < (kp[2][0] if C4 else 2*NQ*(8-LA-(cfg['dv']+1)//2)) and cfg['dv'] <= 4, (bar.gap, LA)
            if 'qd' in cfg:
                assert len(cfg['qd']) == cfg['dq'] and cfg['qd'][0] > bar.gap; scal = self.place_dma_at(G, 0, cfg['qd'], bar.gap-2)
            fr = G.asap(Task('R', self.flag_read(par), [(bar,1)]))
            fw = G.asap(Task('SV', [Op(None, need=[('F', par)]), 'v_cmp_eq_u32 vcc, s%d, v%d' % (S_T, self.V_F)], [(fr, cfg['fq'])]))
            b2 = G.asap(Task('B', ['s_cbranch_vccnz L_qrec%d' % par, 'L_qback%d:' % par][1 if cfg.get('xp_nb') else 0:], [(fw,2)]))
            if not self.W2:
                for q in range(NQ): G.asap(Task('V', 'v_add_f32 v%d, v%d, v%d' % (self.V_L+q, self.V_L+q, self.V_TS+q), [(b2,1)]))
            if cfg.get('wpl', 1) and (par or not self.WL): G.asap(Task('D', 'buffer_load_dword v%d, v%d, s[%d:%d], 0 offen sc1' % (self.V_PF+1, self.V_PF, S_WS, S_WS+3), [(b2, cfg.get('wpd', 14))]))
            dd = scal() if 'qd' in cfg else self.place_dma(G, 0, cfg['dq'], bar.gap+1, n-cfg['dqe'], cfg.get('kpf', 0) and not cfg.get('kpp', 1))
            inc = G.asap(Task('SS', ['s_add_u32 s%d, s%d, 1' % (S_T, S_T), ('s_cmp_eq_u32 s%d, s%d' if par else 's_cmp_lg_u32 s%d, s%d') % (S_T, S_N)], [(b2,1)]+dd, lo=n-3))
            if self.W2:
                ad = [self.ladds(q) for q in range(NQ)]; prev = b2
                for r in range(4):
                    for q in range(NQ): prev = G.asap(Task('V', ad[q][r], [(prev, 1 if prev is b2 else 0)]))
            if cfg.get('show'): print('QK', par, G.show())
        ops = []
        for g in range(n):
            ops.append(self.qk_mfma(g, par, first)); ops += G.ops(g)
        return ops
    def rowmax_exchange(self, sp):
        a = self.a; NQ = self.NQ; T = self.V_T
        for qb in range(NQ):
            S = self.V_S + 4*NQ*sp + 4*qb; M = self.V_TS+qb
            a('v_max3_f32 v%d, v%d, v%d, v%d', M, S, S+1, S+2); a('v_max_f32 v%d, v%d, v%d', M, M, S+3)
            for ins in ['v_permlane16_swap_b32', 'v_permlane32_swap_b32']:
                a('v_mov_b32 v%d, v%d', T, M); a('s_nop 1'); a('%s v%d, v%d', ins, T, M); a('v_max_f32 v%d, v%d, v%d', M, M, T)
            if self.W2: a('v_add_f32 v%d, 0x%x, v%d', M, f2u(float(self.cfg.get('thr', 40))), M)
            a('ds_write_b32 v%d, v%d offset:%d', self.V_XA, M, qb*512)
    def read_x(self, dst):
        a = self.a
        a('v_and_b32 v%d, 0xfffffffb, v%d', self.V_T, self.V_XA)
        for qb in range(self.NQ): a('ds_read_b64 %s, v%d offset:%d', vr(dst+2*qb,2), self.V_T, qb*512)
        a('s_waitcnt lgkmcnt(0)')
    def emit_flat(self, groups):
        for it in groups:
            for o in oplist(it): self.a(o.text)
            if it and not isinstance(it[0], Op) and it[0].startswith('v_exp'): pass
    def qk_path(self):
        a = self.a; NQ = self.NQ; cfg = self.cfg; T = self.V_T
        h_frag_addr(a, self.V_A, T)
        a('s_lshl_b32 s%d, s%d, 14', S_T2, S_J); a('v_add_u32 v%d, s%d, v%d', self.V_A, S_T2, self.V_A)
        QA = self.V_E
        a('v_add_u32 v%d, %d, v%d', QA, L_ST, self.V_L16); a('v_add_u32 v%d, %d, v%d', QA+1, L_ST+65536, self.V_L16)
        LA = min(self.RQ//2 - 1, cfg['laq'])
        def qread(g):
            qb, kk = self.pos(g, self.CH); off = qb*16384 + kk*1024
            return Op('ds_read_b128 %s, v%d offset:%d' % (self.R(4*(kk*NQ+qb),4), QA + off//65536, off % 65536), prod=('Q', g))
        PRE = 10
        ops = [self.kread(kk, 0) for kk in range(4 if self.CH == 4 else 2*LA)] + [qread(g) for g in range(PRE)]
        ops += ['s_lshl_b32 s%d, s%d, %d' % (S_T2, S_J, 9 if self.PL else 3), 's_add_u32 s%d, s%d, %d' % (S_T2, S_T2, L_P), 'v_lshl_add_u32 v%d, v0, %d, s%d' % (self.V_PA, 2 if self.PL else 4, S_T2)]
        ops += ['v_mov_b32 v%d, 0' % (self.V_L+q) for q in range(NQ)]
        ops += ['s_and_b32 s%d, s%d, 7' % (S_T2, S_QT), 's_lshl_b32 s%d, s%d, 11' % (S_T2, S_T2), 's_add_u32 s%d, s%d, %d' % (S_T2, S_T2, 32768*cfg.get('kpf', 0)), 'v_lshl_add_u32 v%d, v0, 5, s%d' % (self.V_PF, S_T2)]
        if cfg.get('wpl', 1):
            assert cfg.get('kpp', 1)
            ops += ['v_lshrrev_b32 v%d, 4, v0' % self.V_PF, 'v_min_u32 v%d, 2, v%d' % (self.V_PF, self.V_PF), 'v_lshlrev_b32 v%d, 7, v%d' % (self.V_PF, self.V_PF), 'v_add_u32 v%d, 0x%x, v%d' % (self.V_PF, WS_FLG + 128*FLG_W, self.V_PF)]
        g = 0; late = []
        for o in self.qk_body(0, first=True):
            if self.T1L and o.prod and o.prod[0] == 'K' and o.prod[1] == 1: late.append(o)
            elif o.text and o.text.startswith(MF):
                if g % 2 == 0: o.need = o.need + [('Q', g+1)]
                ops.append(o)
                if g + PRE < self.n: ops.append(qread(g+PRE))
                g += 1
            else: ops.append(o)
        resolve(a, oplist(ops), [])
        if cfg.get('stamp') and cfg.get('sthead') == 1: stamp_mid(a, 8)
        M = self.V_TS; X = self.V_S + 4*NQ
        a('v_and_b32 v%d, 0xfffffffb, v%d', T, self.V_XA)
        for qb in range(NQ):
            S = self.V_S + 4*qb
            a('v_max3_f32 v%d, v%d, v%d, v%d', M+qb, S, S+1, S+2); a('v_max_f32 v%d, v%d, v%d', M+qb, M+qb, S+3); a('v_mov_b32 v%d, v%d', X+qb, M+qb)
        for qb in range(NQ): a('v_permlane16_swap_b32 v%d, v%d', X+qb, M+qb)
        for qb in range(NQ): a('v_max_f32 v%d, v%d, v%d', M+qb, M+qb, X+qb); a('v_mov_b32 v%d, v%d', X+qb, M+qb)
        for qb in range(NQ): a('v_permlane32_swap_b32 v%d, v%d', X+qb, M+qb)
        for qb in range(NQ): a('v_max_f32 v%d, v%d, v%d', M+qb, M+qb, X+qb)
        for qb in range(NQ if self.W2 else 0): a('v_add_f32 v%d, 0x%x, v%d', M+qb, f2u(float(cfg.get('thr', 40))), M+qb)
        for qb in range(NQ): a('ds_write_b32 v%d, v%d offset:%d', self.V_XA, M+qb, qb*512)
        a('s_waitcnt lgkmcnt(0)'); a('s_barrier')
        for qb in range(NQ): a('ds_read_b64 %s, v%d offset:%d', vr(X+2*qb,2), T, qb*512)
        for o in late: a(o.text)
        for qb in range(NQ):
            N_ = self.V_NEGM+4*qb; S = self.V_S+4*qb
            a('s_waitcnt lgkmcnt(%d)', NQ-1-qb+len(late))
            a('v_min_f32 v%d, -v%d, -v%d', N_, X+2*qb, X+2*qb+1); a('v_mov_b32 v%d, v%d', N_+1, N_)
            a('v_pk_mov_b32 %s, %s, %s', vr(N_+2,2), vr(N_,2), vr(N_,2))
            for r in (0, 2): a('v_pk_add_f32 %s, %s, %s', vr(S+r,2), vr(S+r,2), vr(N_,2))
        a('s_waitcnt lgkmcnt(0)')
        if cfg.get('stamp'): stamp_mid(a, 9)
        a('s_mov_b32 s%d, 1', S_T)
        if self.WL: a('s_mov_b32 s%d, s%d', S_NR, S_N); a('s_mov_b32 s%d, %d', S_N, cfg.get('wlt', 57))
        b0 = self.qk_body(0); b1 = self.qk_body(1)
        a('.p2align 6') if cfg.get('align',1) else None
        for i in range(cfg.get('qsh', 0)): a('s_nop 0')
        a.label('L_qloop')
        resolve(a, b1, b0)
        a('s_cbranch_scc1 L_qfin0')
        resolve(a, b0, b1)
        a('s_cbranch_scc1 L_qloop')
        for par in (1, 0):
            a.label('L_qfin%d' % par)
            if self.WL and par == 1: a('s_cmp_lg_u32 s%d, s%d', S_T, S_NR); a('s_cbranch_scc1 L_qmid')
            a('s_nop 3')
            for it in self.softmax_groups(par ^ 1) + self.check_groups('f%d' % par):
                for o in oplist(it): a(o.text)
            a('s_waitcnt vmcnt(0) lgkmcnt(0)'); a('s_barrier')
            a(self.flag_read(par).text); a('s_waitcnt lgkmcnt(0)')
            a('v_cmp_eq_u32 vcc, s%d, v%d', S_T, self.V_F)
            a('s_cbranch_vccnz L_qrecf%d', par); a.label('L_qbackf%d' % par)
            if par == 1: a('s_branch L_qend')
        a.label('L_qend')
        if cfg.get('fuse3', 1): self.qk_tail()
        else: self.qk_tail_old()
        for tag in ['0', '1', 'f0', 'f1']:
            a.label('L_setflag%s' % tag)
            a('v_mov_b32 v%d, s%d', T, S_T); a('ds_write_b32 v%d, v%d', self.V_FA, T); a('s_waitcnt lgkmcnt(0)')
            a('s_branch L_flagset%s', tag)
        for par in (0, 1):
            sp = par ^ 1
            a.label('L_qrecf%d' % par); a('s_mov_b32 s%d, 1', S_RET); a('s_branch L_qrecx%d', par)
            a.label('L_qrec%d' % par); a('s_mov_b32 s%d, 0', S_RET)
            a.label('L_qrecx%d' % par)
            a('s_nop 15')
            self.rowmax_exchange(sp)
            a('s_waitcnt lgkmcnt(0)'); a('s_barrier')
            a('v_and_b32 v%d, 0xfffffffb, v%d', self.V_F, self.V_XA)
            for qb in range(NQ):
                E = self.V_E
                a('ds_read_b64 %s, v%d offset:%d', vr(E,2), self.V_F, qb*512); a('s_waitcnt lgkmcnt(0)')
                a('v_max3_f32 v%d, v%d, v%d, 0', T, E, E+1)
                a('v_sub_f32 v%d, 0, v%d', E, T); a('v_exp_f32 v%d, v%d', E, E)
                for r in range(4):
                    for base in (self.V_S, self.V_S+4*NQ, self.V_NEGM):
                        a('v_sub_f32 v%d, v%d, v%d', base+4*qb+r, base+4*qb+r, T)
                a('v_mul_f32 v%d, v%d, v%d', self.V_L+qb, self.V_L+qb, E)
            for it in self.softmax_groups(sp):
                for o in oplist(it): a(o.text)
            a('s_waitcnt lgkmcnt(0)'); a('s_barrier')
            a('s_cmp_eq_u32 s%d, 0', S_RET); a('s_cbranch_scc1 L_qback%d', par); a('s_branch L_qbackf%d', par)
    def pv_tail_old(self):
        a = self.a; NQ = self.NQ; cfg = self.cfg; T = self.V_T
        a('s_mul_i32 s%d, s%d, 500', S_T0, S_SP); a('s_add_u32 s%d, s%d, s%d', S_T0, S_T0, S_RB)
        a('s_lshl_b32 s%d, s%d, 14', S_T0, S_T0); a('s_lshl_b32 s%d, s%d, 13', S_T1, S_J)
        a('s_add_u32 s%d, s%d, s%d', S_T0, S_T0, S_T1); a('s_add_u32 s%d, s%d, %d', S_T0, S_T0, WS_PART)
        RBK = cfg.get('rb2', 0)
        if RBK: a('v_lshlrev_b32 v%d, 7, v0', self.V_F); a('s_mov_b32 s%d, s%d', S_T2, S_T0)
        for f in range(8*NQ):
            qb, k2 = f//8, f % 8
            if f < self.NFV: b = 32+8*f
            else:
                b = 12 + 8*(f & 1)
                for r in range(8): a('v_accvgpr_read_b32 v%d, %s', b+r, self.O(f, r))
            for r in range(4): a('v_cvt_pk_bf16_f32 v%d, v%d, v%d', b+r, b+2*r, b+2*r+1)
            if k2 == 4: a('s_add_u32 s%d, s%d, 4096', S_T0, S_T0)
            a('buffer_store_dwordx4 %s, v%d, s[%d:%d], s%d offen offset:%d%s', vr(b,4), self.V_L16, S_WS, S_WS+3, S_T0, (k2%4)*1024, ' sc1' if cfg.get('sc2', 1) else '')
            if k2 == 7: a('s_add_u32 s%d, s%d, %d', S_T0, S_T0, 16384-4096)
        if RBK:
            for qb in range(NQ):
                a('s_waitcnt vmcnt(%d)', 8*(NQ-1-qb) + qb)
                a('buffer_load_dword v%d, v%d, s[%d:%d], s%d offen', T, self.V_F, S_WS, S_WS+3, S_T2); a('s_add_u32 s%d, s%d, 16384', S_T2, S_T2)
        a('s_branch L_k2_fin')
    def qk_tail_old(self):
        a = self.a; NQ = self.NQ; cfg = self.cfg; T = self.V_T
        if cfg.get('pf3', 1):
            F = self.V_F; E = self.V_E
            a('v_lshlrev_b32 v%d, 7, v0', F)
            a('s_lshl_b32 s%d, s%d, 1', S_T0, S_SP); a('s_add_u32 s%d, s%d, s%d', S_T0, S_T0, S_J); a('s_mul_i32 s%d, s%d, 20480', S_T0, S_T0)
            a('s_lshl_b32 s%d, s%d, 14', S_T1, S_RB); a('s_add_u32 s%d, s%d, s%d', S_T0, S_T0, S_T1)
            a('s_lshr_b32 s%d, s2, 3', S_T1); a('s_lshl_b32 s%d, s%d, 1', S_T1, S_T1); a('s_add_u32 s%d, s%d, s%d', S_T1, S_T1, S_J)
            a('s_cmp_lt_u32 s%d, 32', S_T1); a('s_cselect_b32 s%d, s%d, 0x4000', S_T1, S_T1)
            a('s_lshl_b32 s%d, s%d, 14', S_T1, S_T1); a('s_add_u32 s%d, s%d, 0x%x', S_T1, S_T1, WS_WVOF)
            for i in range(2):
                a('buffer_load_dword v%d, v%d, s[%d:%d], s%d offen', E+i, F, S_WS, S_WS+3, S_T1); a('s_add_u32 s%d, s%d, 8192', S_T1, S_T1)
            for i in range(3):
                a('buffer_load_dword v%d, v%d, s[12:15], s%d offen', E+2+i, F, S_T0); a('s_add_u32 s%d, s%d, %d', S_T0, S_T0, 8192 if i == 0 else 4096)
        for qb in range(NQ):
            M = self.V_L+qb
            [a(x) for x in self.ladds(qb)]
            for ins in ['v_permlane16_swap_b32', 'v_permlane32_swap_b32']:
                a('v_mov_b32 v%d, v%d', T, M); a('s_nop 1'); a('%s v%d, v%d', ins, T, M); a('v_add_f32 v%d, v%d, v%d', M, M, T)
            a('ds_write_b32 v%d, v%d offset:%d', self.V_XA, M, qb*512)
        a('s_waitcnt lgkmcnt(0)'); a('s_barrier')
        if cfg.get('stamp'): stamp_mid(a, 10)
        a('s_cmp_lg_u32 s%d, 0', S_J); a('s_cbranch_scc1 L_k2_fin')
        X = self.V_S
        self.read_x(X)
        a('s_mul_i32 s%d, s%d, 500', S_T0, S_SP); a('s_add_u32 s%d, s%d, s%d', S_T0, S_T0, S_RB)
        a('s_lshl_b32 s%d, s%d, 7', S_T0, S_T0); a('s_add_u32 s%d, s%d, %d', S_T0, S_T0, WS_LSE)
        a('v_and_b32 v%d, 15, v0', self.V_F); a('v_lshlrev_b32 v%d, 3, v%d', self.V_F, self.V_F)
        for qb in range(NQ):
            a('v_add_f32 v%d, v%d, v%d', X+2*qb, X+2*qb, X+2*qb+1); a('v_mov_b32 v%d, v%d', X+2*qb+1, self.V_NEGM+4*qb)
            a('buffer_store_dwordx2 %s, v%d, s[%d:%d], s%d offen offset:%d', vr(X+2*qb,2), self.V_F, S_WS, S_WS+3, S_T0, qb*128)
        a('s_branch L_k2_fin')
    T_ST=10; T_CO=20; T_CP=25; T_A0=32; T_A1=112; T_BR=144; T_BF=176; T_R=216; T_PK=232; T_OT=240
    def wreg(self, kk, nb):
        if self.WL: kk = {8: 10, 9: 11, 10: 8, 11: 9}.get(kk, kk)
        return ar((96 + 16*kk + 4*nb) % 256, 4)
    def wload(self, kk):
        if self.WL:
            return ['s_add_u32 s%d, s%d, %d' % (S_WP+1, S_WP, (kk >> 2)*32768 + (kk & 3)*4096)] + \
                   [Op('buffer_load_dwordx4 %s, v%d, s[%d:%d], s%d offen offset:%d sc1' % (self.wreg(kk, nb), self.V_L16, S_WS, S_WS+3, S_WP+1, nb*1024), prod=('W', kk)) for nb in range(4)]
        r = [Op('buffer_load_dwordx4 %s, v%d, s[%d:%d], s%d offen offset:%d sc1' % (self.wreg(kk, nb), self.V_L16, S_WS, S_WS+3, S_WP+nb, (kk%4)*1024), prod=('W', kk)) for nb in range(4)]
        if kk % 4 == 3: r += ['s_add_u32 s%d, s%d, 4096' % (S_WP+nb, S_WP+nb) for nb in range(4)]
        return r
    def tail_sgprs(self):
        a = self.a
        a('s_lshl_b32 s%d, s%d, 2', S_T0, S_SP); a('s_add_u32 s%d, s%d, s%d', S_T0, S_T0, S_W)
        a('s_lshl_b32 s%d, s%d, 16', S_WP, S_T0); a('s_add_u32 s%d, s%d, 0x%x', S_WP, S_WP, WS_WVOF)
        if self.cfg.get('xp_now'): a('s_mov_b32 s%d, 0x%x', S_WP, WS_SIZE)
        if self.WL:
            assert not self.cfg.get('roles', 0)
            a('s_lshr_b32 s%d, s%d, 1', S_WP, S_T0); a('s_lshl_b32 s%d, s%d, 17', S_WP, S_WP); a('s_lshl_b32 s%d, s%d, 14', S_WB, S_J)
            a('s_add_u32 s%d, s%d, s%d', S_END, S_END, S_WB); a('s_add_u32 s%d, s%d, s%d', S_WP, S_WP, S_WB); a('s_add_u32 s%d, s%d, 0x%x', S_WP, S_WP, WS_WVOF)
            a('s_or_b32 s%d, s%d, 0x20000', S_WB, S_WP)
        for i in range(1, 1 if self.WL else 4): a('s_add_u32 s%d, s%d, %d', S_WP+i, S_WP, i*16384)
        a('s_lshl_b32 s%d, s%d, 14', S_T1, S_RB)
        a('s_lshl_b32 s%d, s%d, 7', S_OP, S_T0); a('s_add_u32 s%d, s%d, s%d', S_OP, S_OP, S_T1)
        CV2 = self.cfg.get('one', 1) and self.cfg.get('cv2', 1)
        if CV2: a('s_mul_i32 s%d, s%d, %d', S_T1, S_B, 53*81920)
        a('s_lshl_b32 s%d, s%d, 11', S_BS, S_T0); a('s_add_u32 s%d, s%d, s%d', S_BS, S_BS, S_T1); a('s_add_u32 s%d, s%d, 0x%x', S_BS, S_BS, WS_BASE)
        a('s_xor_b32 s%d, s%d, 1', S_T0, S_SP); a('s_mul_i32 s%d, s%d, 500', S_T0, S_T0); a('s_add_u32 s%d, s%d, s%d', S_T0, S_T0, S_RB)
        a('s_lshl_b32 s%d, s%d, 7', S_PS, S_T0); a('s_add_u32 s%d, s%d, 0x%x', S_PS, S_PS, WS_LSE)
        a('s_lshl_b32 s%d, s%d, 12', S_LP, S_W)
        a('s_lshl_b32 s%d, s%d, 14', S_PP, S_T0); a('s_add_u32 s%d, s%d, 0x%x', S_PP, S_PP, WS_PART); a('s_mov_b32 s%d, s%d', S_PP2, S_PP)
        a('s_lshl_b32 s%d, s3, 1', S_FO); a('s_add_u32 s%d, s%d, s%d', S_FO, S_FO, S_J); a('s_lshl_b32 s%d, s%d, 7', S_FO, S_FO); a('s_add_u32 s%d, s%d, 0x%x', S_FO, S_FO, WS_FLG)
        a('s_mov_b32 s%d, 0xffff0000', S_MK)
    def poll_load(self, va, tag): return Op('buffer_load_dword v%d, v%d, s[%d:%d], 0 offen sc1' % (self.V_F, va, S_WS, S_WS+3), prod=tag)
    def spin(self, name, va):
        a = self.a
        a.label('L_spin%s' % name); a('s_mov_b32 s%d, 0', S_SPIN)
        a.label('L_spin%s_l' % name)
        a(self.poll_load(va, None).text); a('s_waitcnt vmcnt(0)'); a('v_cmp_ne_u32 vcc, s7, v%d', self.V_F)
        a('s_cbranch_vccz L_ok%s', name)
        a('s_add_u32 s%d, s%d, 1', S_SPIN, S_SPIN); a('s_cmp_lt_u32 s%d, 0x40000', S_SPIN); a('s_cbranch_scc1 L_spin%s_l', name)
        a('s_branch L_ok%s', name)
    def read_stats(self):
        a = self.a; NQ = self.NQ; ST = self.T_ST
        a('v_and_b32 v%d, 0xfffffffb, v%d', self.V_T, self.V_XA)
        for qb in range(NQ):
            a('ds_read_b64 %s, v%d offset:%d', vr(ST+2*qb,2), self.V_T, qb*512); a('ds_read_b32 v%d, v%d offset:%d', self.T_CO+qb, self.V_T, L_X2-L_X + qb*512)
        a('s_waitcnt lgkmcnt(0)')
        for qb in range(NQ):
            a('v_add_f32 v%d, v%d, v%d', ST+2*qb, ST+2*qb, ST+2*qb+1); a('v_mov_b32 v%d, v%d', ST+2*qb+1, self.T_CO+qb)
    def qk_tail(self):
        a = self.a; NQ = self.NQ; cfg = self.cfg; T = self.V_T
        W1 = cfg.get('tw1', 8)
        if cfg.get('wpl', 1):
            WA = self.V_PF
            if not self.WL: a('v_cmp_ne_u32 vcc, s7, v%d', self.V_PF+1); a('s_cbranch_vccnz L_spinW'); a.label('L_okW')
            wq = []
            for kk in range(W1): wq += oplist(self.wload(kk))
            def pop(c):
                for i in range(c):
                    while wq and kind_of(wq[0]) == 'S': a(wq.pop(0).text)
                    if wq: a(wq.pop(0).text)
                    while wq and kind_of(wq[0]) == 'S': a(wq.pop(0).text)
            for qb in range(NQ):
                M = self.V_L+qb
                [a(x) for x in self.ladds(qb)]
                for ins in ['v_permlane16_swap_b32', 'v_permlane32_swap_b32']:
                    a('v_mov_b32 v%d, v%d', T, M); a('s_nop 0'); a('s_nop 0') if not wq else pop(2); a('%s v%d, v%d', ins, T, M); a('v_add_f32 v%d, v%d, v%d', M, M, T)
                a('ds_write_b32 v%d, v%d offset:%d', self.V_XA, M, qb*512)
                a('ds_write_b32 v%d, v%d offset:%d', self.V_XA, self.V_NEGM+4*qb, L_X2-L_X + qb*512)
                pop(2)
            pop(64)
        else:
            WA = self.V_E
            a('v_and_b32 v%d, 3, v0', WA); a('v_min_u32 v%d, %d, v%d', WA, 2 if cfg.get('lean', 1) else 1, WA); a('v_lshlrev_b32 v%d, 7, v%d', WA, WA); a('v_add_u32 v%d, 0x%x, v%d', WA, WS_FLG + 128*FLG_W, WA)
            a(self.poll_load(WA, None).text)
            for qb in range(NQ):
                M = self.V_L+qb
                [a(x) for x in self.ladds(qb)]
                for ins in ['v_permlane16_swap_b32', 'v_permlane32_swap_b32']:
                    a('v_mov_b32 v%d, v%d', T, M); a('s_nop 1'); a('%s v%d, v%d', ins, T, M); a('v_add_f32 v%d, v%d, v%d', M, M, T)
                a('ds_write_b32 v%d, v%d offset:%d', self.V_XA, M, qb*512)
                a('ds_write_b32 v%d, v%d offset:%d', self.V_XA, self.V_NEGM+4*qb, L_X2-L_X + qb*512)
            a('s_waitcnt vmcnt(0)'); a('v_cmp_ne_u32 vcc, s7, v%d', self.V_F); a('s_cbranch_vccnz L_spinW'); a.label('L_okW')
            W1 = cfg.get('tw1', 8)
            for kk in range(W1):
                for o in oplist(self.wload(kk)): a(o.text)
        a('s_waitcnt lgkmcnt(0)'); a('s_barrier')
        self.read_stats()
        a('s_barrier')
        if cfg.get('stamp') and not cfg.get('sthead'): stamp_mid(a, 1)
        a('s_cmp_lg_u32 s%d, 0', S_J); a('s_cbranch_scc1 L_qt1')
        a('s_mul_i32 s%d, s%d, 500', S_T0, S_SP); a('s_add_u32 s%d, s%d, s%d', S_T0, S_T0, S_RB)
        a('s_lshl_b32 s%d, s%d, 7', S_T0, S_T0); a('s_add_u32 s%d, s%d, %d', S_T0, S_T0, WS_LSE)
        a('v_and_b32 v%d, 15, v0', T); a('v_lshlrev_b32 v%d, 3, v%d', T, T)
        for qb in range(NQ): a('buffer_store_dwordx2 %s, v%d, s[%d:%d], s%d offen offset:%d sc1', vr(self.T_ST+2*qb,2), T, S_WS, S_WS+3, S_T0, qb*128)
        a.label('L_qt1')
        a('s_branch L_tailq')
        if self.WL:
            a.label('L_qmid'); a('v_cmp_ne_u32 vcc, s7, v%d', self.V_PF+1); a('s_mov_b32 s%d, s%d', S_N, S_NR); a('s_cbranch_vccnz L_spinW'); a.label('L_okW'); a('s_branch L_qloop')
        self.spin('W', WA)
        if cfg.get('ln2', 1): self.spin('X', 58)
        if cfg.get('one', 1) and cfg.get('q6', 1): self.spin('Q', 59)
    def pv_tail(self):
        a = self.a; NQ = self.NQ; cfg = self.cfg; T = self.V_T
        if self.WL:
            for i in range(3):
                a('s_add_u32 s%d, s%d, %d', S_T0, S_DST, (i+1)*32768); a('s_and_b32 s%d, s%d, 0x1ffff', S_T0, S_T0); a('v_add_u32 v%d, s%d, v%d', 10+i, S_T0, self.V_L16)
            wr = ['ds_read_b128 %s, v%d offset:%d' % (self.wreg(kk, nb), 10 + (kk >> 2), (kk & 3)*4096 + nb*1024) for kk in list(range(8)) + [10, 11] for nb in range(4)]
        WI = cfg.get('wi', 8) if self.WL else 0
        if self.WL and not WI:
            for i, x in enumerate(wr):
                if i == 32: a('s_waitcnt vmcnt(0)')
                a(x)
        if not WI:
            a('s_waitcnt vmcnt(0) lgkmcnt(0)'); a('s_barrier')
            if cfg.get('stamp') and not cfg.get('sthead'): stamp_mid(a, 1)
        a('s_mul_i32 s%d, s%d, 500', S_T0, S_SP); a('s_add_u32 s%d, s%d, s%d', S_T0, S_T0, S_RB)
        a('s_lshl_b32 s%d, s%d, 14', S_T0, S_T0); a('s_lshl_b32 s%d, s%d, 13', S_T1, S_J)
        a('s_add_u32 s%d, s%d, s%d', S_T0, S_T0, S_T1); a('s_add_u32 s%d, s%d, %d', S_RET, S_T0, WS_PART)
        a('v_add_u32 v2, s%d, v%d', S_T1, self.V_L16); a('v_add_u32 v3, 0x10000, v2')
        tr = self.tr = Trace(); o = []
        if self.WL: tr.run('w0', [Op('buffer_load w', prod=('W', kk)) for kk in list(range(8)) + [10, 11]] + [Op(None, need=['ALLV'])])
        wq = []
        for kk in range(self.TWP): wq += oplist(self.wload(kk))
        WD = cfg.get('twd', 0)
        safe = [10, 11, 12, 13] + list(range(18, 27))
        cand = safe + list(range(self.NFV, 8*NQ))
        H = cfg.get('thold', 0 if cfg.get('hyb', 1) else 8)
        held = set(cand[(i*len(cand))//H] for i in range(H)) if H else set()
        self.held = []; FAST = cfg.get('fast', 0)
        def pstore(f, reg):
            qb, k2 = f//8, f % 8
            return ['s_add_u32 s%d, s%d, %d' % (S_T3, S_RET, qb*16384 + (k2//4)*4096),
                    Op('buffer_store_dwordx4 %s, v%d, s[%d:%d], s%d offen offset:%d%s' % (vr(reg,4), self.V_L16, S_WS, S_WS+3, S_T3, (k2%4)*1024, cfg['xp_ps'] if 'xp_ps' in cfg else ('' if FAST else ' sc1')), prod=('PS', f))]
        TWO = self.TWO = cfg.get('hyb', 1) and cfg.get('two', 0); pend = []
        if TWO: held = set(range(16, 8*NQ)); slot = {f: 80+4*i for i, f in enumerate([16, 17, 27] + list(range(self.NFV, 8*NQ)))}
        for f in range(8*NQ):
            qb, k2 = f//8, f % 8
            if TWO:
                b = 32 + 8*(f if f < self.NFV else (f - self.NFV) % 6); d = slot.get(f, b)
                if f >= self.NFV:
                    for r in range(8): o.append('v_accvgpr_read_b32 v%d, %s' % (b+r, self.O(f, r)))
            elif f < self.NFV: b = d = 32 + 8*f
            else:
                b = 32 + 8*((f - self.NFV) % 8); d = 32 + 8*safe[f - self.NFV] + 4
                for r in range(8): o.append('v_accvgpr_read_b32 v%d, %s' % (b+r, self.O(f, r)))
            for r in range(4): o.append('v_cvt_pk_bf16_f32 v%d, v%d, v%d' % (d+r, b+2*r, b+2*r+1))
            off = qb*16384 + k2*1024
            dw = Op('ds_write_b128 v%d, %s offset:%d' % (2 + off//65536, vr(d,4), off % 65536), prod=('CVW', f))
            if f < WI:
                pend.append(dw); c = -(-40//WI); o += wr[c*f:c*f+c]
                if f == 0: o.append('s_waitcnt vmcnt(0)')
            else:
                if WI and f == WI: o += [Op('s_barrier', need=['ALLL'])] + ([stamp_op(1)] if (cfg.get('stamp') and not cfg.get('sthead')) else [])
                o.append(dw)
                if pend: o.append(pend.pop(0))
            if TWO and f == 17: o.append(Op('s_barrier', need=[('CVW', 15)]))
            if TWO and f < 16: pass
            elif f in held: self.held += pstore(f, d)
            elif not (cfg.get('xp_nost') and f >= cfg.get('xp_nost')): o += pstore(f, d)
            if self.EA and f == cfg.get('eaf', 26):
                o += ['v_min_u32 v30, 1, v0', 'v_lshlrev_b32 v30, 30, v30', 'v_mov_b32 v31, s7', 's_add_u32 s%d, s%d, %d' % (S_T3, S_FO, 128*FLG_B),
                      Op('buffer_store_dword v31, v30, s[%d:%d], s%d offen sc1' % (S_WS, S_WS+3, S_T3), need=[('PS', 8*self.EA-1)])]
            for rep in range(cfg.get('twr', 1 if TWO else 2)):
                if f >= WD and wq:
                    o.append(wq.pop(0))
                    while wq and kind_of(wq[0]) == 'S': o.append(wq.pop(0))
        o += wq
        tr.run('cv', o); tr.emit(a, 'cv')
        if not cfg.get('hyb', 1): self.read_stats()
    def tail(self):
        a = self.a; NQ = self.NQ; cfg = self.cfg; tr = self.tr; stamp = cfg.get('stamp') and not cfg.get('sthead')
        ST = self.T_ST; CO = self.T_CO; CP = self.T_CP; A0 = self.T_A0; A1 = self.T_A1; BR = self.T_BR; BF = self.T_BF; RR = self.T_R; PK = self.T_PK; OT = self.T_OT
        L16 = self.V_L16; F = self.V_F
        n = 320
        class FX:
            def __init__(s): s.fx = [[] for _ in range(n)]
            def putd(s, lst, g, step=4):
                fx = s.fx
                for x in oplist(lst):
                    if kind_of(x) == 'D':
                        g += 1
                        while (step > 2 and g % step != 2) or (step == 2 and g % 2 == 0) or any(kind_of(y) in ('R','D','B','V') for y in oplist(fx[g])): g += 1
                        fx[g].append(x); g += 1
                    else: fx[g].append(x)
                return g
            def check(s, g, tag, name):
                fx = s.fx
                while fx[g] or fx[g+2]: g += 1
                fx[g] += [Op('v_cmp_ne_u32 vcc, s7, v%d' % F, need=[tag])]; fx[g+2] += ['s_cbranch_vccnz L_spin%s' % name, 'L_ok%s:' % name]
                return g+2
        def rd1(i):
            G, qb, h = i//10, (i % 10)//2, i & 1; off = qb*16384 + (2*G+h)*1024
            return Op('ds_read_b128 %s, v%d offset:%d' % (vr(BR+4*(i % 8),4), 2 if off >= 65536 else L16, off % 65536), prod=('B1', i))
        t = Asm(); h_frag_addr(t, 6, 8)
        su = ['v_add_u32 v3, %d, v%d' % (L_PAR, L16), 'v_add_u32 v4, %d, v%d' % (L_PAR+65536, L16)] + t.lines
        su += ['v_add_u32 v6, s%d, v6' % S_LP, 'v_add_u32 v8, s%d, v%d' % (S_LP, L16),
               'v_lshrrev_b32 v7, 4, v0', 'v_sub_u32 v7, 0, v7', 'v_xor_b32 v7, v7, v0', 'v_and_b32 v7, 3, v7', 'v_lshlrev_b32 v7, 4, v7',
               'v_lshrrev_b32 v9, 2, v0', 'v_lshl_add_u32 v7, v9, 10, v7',
               's_xor_b32 s%d, s3, 2' % S_T1, 's_lshl_b32 s%d, s%d, 8' % (S_T1, S_T1), 's_add_u32 s%d, s%d, 0x%x' % (S_T1, S_T1, WS_FLG),
               'v_and_b32 v9, 1, v0', 'v_lshl_add_u32 v9, v9, 7, s%d' % S_T1,
               'v_and_b32 v252, 15, v0', 'v_lshlrev_b32 v252, 3, v252']
        suq = ['s_mul_i32 s%d, s%d, %d' % (S_T1, S_QT, 80*55189), 's_add_u32 s%d, s%d, %d' % (S_T2, S_T1, 79*55189),
               's_lshr_b32 s%d, s%d, 22' % (S_T1, S_T1), 's_lshr_b32 s%d, s%d, 22' % (S_T2, S_T2),
               'v_and_b32 v250, 3, v0', 'v_add_u32 v250, s%d, v250' % S_T1, 'v_min_u32 v250, s%d, v250' % S_T2,
               's_mul_i32 s%d, s%d, %d' % (S_T1, S_B, 53*128), 's_add_u32 s%d, s%d, 0x%x' % (S_T1, S_T1, WS_FLG + 128*FLG_C),
               'v_lshl_add_u32 v250, v250, 7, s%d' % S_T1, 's_lshl_b32 s%d, s%d, 13' % (S_T2, S_J), 's_add_u32 s%d, s%d, s%d' % (S_PP, S_PP, S_T2)]
        if cfg.get('xp_nodma'): suq.append('s_mov_b32 s%d, 0x%x' % (S_PP, WS_SIZE))
        CV2 = cfg.get('one', 1) and cfg.get('cv2', 1); sub = []; BAR = [249, 251, 253, 254, 255]
        if CV2:
            sub = ['s_mul_i32 s%d, s%d, 80' % (S_SPIN, S_QT), 'v_and_b32 v232, 15, v0', 'v_add_u32 v232, s%d, v232' % S_SPIN, 'v_lshrrev_b32 v233, 4, v0', 'v_lshlrev_b32 v233, 8, v233']
            for q in range(NQ):
                d = BAR[q]
                sub += ['v_add_u32 v234, %d, v232' % (16*q), 'v_mul_u32_u24 v235, 0xd795, v234', 'v_lshrrev_b32 v235, 22, v235', 'v_lshl_add_u32 v234, v235, 2, v234',
                        'v_and_b32 v235, 15, v234', 'v_lshl_add_u32 v235, v235, 4, v233', 'v_lshrrev_b32 v234, 4, v234', 'v_lshl_add_u32 v%d, v234, 14, v235' % d]
        ld = [Op('buffer_load_dwordx2 %s, v252, s[%d:%d], s%d offen offset:%d sc1' % (vr(RR+2*q,2), S_WS, S_WS+3, S_PS, q*128), prod='PST') for q in range(NQ)]
        GC = cfg.get('tgc', 36)
        def gemm1(role):
            X = FX(); o = []
            if role == 'q': o += su + suq + sub
            o += ['v_add_u32 v2, 0x10000, v%d' % L16, Op('s_barrier', need=['ALLL', 'ALLV'] if role == 'q' else ['ALLL'])]
            if stamp: o.append(stamp_op(2))
            o += [rd1(i) for i in range(6)]
            for i in range(6, 80): X.fx[4*(i-6)].append(rd1(i))
            if role == 'p':
                g = X.putd(self.held, 0, cfg.get('ths', 4))
                GF = self.GF = g + cfg.get('tgf', 30); GF += (-GF) % 4
                X.fx[GF-1] += [Op(None, need=['ALLV'])] + ([stamp_op(3)] if stamp else [])
                late = []
                for kk in range(cfg.get('twp', 6), 16): late += self.wload(kk)
                fl = 'buffer_store_dword v31, v30, s[%d:%d], s%d offen' % (S_WS, S_WS+3, S_FO)
                if cfg.get('fast', 0):
                    X.fx[GF-2].append('s_cmp_eq_u32 s%d, 0' % S_SAME)
                    self.flag_text = fl
                    fl = Op('buffer_x\ns_cbranch_scc1 L_rel\n%s%s\nL_rel_back:\ns_nop 0' % (fl, '' if cfg.get('fastflag', 1) else ' sc1'))
                else: fl += ' sc1'
                g = X.putd([fl] + late, GF-1, 2)
                g = X.putd([self.poll_load(9, 'PF')], max(g, cfg.get('tpp', 210)))
                X.fx[1] += ['v_min_u32 v30, 1, v0', 'v_lshlrev_b32 v30, 30, v30', 'v_mov_b32 v31, s7']
                g = X.check(g+GC, 'PF', 'P2')
                X.putd(ld, g, 2); X.fx[n-1].append(Op(None, need=['PST']))
                X.fx = spread(X.fx, su, n, 3, GF-2)
                X.fx = spread(X.fx, sub, n, GF+2, 208)
            else:
                late = []
                for kk in range(cfg.get('tw1', 8), 16): late += self.wload(kk)
                g = X.putd(late, 0, cfg.get('tqs', 2))
                g = X.putd([self.poll_load(9, 'PF')], max(g, self.GF + cfg.get('tgp', 30)))
                g = X.check(g+GC, 'PF', 'P')
                if stamp: X.fx[g].append(stamp_op(3))
                dm = []
                for q in range(NQ):
                    for k in range(8):
                        if k % 4 == 0: dm += ['s_add_u32 m0, s%d, %d' % (S_T2, L_PAR + q*16384 + k*1024), 's_add_u32 s%d, s%d, %d' % (S_T0, S_PP, q*16384 + k*1024)]
                        dm.append(Op('buffer_load_dwordx4 v%d, s[%d:%d], s%d offen offset:%d%s lds' % (L16, S_WS, S_WS+3, S_T0, (k%4)*1024, '' if cfg.get('xp_plainld') else ' sc1'), prod=('PD', q)))
                NP = cfg.get('tnp', 3); ST = cfg.get('tps', 4)
                g = X.putd(dm[:12], g+1, cfg.get('tps0', 2))
                g = X.putd(ld + [self.poll_load(250, 'CF')], g, 2)
                g = X.putd(dm[12:12*NP], g, ST)
                X.check(max(g, n-8), 'CF', 'C')
            for g in range(n):
                G, qb, nb, h = g//40, (g % 40)//8, (g % 8)//2, g & 1
                h ^= nb & self.SN
                i = 10*G + 2*qb + h; kk = 2*G + h; D = vr(A0 + 16*qb + 4*nb, 4)
                o.append(Op('%s %s, %s, %s, %s' % (MF, D, self.wreg(kk, nb), vr(BR+4*(i % 8),4), D if (G or g & 1) else '0'), need=[('B1', i | 1), ('W', kk | 1)]))
                o += oplist(X.fx[g])
                if stamp and cfg.get('stg1') and g in (80, 160, 240): o.append(stamp_op({80:7, 160:9, 240:10}[g]))
            return o
        tr.run('g1p', gemm1('p'))
        trq = Trace(tr.static); trq.run('x', [Op('buffer_load w', prod=('W', kk)) for kk in range(cfg.get('tw1', 8))] + ['ds_x']); trq.run('g1q', gemm1('q'))
        tr.lenient = ('PD',)
        o = []; X = FX(); putd = X.putd
        if stamp: o.append(stamp_op(4))
        o += ['s_add_u32 s%d, s%d, s%d' % (S_WP, S_PP2, S_LP), Op('s_barrier', need=[('PD', 1)])]
        if stamp: o.append(stamp_op(5))
        def rd2(i):
            off = (i//16)*16384 + (i % 16)*1024
            return Op('ds_read_b128 %s, v%d offset:%d' % (vr(BR+4*(i % 8),4), 4 if off >= 65536 else 3, off % 65536), prod=('B2', i))
        fx = X.fx
        o += [rd2(i) for i in range(6)]
        for i in range(6, 80): fx[4*(i-6)].append(rd2(i))
        NP = cfg.get('tnp', 3)
        if NP >= 3: fx[4*26-2].append(Op('s_barrier', need=[('PD', NP-1)]))
        for q in range(max(NP, 2), NQ): fx[4*(16*q-6)-2].append(Op('s_barrier', need=[('PE', q)]))
        bl = []
        for c in range(2*NQ):
            if CV2: bl.append(Op('buffer_load_dwordx4 %s, v%d, s[%d:%d], s%d offen offset:%d sc1' % (vr(BF+4*c,4), BAR[c >> 1], S_WS, S_WS+3, S_BS, (c & 1)*1024), prod=('BF', c)))
            else: bl += ['s_add_u32 s%d, s%d, %d' % (S_T0, S_BS, (c >> 1)*16384), Op('buffer_load_dwordx4 %s, v%d, s[%d:%d], s%d offen offset:%d sc1' % (vr(BF+4*c,4), L16, S_WS, S_WS+3, S_T0, (c & 1)*1024), prod=('BF', c))]
        def pe(q):
            return ['s_add_u32 m0, s%d, %d' % (S_LP, L_PAR + q*16384), 's_add_u32 s%d, s%d, %d' % (S_T0, S_WP, q*16384)] + \
                   [Op('buffer_load_dwordx4 v%d, s[%d:%d], s%d offen offset:%d sc1 lds' % (L16, S_WS, S_WS+3, S_T0, k*1024), prod=('PE', q)) for k in range(4)]
        if NP < NQ:
            assert CV2
            seq = bl[:2]
            for q in range(1, NQ):
                if NP+q-1 < NQ: seq = seq + pe(NP+q-1)
                seq = seq + bl[2*q:2*q+2]
            putd(seq, 0, cfg.get('tp2', 8))
        else: putd(bl, 0)
        wt = []
        for q in range(NQ):
            l0, m0, l1, m1, t0 = ST+2*q, ST+2*q+1, RR+2*q, RR+2*q+1, 248
            wt += [Op('v_min_f32 v%d, v%d, v%d' % (t0, m0, m1), need=['PST']), 'v_sub_f32 v%d, v%d, v%d' % (m0, t0, m0), 'v_sub_f32 v%d, v%d, v%d' % (m1, t0, m1),
                   'v_exp_f32 v%d, v%d' % (m0, m0), 'v_exp_f32 v%d, v%d' % (m1, m1), 'v_mul_f32 v%d, v%d, v%d' % (l0, l0, m0), 'v_fmac_f32 v%d, v%d, v%d' % (l0, l1, m1),
                   'v_rcp_f32 v%d, v%d' % (l0, l0), 's_nop 0', 'v_mul_f32 v%d, v%d, v%d' % (CO+q, m0, l0), 'v_mul_f32 v%d, v%d, v%d' % (CP+q, m1, l0)]
        def ep_a(q):
            r = []
            for p in range(2):
                for x in range(4):
                    r += [Op('v_lshlrev_b32 v%d, 16, v%d' % (RR+8*p+2*x, BF+8*q+4*p+x), need=[('BF', 2*q+p)]), 'v_and_b32 v%d, s%d, v%d' % (RR+8*p+2*x+1, S_MK, BF+8*q+4*p+x)]
            return r + ['v_fmac_f32 v%d, v%d, v%d' % (RR+x, A0+16*q+x, CO+q) for x in range(16)]
        def ep_b(q):
            r = []
            for p in range(2):
                r += ['v_fmac_f32 v%d, v%d, v%d' % (RR+8*p+x, A1+16*(q & 1)+8*p+x, CP+q) for x in range(8)]
                r += ['v_cvt_pk_bf16_f32 v%d, v%d, v%d' % (PK+4*p+x, RR+8*p+2*x, RR+8*p+2*x+1) for x in range(4)]
                r += ['ds_write_b128 v6, %s offset:%d' % (vr(PK+4*p,4), p*1024), Op('ds_read_b128 %s, v8 offset:%d' % (vr(OT+4*p,4), p*1024), prod=('OT', q, p))]
            return r
        def ep_c(q):
            return ['s_add_u32 s%d, s%d, %d' % (S_T1, S_OP, q*16384)] + [Op('buffer_store_dwordx4 %s, v7, s[16:19], s%d offen offset:%d%s' % (vr(OT+4*p,4), S_T1, p*64, ' sc1' if cfg.get('sc3', 0) else ''), need=[('OT', q, p)]) for p in range(2)]
        fx = spread(fx, wt, n, 2, 64)
        fx = spread(fx, ep_a(0) + ep_b(0) + ep_a(1) + ep_c(0), n, 64+1, 128)
        for q in range(1, NQ-1): fx = spread(fx, ep_b(q) + ep_a(q+1) + ep_c(q), n, 64*(q+1)+8, 64*(q+2))
        for g in range(n):
            qb, G, nb, h = g//64, (g % 64)//8, (g % 8)//2, g & 1
            h ^= nb & self.SN
            kk = 2*G + h; i = 16*qb + kk; D = vr(A1 + 16*(qb & 1) + 4*nb, 4)
            o.append(Op('%s %s, %s, %s, %s' % (MF, D, self.wreg(kk, nb), vr(BR+4*(i % 8),4), D if (G or g & 1) else '0'), need=[('B2', i | 1)]))
            o += oplist(fx[g])
            if stamp and g == 128: o.append(stamp_op(6))
        if stamp: o.append(stamp_op(8))
        o += ['s_nop 5'] + ep_b(NQ-1) + ep_c(NQ-1)
        tr.run('t', o); trq.run('t', o)
        if cfg.get('xp_nodma'): a('s_nop 0')
        tr.emit(a, 'g1p'); a.label('L_tail2'); tr.emit(a, 't')
        a('s_branch L_k2_fin')
        a.label('L_tailq'); tr.emit(a, 'g1q'); a('s_branch L_tail2')
        self.spin('P', 9); self.spin('P2', 9); self.spin('C', 250)
        if cfg.get('fast', 0):
            a.label('L_rel'); a('buffer_wbl2 sc1'); a('s_waitcnt vmcnt(0)'); a(self.flag_text + ' sc1'); a('s_branch L_rel_back')
    def tail2(self):
        a = self.a; NQ = self.NQ; cfg = self.cfg; tr = self.tr; stamp = cfg.get('stamp') and not cfg.get('sthead')
        ST = self.T_ST; CW = 20; A0 = self.T_A0; NH = cfg.get('nh', 3); PR = A0+16*NH; A1 = self.T_A1; BR = self.T_BR; BF = self.T_BF; RR = self.T_R; PK = self.T_PK; OT = self.T_OT
        L16 = self.V_L16; F = self.V_F; n1 = 64*NH; n = 320; L_PS = 155648; BAR = [249, 251, 253, 254, 255]
        ND = cfg.get('nd', 3 if self.EA else 2)
        class FX:
            def __init__(s, m): s.fx = [[] for _ in range(m)]
            def putd(s, lst, g, step=4):
                fx = s.fx
                for x in oplist(lst):
                    if kind_of(x) == 'D':
                        g += 1
                        while any(kind_of(y) in ('R','D','B','V','X') for y in oplist(fx[g])): g += 1
                        fx[g].append(x); g += step-1
                    else: fx[g].append(x)
                return g
            def check(s, g, tag, name):
                fx = s.fx
                while fx[g] or fx[g+2]: g += 1
                fx[g] += [Op('v_cmp_ne_u32 vcc, s7, v%d' % F, need=[tag])]; fx[g+2] += ['s_cbranch_vccnz L_spin%s' % name, 'L_ok%s:' % name]
                return g+2
        def rd1(i):
            G, qb, h = i//(2*NH), (i % (2*NH))//2, i & 1
            return Op('ds_read_b128 %s, v%d offset:%d' % (vr(BR+4*(i % 8),4), L16, qb*16384 + (2*G+h)*1024), prod=('B1', i))
        t = Asm(); h_frag_addr(t, 6, 8)
        su = ['v_add_u32 v2, 0x10000, v%d' % L16, 'v_add_u32 v3, %d, v%d' % (L_PAR, L16)] + t.lines
        su += ['v_add_u32 v6, s%d, v6' % S_LP, 'v_add_u32 v8, s%d, v%d' % (S_LP, L16), 'v_add_u32 v4, 0x10000, v8',
               'v_lshrrev_b32 v7, 4, v0', 'v_sub_u32 v7, 0, v7', 'v_xor_b32 v7, v7, v0', 'v_and_b32 v7, 3, v7', 'v_lshlrev_b32 v7, 4, v7',
               'v_lshrrev_b32 v9, 2, v0', 'v_lshl_add_u32 v7, v9, 10, v7',
               'v_and_b32 v252, 15, v0', 'v_lshlrev_b32 v252, 3, v252', 'v_add_u32 v252, %d, v252' % L_PS,
               's_mul_i32 s%d, s%d, %d' % (S_T1, S_QT, 80*55189), 's_add_u32 s%d, s%d, %d' % (S_T2, S_T1, 79*55189),
               's_lshr_b32 s%d, s%d, 22' % (S_T1, S_T1), 's_lshr_b32 s%d, s%d, 22' % (S_T2, S_T2),
               'v_and_b32 v250, 3, v0', 'v_add_u32 v250, s%d, v250' % S_T1, 'v_min_u32 v250, s%d, v250' % S_T2,
               's_mul_i32 s%d, s%d, %d' % (S_T1, S_B, 53*128), 's_add_u32 s%d, s%d, 0x%x' % (S_T1, S_T1, WS_FLG + 128*FLG_C),
               'v_lshl_add_u32 v250, v250, 7, s%d' % S_T1]
        suq = ['s_xor_b32 s%d, s3, 2' % S_T1, 's_lshl_b32 s%d, s%d, 8' % (S_T1, S_T1), 's_add_u32 s%d, s%d, 0x%x' % (S_T1, S_T1, WS_FLG),
               'v_and_b32 v9, 1, v0', 'v_lshl_add_u32 v9, v9, 7, s%d' % S_T1,
               's_lshl_b32 s%d, s%d, 13' % (S_T2, S_J), 's_add_u32 s%d, s%d, s%d' % (S_PP, S_PP, S_T2)]
        sub = ['s_mul_i32 s%d, s%d, 80' % (S_SPIN, S_QT), 'v_and_b32 v236, 15, v0', 'v_add_u32 v236, s%d, v236' % S_SPIN, 'v_lshrrev_b32 v237, 4, v0', 'v_lshlrev_b32 v237, 8, v237']
        for q in range(NQ):
            sub += ['v_add_u32 v238, %d, v236' % (16*q), 'v_mul_u32_u24 v239, 0xd795, v238', 'v_lshrrev_b32 v239, 22, v239', 'v_lshl_add_u32 v238, v239, 2, v238',
                    'v_and_b32 v239, 15, v238', 'v_lshl_add_u32 v239, v239, 4, v237', 'v_lshrrev_b32 v238, 4, v238', 'v_lshl_add_u32 v%d, v238, 14, v239' % BAR[q]]
        own = ['v_and_b32 v9, 0xfffffffb, v%d' % self.V_XA]
        for q in range(NQ): own += ['ds_read_b64 %s, v9 offset:%d' % (vr(ST+2*q,2), q*512), Op('ds_read_b32 v%d, v9 offset:%d' % (CW+q, L_X2-L_X + q*512), prod=('OS', q))]
        own2 = []
        for q in range(NQ): own2 += [Op('v_add_f32 v%d, v%d, v%d' % (ST+2*q, ST+2*q, ST+2*q+1), need=[('OS', q)]), 'v_mov_b32 v%d, v%d' % (ST+2*q+1, CW+q)]
        bls = lambda: [Op('buffer_load_dwordx4 %s, v%d, s[%d:%d], s%d offen offset:%d sc1' % (vr(BF+4*c,4), BAR[c >> 1], S_WS, S_WS+3, S_BS, (c & 1)*1024), prod=('BF', c)) for c in range(2*NQ)]
        def gemm1(role):
            X = FX(n1); o = []
            TWO = self.TWO; WQ = cfg.get('tw1', 8)
            fv = ['v_min_u32 v30, 1, v0', 'v_lshlrev_b32 v30, 30, v30', 'v_mov_b32 v31, s7']
            fl = 'buffer_store_dword v31, v30, s[%d:%d], s%d offen sc1' % (S_WS, S_WS+3, S_FO)
            if role == 'q':
                if TWO:
                    for kk in range(WQ, WQ + cfg.get('tw2', 2)): o += self.wload(kk)
                    WQ += cfg.get('tw2', 2)
                o += su + suq + sub
                if cfg.get('eb'): o += [Op('s_branch L_spinC', need=['ALLV']), 'L_okC:'] + (bls() if cfg.get('eb') == 1 else [])
                if TWO:
                    o += fv + ['s_mul_i32 s%d, s%d, 500' % (S_T0, S_SP), 's_add_u32 s%d, s%d, s%d' % (S_T0, S_T0, S_RB), 's_add_u32 s%d, s%d, s%d' % (S_T0, S_T0, S_J),
                               's_lshl_b32 s%d, s%d, 14' % (S_T0, S_T0), 's_add_u32 s%d, s%d, 0x%x' % (S_T0, S_T0, WS_PART),
                               's_lshl_b32 s%d, s%d, 14' % (S_T1, S_J), 'v_add_u32 v248, s%d, v%d' % (S_T1, L16), 's_barrier']
                    o += [Op('ds_read_b128 %s, v248 offset:%d' % (vr(32+4*k,4), k*1024), prod=('QR', k)) for k in range(16)]
                    for k in range(16):
                        o.append(Op('buffer_store_dwordx4 %s, v%d, s[%d:%d], s%d offen offset:%d sc1' % (vr(32+4*k,4), L16, S_WS, S_WS+3, S_T0, (k%4)*1024), need=[('QR', k)]))
                        if k % 4 == 3: o.append('s_add_u32 s%d, s%d, 4096' % (S_T0, S_T0))
            def pdm(q):
                dm = []
                for k in range(8):
                    if k % 4 == 0: dm += ['s_add_u32 m0, s%d, %d' % (S_T2, L_PAR + q*16384 + k*1024), 's_add_u32 s%d, s%d, %d' % (S_T0, S_PP, q*16384 + k*1024)]
                    dm.append(Op('buffer_load_dwordx4 v%d, s[%d:%d], s%d offen offset:%d%s lds' % (L16, S_WS, S_WS+3, S_T0, (k%4)*1024, cfg.get('xp_pl', ' sc1')), prod=('PD', q)))
                return dm
            if role == 'q' and self.EA:
                for kk in range(WQ, WQ + cfg.get('tw2', 2)): o += self.wload(kk)
                WQ += cfg.get('tw2', 2)
                o += ['v_add_u32 v248, %d, v9' % (128*FLG_B), Op('s_branch L_spinA', need=['ALLV']), 'L_okA:']
                for q in range(self.EA): o += pdm(q)
            o.append(Op('s_barrier', need=['ALLL', 'ALLV'] if (role == 'q' and not TWO and not self.EA) else ['ALLL']))
            if stamp: o.append(stamp_op(2))
            o += [rd1(i) for i in range(6)]
            for i in range(6, 16*NH): X.fx[4*(i-6)].append(rd1(i))
            late = []
            for kk in ((8, 9, 12, 13, 14, 15) if (role == 'p' and self.WL) else range(self.TWP if role == 'p' else WQ, 16)): late += self.wload(kk)
            if role == 'p' and TWO:
                X.fx[1] += fv
                g = X.putd(late, 1, 2)
                g = X.putd(self.held, g, cfg.get('ths', 4))
                GB = min(n1-4, g + cfg.get('tgb', 40)); GB -= GB % 4
                X.fx[GB-1] += ['s_add_u32 s%d, s%d, %d' % (S_FO, S_FO, 128*FLG_B), Op(None, need=['ALLV'])] + ([stamp_op(3)] if stamp else [])
                X.putd([fl], GB-1)
                X.fx = spread(X.fx, own + own2 + su + sub + suq[:5], n1, 2, n1, 3)
            elif role == 'p':
                X.fx[1] += ['v_min_u32 v30, 1, v0', 'v_lshlrev_b32 v30, 30, v30', 'v_mov_b32 v31, s7']
                g = X.putd(self.held, 1, cfg.get('ths', 2))
                GF = self.GF = g + cfg.get('tgf', 28); GF += (-GF) % 4
                X.fx[GF-1] += [Op(None, need=['ALLV'])] + ([stamp_op(3)] if stamp else [])
                g = X.putd(['buffer_store_dword v31, v30, s[%d:%d], s%d offen%s' % (S_WS, S_WS+3, S_FO, cfg.get('xp_fl', ' sc1'))] + late, GF-1, 2)
                if cfg.get('eb'):
                    X.putd(bls(), g, 2)
                    X.fx = spread(X.fx, sub, n1, 2, GF-1); X.fx = spread(X.fx, own + own2 + su, n1, GF+2, n1, 3)
                else:
                    X.fx = spread(X.fx, own, n1, 2, GF-1)
                    X.fx = spread(X.fx, own2 + su + sub, n1, GF+2, n1, 3)
            else:
                if TWO:
                    GA = cfg.get('tga', 24)
                    X.fx[GA-1].append(Op(None, need=['ALLV']))
                    nl = cfg.get('tnl', 14)
                    g = X.putd([fl] + late[:nl] + [self.poll_load(9, 'PF')], GA-1, 2)
                    X.putd(late[nl:], g, 2)
                else:
                    g = X.putd(late + (bls() if cfg.get('eb') == 2 else []), 0, 2)
                    g = X.putd([self.poll_load(9, 'PF')], max(g, self.GF + cfg.get('tgp', 20)))
                g = X.check(g + cfg.get('tgc', 28), 'PF', 'P')
                if stamp: X.fx[g].append(stamp_op(3))
                sd = ['s_mov_b32 m0, %d' % L_PS, Op('buffer_load_dwordx4 v%d, s[%d:%d], s%d offen sc1 lds' % (L16, S_WS, S_WS+3, S_PS), prod=('PD', 0))]
                g = X.putd((pdm(0) if not self.EA else []) + sd, g+1, cfg.get('tps0', 2))
                for q in range(max(1, self.EA), ND): g = X.putd(pdm(q), g, cfg.get('tps', 4))
            for g in range(n1):
                G, qb, nb, h = g//(8*NH), (g % (8*NH))//8, (g % 8)//2, g & 1
                h ^= nb & self.SN
                if self.S2 and (g//8) & 1: nb = 3-nb
                i = 2*NH*G + 2*qb + h; kk = 2*G + h; D = vr(A0 + 16*qb + 4*nb, 4)
                o.append(Op('%s %s, %s, %s, %s' % (MF, D, self.wreg(kk, nb), vr(BR+4*(i % 8),4), D if (G or g & 1) else '0'), need=[('B1', i | 1), ('W', kk | 1)]))
                o += oplist(X.fx[g])
            return o
        tr.run('g1p', gemm1('p'))
        trq = Trace(tr.static); trq.run('x', [Op('buffer_load w', prod=('W', kk)) for kk in range(cfg.get('tw1', 8))] + ['ds_x']); trq.run('g1q', gemm1('q'))
        tr.lenient = ('PD',)
        o = []; X = FX(n); fx = X.fx
        if stamp: o.append(stamp_op(4))
        o += ['s_add_u32 s%d, s%d, s%d' % (S_WP, S_PP2, S_LP), Op('s_barrier', need=[('PD', 0)])]
        if stamp: o.append(stamp_op(5))
        def rd2(i):
            q = i//16; off = q*16384 + (i % 16)*1024
            return Op('ds_read_b128 %s, v%d offset:%d' % (vr(BR+4*(i % 8),4), 3 if q < NH else (2 if off >= 65536 else L16), off % 65536), prod=('B2', i))
        o += [rd2(i) for i in range(6)]
        for i in range(6, 80): fx[4*(i-6)].append(rd2(i))
        for q in range(1, NQ): fx[4*(16*q-6)-2].append(Op('s_barrier', need=[('PD' if q < ND else ('PE' if q < NH else 'CW'), q)]))
        seq = []
        for q in range(ND, NH):
            seq += ['s_add_u32 m0, s%d, %d' % (S_LP, L_PAR + q*16384), 's_add_u32 s%d, s%d, %d' % (S_T0, S_WP, q*16384)]
            seq += [Op('buffer_load_dwordx4 v%d, s[%d:%d], s%d offen offset:%d%s lds' % (L16, S_WS, S_WS+3, S_T0, k*1024, cfg.get('xp_pl', ' sc1')), prod=('PE', q)) for k in range(4)]
        pr = lambda q: ['s_add_u32 s%d, s%d, %d' % (S_T0, S_WP, q*16384)] + [Op('buffer_load_dwordx4 %s, v%d, s[%d:%d], s%d offen offset:%d%s' % (vr(PR+16*(q-NH)+4*k,4), L16, S_WS, S_WS+3, S_T0, k*1024, cfg.get('xp_pl', ' sc1')), prod=('PR', q, k)) for k in range(4)]
        if self.TWO:
            fx[1].append('v_add_u32 v9, %d, v9' % (128*FLG_B))
            g = X.putd([self.poll_load(9, 'BFL')], cfg.get('tbp', 4))
            g = X.check(g + cfg.get('tbc', 28), 'BFL', 'B')
            g = X.putd(seq + pr(3) + pr(4), g+1, cfg.get('tp2', 4))
        else: g = X.putd({3: lambda: pr(3) + seq + pr(4), 4: lambda: pr(4) + seq, 2: lambda: pr(2) + seq + pr(3) + pr(4)}[NH](), 1, cfg.get('tp2', 6))
        if not cfg.get('eb'):
          g = X.putd([self.poll_load(250, 'CF')], max(g, cfg.get('tcp', 110)))
          g = X.check(g + cfg.get('tgc', 28), 'CF', 'C')
          X.putd([Op('buffer_load_dwordx4 %s, v%d, s[%d:%d], s%d offen offset:%d sc1' % (vr(BF+4*c,4), BAR[c >> 1], S_WS, S_WS+3, S_BS, (c & 1)*1024), prod=('BF', c)) for c in range(2*NQ)], g, cfg.get('tp3', 4))
        wt = [Op('ds_read_b64 %s, v252 offset:%d' % (vr(RR+2*q,2), q*128), prod=('PST', q)) for q in range(NQ)]
        for q in range(NQ):
            l0, m0, l1, m1, t0 = ST+2*q, ST+2*q+1, RR+2*q, RR+2*q+1, 248
            wt += [Op('v_min_f32 v%d, v%d, v%d' % (t0, m0, m1), need=[('PST', q)]), 'v_sub_f32 v%d, v%d, v%d' % (m0, t0, m0), 'v_sub_f32 v%d, v%d, v%d' % (m1, t0, m1),
                   'v_exp_f32 v%d, v%d' % (m0, m0), 'v_exp_f32 v%d, v%d' % (m1, m1), 'v_mul_f32 v%d, v%d, v%d' % (l0, l0, m0), 'v_fmac_f32 v%d, v%d, v%d' % (l0, l1, m1),
                   'v_rcp_f32 v%d, v%d' % (l0, l0), 's_nop 0', 'v_mul_f32 v%d, v%d, v%d' % (CW+2*q, m0, l0), 'v_mul_f32 v%d, v%d, v%d' % (CW+2*q+1, m1, l0)]
        unp = lambda d, s_, need=(): [Op('v_lshlrev_b32 v%d, 16, v%d' % (d, s_), need=list(need)), 'v_and_b32 v%d, s%d, v%d' % (d+1, S_MK, s_)]
        def mix(q):
            return ['v_mul_f32 v%d, v%d, v%d' % (A0+16*q+x, A0+16*q+x, CW+2*q) for x in range(16)] + \
                   ['v_fmac_f32 v%d, v%d, v%d' % (A0+16*q+x, A1+16*(q & 1)+x, CW+2*q+1) for x in range(16)]
        def comb(q):
            ad = lambda k: (4 if q == 4 else 8, (q*16384 + k*1024) % 65536)
            rd = lambda k: Op('ds_read_b128 %s, v%d offset:%d' % ((vr(OT+4*(k & 1),4),) + ad(k)), prod=('CO', q, k))
            r = [rd(0), rd(1)]; C = vr(CW+2*q, 2)
            for k in range(4):
                for x in range(4): r += unp(RR+8+2*x, PR+16*(q-NH)+4*k+x, [('PR', q, k)] if x == 0 else [])
                for x in range(4): r += unp(RR+2*x, OT+4*(k & 1)+x, [('CO', q, k)] if x == 0 else [])
                r += ['v_pk_mul_f32 %s, %s, %s op_sel:[0,1] op_sel_hi:[1,1]' % (vr(RR+8+2*x,2), vr(RR+8+2*x,2), C) for x in range(4)]
                r += ['v_pk_fma_f32 %s, %s, %s, %s op_sel_hi:[1,0,1]' % (vr(RR+2*x,2), vr(RR+2*x,2), C, vr(RR+8+2*x,2)) for x in range(4)]
                if k < 2: r.append(rd(k+2))
                r += ['v_cvt_pk_bf16_f32 v%d, v%d, v%d' % (PK+4*(k & 1)+x, RR+2*x, RR+2*x+1) for x in range(4)]
                r.append(Op('ds_write_b128 v%d, %s offset:%d' % (ad(k)[0], vr(PK+4*(k & 1),4), ad(k)[1]), prod=('CW', q)))
            return r
        def fin_a(q):
            r = []
            for p in range(2):
                for x in range(4): r += unp(RR+8*p+2*x, BF+8*q+4*p+x, [('BF', 2*q+p)] if x == 0 else [])
            return r
        def fin_b(q, pk=False):
            r = []; S = A0+16*q if q < NH else A1+16*(q & 1)
            for p in range(2):
                if pk: r += ['v_pk_add_f32 %s, %s, %s' % (vr(RR+8*p+x,2), vr(RR+8*p+x,2), vr(S+8*p+x,2)) for x in range(0, 8, 2)]
                else: r += ['v_add_f32 v%d, v%d, v%d' % (RR+8*p+x, RR+8*p+x, S+8*p+x) for x in range(8)]
                r += ['v_cvt_pk_bf16_f32 v%d, v%d, v%d' % (PK+4*p+x, RR+8*p+2*x, RR+8*p+2*x+1) for x in range(4)]
                r += ['ds_write_b128 v6, %s offset:%d' % (vr(PK+4*p,4), p*1024), Op('ds_read_b128 %s, v8 offset:%d' % (vr(OT+4*p,4), p*1024), prod=('OT', q, p))]
            return r
        def fin_c(q):
            return ['s_add_u32 s%d, s%d, %d' % (S_T1, S_OP, q*16384)] + [Op('buffer_store_dwordx4 %s, v7, s[16:19], s%d offen offset:%d%s' % (vr(OT+4*p,4), S_T1, p*64, cfg.get('opol', ' nt') if q < cfg.get('sc3', 5) else ''), need=[('OT', q, p)]) for p in range(2)]
        W0, W1, W2 = cfg.get('tw', (88, 160, 226) if self.TWO else (64, 140, 212))
        fa = lambda q: fin_a(q) + (fin_c(q-1) if q else []) + fin_b(q)
        if NH == 4:
            E0, E1, E2 = cfg.get('te', (56, 127, 170))
            fx = spread(fx, wt, n, 2, E0)
            fx = spread(fx, comb(4) + mix(0), n, E0, E1)
            fx = spread(fx, mix(1), n, 130, E2)
            fx = spread(fx, fa(0) + mix(2) + fa(1), n, E2, 256)
            fx = spread(fx, fa(2) + mix(3) + fa(3) + fin_a(4) + fin_c(3), n, 256, n)
        elif NH == 2:
            E0 = cfg.get('te', 40)
            fx = spread(fx, wt, n, 2, E0)
            fx = spread(fx, comb(2), n, E0, 100)
            fx = spread(fx, mix(0) + comb(3), n, 100, 164)
            fx = spread(fx, mix(1) + comb(4), n, 164, 226)
            fx = spread(fx, fin_a(2) + fin_b(2), n, 226, 256)
            fx = spread(fx, fin_a(0) + fin_c(2) + fin_b(0) + fa(1) + fin_a(3) + fin_c(1) + fin_b(3) + fin_a(4) + fin_c(3), n, 256, n)
        elif cfg.get('even', 1) and not self.TWO:
            sp_ = spread_dp if cfg.get('tdp', 1) else spread
            E0, E1, E2 = cfg.get('te', (56, 127, 191))
            fx = sp_(fx, wt, n, 2, E0)
            fx = sp_(fx, comb(3) + mix(0), n, E0, E1)
            fx = sp_(fx, comb(4) + mix(1), n, E1, E2)
            fx = sp_(fx, fin_a(0) + fin_b(0) + mix(2) + fin_c(0) + fin_a(1) + fin_b(1) + fin_a(2) + fin_c(1) + fin_b(2) + fin_a(3) + fin_c(2) + fin_b(3) + fin_a(4) + fin_c(3), n, E2, n)
        else:
            fx = spread(fx, wt, n, 2, 64)
            fx = spread(fx, mix(0) + comb(3), n, W0, W1)
            fx = spread(fx, mix(1) + comb(4), n, W1, W2)
            fx = spread(fx, mix(2) + fin_a(0) + fin_b(0), n, W2, 256)
            fx = spread(fx, fin_a(1) + fin_c(0) + fin_b(1) + fin_a(2) + fin_c(1) + fin_b(2) + fin_a(3) + fin_c(2) + fin_b(3) + fin_a(4) + fin_c(3), n, 256, n)
        where = lambda txt: [g for g in range(n) for y in oplist(fx[g]) if y.text == txt][0]
        for q in range(NH):
            m = mix(q); assert where(m[16]) >= 64*(q+1)+6 and where(m[-1]) < 64*(q+2), (q, where(m[16]), where(m[-1]))
        assert where(fin_b(3)[0]) >= 256+8
        for g in range(n):
            qb, G, nb, h = g//64, (g % 64)//8, (g % 8)//2, g & 1
            h ^= nb & self.SN
            if self.S2 and not G & 1: nb = 3-nb
            kk = 2*G + h; i = 16*qb + kk; D = vr(A1 + 16*(qb & 1) + 4*nb, 4)
            o.append(Op('%s %s, %s, %s, %s' % (MF, D, self.wreg(kk, nb), vr(BR+4*(i % 8),4), D if (G or g & 1) else '0'), need=[('B2', i | 1)]))
            o += oplist(fx[g])
            if stamp and g == 128: o.append(stamp_op(6))
        if stamp: o.append(stamp_op(8))
        if cfg.get('show'): print('gemm2 est', est_cycles([Op(y.text, need=y.need if kind_of(y) != 'M' else []) for y in oplist(o)]))
        o += ['s_nop 5'] + fin_b(NQ-1, True) + fin_c(NQ-1)
        tr.run('t', o); trq.run('t', o)
        tr.emit(a, 'g1p'); a.label('L_tail2'); tr.emit(a, 't')
        a('s_branch L_k2_fin')
        a.label('L_tailq'); tr.emit(a, 'g1q'); a('s_branch L_tail2')
        self.spin('P', 9)
        if self.TWO: self.spin('B', 9)
        if self.EA: self.spin('A', 248)
        if cfg.get('xp_noc'): a.label('L_spinC'); a('s_branch L_okC')
        else: self.spin('C', 250)
    def vread(self, db, par):
        return [Op('ds_read_b64_tr_b16 %s, v%d offset:%d' % (ar(self.A_RP+4*(db % self.RP)+2*jj,2), self.V_A2 if db & 1 else self.V_A, par*32768 + jj*16384 + (db >> 1)*1024), prod=('V', par, db)) for jj in range(2)]
    def preads(self, qb, par):
        if not self.PL: return [self.pread(qb, par)]
        o = 4*(par*self.NQ+qb)
        return [Op('ds_read2st64_b32 %s, v%d offset0:%d offset1:%d' % (ar(self.A_PP+4*self.NQ*par+4*qb+2*h,2), self.V_PA, o+2*h, o+2*h+1), prod=('P', par, qb)) for h in range(2)]
    def pread(self, qb, par):
        return Op('ds_read_b128 %s, v%d offset:%d' % (ar(self.A_PP+4*self.NQ*par+4*qb,4), self.V_PA, (par*self.NQ+qb)*1024), prod=('P', par, qb))
    def pv_body(self, par):
        NQ = self.NQ; n = self.n; cfg = self.cfg
        G = Gaps(n)
        LA = min(self.RP - 1, cfg['lap']); W = cfg['pw']; PP = cfg.get('kpf', 0) and cfg.get('kpp', 1)
        for db in range(16):
            d2 = db + LA; p2 = par
            if d2 >= 16: d2 -= 16; p2 ^= 1
            VD = cfg.get('vd', 1) if db < 15 else 1
            if d2 == 0 and par == 1: G.put(Task('V', 'v_xor_b32 v%d, 0x10000, v%d' % (self.V_A, self.V_A)), NQ*(db-1)+VD)
            if d2 == 1 and par == 1: G.put(Task('V', 'v_xor_b32 v%d, 0x10000, v%d' % (self.V_A2, self.V_A2)), NQ*(db-1)+VD)
            r = self.vread(d2, p2)
            G.put(Task('R', r[0]), NQ*db); G.put(Task('R', r[1]), NQ*db+VD)
            if (db+1) % W == 0 and db < 15:
                G.put(Task('S', Op(None, need=[('V', par, db+W)])), NQ*db)
        gb = n - cfg['bp']
        while not G.fits(gb, 'X'): gb -= 1
        assert gb > NQ*(15-LA)+1, (gb, LA)
        bar = G.put(Task('X', [Op(None, need=[('V', par, 15)], extra='vmcnt(%d)' % (cfg['dv'] + (1 if PP else 0)) if cfg['dq'] < 16 else ''), 's_barrier']), gb)
        prev = fr = G.asap(Task('R', self.flag_read(par), [(bar,1)]))
        for qb in range(NQ):
            for x in self.preads(qb, par ^ 1): prev = G.asap(Task('R', x, [(prev,1)]))
        fw = G.put(Task('SV', [Op(None, need=[('F', par)]), 'v_cmp_eq_u32 vcc, s%d, v%d' % (S_T, self.V_F)]), n-3)
        G.put(Task('SSS', ['s_add_u32 s%d, s%d, 1' % (S_T, S_T), ('s_cmp_lg_u32 s%d, s%d' if par else 's_cmp_eq_u32 s%d, s%d') % (S_T, S_N),
                           Op(None, need=[('P', par^1, NQ-1), ('V', par^1, W-1)])]), n-2)
        G.put(Task('B', ['s_cbranch_vccnz L_prec%d' % par, 'L_pback%d:' % par]), n-1)
        dd = self.place_dma_at(G, cfg['dq'], cfg['pd'], 0)() if 'pd' in cfg else self.place_dma(G, cfg['dq'], 16-cfg['dq'], cfg['dp0'], cfg['dpend'], False, (15-cfg['dq']-cfg['dv']+cfg.get('kpo', cfg['dv'])) if PP else None)
        assert all(t.gap < gb for t, _ in dd)
        if cfg.get('show'): print('PV', par, G.show())
        ops = []
        for g in range(n):
            if self.PV2:
                assert LA <= 6
                blk = g//(2*NQ); w = g % (2*NQ); qb = w//2; db = 2*blk + ((w & 1) ^ (qb & 1))
                if blk & 1: qb = NQ-1-qb
                need = [('V', par, db)] + ([('P', par, qb)] if blk == 0 else [])
            else:
                db, qb = g//NQ, g % NQ
                need = []
                if qb == 0: need.append(('V', par, db))
                if db & self.SN: qb = NQ-1-qb
                if g < NQ: need.append(('P', par, qb))
            D = self.O(8*qb + (db >> 1), 4*(db & 1), 4)
            ops.append(Op('%s %s, %s, %s, %s' % (MF, D, ar(self.A_RP+4*(db % self.RP),4), ar(self.A_PP+4*NQ*par+4*qb,4), D), need=need))
            ops += G.ops(g)
        return ops
    def pv_path(self):
        a = self.a; NQ = self.NQ; cfg = self.cfg; T = self.V_T
        b = Asm()
        if self.T1L:
            for pre, ins in self.dma(0, 16):
                for x in pre: b(x)
                b(ins)
            for it in self.dma_adv():
                for x in it: b(x)
        KP0 = cfg.get('kpf', 0)+1 if cfg.get('kpf', 0) else cfg.get('kp0', 0)
        if KP0:
            a('s_and_b32 s%d, s%d, 7', S_T2, S_QT); a('s_lshl_b32 s%d, s%d, 11', S_T2, S_T2); a('v_lshl_add_u32 v10, v0, 5, s%d', S_T2)
            a('v_add_u32 v22, %d, v10', 32768*cfg.get('kpf', 0))
            for i in range(KP0):
                b('s_add_u32 s%d, s%d, %d', S_T2, S_SRC, 32768*i); b('buffer_load_dword v11, v10, s[%d:%d], s%d offen', S_WS, S_WS+3, S_T2)
        for r in range(4): a('v_mov_b32 v%d, 0', 12+r)
        a('s_nop 1')
        z = ['v_mfma_f32_32x32x16_bf16 %s, v[12:15], v[12:15], 0' % self.O(f, 0, 16) for f in range(0, 8*NQ, 2)]
        for l in b.lines:
            if l.startswith('buffer') and z: a(z.pop(0))
            a(l)
        for l in z: a(l)
        F = self.V_F
        a('v_lshrrev_b32 v%d, 4, v0', T); a('v_sub_u32 v%d, 0, v%d', T, T); a('v_bfe_u32 v%d, v0, 1, 1', F)
        a('v_xor_b32 v%d, v%d, v%d', T, T, F); a('v_and_b32 v%d, 3, v%d', T, T); a('v_lshlrev_b32 v%d, 4, v%d', T, T)
        a('v_lshrrev_b32 v%d, 2, v0', F); a('v_lshl_add_u32 v%d, v%d, 6, v%d', T, F, T)
        a('v_and_b32 v%d, 1, v0', F); a('v_lshl_add_u32 v%d, v%d, 3, v%d', T, F, T)
        a('s_lshl_b32 s%d, s%d, 13', S_T2, S_J); a('v_add_u32 v%d, s%d, v%d', self.V_A, S_T2, T)
        a('v_xor_b32 v%d, 32, v%d', self.V_A2, self.V_A)
        a('v_lshlrev_b32 v%d, %d, v0', self.V_PA, 2 if self.PL else 4); a('v_add_u32 v%d, %d, v%d', self.V_PA, L_P, self.V_PA)
        if cfg.get('stamp') and cfg.get('sthead') == 1: stamp_mid(a, 8)
        if self.T1L: a('s_waitcnt vmcnt(%d)', KP0)
        a('s_barrier')
        for pre, ins in self.dma(0, 16):
            for x in pre: a(x)
            a(ins)
        for it in self.dma_adv():
            for x in it: a(x)
        for db in range(min(self.RP-1, cfg['lap'])):
            for o in self.vread(db, 0): a(o.text)
        a('s_waitcnt vmcnt(%d)', cfg['dv']); a('s_barrier')
        for qb in range(NQ): [a(x.text) for x in self.preads(qb, 0)]
        if cfg.get('stamp'): stamp_mid(a, 9)
        a('s_mov_b32 s%d, 2', S_T); a('s_add_u32 s%d, s%d, 2', S_N, S_N)
        a('s_waitcnt lgkmcnt(0)')
        b0 = self.pv_body(0); b1 = self.pv_body(1)
        a('.p2align 6') if cfg.get('align',1) else None
        for i in range(cfg.get('psh', 0)): a('s_nop 0')
        a.label('L_ploop')
        resolve(a, b0, b1)
        a('s_cbranch_scc1 L_pend')
        resolve(a, b1, b0)
        a('s_cbranch_scc1 L_ploop')
        a.label('L_pend')
        if cfg.get('stamp'): stamp_mid(a, 10)
        if cfg.get('fuse3', 1): self.pv_tail(); (self.tail2 if cfg.get('hyb', 1) else self.tail)()
        else: self.pv_tail_old()
        a.label('L_prec0'); a('s_mov_b32 s%d, 0', S_RET); a('s_branch L_precx')
        a.label('L_prec1'); a('s_mov_b32 s%d, 1', S_RET)
        a.label('L_precx')
        a('s_waitcnt lgkmcnt(0)'); a('s_barrier')
        X = self.V_PX
        self.read_x(X)
        for qb in range(NQ):
            a('v_max3_f32 v%d, v%d, v%d, 0', X+2*qb, X+2*qb, X+2*qb+1)
            a('v_sub_f32 v%d, 0, v%d', X+2*qb, X+2*qb); a('v_exp_f32 v%d, v%d', X+2*qb, X+2*qb)
        a('s_nop 7')
        E = 24
        for f in range(8*NQ):
            qb = f//8
            if f < self.NFV:
                for r in range(8): a('v_mul_f32 %s, %s, v%d', self.O(f, r), self.O(f, r), X+2*qb)
            else:
                for r in range(8): a('v_accvgpr_read_b32 v%d, %s', E+r, self.O(f, r))
                for r in range(8): a('v_mul_f32 v%d, v%d, v%d', E+r, E+r, X+2*qb)
                for r in range(8): a('v_accvgpr_write_b32 %s, v%d', self.O(f, r), E+r)
        a('s_barrier')
        a('s_cmp_eq_u32 s%d, 0', S_RET); a('s_cbranch_scc0 L_precy')
        for qb in range(NQ): [a(x.text) for x in self.preads(qb, 1)]
        a('s_waitcnt lgkmcnt(0)'); a('s_cmp_eq_u32 s%d, s%d', S_T, S_N); a('s_branch L_pback0')
        a.label('L_precy')
        for qb in range(NQ): [a(x.text) for x in self.preads(qb, 0)]
        a('s_waitcnt lgkmcnt(0)'); a('s_cmp_lg_u32 s%d, s%d', S_T, S_N); a('s_branch L_pback1')
    def qprime(self):
        a = self.a; NQ = self.NQ; n = self.n; T = self.V_T
        assert NQ == 5
        RA = 64; DD = 16; PK = 8; BA = 2; WA = 56; S_AP = S_T3; S_X = S_T1
        ONE = self.cfg.get('one', 1)
        tr = self.tr0 if ONE else Trace(); ops = []
        LN2 = self.cfg.get('ln2', 1); KSC = ' sc1' if (LN2 and self.cfg.get('ksc', 1)) else ''
        Xs = [128+16*q for q in range(5)]
        if ONE: pass
        elif LN2:
            ops += ln_lane_addr(58, 59, S_W, 1)
            ops += ['s_lshl_b32 s%d, s%d, 14' % (S_X, S_RB), 's_lshl_b32 s%d, s%d, 9' % (S_T2, S_SP), 's_add_u32 s%d, s%d, s%d' % (S_T0, S_X, S_T2), 's_xor_b32 s%d, s%d, 512' % (S_T2, S_T0)]
            ops += ['s_mov_b32 s60, s%d' % S_T0, 's_mov_b32 s61, s%d' % S_T2, 'v_mov_b32 v55, v58']
            X0 = self.cfg.get('x0', 3) if self.cfg.get('lnb', 1) else 5
            xlate = []
            for q in range(5):
                l = [Op('buffer_load_dwordx4 %s, v55, s[12:15], s%d offen offset:%d' % (vr(Xs[q]+4*k,4), 61 if k & 2 else 60, (k & 1)*256), prod=(('X', q), k)) for k in range(4)]
                if q < 4: l += ['s_add_u32 s60, s60, 16384', 's_add_u32 s61, s61, 16384']
                if q < X0: ops += l
                else: xlate.append(l)
        else:
            ops += ['s_mul_i32 s%d, s%d, 20480' % (S_T2, S_W), 's_lshl_b32 s%d, s%d, 14' % (S_X, S_RB), 's_add_u32 s%d, s%d, s%d' % (S_X, S_X, S_T2)]
            for d in range(20):
                if d % 4 == 0: ops += ['s_add_u32 m0, s%d, %d' % (S_T2, L_ST + d*1024), 's_add_u32 s%d, s%d, %d' % (S_T0, S_X, d*1024)]
                ops.append(Op('buffer_load_dwordx4 v%d, s[%d:%d], s%d offen offset:%d lds' % (self.V_L16, S_WS, S_WS+3, S_T0, (d%4)*1024), prod='XS'))
        ops += ['s_mov_b32 s%d, s6' % S_AP] if ONE else ['s_lshl_b32 s%d, s%d, 17' % (S_AP, S_W), 's_add_u32 s%d, s%d, 0x%x' % (S_AP, S_AP, WS_MF)]
        RO = 16 if ONE else 0
        def aload(f):
            o = [Op('buffer_load_dwordx4 %s, v%d, s[%d:%d], s%d offen offset:%d%s' % (vr(RA+4*((f+RO) % 32),4), self.V_L16, S_WS, S_WS+3, S_AP, (f%4)*1024, ' sc1' if ONE else ''), prod=('A', f))]
            return o, (['s_add_u32 s%d, s%d, 4096' % (S_AP, S_AP)] if f % 4 == 3 else [])
        LNB = LN2 and self.cfg.get('lnb', 1)
        A0 = self.cfg.get('qa0', 0 if LNB else (16 if LN2 else 8))
        if ONE: A0 = self.cfg.get('qla', 16)
        for f in range(14 if ONE else 0, A0):
            o, s_ = aload(f); ops += o + s_
        if self.cfg.get('stamp') and self.cfg.get('sthead') == 1: ops.append(stamp_op(1))
        tr.run('pre', ops); tr.emit(a, 'pre')
        if self.cfg.get('fuse3', 1): self.tail_sgprs()
        h_frag_addr(a, BA, T); a('v_add_u32 v%d, %d, v%d', BA, L_ST, BA); a('v_add_u32 v%d, 0x10000, v%d', BA+1, BA)
        a('s_lshl_b32 s%d, s%d, 12', S_T2, S_W); a('s_add_u32 s%d, s%d, %d', S_T2, S_T2, L_ST)
        a('v_add_u32 v%d, s%d, v%d', WA, S_T2, self.V_L16); a('v_add_u32 v%d, 0x10000, v%d', WA+1, WA)
        a('v_mov_b32 v%d, -1', T); a('ds_write_b32 v%d, v%d', self.V_FA, T); a('s_waitcnt lgkmcnt(0)')
        a('s_lshl_b32 s%d, s%d, 14', S_T2, S_W); a('s_add_u32 s%d, s%d, s%d', S_X, S_SRC, S_T2)
        def pos(g):
            return self.pos(g)
        def bread(g):
            qb, kk = pos(g); off = qb*16384 + kk*1024
            return Op('ds_read_b128 %s, v%d offset:%d' % (self.R(4*(kk*NQ+qb),4), BA + off//65536, off % 65536), prod=('B', g))
        def ep(i):
            o = []
            for qb in range(NQ):
                D = DD + 20*(i & 1) + 4*qb; P = PK + 2*(qb % 4); off = qb*16384 + (i >> 1)*1024 + 8*(i & 1)
                o += ['v_cvt_pk_bf16_f32 v%d, v%d, v%d' % (P, D, D+1), 'v_cvt_pk_bf16_f32 v%d, v%d, v%d' % (P+1, D+2, D+3),
                      'ds_write_b64 v%d, %s offset:%d' % (WA + off//65536, vr(P,2), off % 65536)]
            return o
        PRE = 10
        ops = []
        if LN2 and not ONE:
            ops += ln_h_addr(58, 59, S_W) + ['s_lshl_b32 s%d, s%d, 13' % (S_T0, S_SP), 'v_add_u32 v58, s%d, v58' % S_T0, 'v_add_u32 v60, %d, v58' % L_ST, 'v_xor_b32 v61, 0x2000, v60',
                                             'v_add_u32 v62, 0x10000, v60', 'v_add_u32 v63, 0x10000, v61', 's_lshl_b32 s%d, s%d, 14' % (S_RET, S_RB)]
            def wr(q, k, reg):
                off = q*16384 + (k & 1)*4096
                r = ['ds_write_b128 v%d, %s offset:%d' % (60 + (k >> 1) + 2*(off//65536), vr(reg,4), off % 65536)]
                if k < 2 and not (self.cfg.get('noxst') and q): r += ['s_add_u32 s%d, s%d, %d' % (S_T0 if q & 1 else S_SPIN, S_RET, off), Op('buffer_store_dwordx4 %s, v58, s[%d:%d], s%d offen%s' % (vr(reg,4), S_WS, S_WS+3, S_T0 if q & 1 else S_SPIN, '' if self.cfg.get('xplain') else ' sc1'), prod='XST')]
                return r
            if LNB:
                cnt = self.cfg.get('lnx', [0, 0, 6, 5, 5]); ex = []
                for q in range(5):
                    e = xlate.pop(0) if xlate else []
                    for c in range(cnt[q]):
                        assert A0 < 16 + 4*q
                        o_, s_ = aload(A0); e += o_ + s_; A0 += 1
                    ex.append(e)
                ops += ln80b(Xs, 16, 48, 'X', S_MK, 54, wr, ex)
            else: ops += ln80(Xs, [16, 208], [48, 240], 'X', S_MK, wr)
            if self.cfg.get('stamp') and self.cfg.get('sthead'): ops.append(stamp_op(5))
        if LN2:
            ops += ['s_lshl_b32 s%d, s3, 7' % S_RET, 's_add_u32 s%d, s%d, 0x%x' % (S_RET, S_RET, WS_FLG + 128*FLG_X),
                    's_mul_i32 s%d, s%d, 50' % (S_T0, S_SP), 'v_min_u32 v58, 51, v0', 'v_add_u32 v58, s%d, v58' % S_T0, 'v_min_u32 v58, 0x63, v58',
                    'v_lshl_add_u32 v58, v58, 1, s%d' % S_B, 's_xor_b32 s%d, s3, 2' % S_T0, 'v_cmp_eq_u32 vcc, 63, v0', 'v_mov_b32 v59, s%d' % S_T0, 's_nop 0', 'v_cndmask_b32 v58, v58, v59, vcc', 'v_lshlrev_b32 v58, 7, v58', 'v_add_u32 v58, 0x%x, v58' % (WS_FLG + 128*FLG_X), 'v_min_u32 v60, 1, v0', 'v_lshlrev_b32 v60, 30, v60', 'v_mov_b32 v62, s7', 's_getreg_b32 s%d, hwreg(HW_REG_XCC_ID, 0, 4)' % S_SAME, 'v_mov_b32 v63, s%d' % S_SAME,
                    's_cmp_eq_u32 s%d, 0' % S_W, 's_cselect_b32 s%d, s%d, 0x%x' % (S_RET, S_RET, WS_SIZE)]
        ops += [Op('s_barrier', need=['ALLL'] if LN2 else ['XS'])] + [bread(g) for g in range(PRE)]
        QLA = self.cfg.get('qla', 16); assert A0 <= QLA
        for f in range(A0, QLA):
            o, s_ = aload(f); ops += o + s_
        for i in range(8):
            if self.cfg.get('stamp') and self.cfg.get('sthead') == 1 and i in (0,1,2,6): ops.append(stamp_op({0:2,1:3,2:4,6:6}[i]))
            if self.cfg.get('stamp') and self.cfg.get('sthead') == 2 and i == 1: ops.append(stamp_op(8))
            fx = [[] for _ in range(n)]
            for G in range(8):
                for h in range(2):
                    f = 16*i + QLA + 2*G + h; gp = 2*NQ*G + 5*h
                    if f < 128:
                        o, s_ = aload(f); fx[gp] += o; fx[gp+1] += s_
                    d = 16*(i-6) + 2*G + h - self.cfg.get('qd0', 12)
                    if 0 <= d < 16:
                        if d % 4 == 0: fx[gp+1] += ['s_add_u32 m0, s%d, %d' % (S_T2, d*1024), 's_add_u32 s%d, s%d, %d' % (S_T0, S_X, d*1024)]
                        fx[gp+2].append('buffer_load_dwordx4 v%d, s[%d:%d], s%d offen offset:%d%s lds' % (self.V_L16, S_WS, S_WS+3, S_T0, (d%4)*1024, KSC))
                nxt = 16*i + 2*G + 3
                if nxt < 128: fx[2*NQ*G + 8].append(Op(None, need=[('A', nxt)]))
            if i == 0:
                for g in range(n - PRE): fx[g].insert(0, bread(g+PRE))
            if i == 1: fx[2].append('s_barrier')
            if LN2 and i == self.cfg.get('xfb', 2):
                fx[72].append(Op('s_barrier', need=['XST'])); fx[73].append('buffer_store_dwordx2 v[62:63], v60, s[%d:%d], s%d offen sc1' % (S_WS, S_WS+3, S_RET))
            if LN2 and i == 5: fx[33].append(self.poll_load(58, 'XF'))
            if LN2 and i == 6:
                fx[1].append(Op('v_cmp_ne_u32 vcc, s7, v%d' % self.V_F, need=['XF'])); fx[3] += ['s_cbranch_vccnz L_spinX', 'L_okX:']
                fx[13].append(Op('buffer_load_dword v59, v58, s[%d:%d], 0 offen offset:4 sc1' % (S_WS, S_WS+3), prod='XC'))
            if i: fx = spread(fx, ep(i-1), n, 4)
            for g in range(n):
                qb, kk = pos(g); D = vr(DD + 20*(i & 1) + 4*qb, 4)
                need = [('A', 16*i+kk)] + ([('B', g | 1)] if i == 0 else [])
                ops.append(Op('%s %s, %s, %s, %s' % (MF, D, vr(RA+4*((16*i+kk+RO) % 32),4), self.R(4*(kk*NQ+qb),4), D if (g >= 2*NQ or g & 1) else '0'), need=need))
                ops += oplist(fx[g])
        ops += ep(7) + [Op('s_barrier', need=['ALLV', 'ALLL'])]
        if LN2: ops += ['v_readlane_b32 s%d, v59, 63' % S_T0, 's_nop 0', 's_cmp_eq_u32 s%d, s%d' % (S_T0, S_SAME), 's_cselect_b32 s%d, %d, 0' % (S_SAME, 0 if self.cfg.get('forceslow') else 1)]
        tr.run('main', ops); tr.emit(a, 'main')
    def qprime6(self):
        a = self.a; NQ = self.NQ; n = self.n; T = self.V_T; cfg = self.cfg
        RA = 64; DD = 16; BA = 2; WA = 56; WS0 = 8; S_AP = S_T3; S_X = S_T1; S_QO = 60; S_QI = 61; S_QL = 62; S_QF = 63; S_J1 = 44
        PKF = 64
        T1L = cfg.get('t1l', 1); ND = 8 if T1L else 16; QW = cfg.get('qw', 0); XM = cfg.get('xmrg', 0)
        NB = 6; NF = 16*NB; QLA = 16; st1 = cfg.get('stamp') and cfg.get('sthead') == 1; st2 = cfg.get('stamp') and cfg.get('sthead') == 2
        tr = self.tr0
        reg = lambda f: vr(128 + 4*(f % 16) if (f//16) % 2 == 0 or (f % 16) < 5 else 64 + 4*(f % 16), 4)
        def aload(f):
            o = [Op('buffer_load_dwordx4 %s, v%d, s[%d:%d], s%d offen offset:%d sc1' % (self.areg(f), self.V_L16, S_WS, S_WS+3, S_AP, (f%4)*1024), prod=('A', f))]
            if f == 31: return o, ['s_mov_b32 s%d, s%d' % (S_AP, S_J1)]
            return o, (['s_add_u32 s%d, s%d, 4096' % (S_AP, S_AP)] if f % 4 == 3 else [])
        self.areg = lambda f: vr(84 + 4*((f + 11) % 27), 4)
        ops = ['s_mov_b32 s%d, s6' % S_AP]
        for f in range(14, QLA):
            o, s_ = aload(f); ops += o + s_
        t = Asm(); h_frag_addr(t, BA, T); ops += t.lines + ['v_add_u32 v%d, %d, v%d' % (BA, L_ST, BA), 'v_add_u32 v%d, 0x10000, v%d' % (BA+1, BA)]
        def pos(g):
            return self.pos(g)
        def bread(g):
            qb, kk = pos(g); off = qb*16384 + kk*1024
            return Op('ds_read_b128 %s, v%d offset:%d' % (self.R(4*(kk*NQ+qb),4), BA + off//65536, off % 65536), prod=('B', g))
        PRE = 10
        ops += [Op('s_barrier', need=['ALLL'])] + [bread(g) for g in range(PRE)]
        t = Asm(); sv = self.a; self.a = t; self.tail_sgprs(); self.a = sv
        su = t.lines + ['s_lshl_b32 s%d, s%d, 17' % (S_J1, S_W), 's_add_u32 s%d, s%d, 0x%x' % (S_J1, S_J1, WS_MF + 32768),
              's_lshl_b32 s%d, s%d, 12' % (S_T2, S_W), 's_add_u32 s%d, s%d, %d' % (S_T2, S_T2, L_ST),
              'v_add_u32 v%d, s%d, v%d' % (WA, S_T2, self.V_L16), 'v_add_u32 v%d, 0x10000, v%d' % (WA+1, WA),
              's_mul_i32 s%d, s%d, 3072' % (S_T0, S_SP), 'v_add_u32 v%d, s%d, v%d' % (WS0, S_T0, WA), 'v_add_u32 v%d, s%d, v%d' % (WS0+1, S_T0, WA+1),
              's_sub_u32 s%d, s%d, s%d' % (S_QL, S_T2, S_T0), 's_add_u32 s%d, s%d, 3072' % (S_QL, S_QL),
              's_lshl_b32 s%d, s3, 2' % S_T0, 's_add_u32 s%d, s%d, s%d' % (S_T0, S_T0, S_W), 's_mul_i32 s%d, s%d, 5120' % (S_QO, S_T0), 's_add_u32 s%d, s%d, 0x%x' % (S_QO, S_QO, WS_QX),
              's_xor_b32 s%d, s%d, 8' % (S_T0, S_T0), 's_mul_i32 s%d, s%d, 5120' % (S_QI, S_T0), 's_add_u32 s%d, s%d, 0x%x' % (S_QI, S_QI, WS_QX),
              's_lshl_b32 s%d, s3, 7' % S_RET, 's_add_u32 s%d, s%d, 0x%x' % (S_QF, S_RET, WS_FLG + 128*FLG_Q), 's_add_u32 s%d, s%d, 0x%x' % (S_RET, S_RET, WS_FLG + 128*FLG_X),
              ] + (['s_lshl_b32 s%d, s3, 2' % S_QF, 's_add_u32 s%d, s%d, s%d' % (S_QF, S_QF, S_W), 's_lshl_b32 s%d, s%d, 7' % (S_QF, S_QF), 's_add_u32 s%d, s%d, 0x%x' % (S_QF, S_QF, WS_FLG + 128*FLG_QW),
                    'v_min_u32 v63, 1, v0', 'v_lshlrev_b32 v63, 30, v63'] if QW else []) + [
              's_xor_b32 s%d, s%d, %d' % (S_T0, S_QF, 1024 if QW else 256), 'v_mov_b32 v59, s%d' % S_T0,
              's_mul_i32 s%d, s%d, 50' % (S_T0, S_SP), 'v_min_u32 v58, 51, v0', 'v_add_u32 v58, s%d, v58' % S_T0, 'v_min_u32 v58, 0x63, v58',
              'v_lshl_add_u32 v58, v58, 1, s%d' % S_B, 'v_lshlrev_b32 v58, 7, v58', 'v_add_u32 v58, 0x%x, v58' % (WS_FLG + 128*FLG_X),
              'v_or_b32 v60, s%d, v0' % S_W, 'v_min_u32 v60, 1, v60', 'v_lshlrev_b32 v60, 30, v60', 'v_mov_b32 v61, s7', 'v_mov_b32 v62, -1',
              's_lshl_b32 s%d, s%d, %d' % (S_T2, S_W, 13 if T1L else 14), 's_add_u32 s%d, s%d, s%d' % (S_X, S_SRC, S_T2)]
        assert (WS_FLG + 128*FLG_Q) % 512 == 0
        ops += [x for x in su if x.startswith('s_') and False]
        def ep(i):
            o = []
            for qb in range(NQ):
                D = DD + 20*(i & 1) + 4*qb
                if i < 2: P = PKF + 4*qb + 2*i; off = qb*16384 + 8*i; wa = WS0
                else: P = 10 + 2*(qb % 3); off = qb*16384 + (i >> 1)*1024 + 8*(i & 1); wa = WA
                o += ['v_cvt_pk_bf16_f32 v%d, v%d, v%d' % (P, D, D+1), 'v_cvt_pk_bf16_f32 v%d, v%d, v%d' % (P+1, D+2, D+3),
                      'ds_write_b64 v%d, %s offset:%d' % (wa + off//65536, vr(P,2), off % 65536)]
                if i == 1:
                    if qb == 4: o.append('s_add_u32 s%d, s%d, 4096' % (S_QO, S_QO))
                    o.append(Op('buffer_store_dwordx4 %s, v%d, s[%d:%d], s%d offen offset:%d sc1' % (vr(PKF+4*qb,4), self.V_L16, S_WS, S_WS+3, S_QO, (qb % 4)*1024), prod='QST'))
            return o
        XB = cfg.get('q6x', (1, 72)); QB = cfg.get('q6q', (3, 22)); XP = cfg.get('q6xp', (3, 43)); XC = cfg.get('q6xc', (4, 1))
        QP = cfg.get('q6qp', (4, 33)); QC = cfg.get('q6qc', (5, 1)); D0 = cfg.get('q6d', 12 if T1L else 4)
        fl = lambda sreg: 'buffer_store_dword v61, v60, s[%d:%d], s%d offen sc1' % (S_WS, S_WS+3, sreg)
        nf = [QLA]
        for i in range(NB):
            if st1 and i in (0,1,2,4): ops.append(stamp_op({0:2,1:3,2:4,4:6}[i]))
            if st2 and i == 1: ops.append(stamp_op(8))
            fx = [[] for _ in range(n)]
            for G in range(8):
                for h in range(2):
                    gp = 2*NQ*G + 5*h
                    if nf[0] < NF:
                        o, s_ = aload(nf[0]); fx[gp] += o; fx[gp+1] += s_; nf[0] += 1
                    if i == 1 and h == 1 and G < cfg.get('q6r', 0):
                        o, s_ = aload(nf[0]); fx[gp+2] += o; fx[gp+3] += s_; nf[0] += 1
                    assert nf[0] - (16*i + 2*G) <= 27
                    d = 16*(i-4) + 2*G + h - D0
                    if 0 <= d < ND:
                        if d % 4 == 0: fx[gp+1] += ['s_add_u32 m0, s%d, %d' % (S_T2, d*1024), 's_add_u32 s%d, s%d, %d' % (S_T0, S_X, d*1024)]
                        fx[gp+2].append('buffer_load_dwordx4 v%d, s[%d:%d], s%d offen offset:%d sc1 lds' % (self.V_L16, S_WS, S_WS+3, S_T0, (d%4)*1024))
                nxt = 16*i + 2*G + 3
                if nxt < NF: fx[2*NQ*G + 8].append(Op(None, need=[('A', nxt)]))
            if i == 0:
                for g in range(n - PRE): fx[g].insert(0, bread(g+PRE))
            if i == 1:
                fx[2].append(Op('s_barrier', need=['XST'] if XM else [])); fx[3].append('ds_write_b32 v%d, v62' % self.V_FA)
                if XM: fx[4].append(fl(S_RET))
            if i == XB[0] and not XM: fx[XB[1]].append(Op('s_barrier', need=['XST'])); fx[XB[1]+1].append(fl(S_RET))
            if i == QB[0]:
                if QW: fx[QB[1]].append(Op(None, need=['QST'])); fx[QB[1]+1].append(fl(S_QF).replace('v60', 'v63'))
                else: fx[QB[1]].append(Op('s_barrier', need=['QST'])); fx[QB[1]+1].append(fl(S_QF))
            if i == XP[0]: fx[XP[1]].append(self.poll_load(58, 'XF'))
            if i == XC[0]: fx[XC[1]].append(Op('v_cmp_ne_u32 vcc, s7, v%d' % self.V_F, need=['XF'])); fx[XC[1]+2] += ['s_cbranch_vccnz L_spinX', 'L_okX:']
            if i == QP[0]: fx[QP[1]].append(self.poll_load(59, 'QF'))
            if i == QC[0]:
                fx[QC[1]].append(Op('v_cmp_ne_u32 vcc, s7, v%d' % self.V_F, need=['QF'])); fx[QC[1]+2] += ['s_cbranch_vccnz L_spinQ', 'L_okQ:']
                g0 = max(QC[1]+4, 5*(D0 + ND - 16*(i-4)))
                g0 += (-g0) % 5
                for qb in range(NQ):
                    fx[g0+5*qb-1] += ['s_add_u32 m0, s%d, %d' % (S_QL, qb*16384), 's_add_u32 s%d, s%d, %d' % (S_T0, S_QI, qb*1024)]
                    fx[g0+5*qb].append('buffer_load_dwordx4 v%d, s[%d:%d], s%d offen sc1 lds' % (self.V_L16, S_WS, S_WS+3, S_T0))
            fx = spread(fx, ep(i-1), n, 4) if i else spread(fx, su, n, 0, None, 2)
            for g in range(n):
                qb, kk = pos(g); D = vr(DD + 20*(i & 1) + 4*qb, 4)
                need = [('A', 16*i+kk)] + ([('B', g | 1)] if i == 0 else [])
                ops.append(Op('%s %s, %s, %s, %s' % (MF, D, self.areg(16*i+kk), self.R(4*(kk*NQ+qb),4), D if (g >= 2*NQ or g & 1) else '0'), need=need))
                ops += oplist(fx[g])
        ops += ep(NB-1) + [Op('s_barrier', need=['ALLV', 'ALLL'])]
        tr.run('main', ops); tr.emit(a, 'main')
    def gen_body(self):
        a = self.a; cfg = self.cfg; NQ = self.NQ; NS = self.NS; T = self.V_T
        a('s_and_b32 s%d, s3, 1', S_B); a('s_bfe_u32 s%d, s3, 0x10001', S_SP); a('s_lshr_b32 s%d, s3, 2', S_QT)
        a('s_mul_i32 s%d, s%d, %d', S_RB, S_QT, NQ); a('s_sub_u32 s%d, 249, s%d', S_NV, S_RB)
        a('s_mul_i32 s%d, s%d, 250', S_T0, S_B); a('s_add_u32 s%d, s%d, s%d', S_RB, S_RB, S_T0)
        per = cfg.get('per', 63)
        a('s_mul_i32 s%d, s%d, %d', S_T1, S_SP, per); a('s_sub_u32 s%d, 125, s%d', S_N, S_T1); a('s_min_u32 s%d, s%d, %d', S_N, S_N, per)
        a('s_mul_i32 s%d, s%d, 125', S_T0, S_B); a('s_add_u32 s%d, s%d, s%d', S_T1, S_T1, S_T0)
        a(('s_lshr_b32 s%d, s%d, 1' if cfg.get('roles', 0) else 's_and_b32 s%d, s%d, 1') % (S_J, S_W))
        a('s_lshl_b32 s%d, s%d, 15', S_SRC, S_T1); a('s_add_u32 s%d, s%d, s%d', S_T1, S_T1, S_N); a('s_lshl_b32 s%d, s%d, 15', S_END, S_T1)
        assert WS_XA == 0
        a('s_mov_b32 s%d, 0x%x', S_THR, 0x40004000 if self.W2 else f2u(2.0**cfg.get('thr', 40)))
        a('v_mov_b32 v%d, %d', self.V_FA, L_FLAG)
        a('s_lshl_b32 s%d, s%d, 2', S_T2, S_J); a('s_add_u32 s%d, s%d, %d', S_T2, S_T2, L_X); a('v_lshl_add_u32 v%d, v0, 3, s%d', self.V_XA, S_T2)
        if cfg.get('one', 1) and cfg.get('q6', 1): self.qprime6()
        else: self.qprime()
        if cfg.get('stamp'): stamp_mid(a, 7)
        self.T1L = cfg.get('one', 1) and cfg.get('q6', 1) and cfg.get('t1l', 1)
        a('s_lshl_b32 s%d, s%d, 14', S_DST, S_J); a('s_add_u32 s%d, s%d, %d', S_DST, S_DST, (1 if self.T1L else 2)*32768)
        a('s_add_u32 s%d, s%d, s%d', S_SRC, S_SRC, S_DST); a('s_mov_b32 s%d, s%d', S_SRCV, S_SRC)
        a('s_bitcmp1_b32 s%d, %d', S_W, 0 if cfg.get('roles', 0) else 1); a('s_cbranch_scc1 L_pv')
        sk = 65536 if self.T1L else 32768
        a('s_add_u32 s%d, s%d, %d', S_SRC, S_SRC, sk); a('s_add_u32 s%d, s%d, %d', S_DST, S_DST, sk); a('s_mov_b32 s%d, s%d', S_SRCV, S_SRC)
        self.qk_path()
        a.label('L_pv')
        self.pv_path()

DEFCFG = dict(NQ=5, NS=2, ringq=8, ringp=8, bq=4, fq=5, dq=6, bp=23, pw=2, dpend=48, laq=1, lap=6, dv=4, dp0=0, dqe=8, w32=0)
```

```python
from asmlib import *
from layout import *
from gen_k0 import srd, h_frag_addr
MF='v_mfma_f32_16x16x32_bf16'
S_WS=8; S_W=20
C1 = 2*0.7978845608028654*1.4426950408889634; C2 = C1*0.044715
L_DW=81920; L_SX=92160; L_DUM=96256; L_XS=102400
NQ=5; n=80
def R(i, k=1): return ar(i, k) if i < 256 else vr(192 + i - 256, k)
SN = [1, 1]
def pos(g):
    G = g//10; w = g % 10; qb = w//2
    return (4-qb if (SN[1] and not G & 1) else qb), 2*G + ((w & 1) ^ (qb & SN[0]))
p2 = lambda r: vr(r, 2)

class Conv:
    L16=1; HA=2; PH=4; XV=5; GA=6; DA=11; XA=12; XR=17; RS=18; U0=28; U1=48; U2=68; DD=88; RA=128
    S_C=21; S_R0=22; S_TB=23; S_AP=24; S_CNT=25; S_T0=26; S_T1=27; S_MK=28; S_OUT=29; S_JMP=30; S_TILE=31
    S_PG=32; S_PU=33; S_PZ=34; S_T3=35; S_M=36
    S_XP=42; S_XL=43; S_FL=44; S_XD=45; S_K=46; S_ONE=48
    def __init__(self, a, cfg): self.a = a; self.cfg = cfg; SN[0] = cfg.get('snake', 1); SN[1] = cfg.get('s2', 1)
    def aload(self, kk, blk):
        return Op('buffer_load_dwordx4 %s, v%d, s[%d:%d], s%d offen offset:%d%s' % (vr(self.RA+4*kk,4), self.L16, S_WS, S_WS+3, self.S_AP, (kk%4)*1024, self.cfg.get('apol', ' sc1')), prod=('A', blk, kk))
    def block(self, blk, par, stream=(), bread=None, jump=None, extra=None, g0=2, tail=()):
        fx = [[] for _ in range(n)]
        for G in range(8):
            for h in range(2):
                kk = (2*G + h - 2) % 16; gp = 10*G + 5*h
                fx[gp].append(self.aload(kk, blk if G == 0 else blk+1))
                if kk % 4 == 3:
                    fx[gp+1] += (jump if (kk == 15 and jump) else ['s_add_u32 s%d, s%d, 4096' % (self.S_AP, self.S_AP)])
            fx[10*G+8].append(Op(None, need=[('A', blk if G < 7 else blk+1, (2*G+3) % 16)]))
        if extra:
            for g, o in extra: fx[g] += oplist(o)
        ops = []; PRE = 10
        if bread is not None:
            def rd(g):
                qb, kk = pos(g); off = qb*16384 + kk*1024
                return Op('ds_read_b128 %s, v%d offset:%d' % (R(4*(kk*NQ+qb),4), bread[off//65536], off % 65536), prod=('B', blk, g))
            ops += [rd(g) for g in range(PRE)]
            for g in range(n-PRE): fx[g].insert(0, rd(g+PRE))
        if stream: fx = (spread_dp if self.cfg.get('dp', 1) else spread)(fx, stream, n, g0)
        for g in range(n):
            qb, kk = pos(g); D = vr(self.DD + 20*par + 4*qb, 4)
            need = [('A', blk, kk)] + ([('B', blk, g | 1)] if bread is not None else [])
            ops.append(Op('%s %s, %s, %s, %s' % (MF, D, vr(self.RA+4*kk,4), R(4*(kk*NQ+qb),4), D if (g >= 10 or g & 1) else '0'), need=need))
            ops += oplist(fx[g])
        if self.cfg.get('show'): print('blk', blk, est_cycles([Op(o.text, need=o.need if kind_of(o) != 'M' else []) for o in ops]))
        return ops + oplist(list(tail))
    def P1(self, D, T, m):
        K = sr(self.S_K, 2)
        return (['v_pk_mul_f32 %s, %s, %s' % (p2(T+r), p2(D+r), p2(D+r)) for r in range(0, m, 2)] +
                ['v_pk_fma_f32 %s, %s, %s, %s op_sel:[0,0,1] op_sel_hi:[1,0,1]' % (p2(T+r), p2(T+r), K, K) for r in range(0, m, 2)] +
                ['v_pk_mul_f32 %s, %s, %s' % (p2(T+r), p2(T+r), p2(D+r)) for r in range(0, m, 2)])
    def E1(self, T, m): return ['v_exp_f32 v%d, v%d' % (T+r, T+r) for r in range(m)]
    def E2(self, T, m): return ['v_rcp_f32 v%d, v%d' % (T+r, T+r) for r in range(m)]
    def P2(self, T, m, pk=True):
        if pk: return ['v_pk_add_f32 %s, %s, %s' % (p2(T+r), p2(T+r), sr(self.S_ONE, 2)) for r in range(0, m, 2)]
        return ['v_add_f32 v%d, 1.0, v%d' % (T+r, T+r) for r in range(m)]
    def mul(self, D, T, pk=True):
        if pk: return ['v_pk_mul_f32 %s, %s, %s' % (p2(D+r), p2(D+r), p2(T+r)) for r in (0, 2)]
        return ['v_mul_f32 v%d, v%d, v%d' % (D+r, D+r, T+r) for r in range(4)]
    def adv_g(self, d): return ['v_add_u32 v%d, %d, v%d' % (self.GA+q, d, self.GA+q) for q in range(NQ)]
    def ep_g(self, t):
        o = []; PK = self.U0; S1 = self.U1; S2 = self.U2; T = self.RS
        def fin(qb):
            D = self.DD + 20*t + 4*qb; P = PK + 4*qb + 2*t
            r = ['v_cvt_pk_bf16_f32 v%d, v%d, v%d' % (P, D, D+1), 'v_cvt_pk_bf16_f32 v%d, v%d, v%d' % (P+1, D+2, D+3),
                 'ds_write_b64 v%d, %s offset:%d' % (self.GA+qb, vr(P,2), 8*t)]
            if self.cfg.get('g128', 1): r = r[:2] + (['ds_write_b128 v%d, %s' % (self.GA+qb, vr(PK+4*qb,4))] if t else [])
            if t:
                F = vr(PK+4*qb,4)
                r += ['v_add_u32 v%d, 1024, v%d' % (self.GA+qb, self.GA+qb),
                      '%s %s, %s, %s, %s' % (MF, vr(S1+4*qb,4), vr(self.XA,4), F, vr(S1+4*qb,4)),
                      '%s %s, %s, %s, %s' % (MF, vr(S2+4*qb,4), F, F, vr(S2+4*qb,4))]
            return r
        late = []
        for q0, m in ((0, 8), (2, 8), (4, 4)):
            D = self.DD + 20*t + 4*q0
            o += self.P1(D, T, m) + late + self.E1(T, m) + self.P2(T, m, False) + self.E2(T, m)
            late = []
            for j in range(m//4):
                o += self.mul(D+4*j, T+4*j, self.cfg.get('gm', 0) and q0 < 4); late += fin(q0+j)
        return o + late
    def ep_u(self, t, blk):
        GN = self.U0; DW = self.U1; TA = self.U2; TB = self.U2+8; CV = self.U2+16; RAW = self.U2+8
        D = lambda q: self.DD + 20*t + 4*q
        rd = [Op('ds_read_b64 %s, v%d offset:%d' % (vr(RAW+2*q,2), self.GA+q, 8*t), prod=('G', blk, q)) for q in range(NQ)]
        rw = [Op('ds_read_b128 %s, v%d offset:%d' % (vr(DW+4*k,4), self.DA, k*2048 + 16*t), prod=('DW', blk, k)) for k in range(5)]
        un = []
        for q in range(NQ):
            for h in range(2): un += ['v_lshlrev_b32 v%d, 16, v%d' % (GN+4*q+2*h, RAW+2*q+h), 'v_and_b32 v%d, s%d, v%d' % (GN+4*q+2*h+1, self.S_MK, RAW+2*q+h)]
        norm = ['v_pk_fma_f32 %s, %s, %s, %s op_sel:[0,0,1] op_sel_hi:[1,0,1]' % (p2(GN+4*q+r), p2(GN+4*q+r), p2(self.RS+2*q), p2(self.RS+2*q)) for q in range(NQ) for r in (0, 2)]
        def cpk(q):
            r_ = ['v_pk_mul_f32 %s, %s, %s' % (p2(CV+r), p2(GN+4*q+r), p2(DW+8+r)) for r in (0, 2)]
            for k in (3, 4, 1, 0):
                if 0 <= q+k-2 <= 4: r_ += ['v_pk_fma_f32 %s, %s, %s, %s' % (p2(CV+r), p2(GN+4*(q+k-2)+r), p2(DW+4*k+r), p2(CV+r)) for r in (0, 2)]
            return r_
        def cdpp(q):
            r_ = []
            for k in (3, 4, 1, 0):
                q2 = q+k-2
                if q2 < 0: r_ += ['v_fmac_f32_dpp v%d, v%d, v%d row_shr:1 row_mask:0xf bank_mask:0xf bound_ctrl:0' % (CV+r, GN+4*(q2+5)+r, DW+4*k+r) for r in range(4)]
                if q2 > 4: r_ += ['v_fmac_f32_dpp v%d, v%d, v%d row_shl:1 row_mask:0xf bank_mask:0xf bound_ctrl:0' % (CV+r, GN+4*(q2-5)+r, DW+4*k+r) for r in range(4)]
            return r_
        def fin(q):
            d = D(q)
            r_ = ['v_cvt_pk_bf16_f32 v%d, v%d, v%d' % (d, d, d+1), 'v_cvt_pk_bf16_f32 v%d, v%d, v%d' % (d+1, d+2, d+3), 'ds_write_b64 v%d, %s offset:%d' % (self.GA+q, vr(d,2), 8*t)]
            if t: r_.append('v_add_u32 v%d, 1024, v%d' % (self.GA+q, self.GA+q))
            return r_
        m = self.mul
        o = rd + self.P1(D(0), TA, 8) + self.E1(TA, 8)
        un[0] = Op(un[0], need=[('G', blk, 4)])
        for i in range(5): o += [rw[i], un[i]]
        o += un[5:]
        o += self.P2(TA, 8) + norm + self.P1(D(2), TB, 8) + [Op(None, need=[('DW', blk, 4)])] + cpk(0)
        o += self.E2(TA, 8) + self.E1(TB, 8) + cdpp(0)
        o += m(D(0), CV) + self.P2(TB, 8) + m(D(0), TA) + cpk(1)
        o += self.E2(TB, 8) + fin(0) + cdpp(1)
        o += m(D(1), CV) + m(D(2), TB) + m(D(1), TA+4) + self.P1(D(4), TA, 4) + cpk(2) + m(D(3), TB+4) + m(D(2), CV) + cpk(3)
        o += self.E1(TA, 4) + fin(1) + fin(2) + cdpp(3)
        o += self.P2(TA, 4) + m(D(3), CV) + cpk(4)
        o += self.E2(TA, 4) + fin(3) + cdpp(4) + m(D(4), TA, False) + m(D(4), CV, False) + fin(4)
        if t: o.append('v_add_u32 v%d, 128, v%d' % (self.DA, self.DA))
        return o
    def xdma(self, tag):
        g = [(['s_add_u32 m0, s%d, %d' % (self.S_XD, q*1024), 's_add_u32 s%d, s%d, %d' % (self.S_T3, self.S_XP, q*16384)],
              Op('buffer_load_dwordx4 v%d, s[16:19], s%d offen lds' % (self.XV, self.S_T3), prod=('XD', tag))) for q in range(NQ)]
        return g, ['s_add_u32 s%d, s%d, 64' % (self.S_XP, self.S_XP), 's_add_u32 s%d, s%d, 5120' % (self.S_XD, self.S_XD)]
    def ep_z(self, t, tag=None):
        o = []; PK = self.U0; XF = self.U2; T = self.U1
        if t == 0:
            o += [Op('ds_read_b128 %s, v%d offset:%d' % (vr(XF+4*q,4), self.XR, q*1024), prod=('XF', tag, q), need=[('XD', tag)] if q == 0 else []) for q in range(NQ)]
        for qb in range(NQ):
            D = self.DD + 20*t + 4*qb; P = PK + 4*qb + 2*t
            for h in range(2):
                o += [Op('v_lshlrev_b32 v%d, 16, v%d' % (T+2*h, XF+4*qb+2*t+h), need=[('XF', tag, qb)] if (t == 0 and h == 0) else []),
                      'v_and_b32 v%d, s%d, v%d' % (T+2*h+1, self.S_MK, XF+4*qb+2*t+h)]
            for r in range(4): o.append('v_add_f32 v%d, v%d, v%d' % (D+r, D+r, T+r))
            o += ['v_cvt_pk_bf16_f32 v%d, v%d, v%d' % (P, D, D+1), 'v_cvt_pk_bf16_f32 v%d, v%d, v%d' % (P+1, D+2, D+3)]
            if t: o += ['s_add_u32 s%d, s%d, %d' % (self.S_T3, self.S_OUT, qb*16384),
                        Op('buffer_store_dwordx4 %s, v%d, s[%d:%d], s%d offen%s' % (vr(PK+4*qb,4), self.L16, S_WS, S_WS+3, self.S_T3, '' if self.cfg.get('xp_plainb') else ' sc1'), prod='BST')]
        if t: o.append('s_add_u32 s%d, s%d, 1024' % (self.S_OUT, self.S_OUT))
        return o
    def flag_store(self):
        T = self.RS+8
        return ['v_or_b32 v%d, s%d, v0' % (T, S_W), 'v_min_u32 v%d, 1, v%d' % (T, T), 'v_lshlrev_b32 v%d, 30, v%d' % (T, T), 'v_mov_b32 v%d, s7' % (T+1),
                'buffer_store_dword v%d, v%d, s[%d:%d], s%d offen sc1' % (T+1, T, S_WS, S_WS+3, self.S_FL)]
    def stage_addr(self):
        T = self.U1+8
        o = ['v_lshrrev_b32 v%d, 2, v0' % T, 'v_mul_u32_u24 v%d, 5, v%d' % (T, T), 's_add_u32 s%d, s%d, 4000' % (self.S_JMP, self.S_R0), 'v_add_u32 v%d, s%d, v%d' % (T, self.S_JMP, T),
             'v_lshrrev_b32 v%d, 4, v%d' % (T+1, self.XV), 's_movk_i32 s%d, 4000' % self.S_JMP, 'v_mov_b32 v%d, 7999' % (T+4)]
        for q in range(NQ):
            X = self.XA+q
            o += ['v_add_u32 v%d, %d, v%d' % (T+2, q, T), 'v_med3_i32 v%d, v%d, s%d, v%d' % (T+2, T+2, self.S_JMP, T+4),
                  'v_lshrrev_b32 v%d, 2, v%d' % (T+3, T+2), 'v_sub_u32 v%d, 0, v%d' % (T+3, T+3), 'v_xor_b32 v%d, v%d, v%d' % (T+3, T+3, T+1),
                  'v_and_b32 v%d, 3, v%d' % (T+3, T+3), 'v_and_b32 v%d, 15, v%d' % (X, T+2), 'v_lshl_add_u32 v%d, v%d, 2, v%d' % (T+3, X, T+3),
                  'v_lshrrev_b32 v%d, 4, v%d' % (X, T+2), 'v_lshl_add_u32 v%d, v%d, 10, v%d' % (X, X, T+3), 'v_lshlrev_b32 v%d, 4, v%d' % (X, X)]
        return o
    def stage_dma(self, tag):
        g = [(['s_add_u32 m0, s%d, %d' % (self.S_JMP, q*16384)], Op('buffer_load_dwordx4 v%d, s[%d:%d], s%d offen sc1 lds' % (self.XA+q, S_WS, S_WS+3, self.S_T0), prod=tag)) for q in range(NQ)]
        return g, ['s_add_u32 s%d, s%d, 1024' % (self.S_T0, self.S_T0), 's_add_u32 s%d, s%d, 1024' % (self.S_JMP, self.S_JMP)]
    def place(self, gm, gaps):
        g, post = gm; ex = []
        for (pre, o), gp in zip(g, gaps): ex += [(gp-1, pre), (gp, [o])]
        return ex + [(gaps[len(g)-1]+1, post)]
    def stats(self, tile):
        S1 = self.U1; S2 = self.U2; T = self.U0; M = self.S_M
        o = ['v_and_b32 v%d, 15, v0' % T, 'v_lshrrev_b32 v%d, 2, v%d' % (T+1, T), 'v_lshrrev_b32 v%d, 4, v0' % (T+2),
             'v_cmp_eq_u32 vcc, v%d, v%d' % (T+1, T+2), 'v_lshlrev_b32 v%d, 5, v%d' % (T+1, T), 'v_add_u32 v%d, %d, v%d' % (T+1, L_SX, T+1),
             's_lshl_b32 s%d, s%d, 3' % (self.S_T0, S_W), 'v_add_u32 v%d, s%d, v%d' % (T+2, self.S_T0, T+1), 'v_mov_b32 v%d, %d' % (T+3, L_DUM),
             'v_cndmask_b32 v%d, v%d, v%d, vcc' % (T+2, T+3, T+2)]
        for q in range(NQ):
            d = S1+4*q+1
            o += ['v_cndmask_b32 v%d, v%d, v%d, s[%d:%d]' % (d, S2+4*q, S2+4*q+1, M, M+1),
                  'v_cndmask_b32 v%d, v%d, v%d, s[%d:%d]' % (d, d, S2+4*q+2, M+2, M+3),
                  'v_cndmask_b32 v%d, v%d, v%d, s[%d:%d]' % (d, d, S2+4*q+3, M+4, M+5),
                  'ds_write_b64 v%d, %s offset:%d' % (T+2, vr(S1+4*q,2), q*512)]
        t = self.XA; P = self.XA+4
        if self.cfg.get('dmh', 0):
            o += ['s_lshl_b32 s%d, s%d, 13' % (self.S_JMP, S_W), 's_add_u32 s%d, s%d, 0x%x' % (self.S_JMP, self.S_JMP, WS_FLG + 128*FLG_X), 'v_lshl_add_u32 v%d, v0, 7, s%d' % (P, self.S_JMP)]
        else:
          DMV = self.cfg.get('dmv', 1)
          o += ['v_and_b32 v%d, 3, v0' % t] + (['v_lshlrev_b32 v%d, 7, v0' % P, 'v_add_u32 v%d, 0x%x, v%d' % (P, WS_FLG + 128*(FLG_X+200), P)] if DMV else
                ['v_min_u32 v%d, 2, v%d' % (P, t), 'v_lshlrev_b32 v%d, 7, v%d' % (P, P), 'v_add_u32 v%d, 0x%x, v%d' % (P, WS_FLG + 128*FLG_D, P)])
          o += [
              's_max_i32 s%d, s%d, 0' % (self.S_JMP, self.S_R0), 's_mul_i32 s%d, s%d, 52429' % (self.S_JMP, self.S_JMP), 's_lshr_b32 s%d, s%d, 22' % (self.S_JMP, self.S_JMP),
              's_lshl_b32 s%d, s%d, 1' % (self.S_JMP, self.S_JMP), 'v_and_b32 v%d, 4, v0' % (t+1), 'v_cmp_gt_u32 vcc, 48, v0' if DMV else 'v_cmp_eq_u32 vcc, 0, v%d' % (t+1),
              'v_add_u32 v%d, s%d, v%d' % (t, self.S_JMP, t), 'v_min_u32 v%d, 0x63, v%d' % (t, t),
              'v_lshlrev_b32 v%d, 8, v%d' % (t, t), 'v_add_u32 v%d, 0x%x, v%d' % (t, WS_FLG + 128*(FLG_X+1), t), 'v_cndmask_b32 v%d, v%d, v%d, vcc' % (P, t, P)]
        o.append(Op('s_barrier', need=['ALLL']))
        for q in range(NQ):
            o += [Op('ds_read_b128 %s, v%d offset:%d' % (vr(S1+8*q,4), T+1, q*512), prod=('SA', tile, q)),
                  Op('ds_read_b128 %s, v%d offset:%d' % (vr(S1+8*q+4,4), T+1, q*512+16), prod=('SB', tile, q))]
        o += self.adv_g(-4096)
        o += ['v_mul_u32_u24 v%d, 5, v%d' % (T, T), 'v_add_u32 v%d, s%d, v%d' % (T, self.S_R0, T), 'v_mov_b32 v%d, 0x%x' % (T+4, f2u(1/512.)),
              's_add_u32 s%d, s%d, 2' % (self.S_XP, self.S_R0), 's_add_u32 s%d, s%d, s%d' % (self.S_XP, self.S_XP, self.S_TB), 's_lshl_b32 s%d, s%d, 10' % (self.S_XP, self.S_XP),
              's_lshr_b32 s%d, s%d, 4' % (self.S_JMP, self.S_T1), 's_add_u32 s%d, s%d, s%d' % (self.S_XP, self.S_XP, self.S_JMP), 's_mov_b32 s%d, s%d' % (self.S_XD, self.S_XL)]
        for q in range(NQ):
            A = S1+8*q
            o += [Op('v_pk_add_f32 %s, %s, %s' % (p2(A), p2(A), p2(A+2)), need=[('SB', tile, q)]), 'v_pk_add_f32 %s, %s, %s' % (p2(A+4), p2(A+4), p2(A+6)),
                  'v_add_u32 v%d, %d, v%d' % (T+2, q, T), 'v_pk_add_f32 %s, %s, %s' % (p2(A), p2(A), p2(A+4)), 'v_cmp_gt_u32 vcc, 0xfa0, v%d' % (T+2),
                  'v_pk_mul_f32 %s, %s, %s op_sel_hi:[1,0]' % (p2(A), p2(A), p2(T+4)),
                  'v_fma_f32 v%d, -v%d, v%d, v%d' % (A+1, A, A, A+1), 'v_max_f32 v%d, 0, v%d' % (A+1, A+1), 'v_add_f32 v%d, 0x%x, v%d' % (A+1, f2u(1e-5), A+1),
                  'v_rsq_f32 v%d, v%d' % (A+1, A+1), 's_nop 0',
                  'v_cndmask_b32 v%d, 0, v%d, vcc' % (self.RS+2*q, A+1), 'v_mul_f32 v%d, -v%d, v%d' % (self.RS+2*q+1, A, self.RS+2*q)]
        return o
    def wdm_unit(self):
        LA = 98304; RG = 192; D = 92
        t = Asm(); srd(t, 64, 50, 51, 524288)
        t('s_sub_u32 s21, s3, 200'); t('s_and_b32 s22, s21, 15'); t('s_lshr_b32 s23, s21, 4')
        t('s_lshl_b32 s24, s22, 15'); t('s_lshl_b32 s25, s20, 8'); t('s_add_u32 s24, s24, s25'); t('s_add_u32 s25, s24, 4096')
        t('s_lshl_b32 s26, s20, 12'); t('s_add_u32 s26, s26, %d', LA)
        o = t.lines
        for tt in range(2):
            for e in range(4): o += ['s_add_u32 m0, s26, %d' % (tt*16384 + e*960), 's_nop 0', Op('buffer_load_dwordx4 v4, s[64:67], s%d offen offset:%d lds' % (24+tt, e*64), prod='UA')]
        o += ['s_mul_i32 s23, s23, 12', 's_mul_i32 s27, s20, 3', 's_add_u32 s23, s23, s27', 's_lshl_b32 s22, s22, 10', 's_add_u32 s22, s22, 0x%x' % WS_WDMF]
        for nb in range(3):
            o += ['s_add_u32 s27, s23, %d' % nb, 's_min_u32 s34, s27, 31', 's_lshl_b32 s34, s34, 14', 's_add_u32 s%d, s34, 0x%x' % (28+nb, WS_WMF + 0x80000),
                  's_add_u32 s34, s34, s22', 's_cmp_lt_u32 s27, 32', 's_cselect_b32 s%d, s34, 0x%x' % (31+nb, WS_SIZE)]
        o.append('s_barrier')
        def bl(e):
            l = [Op('buffer_load_dwordx4 %s, v1, s[8:11], s%d offen offset:%d sc1' % (ar(12*e+4*nb,4), 28+nb, (e%4)*1024), prod=('UB', e)) for nb in range(3)]
            if e % 4 == 3: l += ['s_add_u32 s%d, s%d, 4096' % (28+nb, 28+nb) for nb in range(3)]
            return l
        for e in range(8): o += bl(e)
        t = Asm(); h_frag_addr(t, 2, 3); t('v_add_u32 v2, %d, v2', LA); o += t.lines
        rd = lambda e: [Op('ds_read_b128 %s, v2 offset:%d' % (vr(RG+8*(e % 8)+4*tt,4), tt*16384 + e*1024), prod=('UF', e)) for tt in range(2)]
        o.append(Op('s_barrier', need=['UA']))
        for e in range(4): o += rd(e)
        for e in range(16):
            if e+8 < 16: o += bl(e+8)
            if e+4 < 16: o += rd(e+4)
            for nb in range(3):
                for tt in range(2):
                    d = vr(D+8*nb+4*tt, 4)
                    o.append(Op('%s %s, %s, %s, %s' % (MF, d, vr(RG+8*(e % 8)+4*tt,4), ar(12*e+4*nb,4), d if e else '0'), need=[('UB', e), ('UF', e)]))
        o.append('s_nop 7')
        for nb in range(3):
            b = D+8*nb
            o += ['v_cvt_pk_bf16_f32 v%d, v%d, v%d' % (b+x, b+2*x, b+2*x+1) for x in range(4)]
            o.append(Op('buffer_store_dwordx4 %s, v1, s[8:11], s%d offen sc1' % (vr(b,4), 31+nb), prod='XST'))
        return o
    def gen(self):
        a = self.a; cfg = self.cfg; T = self.U2; tr = self.tr0; S = self
        DMV = cfg.get('dmv', 1) and not cfg.get('dmh', 0)
        pre = S.wdm_unit() if (DMV and not cfg.get('xp_nounit')) else []
        pre += ['s_lshl_b32 s%d, s%d, 8' % (S.S_T0, S_W), 'v_lshl_add_u32 v%d, v0, 2, s%d' % (T, S.S_T0), 's_mov_b32 s%d, 4096' % S.S_JMP]
        for k in range(5): pre.append(Op('buffer_load_dword v%d, v%d, s[12:15], %s offen offset:%d' % (S.U0+k, T, '0' if k < 4 else 's%d' % S.S_JMP, (k%4)*1024), prod=('DWL', k)))
        if cfg.get('wpf', 0):
            pre += ['s_sub_u32 s21, s3, 200', 's_lshl_b32 s21, s21, 2', 's_add_u32 s21, s21, s20', 's_lshr_b32 s22, s21, 6',
                    's_cmp_eq_u32 s22, 1', 's_cselect_b32 s60, s44, s50', 's_cselect_b32 s61, s45, s51', 's_cmp_eq_u32 s22, 2', 's_cselect_b32 s60, s42, s60', 's_cselect_b32 s61, s43, s61',
                    's_and_b32 s61, s61, 0xffff', 's_cmp_eq_u32 s22, 3', 's_cselect_b32 s62, 0, 0x80000', 's_mov_b32 s63, 0x20000',
                    's_and_b32 s21, s21, 63', 's_lshl_b32 s21, s21, 13', 'v_lshlrev_b32 v%d, 7, v0' % S.XR, 'buffer_load_dword v%d, v%d, s[60:63], s21 offen' % (S.XR, S.XR)]
        pre += ['s_sub_u32 s%d, s3, 200' % S.S_C, 's_mul_i32 s%d, s%d, 76' % (S.S_R0, S.S_C), 's_sub_u32 s%d, s%d, 2' % (S.S_R0, S.S_R0),
                's_mov_b32 s%d, 0' % S.S_TB, 's_mov_b32 s%d, 0' % S.S_TILE, 's_lshl_b32 s%d, s%d, 12' % (S.S_T1, S_W),
                's_mul_i32 s%d, s%d, 15360' % (S.S_XL, S_W), 's_add_u32 s%d, s%d, %d' % (S.S_XL, S.S_XL, L_XS), 's_lshl_b32 s%d, s3, 7' % S.S_FL, 's_add_u32 s%d, s%d, 0x%x' % (S.S_FL, S.S_FL, WS_FLG + 128*FLG_X if (cfg.get('dmh', 0) or DMV) else WS_SIZE),
                's_lshl_b32 s%d, s%d, 17' % (S.S_PU, S_W), 's_add_u32 s%d, s%d, 0x%x' % (S.S_PZ, S.S_PU, WS_WDMF),
                's_add_u32 s%d, s%d, 0x%x' % (S.S_PU, S.S_PU, WS_WUPF), 's_add_u32 s%d, s%d, 0x80000' % (S.S_PG, S.S_PU), 's_mov_b32 s%d, s6' % S.S_AP,
                's_mov_b32 s%d, 0xffff0000' % S.S_MK, 's_mov_b32 s%d, 0x%x' % (S.S_K, f2u(-C2)), 's_mov_b32 s%d, 0x%x' % (S.S_K+1, f2u(-C1)),
                's_mov_b32 s%d, 1.0' % S.S_ONE, 's_mov_b32 s%d, 1.0' % (S.S_ONE+1)]
        tmp = Asm(); h_frag_addr(tmp, S.HA, T+1); pre += tmp.lines
        pre += ['v_add_u32 v%d, 0x10000, v%d' % (S.HA+1, S.HA)]
        tr.run('pre', pre)
        su = ['v_add_u32 v%d, 0x10000, v%d' % (S.PH, S.L16),
              'v_lshrrev_b32 v%d, 4, v0' % (T+2), 'v_sub_u32 v%d, 0, v%d' % (T+1, T+2), 'v_xor_b32 v%d, v%d, v0' % (T+1, T+1), 'v_and_b32 v%d, 3, v%d' % (T+1, T+1),
              'v_lshlrev_b32 v%d, 4, v%d' % (T+1, T+1), 'v_lshrrev_b32 v%d, 2, v0' % S.XV, 'v_lshl_add_u32 v%d, v%d, 10, v%d' % (S.XV, S.XV, T+1),
              'v_and_b32 v%d, 15, v0' % (T+1), 'v_mul_u32_u24 v%d, 5, v%d' % (T+1, T+1),
              'v_lshl_add_u32 v%d, v%d, 8, s%d' % (T+3, T+2, S.S_T1), 's_lshr_b32 s%d, s%d, 3' % (S.S_JMP, S.S_T1), 's_add_u32 s%d, s%d, %d' % (S.S_JMP, S.S_JMP, L_DW),
              'v_lshl_add_u32 v%d, v%d, 5, s%d' % (S.DA, T+2, S.S_JMP)]
        for q in range(NQ):
            su += ['v_add_u32 v%d, %d, v%d' % (T+2, q-2, T+1)]
            if q < 2: su += ['v_min_u32 v%d, %d, v%d' % (T+2, 78+q, T+2)]
            su += ['v_and_b32 v%d, 15, v%d' % (T+4, T+2), 'v_lshl_add_u32 v%d, v%d, 4, v%d' % (T+4, T+4, T+3),
                   'v_lshrrev_b32 v%d, 4, v%d' % (T+2, T+2), 'v_lshl_add_u32 v%d, v%d, 14, v%d' % (S.GA+q, T+2, T+4)]
        su += ['v_and_b32 v%d, 3, v0' % (T+1)] + ['v_cmp_eq_u32 s[%d:%d], %d, v%d' % (S.S_M+2*i, S.S_M+2*i+1, i+1, T+1) for i in range(3)]
        dwo = ['v_lshlrev_b32 v%d, 1, v%d' % (T, T), 'v_add_u32 v%d, %d, v%d' % (T, L_DW, T)]
        for k in range(5):
            dwo += [Op('v_lshlrev_b32 v%d, 16, v%d' % (S.U1+2*k, S.U0+k), need=[('DWL', k)]), 'v_and_b32 v%d, s%d, v%d' % (S.U1+2*k+1, S.S_MK, S.U0+k),
                    'ds_write_b64 v%d, %s offset:%d' % (T, vr(S.U1+2*k,2), k*2048)]
        SAL = cfg.get('sal', 1); L_SA = 94720
        if SAL: su += S.stage_addr() + ['v_lshlrev_b32 v%d, 2, v0' % (T+1), 'v_add_u32 v%d, %d, v%d' % (T+1, L_SA, T+1)] + ['ds_write_b32 v%d, v%d offset:%d' % (T+1, S.XA+q, q*256) for q in range(NQ)]
        tr.run('pre2', su + dwo)
        sel = lambda tgt: ['s_add_u32 s%d, s%d, 4096' % (S.S_AP, S.S_AP), 's_cmp_eq_u32 s%d, 3' % S.S_CNT, 's_cselect_b32 s%d, s%d, s%d' % (S.S_AP, tgt, S.S_AP)]
        inc = 's_add_u32 s%d, s%d, 1' % (S.S_CNT, S.S_CNT)
        blk = 0
        for tile in range(2):
            init = ['v_mov_b32 v%d, 0x3f803f80' % (S.XA+r) for r in range(4)] + ['v_mov_b32 v%d, 0' % (S.U1+r) for r in range(40)]
            tr.run('g0', [Op('s_barrier', need=[('XS', tile), 'ALLL']), 's_mov_b32 s%d, 0' % S.S_CNT] +
                   S.block(blk, 0, stream=init, bread=(S.HA, S.HA+1), tail=[Op('s_barrier', need=['BST'] if tile else ['XST'])] + S.flag_store())); blk += 1
            for it in range(4):
                tr.run('g1', S.block(blk, 1, stream=S.ep_g(0), jump=sel(S.S_PU))); blk += 1
                tr.run('g2', S.block(blk, 0, stream=S.ep_g(1), tail=[inc, 's_cmp_lt_u32 s%d, 4' % S.S_CNT])); blk += 1
            tr.run('stats', S.stats(tile) + ['s_mov_b32 s%d, 0' % S.S_CNT])
            for it in range(4):
                tr.run('u1', S.block(blk, 1, stream=S.ep_u(0, blk), jump=sel(S.S_PZ), g0=1, tail=['s_cmp_eq_u32 s%d, 3' % S.S_CNT])); blk += 1
                if it < 3:
                    ex = [(3, [Op('buffer_load_dword v%d, v%d, s[%d:%d], 0 offen sc1' % (S.XA+1, S.XA+4, S_WS, S_WS+3), prod=('DF', blk))])]
                    ex += S.place(S.xdma((tile, it)), [13, 23, 33, 43, 53])
                    tl = [Op('v_cmp_ne_u32 vcc, s7, v%d' % (S.XA+1), need=[('DF', blk)]), inc, 's_cmp_eq_u32 s%d, 3' % S.S_CNT, 's_cselect_b64 vcc, vcc, 0', 's_cbranch_vccnz L_c_spin']
                    tr.run('u2', S.block(blk, 0, stream=S.ep_u(1, blk), g0=1, extra=ex, tail=tl)); blk += 1
            tr.run('u3', S.ep_u(1, ('e', tile)))
            z0s = S.adv_g(-4096) + ['v_add_u32 v%d, -512, v%d' % (S.DA, S.DA), 'v_add_u32 v%d, s%d, v%d' % (S.XR, S.S_XL, S.HA)]
            zt = []
            if SAL:
                z0s += ['v_lshlrev_b32 v%d, 2, v0' % S.U1, 'v_add_u32 v%d, %d, v%d' % (S.U1, L_SA, S.U1)]
                zt = [(71+q+(q > 3), [Op('ds_read_b32 v%d, v%d offset:%d' % (S.XA+q, S.U1, q*256), prod=('SAD', tile))]) for q in range(NQ)]
            else: z0s += S.stage_addr()
            tr.run('z0', [Op('s_barrier', need=['ALLL']), 's_mov_b32 s%d, 0' % S.S_CNT, 's_mul_i32 s%d, s%d, 53' % (S.S_FL, S.S_TILE), 's_add_u32 s%d, s%d, s%d' % (S.S_FL, S.S_FL, S.S_C),
                          's_mul_i32 s%d, s%d, 81920' % (S.S_OUT, S.S_FL), 's_add_u32 s%d, s%d, s%d' % (S.S_OUT, S.S_OUT, S.S_T1), 's_add_u32 s%d, s%d, 0x%x' % (S.S_OUT, S.S_OUT, WS_SIZE if cfg.get('xp_nobs') else WS_BASE),
                          's_lshl_b32 s%d, s%d, 7' % (S.S_FL, S.S_FL), 's_add_u32 s%d, s%d, 0x%x' % (S.S_FL, S.S_FL, WS_FLG + 128*FLG_C), 's_mov_b32 s%d, s%d' % (S.S_XD, S.S_XL),
                          's_cmp_eq_u32 s%d, %d' % (S.S_TILE, 5 if cfg.get('xp_nostg') else 0), 's_cselect_b32 s%d, s%d, 0x%x' % (S.S_T0, S.S_T1, WS_SIZE)]
                   + S.block(blk, 0, stream=z0s, bread=(S.L16, S.PH), extra=zt, tail=['s_mov_b32 s%d, s%d' % (S.S_JMP, S.S_T1), 's_barrier'])); blk += 1
            sg = [13, 23, 33, 43, 53]
            xg, xpost = S.xdma((tile, 3)); xg[0][1].need = [('XF', (tile, 0), 4)]
            sd0 = S.stage_dma(('XS', tile+1))
            if SAL: sd0[0][0][1].need = [('SAD', tile)]
            tr.run('z1a', S.block(blk, 1, stream=S.ep_z(0, (tile, 0)), extra=S.place(sd0, sg) + S.place((xg, []), [58-1, 63, 68-1, 73, 78-1]))); blk += 1
            for it in range(3):
                tr.run('z2', S.block(blk, 0, stream=S.ep_z(1), tail=[inc, 's_cmp_eq_u32 s%d, 3' % S.S_CNT, 's_movk_i32 s%d, 5120' % S.S_T3, 's_cselect_b32 s%d, -10240, s%d' % (S.S_T3, S.S_T3),
                                                                    'v_add_u32 v%d, s%d, v%d' % (S.XR, S.S_T3, S.XR)])); blk += 1
                tr.run('z1', S.block(blk, 1, stream=S.ep_z(0, (tile, it+1)), extra=S.place(S.stage_dma(('XS', tile+1)), sg), jump=sel(S.S_PG), tail=['s_cmp_lt_u32 s%d, 3' % S.S_CNT])); blk += 1
            tr.run('z3', ['s_nop 1'] + S.ep_z(1) + ['s_mov_b32 s%d, 4000' % S.S_TB, 's_add_u32 s%d, s%d, 1' % (S.S_TILE, S.S_TILE), 's_cmp_lt_u32 s%d, 2' % S.S_TILE])
        def E(k, st=None):
            if st and cfg.get('stamp') and cfg.get('sthead') != 2:
                a('s_cmp_eq_u32 s%d, 0', S.S_TILE); a('s_cbranch_scc0 L_c_s%da', st); stamp_mid(a, st); a('s_branch L_c_s%db', st)
                a.label('L_c_s%da' % st); stamp_mid(a, st+5); a.label('L_c_s%db' % st)
            tr.emit(a, k)
        def lpf(cond):
            a(cond); a('s_cbranch_scc1 L_c_nopf')
            a('s_lshr_b32 s60, s2, 3'); a('s_and_b32 s60, s60, 3'); a('s_lshl_b32 s60, s60, 2'); a('s_add_u32 s60, s60, s20')
            a('s_lshl_b32 s61, s60, 15'); a('s_add_u32 s61, s61, 0x%x', WS_WVOF); a('v_lshlrev_b32 v%d, 7, v0', S.XA)
            for i in range(4): a('buffer_load_dword v%d, v%d, s[8:11], s61 offen', S.XA+3, S.XA); a('s_add_u32 s61, s61, 8192')
            a('s_getpc_b64 s[64:65]'); a.label('L_pc1'); a('s_sub_u32 s64, s64, L_pc1-L_qfin1'); a('s_subb_u32 s65, s65, 0'); a('s_lshl_b32 s60, s60, 11')
            a('v_lshl_add_u32 v%d, v0, 5, s60', S.XA); a('v_min_u32 v%d, L_prec0-L_qfin1, v%d', S.XA, S.XA); a('v_mov_b32 v%d, s65', S.XA+1)
            a('v_add_co_u32 v%d, vcc, s64, v%d', S.XA, S.XA); a('s_nop 1'); a('v_addc_co_u32 v%d, vcc, 0, v%d, vcc', S.XA+1, S.XA+1)
            a('global_load_dword v%d, v[%d:%d], off', S.XA+3, S.XA, S.XA+1)
            a('s_waitcnt vmcnt(0)') if cfg.get('lpfw', 0) else None
            a.label('L_c_nopf')
        E('pre'); E('pre2')
        a.label('L_c_tile'); E('g0', 1)
        a.label('L_c_g'); E('g1'); E('g2'); a('s_cbranch_scc1 L_c_g')
        E('stats', 2)
        a.label('L_c_u')
        if cfg.get('lpf', 1) == 2: a('s_lshl_b32 s60, s%d, 2', S.S_TILE); a('s_add_u32 s60, s60, s%d', S.S_CNT); lpf('s_cmp_lg_u32 s60, %d' % (4 + cfg.get('lpi', 2)))
        E('u1'); a('s_cbranch_scc1 L_c_u3'); E('u2'); a('s_branch L_c_u')
        a.label('L_c_u3')
        if cfg.get('lpf', 1) == 1: lpf('s_cmp_eq_u32 s%d, 0' % S.S_TILE)
        E('u3', 3); E('z0', 4); E('z1a', 5)
        a.label('L_c_z'); E('z2'); E('z1'); a('s_cbranch_scc1 L_c_z')
        E('z3')
        a('s_cbranch_scc1 L_c_tile')
        a('s_waitcnt vmcnt(0)'); a('s_barrier')
        for x in S.flag_store(): a(x)
        a('s_branch L_k2_fin')
        a.label('L_c_spin'); a('s_mov_b32 s%d, 0', S.S_JMP)
        a.label('L_c_spin_l')
        a('buffer_load_dword v%d, v%d, s[%d:%d], 0 offen sc1', S.XA+1, S.XA+4, S_WS, S_WS+3); a('s_waitcnt vmcnt(0)')
        a('v_cmp_ne_u32 vcc, s7, v%d', S.XA+1); a('s_cbranch_vccz L_c_u')
        a('s_add_u32 s%d, s%d, 1', S.S_JMP, S.S_JMP); a('s_cmp_lt_u32 s%d, 0x40000', S.S_JMP); a('s_cbranch_scc1 L_c_spin_l')
        a('s_branch L_c_u')
```

```python
from asmlib import *
from layout import *
from gen_k0 import srd, h_frag_addr, QSCALE
from gen_ln import *
MF='v_mfma_f32_16x16x32_bf16'
XS = [192, 208, 224, 240, 112]
def entry(a, cfg):
    a('s_load_dwordx16 s[36:51], s[0:1], 0'); a('s_load_dwordx8 s[52:59], s[0:1], 64')
    a('v_lshrrev_b32 v1, 6, v0'); a('v_and_b32 v0, 63, v0'); a('v_readfirstlane_b32 s20, v1'); a('v_lshlrev_b32 v1, 4, v0')
    if cfg.get('ipf', 1):
        a('s_getpc_b64 s[72:73]'); a.label('L_pc0')
        a('s_lshr_b32 s21, s2, 3'); a('s_lshl_b32 s21, s21, 2'); a('s_add_u32 s21, s21, s20'); a('s_lshl_b32 s21, s21, 10')
        a('v_add_u32 v8, s21, v1'); a('v_min_u32 v8, L_code_end-L_pc0, v8'); a('v_mov_b32 v9, s73')
        a('v_add_co_u32 v8, vcc, s72, v8'); a('s_nop 1'); a('v_addc_co_u32 v9, vcc, 0, v9, vcc')
        a('global_load_dword v7, v[8:9], off')
    MAP = cfg.get('map', 2)
    if MAP == 3:
        a('s_lshr_b32 s21, s2, 3'); a('s_and_b32 s22, s2, 1')
        if cfg.get('swp', 0): a('s_xor_b32 s22, s22, 1')
        a('s_bfe_u32 s24, s2, 0x10001'); a('s_mul_i32 s24, s24, 25'); a('s_add_u32 s24, s24, s21'); a('s_lshl_b32 s24, s24, 1'); a('s_or_b32 s24, s24, s22')
        a('s_lshl_b32 s24, s24, 1'); a('s_bfe_u32 s25, s2, 0x10002'); a('s_or_b32 s24, s24, s25')
        a('s_and_b32 s25, s2, 7'); a('s_mul_i32 s25, s25, 7'); a('s_add_u32 s25, s25, s21'); a('s_add_u32 s25, s25, 175')
        a('s_cmp_lt_u32 s21, 25'); a('s_cselect_b32 s3, s24, s25')
    else:
        a('s_lshr_b32 s21, s2, 3'); a('s_and_b32 s22, s2, 1')
        if cfg.get('swp', 0): a('s_xor_b32 s22, s22, 1')
        a('s_lshl_b32 s23, s22, 1'); a('s_sub_u32 s23, 26, s23')
        a('s_bfe_u32 s24, s2, 0x10001'); a('s_mul_i32 s24, s24, 25'); a('s_mul_i32 s25, s22, 13'); a('s_add_u32 s24, s24, s25')
        a('s_lshl_b32 s24, s24, 1'); a('s_add_u32 s24, s24, s21'); a('s_lshl_b32 s24, s24, 1'); a('s_bfe_u32 s25, s2, 0x10002'); a('s_or_b32 s24, s24, s25')
        a('s_bfe_u32 s25, s2, 0x20001'); a('s_mul_i32 s25, s25, 14'); a('s_mul_i32 s26, s22, 6'); a('s_add_u32 s25, s25, s26')
        a('s_add_u32 s25, s25, s21'); a('s_sub_u32 s25, s25, s23'); a('s_add_u32 s25, s25, 200')
        a('s_cmp_lt_u32 s21, s23'); a('s_cselect_b32 s3, s24, s25')
    for x, y in cfg.get('spx', [(253, 213), (254, 227), (255, 241)]):
        a('s_cmp_eq_u32 s3, %d', x); a('s_cselect_b32 s24, %d, s3', y); a('s_cmp_eq_u32 s3, %d', y); a('s_cselect_b32 s3, %d, s24', x)
    a('v_lshrrev_b32 v2, 4, v0'); a('v_sub_u32 v4, 0, v2'); a('v_xor_b32 v4, v4, v0'); a('v_and_b32 v4, 3, v4'); a('v_lshlrev_b32 v4, 4, v4')
    a('v_lshl_add_u32 v4, v2, 13, v4'); a('v_bfe_u32 v5, v0, 2, 2'); a('v_lshl_add_u32 v4, v5, 10, v4')
    a('s_and_b32 s23, s2, 3'); a('s_lshl_b32 s23, s23, 2'); a('s_bfe_u32 s21, s2, 0x20003'); a('s_add_u32 s23, s23, s21')
    a('s_bfe_u32 s22, s2, 0x10002'); a('s_lshl_b32 s22, s22, 3'); a('s_lshr_b32 s21, s2, 5'); a('s_add_u32 s22, s22, s21')
    a('s_lshl_b32 s21, s20, 8'); a('s_lshl_b32 s24, s23, 15'); a('s_add_u32 s24, s24, s21'); a('s_add_u32 s25, s24, 4096')
    a('s_lshl_b32 s26, s22, 15'); a('s_add_u32 s26, s26, s21'); a('s_add_u32 s27, s26, 4096')
    a('s_sub_u32 s21, s3, 200'); a('s_cmp_lt_u32 s21, %d', 56 if (cfg.get('dmh', 0) or cfg.get('ts', 0)) else 53)
    a('s_cselect_b32 s33, 0x18000, 0'); a('s_mov_b32 s31, 147456'); a('s_cselect_b32 s31, 81920, s31')
    a('s_lshl_b32 s32, s20, 14'); a('s_add_u32 s32, s32, s33'); a('s_lshl_b32 s21, s20, 11'); a('s_add_u32 s31, s31, s21')
    a('s_waitcnt lgkmcnt(0)')
    srd(a, 60, 38, 39, 524288); srd(a, 64, 40, 41, 524288)

def head_a(cfg):
    stamp = cfg.get('stamp') and cfg.get('sthead') == 2
    o = []
    if stamp: o.append(stamp_op(1))
    order = [(2*ep+h, rb) for ep in range(2) for rb in range(4) for h in range(2)] if cfg.get('hord', 1) else [(e, rb) for e in range(4) for rb in range(4)]
    if 1:
        for e, rb in order:
            o += ['s_add_u32 m0, s32, %d' % ((e*4+rb)*1024 - e*64), 's_nop 0',
                  Op('buffer_load_dwordx4 v4, s[%d:%d], s%d offen offset:%d lds' % (60+4*(rb >> 1), 63+4*(rb >> 1), 24+rb, e*64), prod=('D', e))]
    if stamp and cfg.get('st7'): o.append(stamp_op(7))
    t = Asm()
    t('s_add_u32 s4, s58, 0x%x', WS_FLG + 128*FLG_E); t('s_addc_u32 s5, s59, 0'); t('s_load_dword s7, s[4:5], 0')
    srd(t, 8, 58, 59, WS_SIZE); srd(t, 72, 36, 37, 8192000)
    t('s_lshl_b32 s30, s22, 4'); t('s_add_u32 s30, s30, s23'); t('s_lshr_b32 s24, s30, 6')
    TS = cfg.get('ts', 0)
    if not TS:
        t('s_bfe_u32 s25, s30, 0x10004'); t('s_lshl_b32 s25, s25, 3'); t('s_bfe_u32 s26, s30, 0x10003'); t('s_add_u32 s25, s25, s26')
        t('s_lshl_b32 s26, s24, 1'); t('s_add_u32 s25, s25, s26'); t('s_and_b32 s26, s30, 7')
        t('s_bfe_u32 s27, s30, 0x20003'); t('s_lshl_b32 s24, s24, 2'); t('s_add_u32 s27, s27, s24')
        t('s_bitcmp0_b32 s30, 5')
        t('s_cselect_b32 s34, s25, s26'); t('s_cselect_b32 s35, s26, s27')
        t('s_cselect_b32 s68, s46, s52'); t('s_cselect_b32 s69, s47, s53'); t('s_cselect_b32 s28, 11, 10')
        SP2 = cfg.get('sp2', 0) or cfg.get('xp_nowm')
        t('s_mov_b32 s29, 0x%x', WS_SIZE if SP2 else WS_WMF); t('s_cselect_b32 s29, 0x%x, s29', WS_WUPF)
        if SP2: t('s_cselect_b32 s70, 0x100000, 0')
        else: t('s_mov_b32 s70, 0x%x', 0x80000 if cfg.get('dmh', 0) else 0x100000); t('s_cselect_b32 s70, 0x100000, s70')
        if cfg.get('xp_not'): t('s_mov_b32 s70, 0'); t('s_mov_b32 s29, 0x%x', WS_SIZE)
        t('s_and_b32 s69, s69, 0xffff'); t('s_mov_b32 s71, 0x20000')
        t('s_lshl_b32 s34, s34, 1'); t('s_and_b32 s21, s20, 1'); t('s_add_u32 s34, s34, s21')
        t('s_lshl_b32 s35, s35, 1'); t('s_lshr_b32 s21, s20, 1'); t('s_add_u32 s35, s35, s21')
        t('v_lshrrev_b32 v5, 2, v0'); t('v_lshlrev_b32 v5, s28, v5'); t('v_and_b32 v6, 3, v0'); t('v_lshl_add_u32 v5, v6, 4, v5')
        t('s_add_u32 s21, s28, 5'); t('s_lshl_b32 s24, s35, s21'); t('s_lshl_b32 s21, s34, 6'); t('s_add_u32 s24, s24, s21')
        t('s_lshl_b32 s21, 16, s28'); t('s_add_u32 s25, s24, s21')
    o += t.lines
    TL = 9 if TS else cfg.get('tl', 0)
    tdm = []
    for b in range(2): tdm += ['s_add_u32 m0, s31, %d' % (b*1024), 's_nop 0', Op('buffer_load_dwordx4 v5, s[68:71], s%d offen lds' % ((18 if TL else 24)+b), prod='T')]
    if TS: pass
    elif TL: o += ['s_mov_b32 s18, s24', 's_mov_b32 s19, s25']
    else: o += tdm
    t = Asm()
    t('s_lshr_b32 s24, s3, 2'); t('s_mul_i32 s24, s24, 80'); t('s_and_b32 s25, s3, 1'); t('s_mul_i32 s25, s25, 4000'); t('s_add_u32 s24, s24, s25')
    t('s_sub_u32 s25, s3, 200'); t('s_mul_i32 s25, s25, 76'); t('s_sub_u32 s25, s25, 2'); t('s_cmp_lt_u32 s3, 253'); t('s_cselect_b32 s25, s25, 0x4000')
    t('s_bfe_u32 s14, s3, 0x10001'); t('s_lshl_b32 s12, s24, 10')
    t('s_cmp_lt_u32 s3, 200')
    if cfg.get('xp_nocx'): t('s_mov_b32 s25, 0x4000')
    t('s_cselect_b32 s24, s24, s25'); t('s_cselect_b32 s26, 1, 5'); t('s_mov_b32 s27, 1024'); t('s_cselect_b32 s27, 0x4000, s27'); t('s_cselect_b32 s14, s14, 0')
    t('s_cselect_b32 s12, s12, 0x%x', WS_SIZE); t('s_cselect_b32 s13, 0x10000, 0')
    t('s_mov_b32 s6, 0x%x', WS_WUPF + 0x80000); t('s_cselect_b32 s6, 0x%x, s6', WS_MF)
    o += t.lines
    la = ln_lane_addr(12, 13, 20, 1); la = [x.replace('v_mul_u32_u24 v12, 1, v12', 'v_mul_u32_u24 v12, s26, v12') for x in la]
    o += la + ['s_lshl_b32 s24, s24, 10', 'v_add_u32 v12, s24, v12', 's_lshl_b32 s16, s14, 9', 's_xor_b32 s17, s16, 512']
    xl = []
    for q in range(5):
        if q: o.append('v_add_u32 v%d, s27, v%d' % (12+q, 11+q))
        xl.append([Op('buffer_load_dwordx4 %s, v%d, s[72:75], s%d offen offset:%d' % (vr(XS[q]+4*k,4), 12+q, 17 if k & 2 else 16, (k & 1)*256), prod=(('X', q), k)) for k in range(4)])
    X0 = cfg.get('x0', 0)
    for l in xl[:X0]: o += l
    if stamp: o.append(stamp_op(2))
    t = Asm(); h_frag_addr(t, 2, 3); t('v_add_u32 v2, s32, v2')
    if not TS: t('v_and_b32 v6, 15, v0'); t('v_lshlrev_b32 v6, 4, v6'); t('v_lshrrev_b32 v3, 4, v0'); t('v_lshl_add_u32 v6, v3, 9, v6'); t('v_add_u32 v6, s31, v6')
    o += t.lines
    F = 128; D0 = 76; FS = cfg.get('fs', 7)
    for e in range(4):
        for rb in range(4): o.append(Op('ds_read_b128 %s, v2 offset:%d' % (vr(F+16*e+4*rb,4), (e*4+rb)*1024), need=[('D', e)], prod=('F', e)))
    if stamp and cfg.get('st7'): o.append(stamp_op(8))
    X1 = cfg.get('x1', 2)
    for e in range(4):
        if X0+e < X1: o += xl[X0+e]
        for t2 in range(2):
            for t_ in range(2):
                D = vr(D0+8*t2+4*t_, 4)
                o.append(Op('%s %s, %s, %s, %s' % (MF, D, vr(F+16*e+4*t_,4), vr(F+16*e+8+4*t2,4), D if e else '0'), need=[('F', e)]))
    if TL == 1: o += tdm
    TA = cfg.get('ta', 0)
    trd = [Op('ds_read_b64_tr_b16 %s, v6 offset:%d' % (vr(92+4*t2+2*jj,2), jj*256 + t2*8), need=['T'], prod=('TT', t2)) for t2 in range(0 if TL else 2) for jj in range(2)]
    if not TA: o += trd
    o += ['v_add_u32 v22, s32, v1', 's_and_b32 s21, s20, 1', 's_lshl_b32 s24, s21, 11', 's_add_u32 s24, s24, s33', 'v_add_u32 v23, s24, v1',
          's_lshl_b32 s22, s22, 1', 's_add_u32 s22, s22, s21', 's_lshl_b32 s22, s22, 14', 's_lshl_b32 s23, s23, 10', 's_add_u32 s22, s22, s23', 's_add_u32 s22, s22, 0x%x' % WS_MF,
          's_cmp_lt_u32 s20, 2', 's_cselect_b32 s22, s22, 0x%x' % WS_SIZE]
    for c in range(4): o.append('ds_write_b128 v22, %s offset:%d' % (vr(D0+4*c,4), c*1024))
    if not TS: o += ['s_lshr_b32 s21, s35, 4', 's_lshl_b32 s21, s21, 19', 's_add_u32 s29, s29, s21', 's_and_b32 s21, s35, 15', 's_lshl_b32 s21, s21, 10',
          's_add_u32 s29, s29, s21', 's_lshl_b32 s21, s34, 15', 's_add_u32 s24, s29, s21']
    if cfg.get('dmh', 0): o += ['s_cmp_lt_u32 s35, 16', 's_cselect_b32 s24, s24, 0x%x' % WS_SIZE]
    if not TS: o += ['s_add_u32 s25, s24, 16384']
    if stamp and cfg.get('st7'): o.append(stamp_op(9))
    o.append(Op('s_barrier', need=['ALLL']))
    if stamp and cfg.get('st7'): o.append(stamp_op(10))
    G = 128
    for w in range(4):
        for c in range(2): o.append(Op('ds_read_b128 %s, v23 offset:%d' % (vr(G+8*w+4*c,4), w*16384 + c*1024), prod=('R', w)))
    if TL and not TS: o += ['s_mov_b32 s34, s24', 's_mov_b32 s35, s25']
    tst = [Op('buffer_store_dwordx4 %s, v1, s[8:11], s%d offen sc1' % (vr(92+4*t2,4), 24+t2), need=[('TT', t2)], prod='P0') for t2 in range(0 if TL else 2)]
    if not TA: o += tst
    o += ['v_mov_b32 v60, 0x%x' % f2u(QSCALE), 's_add_u32 s7, s7, 0x9e3779b9', 'v_min_u32 v20, 1, v0', 'v_lshlrev_b32 v20, 30, v20', 'v_mov_b32 v21, s7',
          's_lshl_b32 s30, s30, %d' % FS, 's_add_u32 s30, s30, 0x%x' % (WS_FLG + 128*FLG_0), 's_cmp_eq_u32 s20, 0', 's_cselect_b32 s30, s30, 0x%x' % WS_SIZE,
          's_lshl_b32 s21, s20, %d' % (6+FS), 's_add_u32 s21, s21, 0x%x' % (WS_FLG + 128*FLG_0), 'v_lshl_add_u32 v18, v0, %d, s21' % FS]
    if TL and not TS: o += ['s_cmp_lt_u32 s3, 200', 's_cselect_b32 s21, 0, 0x%x' % (128*(FLG_1-FLG_0)), 'v_add_u32 v18, s21, v18', 's_add_u32 s29, s30, 0x%x' % (128*(FLG_1-FLG_0))]
    for w in range(1, 4):
        for r in range(4): o.append(Op('v_pk_add_f32 %s, %s, %s' % (vr(G+2*r,2), vr(G+2*r,2), vr(G+8*w+2*r,2)), need=[('R', w)]))
    for r in range(4): o.append('v_pk_mul_f32 %s, %s, v[60:61] op_sel_hi:[1,0]' % (vr(G+2*r,2), vr(G+2*r,2)))
    for r in range(4): o.append('v_cvt_pk_bf16_f32 v%d, v%d, v%d' % (G+r, G+2*r, G+2*r+1))
    o.append(Op('buffer_store_dwordx4 %s, v1, s[8:11], s22 offen sc1' % vr(G,4), prod='P0'))
    if TA: o += trd + tst
    if TL == 2: o += tdm
    if stamp: o.append(stamp_op(3))
    return o, xl[max(X0, X1):]
FLAG0 = 'buffer_store_dword v21, v20, s[8:11], s30 offen sc1'
FLAG1 = 'buffer_store_dword v21, v20, s[8:11], s29 offen sc1'
def t_reads(): return [Op('ds_read_b64_tr_b16 %s, v6 offset:%d' % (vr(28+4*t2+2*jj,2), jj*256 + t2*8), need=['T'], prod=('TT', t2)) for t2 in range(2) for jj in range(2)]
def t_stores(): return [Op('buffer_store_dwordx4 %s, v1, s[8:11], s%d offen sc1' % (vr(28+4*t2,4), 34+t2), need=[('TT', t2)], prod='P1') for t2 in range(2)]
POLL0 = 'buffer_load_dword v19, v18, s[8:11], 0 offen sc1'
def spin0(a, name, back, va=18):
    a.label(name); a('s_mov_b32 s21, 0'); a.label(name + '_l')
    a(POLL0.replace('v18', 'v%d' % va)); a('s_waitcnt vmcnt(0)'); a('v_cmp_ne_u32 vcc, s7, v19'); a('s_cbranch_vccz %s', back)
    a('s_add_u32 s21, s21, 1'); a('s_cmp_lt_u32 s21, 0x40000'); a('s_cbranch_scc1 %s_l', name); a('s_branch %s', back)
def head_b(cfg, xlate, atag):
    stamp = cfg.get('stamp') and cfg.get('sthead') == 2
    o = ln_h_addr(17, 3, 20) + ['s_lshl_b32 s21, s14, 13', 'v_add_u32 v17, s21, v17', 'v_add_u32 v8, s13, v17', 'v_xor_b32 v9, 0x2000, v8',
                                'v_add_u32 v10, 0x10000, v8', 'v_add_u32 v11, 0x10000, v9', 's_mov_b32 s15, 0xffff0000',
                                's_lshl_b32 s21, s20, 17', 's_add_u32 s6, s6, s21', Op('v_mov_b32 v66, 0x3f803f80')]
    if cfg.get('q6', 1): o += ['s_mul_i32 s21, s14, 98304', 's_add_u32 s6, s6, s21']
    def wr(q, k, reg):
        off = q*16384 + (k & 1)*4096
        r = [Op('ds_write_b128 v%d, %s offset:%d' % (8 + (k >> 1) + 2*(off//65536), vr(reg,4), off % 65536), prod=('XS', 0))]
        if k < 2: r += ['s_add_u32 s24, s12, %d' % off, Op('buffer_store_dwordx4 %s, v17, s[8:11], s24 offen sc1' % vr(reg,4), prod='XST')]
        return r
    al = []
    for f in range(14):
        al.append(Op('buffer_load_dwordx4 %s, v1, s[8:11], s6 offen offset:%d sc1' % (vr(128+4*f,4), (f%4)*1024), prod=atag(f)))
        if f % 4 == 3: al.append('s_add_u32 s6, s6, 4096')
    PF = cfg.get('hpf', 0); PP = cfg.get('hpp', 3); PC = cfg.get('hpc', 3)
    xlate = list(xlate); XM = cfg.get('xm', 3); xflag = []
    if XM == 1:
        for l in xlate: o += l
        xlate = []
    elif XM == 2: xflag = [x for l in xlate for x in l]; xlate = []
    elif XM == 3: xlate = [xlate[0] + xlate[1]] + xlate[2:]
    elif XM == 4: o += xlate[0]; xflag = [x for l in xlate[1:] for x in l]; xlate = []
    elif XM == 5: o += xlate[0]; xlate = xlate[1:]
    DMH = cfg.get('dmh', 0); dml = [[] for _ in range(5)]
    if DMH:
        t = Asm(); srd(t, 60, 50, 51, 524288); srd(t, 64, 52, 53, 1048576)
        t('s_and_b32 s23, s3, 15'); t('s_lshr_b32 s22, s3, 4'); t('s_lshl_b32 s21, s20, 8'); t('s_lshl_b32 s26, s23, 15'); t('s_add_u32 s26, s26, s21'); t('s_add_u32 s27, s26, 4096')
        t('s_lshl_b32 s28, s20, 17'); t('s_lshl_b32 s21, s22, 6'); t('s_add_u32 s28, s28, s21'); t('s_add_u32 s28, s28, 0x80000')
        t('v_lshrrev_b32 v5, 2, v0'); t('v_lshlrev_b32 v5, 10, v5'); t('v_and_b32 v3, 3, v0'); t('v_lshl_add_u32 v5, v3, 4, v5')
        t('s_sub_u32 s21, s32, s31'); t('v_add_u32 v6, s21, v6')
        t('s_and_b32 s21, s20, 1'); t('s_lshl_b32 s22, s22, 1'); t('s_add_u32 s22, s22, s21'); t('s_lshl_b32 s22, s22, 14'); t('s_lshl_b32 s23, s23, 10'); t('s_add_u32 s22, s22, s23')
        t('s_add_u32 s22, s22, 0x%x', WS_WDMF); t('s_cmp_lt_u32 s20, 2'); t('s_cselect_b32 s22, s22, 0x%x', WS_SIZE)
        o += t.lines
        dl = []
        for rb in range(2):
            for e in range(4): dl.append(Op('buffer_x\ns_add_u32 m0, s32, %d\ns_nop 0\nbuffer_load_dwordx4 v4, s[60:63], s%d offen offset:%d lds' % ((e*4+rb)*1024 - e*64, 26+rb, e*64), prod='D2'))
        for e in range(4):
            for b in range(2): dl.append(Op('buffer_x\ns_add_u32 m0, s32, %d\ns_add_u32 s29, s28, %d\nbuffer_load_dwordx4 v5, s[64:67], s29 offen lds' % ((e*4+2+b)*1024, (2*e+b)*16384), prod='D2'))
        cnt = cfg.get('dmc', [0, 6, 10, 0, 0])
        for q in range(5): dml[q] = dl[:cnt[q]]; dl = dl[cnt[q]:]
        assert not dl and all(c == 0 for c in cnt[:PF+1])
    for q in range(5):
        p = ln_pass1(XS[q], 76, 60, ('X', q), 15, 66, (lambda k, reg, q=q: wr(q, k, reg)))
        ex = oplist(xlate.pop(0)) if xlate else []
        ex += dml[q]
        if q == cfg.get('upq', 2) and cfg.get('upf', 0) and cfg.get('dmv', 1) and not DMH:
            o += ['s_mov_b32 s60, s50', 's_and_b32 s61, s51, 0xffff', 's_sub_u32 s21, s3, 200', 's_cmp_lt_u32 s21, 48', 's_cselect_b32 s62, 0x80000, 0', 's_mov_b32 s63, 0x20000',
                  's_and_b32 s21, s21, 15', 's_lshl_b32 s21, s21, 2', 's_add_u32 s21, s21, s20', 's_lshl_b32 s22, s21, 13', 'v_lshlrev_b32 v24, 7, v0']
            ex.append(Op('buffer_load_dword v24, v24, s[60:63], s22 offen'))
        if q == PC+1: ex += oplist(al); al = []
        nd = sum(1 for x in ex if kind_of(x) == 'D'); step = max(1, len(p)//(nd+1))
        for i, x in enumerate(p):
            if cfg.get('tl', 0):
                if q == cfg.get('tq', 1) and i == 0: o += t_reads()
                if q == cfg.get('tq', 1) and i == 20: o += t_stores()
                if (q, i) == cfg.get('tf', (2, 60)): o += [Op('s_barrier', need=['P1']), FLAG1]
            if q == PP and i == cfg.get('hpi', 0): o.append(Op(POLL0, prod='F0'))
            if q == PF and i == cfg.get('hfi', 80):
                o += [Op('s_barrier', need=['P0']), FLAG0] + xflag
                if stamp: o.append(stamp_op(4))
            o.append(x)
            if ex and i % step == step-1:
                o.append(ex.pop(0))
                while ex and kind_of(ex[0]) != 'D': o.append(ex.pop(0))
        o += ex
        if q == PF and cfg.get('hfi', 80) >= len(p):
            o += [Op('s_barrier', need=['P0']), FLAG0]
            if stamp: o.append(stamp_op(4))
        if q == PC:
            o += [Op('v_cmp_ne_u32 vcc, s7, v19', need=['F0']), 's_cbranch_vccnz L_spin0', 'L_ok0:']
            if stamp: o.append(stamp_op(5))
    o += al
    if DMH:
        D0 = 76; G = 28
        for e in range(4):
            for rb in range(2): o.append(Op('ds_read_b128 %s, v2 offset:%d' % (ar(16*e+4*rb,4), (e*4+rb)*1024), need=['D2'], prod=('F2', e)))
            for t2 in range(2):
                for jj in range(2): o.append(Op('ds_read_b64_tr_b16 %s, v6 offset:%d' % (ar(16*e+8+4*t2+2*jj,2), (e*4+2)*1024 + jj*256 + t2*8), prod=('F2', e)))
            for ee in ([e-1] if 0 < e < 3 else ([2, 3] if e == 3 else [])):
                for t2 in range(2):
                    for t_ in range(2):
                        D = vr(D0+8*t2+4*t_, 4)
                        o.append(Op('%s %s, %s, %s, %s' % (MF, D, ar(16*ee+4*t_,4), ar(16*ee+8+4*t2,4), D if ee else '0'), need=[('F2', ee)]))
        o.append('s_nop 4')
        for c in range(4): o.append('ds_write_b128 v22, %s offset:%d' % (vr(D0+4*c,4), c*1024))
        o.append(Op('s_barrier', need=['ALLL']))
        for w in range(4):
            for c in range(2): o.append(Op('ds_read_b128 %s, v23 offset:%d' % (vr(G+8*w+4*c,4), w*16384 + c*1024), prod=('R2', w)))
        for w in range(1, 4):
            for r in range(4): o.append(Op('v_pk_add_f32 %s, %s, %s' % (vr(G+2*r,2), vr(G+2*r,2), vr(G+8*w+2*r,2)), need=[('R2', w)]))
        for r in range(4): o.append('v_cvt_pk_bf16_f32 v%d, v%d, v%d' % (24+r, G+2*r, G+2*r+1))
        o.append(Op('buffer_store_dwordx4 v[24:27], v1, s[8:11], s22 offen sc1', prod='XST'))
    if stamp: o.append(stamp_op(6))
    return o

def head_c(cfg, xlate, atag):
    stamp = cfg.get('stamp') and cfg.get('sthead') == 2
    o = ln_h_addr(8, 3, 20) + ['v_add_u32 v10, 0x10000, v8', 's_mov_b32 s15, 0xffff0000', 's_lshl_b32 s21, s20, 17', 's_add_u32 s6, s6, s21', 'v_mov_b32 v66, 0x3f803f80']
    t = Asm()
    t('s_sub_u32 s29, s3, 200'); t('s_lshl_b32 s22, s29, 2'); t('s_add_u32 s22, s22, s20'); t('s_sub_u32 s23, s22, 112')
    t('s_cmp_lt_u32 s22, 112')
    t('s_cselect_b32 s22, s22, s23'); t('s_cselect_b32 s68, s46, s52'); t('s_cselect_b32 s69, s47, s53'); t('s_cselect_b32 s28, 11, 10'); t('s_cselect_b32 s34, 5, 4')
    t('s_mov_b32 s35, 0x%x', WS_WMF); t('s_cselect_b32 s35, 0x%x, s35', WS_WUPF)
    t('s_and_b32 s69, s69, 0xffff'); t('s_mov_b32 s70, 0x100000'); t('s_mov_b32 s71, 0x20000'); t('s_mul_i32 s22, s22, 5')
    t('v_lshrrev_b32 v5, 2, v0'); t('v_lshlrev_b32 v5, s28, v5'); t('v_and_b32 v6, 3, v0'); t('v_lshl_add_u32 v5, v6, 4, v5')
    t('s_lshl_b32 s13, 16, s28'); t('v_add_u32 v9, s13, v5'); t('s_add_u32 s28, s28, 5')
    SRC = [60, 61, 62, 63, 64]; DST = [65, 66, 67, 18, 19]
    for i in range(5):
        t('s_add_u32 s23, s22, %d', i); t('s_lshr_b32 s24, s23, s34'); t('s_lshl_b32 s25, s24, s34'); t('s_sub_u32 s25, s23, s25')
        t('s_lshl_b32 s26, s24, s28'); t('s_lshl_b32 s27, s25, 6'); t('s_add_u32 s%d, s26, s27', SRC[i])
        t('s_lshr_b32 s26, s24, 4'); t('s_lshl_b32 s26, s26, 19'); t('s_and_b32 s27, s24, 15'); t('s_lshl_b32 s27, s27, 10'); t('s_add_u32 s26, s26, s27')
        t('s_lshl_b32 s27, s25, 15'); t('s_add_u32 s26, s26, s27'); t('s_add_u32 s26, s26, s35'); t('s_cmp_lt_u32 s23, 512'); t('s_cselect_b32 s%d, s26, 0x%x', DST[i], WS_SIZE)
    t('v_and_b32 v6, 15, v0'); t('v_lshlrev_b32 v6, 4, v6'); t('v_lshrrev_b32 v3, 4, v0'); t('v_lshl_add_u32 v6, v3, 9, v6'); t('v_add_u32 v6, s32, v6')
    t('v_min_u32 v11, 55, v0'); t('v_lshlrev_b32 v11, 7, v11'); t('v_add_u32 v11, 0x%x, v11', WS_FLG + 128*FLG_1); t('v_add_u32 v17, 0x4000, v1')
    t('s_lshl_b32 s29, s29, 7'); t('s_add_u32 s29, s29, 0x%x', WS_FLG + 128*FLG_1); t('s_cmp_eq_u32 s20, 0'); t('s_cselect_b32 s29, s29, 0x%x', WS_SIZE)
    o += t.lines
    tdm = []
    for b in range(2):
        for i in range(5): tdm += ['s_add_u32 m0, s32, %d' % (4096 + i*2048 + b*1024), 's_nop 0', Op('buffer_load_dwordx4 v%d, s[68:71], s%d offen lds' % (9 if b else 5, SRC[i]), prod='T')]
    trd = [Op('ds_read_b64_tr_b16 %s, v6 offset:%d' % (vr(128+8*i+4*t2+2*jj,2), 4096 + i*2048 + jj*256 + t2*8), need=['T'], prod=('TT', i, t2)) for i in range(5) for t2 in range(2) for jj in range(2)]
    tst = [Op('buffer_store_dwordx4 %s, v%d, s[8:11], s%d offen sc1' % (vr(128+8*i+4*t2,4), 17 if t2 else 1, DST[i]), need=[('TT', i, t2)], prod='P1') for i in range(5) for t2 in range(2)]
    def wr(q, k, reg):
        off = q*16384 + k*4096
        return [Op('ds_write_b128 v%d, %s offset:%d' % (8 + 2*(off//65536), vr(reg,4), off % 65536), prod=('XS', 0))]
    xlate = list(xlate); TQ = cfg.get('tsq', 2); TF = cfg.get('tsf', 3)
    if cfg.get('tso', 0): o += tdm; tdm = []
    for q in range(5):
        p = ln_pass1(XS[q], 76, 60, ('X', q), 15, 66, (lambda k, reg, q=q: wr(q, k, reg)))
        if q == TQ: o += trd + tst
        for i, x in enumerate(p):
            if q == 0 and i == cfg.get('tsi', 34):
                o += [Op('s_barrier', need=['P0']), FLAG0] + tdm
                for l in xlate: o += l
                if stamp: o.append(stamp_op(4))
            o.append(x)
        if q == TF: o += [Op('s_barrier', need=['P1']), FLAG1]
    o += [Op('s_branch L_spin2', need=['ALLV']), 'L_ok2:']
    if stamp: o.append(stamp_op(5))
    for f in range(14):
        o.append(Op('buffer_load_dwordx4 %s, v1, s[8:11], s6 offen offset:%d sc1' % (vr(128+4*f,4), (f%4)*1024), prod=atag(f)))
        if f % 4 == 3: o.append('s_add_u32 s6, s6, 4096')
    if stamp: o.append(stamp_op(6))
    return o
```

```python
from asmlib import *
from layout import *
from gen_k0 import srd
import gen_attn3, gen_conv, gen_conv2, gen_head, gen_spare
def gen_k2(a, cfg, name='main_kernel'):
    c = dict(gen_attn3.DEFCFG); c.update(cfg); cfg = c
    kernel_header(a, name)
    a('s_cmp_lt_u32 s2, 256'); a('s_cbranch_scc1 L_k2_go'); a('s_endpgm'); a.label('L_k2_go')
    if cfg.get('stamp'): stamp_begin(a)
    if cfg.get('one', 1): return gen_one(a, cfg)
    a('s_load_dwordx2 s[4:5], s[0:1], 88'); a('s_load_dwordx2 s[6:7], s[0:1], 48'); a('s_load_dwordx2 s[16:17], s[0:1], 24'); a('s_load_dwordx2 s[18:19], s[0:1], 0'); a('s_load_dwordx2 s[46:47], s[0:1], 72')
    a('v_lshrrev_b32 v1, 6, v0'); a('v_and_b32 v0, 63, v0'); a('v_readfirstlane_b32 s20, v1'); a('v_lshlrev_b32 v1, 4, v0')
    a('s_waitcnt lgkmcnt(0)')
    srd(a, 8, 4, 5, WS_SIZE)
    if cfg.get('map', 2) == 1: a('s_mov_b32 s3, s2')
    else:
        a('s_lshr_b32 s21, s2, 3'); a('s_and_b32 s22, s2, 1'); a('s_lshl_b32 s23, s22, 1'); a('s_sub_u32 s23, 26, s23')
        a('s_bfe_u32 s24, s2, 0x10001'); a('s_mul_i32 s24, s24, 25'); a('s_mul_i32 s25, s22, 13'); a('s_add_u32 s24, s24, s25')
        a('s_lshl_b32 s24, s24, 1'); a('s_add_u32 s24, s24, s21'); a('s_lshl_b32 s24, s24, 1'); a('s_bfe_u32 s25, s2, 0x10002'); a('s_or_b32 s24, s24, s25')
        a('s_bfe_u32 s25, s2, 0x20001'); a('s_mul_i32 s25, s25, 14'); a('s_mul_i32 s26, s22, 6'); a('s_add_u32 s25, s25, s26')
        a('s_add_u32 s25, s25, s21'); a('s_sub_u32 s25, s25, s23'); a('s_add_u32 s25, s25, 200')
        a('s_cmp_lt_u32 s21, s23'); a('s_cselect_b32 s3, s24, s25')
    a('s_cmp_lt_u32 s3, 200'); a('s_cbranch_scc1 L_k2_attn')
    a('s_cmp_lt_u32 s3, 253'); a('s_cbranch_scc1 L_k2_conv')
    if cfg.get('lean', 1):
        a('s_load_dwordx2 s[60:61], s[0:1], 56'); a('s_load_dwordx2 s[64:65], s[0:1], 32'); a('s_waitcnt lgkmcnt(0)')
        srd(a, 60, 60, 61, 524288); srd(a, 64, 64, 65, 524288); srd(a, 68, 16, 17, 524288)
        a('s_mov_b32 s7, 1'); gen_conv.gen_spare(a, cfg)
    else:
        a('s_cmp_lt_u32 s3, 255'); a('s_cbranch_scc1 L_k2_wvo'); a('s_endpgm'); a.label('L_k2_wvo')
        srd(a, 12, 16, 17, 524288)
        if cfg.get('no_wvo'): a('s_endpgm')
        a('s_mov_b32 s7, 1'); gen_conv.gen_wvo(a, cfg)
    a.label('L_k2_conv')
    srd(a, 12, 6, 7, 5120); a('s_mov_b32 s7, 1'); srd(a, 16, 18, 19, 8192000)
    if cfg.get('no_conv'): a('s_endpgm')
    gen_conv.Conv(a, cfg).gen()
    a.label('L_k2_fin')
    if cfg.get('stamp'): a('s_mov_b32 s2, s3'); stamp_end(a, cfg['stamp'], 20)
    a('s_endpgm')
    a.label('L_k2_attn')
    if cfg.get('no_attn'): a('s_endpgm')
    srd(a, 12, 18, 19, 8192000); srd(a, 16, 46, 47, 8192000)
    a('s_mov_b32 s7, 1'); gen_attn3.Attn(a, cfg).gen_body()
K2_LAUNCH = 'grid=(256,1,1) block=(256,1,1) lds=163840'
def k2_desc(a, name='main_kernel'): kernel_desc(a, name, 512, 256, 102)

def gen_one(a, cfg):
    gen_head.entry(a, cfg)
    st = {}; ta = Trace(st); tc = Trace(st); TS = cfg.get('ts', 0)
    for t, tag in ((ta, lambda f: ('A', f)), (tc, lambda f: ('A', 0, f))):
        ha, xl = gen_head.head_a(cfg); t.run('ha', ha)
        if TS and t is tc: t.run('hc', gen_head.head_c(cfg, xl, tag))
        else: t.run('hb', gen_head.head_b(cfg, xl, tag))
    ta.emit(a, 'ha')
    DMH = cfg.get('dmh', 0)
    if TS: a('s_cmp_lt_u32 s3, 200'); a('s_cbranch_scc0 L_k2_side')
    elif not DMH: a('s_cmp_lt_u32 s3, 253'); a('s_cbranch_scc0 L_k2_spare')
    ta.emit(a, 'hb')
    ta.static = {}; tc.static = {}
    if not TS: a('s_cmp_lt_u32 s3, 200'); a('s_cbranch_scc0 L_k2_conv')
    srd(a, 16, 54, 55, 8192000)
    A = gen_attn3.Attn(a, cfg); A.tr0 = ta; A.gen_body()
    gen_head.spin0(a, 'L_spin0', 'L_ok0')
    a.label('L_k2_fin')
    if cfg.get('stamp'): a('s_mov_b32 s2, s3'); stamp_end(a, cfg['stamp'], 20)
    a('s_endpgm')
    if TS:
        gen_head.spin0(a, 'L_spin2', 'L_ok2', 11)
        a.label('L_k2_side'); Trace(st).emit(a, 'hc')
    a.label('L_k2_conv')
    if DMH or TS: a('s_cmp_lt_u32 s3, 253'); a('s_cbranch_scc0 L_k2_spare')
    srd(a, 12, 48, 49, 5120); srd(a, 16, 36, 37, 8192000)
    C = (gen_conv2 if cfg.get('cv2', 1) else gen_conv).Conv(a, cfg); C.tr0 = tc; C.gen()
    a.label('L_k2_spare')
    if DMH:
        a('s_lshl_b32 s30, s3, 7'); a('s_add_u32 s30, s30, 0x%x', WS_FLG + 128*FLG_X); a('s_cmp_eq_u32 s20, 0'); a('s_cselect_b32 s30, s30, 0x%x', WS_SIZE)
    a('s_waitcnt vmcnt(0) lgkmcnt(0)'); a('s_barrier')
    if not TS: a(gen_head.FLAG0)
    if cfg.get('tl', 0):
        assert not DMH
        for x in gen_head.t_reads(): a(x.text)
        a('s_waitcnt lgkmcnt(0)')
        for x in gen_head.t_stores(): a(x.text)
        a('s_waitcnt vmcnt(0)'); a('s_barrier'); a(gen_head.FLAG1)
    def token_update():
        if not DMH:
            gen_head.spin0(a, 'L_spin1', 'L_ok1'); a.label('L_ok1')
            a('s_barrier')
        a('s_mov_b32 s21, 0x%x', WS_SIZE); a('s_cmp_eq_u32 s3, 253'); a('s_cselect_b32 s21, 0x%x, s21', WS_FLG + 128*FLG_E)
        a('buffer_store_dword v21, v20, s[8:11], s21 offen sc1')
    if cfg.get('sp2', 0): gen_spare.gen_spare(a, cfg, token_update)
    else:
        srd(a, 60, 50, 51, 524288); srd(a, 64, 44, 45, 524288); srd(a, 68, 42, 43, 524288)
        token_update()
        gen_conv.gen_spare(a, cfg)
    a.label('L_code_end'); a('s_endpgm')
```

```python
import sys, gen_all
HDR = open('standalone__conformer_family_branchformer__speech.s.ref').read().split('; Override launch')[0]
DOC = """; ---------------------------------------------------------------------------------------------
; ---------------------------------------------------------------------------------------------
"""
def mk(fn, **cfg):
    gen_all.gen('tmp_final.s', stamp=False, **cfg)
    s = open('tmp_final.s').read()
    if cfg.get('one', 1) and not cfg.get('aslist'):
        s = s.replace('; @launch kernel=main_kernel ', '; @launch ').replace('main_kernel', 'standalone__conformer_family_branchformer__speech_kernel')
    s = s.replace('.text\n', DOC + '.text\n', 1)
    open(fn, 'w').write(HDR + s)
if __name__ == '__main__':
    cfg = eval(sys.argv[2]) if len(sys.argv) > 2 else {}
    mk(sys.argv[1] if len(sys.argv) > 1 else 'standalone__conformer_family_branchformer__speech.s', **cfg)
```

```python
from asmlib import *
from layout import *
from gen_k0 import srd, h_frag_addr
from gen_ln import *

S_WS=8
S_W=20; S_J=21; S_B=23; S_SP=24; S_QT=25; S_N=26; S_T=27
S_SRC=28; S_DST=29; S_END=30; S_SRCV=31
S_T0=34; S_T1=35; S_T2=36; S_T3=37; S_RET=38; S_RB=39; S_THR=41; S_NV=42
S_WP=48; S_FO=52; S_PP=53; S_PS=54; S_BS=55; S_OP=56; S_SPIN=57; S_LP=58; S_MK=59; S_SAME=43; S_PP2=45; S_WB=46; S_NR=47
L_X2=151552; L_PAR=81920
L_ST=65536; L_P=131072; L_X=147456; L_FLAG=159744
MF='v_mfma_f32_16x16x32_bf16'

class Attn:
    def __init__(self, a, cfg):
        self.a = a; self.cfg = cfg
        self.NQ = NQ = cfg['NQ']; self.NS = cfg['NS']
        self.vb = 256 - max(0, 64*NQ - 256)
        self.n = 16*NQ; self.SN = cfg.get('snake', 1); self.S2 = cfg.get('s2', 1); self.PV2 = cfg.get('pv2', 1); self.CH = cfg.get('ch', 2)
        self.EA = cfg.get('ea', 0) if (cfg.get('hyb', 1) and not cfg.get('two', 0)) else 0
        self.WL = cfg.get('wl', 1) and cfg.get('hyb', 1) and cfg.get('one', 1)
        self.TWP = 0 if self.WL else cfg.get('twp', 10 if (cfg.get('hyb', 1) and cfg.get('two', 0)) else 6)
        self.V_L16=1; self.V_A=2; self.V_PA=3; self.V_XA=4; self.V_F=5; self.V_FA=6; self.V_T=7
        r = 8
        self.V_E=r; r+=8
        self.V_PK=r; r+=4
        self.V_NEGM=r; r+=4*NQ
        self.V_S=r; r+=8*NQ
        self.RQ = cfg['ringq']; self.V_RQ=r; r+=4*self.RQ
        self.V_L=r; r+=NQ
        self.V_TS=r; r+=NQ
        self.V_PF=r; r+=2
        self.W2 = cfg.get('w2', 1); self.PL = self.W2 and cfg.get('pl', 1)
        self.V_EE=r; r+=4*NQ
        self.V_P2=r; r+=2*NQ
        assert r <= self.vb, r
        self.V_A2 = 8; self.V_PX = 10; self.NFV = 28
        r = 8*(8*NQ - self.NFV)
        self.RP = cfg['ringp']; self.A_RP = r; r += 4*self.RP
        self.A_PP = r; r += 8*NQ
        assert r <= 256
    def pos(self, g, ch=2):
        NQ = self.NQ; G = g//(ch*NQ); w = g % (ch*NQ); qb = w//ch
        kk = ch*G + ((w % ch) ^ ((ch-1)*(qb & self.SN)))
        if self.S2 and not G & 1: qb = NQ-1-qb
        return qb, kk
    def O(self, f, off=0, n=1):
        return vr(32+8*f+off, n) if f < self.NFV else ar(8*(f-self.NFV)+off, n)
    def R(self, i, n=1):
        return ar(i, n) if i < 256 else vr(self.vb + i - 256, n)
    def dma(self, d0, cnt):
        pol = self.cfg.get('kpol', ' sc1') if cnt < 16 else ' sc1'
        g = []
        for x in range(cnt):
            d = d0 + x; pre = []
            if d % 4 == 0 or x == 0:
                pre = ['s_add_u32 m0, s%d, %d' % (S_DST, (d//4)*4096), 's_add_u32 s%d, s%d, %d' % (S_T0, S_SRC if self.WL else S_SRCV, (d//4)*4096)]
            g.append((pre, 'buffer_load_dwordx4 v%d, s[%d:%d], s%d offen offset:%d%s lds' % (self.V_L16, S_WS, S_WS+3, S_T0, (d%4)*1024, pol)))
        return g
    def dma_adv(self):
        return [['s_add_u32 s%d, s%d, 32768' % (S_SRC, S_SRC), 's_add_u32 s%d, s%d, 32768' % (S_DST, S_DST)],
                ['s_and_b32 s%d, s%d, 0x1ffff' % (S_DST, S_DST)],
                ['s_cmp_eq_u32 s%d, s%d' % (S_SRC, S_END), 's_cselect_b32 s%d, s%d, s%d' % (S_SRC, S_WB, S_SRC)] if self.WL else
                ['s_cmp_lt_u32 s%d, s%d' % (S_SRC, S_END), 's_cselect_b32 s%d, s%d, 0x%x' % (S_SRCV, S_SRC, WS_SIZE)]]
    def place_dma(self, G, d0, cnt, g0, g1, pf=False, pfp=None):
        if cnt == 0: return []
        prev = None; lst = self.dma(d0, cnt)
        for i, (pre, ins) in enumerate(lst):
            lo = g0 + (i*(g1-g0))//cnt
            if pre:
                t1 = G.asap(Task('S', pre[0], [(prev,1)] if prev else [], lo=max(g0, lo-2) if prev is None else g0))
                t2 = G.asap(Task('S', pre[1], [(t1,0)]))
                prev = t2
            prev = G.asap(Task('D', ins, [(prev,1)], lo=lo))
            if i == pfp: prev = G.asap(Task('D', 'buffer_load_dword v23, v22, s[%d:%d], s%d offen' % (S_WS, S_WS+3, S_SRC if self.WL else S_SRCV), [(prev,1)]))
        if pf: prev = G.asap(Task('D', 'buffer_load_dword v%d, v%d, s[%d:%d], s%d offen' % (self.V_PF+1, self.V_PF, S_WS, S_WS+3, S_SRCV), [(prev,1)]))
        self.last_dma = prev.gap
        adv = self.dma_adv()
        for x in adv[0] + adv[1]: prev = G.asap(Task('S', x, [(prev, 1 if prev.kind == 'D' else 0)]))
        return [(G.asap(Task('SS', adv[2], [(prev,1)])), 1)]
    def place_dma_at(self, G, d0, gaps, s0):
        lst = self.dma(d0, len(gaps)); ds = [G.put(Task('D', ins), g) for (pre, ins), g in zip(lst, gaps)]
        def scal():
            for i, (pre, ins) in enumerate(lst):
                for x in pre:
                    t = G.asap(Task('S', x, lo=gaps[i-1]+1 if i else s0)); assert t.gap < gaps[i], (t.gap, gaps[i])
            prev = ds[-1]; adv = self.dma_adv()
            for x in adv[0] + adv[1]: prev = G.asap(Task('S', x, [(prev, 1 if prev.kind == 'D' else 0)]))
            return [(G.asap(Task('SS', adv[2], [(prev,1)])), 1)]
        return scal
    def kread(self, kk, par):
        return Op('ds_read_b128 %s, v%d offset:%d' % (vr(self.V_RQ+4*(kk % self.RQ),4), self.V_A, par*32768 + kk*1024), prod=('K', par, kk))
    def qk_mfma(self, g, par, first=False):
        NQ = self.NQ
        ch = self.CH; G = g//(ch*NQ); w = g % (ch*NQ); qb, kk = self.pos(g, ch)
        D = vr(self.V_S + 4*NQ*par + 4*qb, 4)
        C = D if (G or w % ch) else ('0' if first else vr(self.V_NEGM+4*qb,4))
        need = [('K', par, kk)] if w < ch else []
        return Op('%s %s, %s, %s, %s' % (MF, D, vr(self.V_RQ+4*(kk % self.RQ),4), self.R(4*(kk*NQ+qb),4), C), need=need)
    def softmax_groups(self, sp):
        NQ = self.NQ; E = self.V_E; out = []
        if self.W2:
            for qb in range(NQ):
                S = self.V_S + 4*NQ*sp + 4*qb; E = self.V_EE + 4*qb; PK = self.V_P2 + 2*qb
                out += [['v_exp_f32 v%d, v%d' % (E+r, S+r)] for r in range(4)]
                out.append(['v_cvt_pk_bf16_f32 v%d, v%d, v%d' % (PK+h, E+2*h, E+2*h+1) for h in range(2)])
                out.append([self.pwrite(sp, qb, h) for h in range(2)])
            return out
        for qb in range(NQ):
            S = self.V_S + 4*NQ*sp + 4*qb; PK = self.V_PK + 2*(qb & 1); TS = self.V_TS+qb
            for r in range(4): out.append(['v_exp_f32 v%d, v%d' % (E+r, S+r)])
            out.append(['v_add_f32 v%d, v%d, v%d' % (TS, E, E+1), 'v_cvt_pk_bf16_f32 v%d, v%d, v%d' % (PK, E, E+1)])
            out.append(['v_add_f32 v%d, v%d, v%d' % (self.V_T, E+2, E+3), 'v_cvt_pk_bf16_f32 v%d, v%d, v%d' % (PK+1, E+2, E+3)])
            out.append(['v_add_f32 v%d, v%d, v%d' % (TS, TS, self.V_T),
                        Op('ds_write_b64 v%d, %s offset:%d' % (self.V_PA, vr(PK,2), (sp*NQ+qb)*1024), prod=('PW', sp, qb))])
        return out
    def pwrite(self, sp, qb, h):
        return Op('ds_write_b32 v%d, v%d offset:%d' % (self.V_PA, self.V_P2+2*qb+h, (sp*self.NQ+qb)*1024 + (256 if self.PL else 4)*h), prod=('PW' if h else 'PW0', sp, qb))
    def ladds(self, qb):
        M = self.V_L+qb
        if self.W2: return ['v_add_f32 v%d, v%d, v%d' % (M, M, self.V_EE+4*qb+r) for r in range(4)]
        return ['v_add_f32 v%d, v%d, v%d' % (M, M, self.V_TS+qb)]
    def check_groups(self, tag):
        NQ = self.NQ; TS = self.V_TS; T = self.V_T
        if self.W2:
            P = self.V_P2
            m = ['v_or3_b32 v%d, v%d, v%d, v%d' % (T, P, P+1, P+2)] + ['v_or3_b32 v%d, v%d, v%d, v%d' % (T, T, P+i, P+i+1) for i in (3, 5, 7)]
            m += ['v_bitop3_b32 v%d, v%d, v%d, s%d bitop3:0xa8' % (T, T, P+9, S_THR), 'v_cmp_ne_u32 vcc, 0, v%d' % T]
            return [m[i:i+2] for i in range(0, 6, 2)] + [['s_cbranch_vccnz L_setflag%s' % tag, 'L_flagset%s:' % tag]]
        m = ['v_max3_f32 v%d, v%d, v%d, v%d' % (T, TS, TS+1, TS+2)]
        i = 3
        while i < NQ:
            if i+1 < NQ: m.append('v_max3_f32 v%d, v%d, v%d, v%d' % (T, T, TS+i, TS+i+1)); i += 2
            else: m.append('v_max_f32 v%d, v%d, v%d' % (T, T, TS+i)); i += 1
        m.append('v_cmp_lt_f32 vcc, s%d, v%d' % (S_THR, T))
        out = [m[i:i+2] for i in range(0, len(m), 2)]
        out.append(['s_cbranch_vccnz L_setflag%s' % tag, 'L_flagset%s:' % tag])
        return out
    def flag_read(self, par): return Op('ds_read_b32 v%d, v%d' % (self.V_F, self.V_FA), prod=('F', par))
    def softmax_tasks(self, sp):
        NQ = self.NQ; cfg = self.cfg; tasks = []; hist = []
        for qb in range(NQ):
            E = self.V_E + 4*(qb & 1)
            S = self.V_S + 4*NQ*sp + 4*qb; PK = self.V_PK + 2*(qb & 1); TS = self.V_TS+qb
            old = hist[qb-2] if qb >= 2 else None
            e = []
            for r in range(4):
                dep = [(e[-1],1)] if e else ([(hist[-1]['e'],1)] if hist else [])
                if old: dep += [(old['a01' if r < 2 else 'af'],1), (old['c01' if r < 2 else 'c23'],1)]
                e.append(Task('E', 'v_exp_f32 v%d, v%d' % (E+r, S+r), dep))
            a01 = Task('V', 'v_add_f32 v%d, v%d, v%d' % (TS, E, E+1), [(e[1],1)])
            c01 = Task('V', 'v_cvt_pk_bf16_f32 v%d, v%d, v%d' % (PK, E, E+1), [(e[1],1)] + ([(old['w'],1)] if old else []))
            a2 = Task('V', 'v_add_f32 v%d, v%d, v%d' % (TS, TS, E+2), [(e[2],1),(a01,0)])
            c23 = Task('V', 'v_cvt_pk_bf16_f32 v%d, v%d, v%d' % (PK+1, E+2, E+3), [(e[3],1)] + ([(old['w'],1)] if old else []))
            af = Task('V', 'v_add_f32 v%d, v%d, v%d' % (TS, TS, E+3), [(e[3],1),(a2,0)])
            off = (sp*NQ+qb)*1024
            if cfg.get('w32', 1):
                w0 = Task('W', Op('ds_write_b32 v%d, v%d offset:%d' % (self.V_PA, PK, off), prod=('PW0', sp, qb)), [(c01,1)] + ([(hist[-1]['w'],1)] if hist else []))
                w = Task('W', Op('ds_write_b32 v%d, v%d offset:%d' % (self.V_PA, PK+1, off+4), prod=('PW', sp, qb)), [(c23,1),(w0,1)])
                ws = [w0, w]
            else:
                w = Task('W', Op(('ds_write_b32 v%d, v%d offset:%d' % (self.V_PA, PK + (qb & 1), off + 4*(qb & 1))) if cfg.get('xp_w1') else 'ds_write_b64 v%d, %s offset:%d' % (self.V_PA, vr(PK,2), off), prod=('PW', sp, qb)), [(c01,1),(c23,1)] + ([(hist[-1]['w'],1)] if hist else []))
                ws = [w]
            hist.append(dict(e=e[3], a01=a01, c01=c01, c23=c23, af=af, w=w))
            tasks.append((e, [a01, c01, a2, c23, af], ws))
        return tasks, hist
    def qk_body(self, par, first=False):
        NQ = self.NQ; n = self.n; cfg = self.cfg
        G = Gaps(n)
        LA = min(self.RQ//2 - 1, cfg['laq'])
        C4 = self.CH == 4
        if C4:
            kp = cfg.get('k4', [[4, 5, 12, 13], [20, 21, 28, 29], [47, 48, 49, 50], [60, 61, 68, 69]])
            for gi in range(4):
                G2 = (gi+1) % 4; p2 = par ^ (gi == 3)
                if gi == 3 and par == 1: G.put(Task('V', 'v_xor_b32 v%d, 0x10000, v%d' % (self.V_A, self.V_A)), 59)
                for h in range(4): G.put(Task('R', self.kread(4*G2+h, p2)), kp[gi][h])
                if not (first and gi == 3): G.put(Task('S', Op(None, need=[('K', p2, 4*G2+3)])), 20*gi+19)
        for gi in range(0 if C4 else 8):
            G2 = gi + LA; p2 = par; pos = 2*NQ*gi
            if G2 >= 8: G2 -= 8; p2 = par ^ 1
            if G2 == 0 and par == 1: G.put(Task('V', 'v_xor_b32 v%d, 0x10000, v%d' % (self.V_A, self.V_A)), pos-1)
            G.put(Task('R', self.kread(2*G2, p2)), pos); G.put(Task('R', self.kread(2*G2+1, p2)), pos+cfg.get('kd',1))
            g1 = (gi+1) % 8
            if not (first and gi == 7):
                G.put(Task('S', Op(None, need=[('K', par if gi < 7 else par^1, 2*g1+1)])), pos+2*NQ-1)
        if not first:
            if self.W2:
                sp = par ^ 1; ee = []; cv = []; ww = []
                for i in range(4*NQ): ee.append(Task('E', 'v_exp_f32 v%d, v%d' % (self.V_EE+i, self.V_S+4*NQ*sp+i), [(ee[-1],1)] if ee else []))
                for i in range(2*NQ):
                    cv.append(Task('V', 'v_cvt_pk_bf16_f32 v%d, v%d, v%d' % (self.V_P2+i, self.V_EE+2*i, self.V_EE+2*i+1), [(ee[2*i+1],1)]))
                    ww.append(Task('W', self.pwrite(sp, i//2, i & 1), [(cv[i],1)] + ([(ww[-1],1)] if ww else [])))
                ck = self.check_groups(str(par)); flat = [x for it in ck[:-1] for x in it]; cks = []
                for i, x in enumerate(flat): cks.append(Task('V', x, [(cv[j],0) for j in range(min(2*NQ, 3+2*i))] + ([(cks[-1],0)] if cks else [])))
                br = Task('B', ck[-1], [(cks[-1], 2)])
                plan = cfg.get('w2p', 'EEEEccEWEWEEccEWEWEEccEWEWEEccEWEWEECWOOOW' if C4 else '..EEEEEEEEccEWEWECEEccEWEWEWEEccEEWWWCWOooOW')
                q = {'E': list(ee), 'c': list(cv), 'W': list(ww), 'o': list(cks)}
                for g, ch in enumerate(plan):
                    for k in {'.': '', 'C': 'cc', 'O': 'oo'}.get(ch, ch):
                        t = q[k].pop(0)
                        assert all(d.gap is not None and d.gap + dist <= g for d, dist in t.deps), (g, t.ops)
                        G.put(t, g)
                assert not any(q.values()), {k: len(v) for k, v in q.items()}
                G.asap(br); hist = [dict(w=ww[-1])]
            else:
                tk, hist = self.softmax_tasks(par ^ 1)
                order = []
                for q in range(NQ):
                    order += tk[q][0][:2]
                    if q: order += tk[q-1][1][2:] + tk[q-1][2][-1:]
                    order += tk[q][0][2:] + tk[q][1][:2] + tk[q][2][:-1]
                order += tk[NQ-1][1][2:] + tk[NQ-1][2][-1:]
                ck = self.check_groups(str(par))
                flat = [x for it in ck[:-1] for x in it]
                prev = None; cks = []
                for i, x in enumerate(flat):
                    dep = [(hist[q]['af'],0) for q in range(min(NQ-1, 2+2*i)+1)] + ([(prev,0)] if prev else [])
                    prev = Task('V', x, dep); cks.append(prev)
                br = Task('B', ck[-1][1:] if cfg.get('xp_nb') else ck[-1], [(prev, 2)])
                G.listsched(order[:-1] + cks + order[-1:] + [br])
            bar = G.asap(Task('X', [Op(None, need=[('PW', par^1, NQ-1)], extra=('vmcnt(1)' if (cfg.get('kpf', 0) and not cfg.get('kpp', 1)) else 'vmcnt(0)') if cfg['dq'] else ''), 's_barrier'], [(br,1),(hist[-1]['w'], cfg['bq'])]))
            assert bar.gap < (kp[2][0] if C4 else 2*NQ*(8-LA-(cfg['dv']+1)//2)) and cfg['dv'] <= 4, (bar.gap, LA)
            if 'qd' in cfg:
                assert len(cfg['qd']) == cfg['dq'] and cfg['qd'][0] > bar.gap; scal = self.place_dma_at(G, 0, cfg['qd'], bar.gap-2)
            fr = G.asap(Task('R', self.flag_read(par), [(bar,1)]))
            fw = G.asap(Task('SV', [Op(None, need=[('F', par)]), 'v_cmp_eq_u32 vcc, s%d, v%d' % (S_T, self.V_F)], [(fr, cfg['fq'])]))
            b2 = G.asap(Task('B', ['s_cbranch_vccnz L_qrec%d' % par, 'L_qback%d:' % par][1 if cfg.get('xp_nb') else 0:], [(fw,2)]))
            if not self.W2:
                for q in range(NQ): G.asap(Task('V', 'v_add_f32 v%d, v%d, v%d' % (self.V_L+q, self.V_L+q, self.V_TS+q), [(b2,1)]))
            if cfg.get('wpl', 1) and (par or not self.WL): G.asap(Task('D', 'buffer_load_dword v%d, v%d, s[%d:%d], 0 offen sc1' % (self.V_PF+1, self.V_PF, S_WS, S_WS+3), [(b2, cfg.get('wpd', 14))]))
            dd = scal() if 'qd' in cfg else self.place_dma(G, 0, cfg['dq'], bar.gap+1, n-cfg['dqe'], cfg.get('kpf', 0) and not cfg.get('kpp', 1))
            inc = G.asap(Task('SS', ['s_add_u32 s%d, s%d, 1' % (S_T, S_T), ('s_cmp_eq_u32 s%d, s%d' if par else 's_cmp_lg_u32 s%d, s%d') % (S_T, S_N)], [(b2,1)]+dd, lo=n-3))
            if self.W2:
                ad = [self.ladds(q) for q in range(NQ)]; prev = b2
                for r in range(4):
                    for q in range(NQ): prev = G.asap(Task('V', ad[q][r], [(prev, 1 if prev is b2 else 0)]))
            if cfg.get('show'): print('QK', par, G.show())
        ops = []
        for g in range(n):
            ops.append(self.qk_mfma(g, par, first)); ops += G.ops(g)
        return ops
    def rowmax_exchange(self, sp):
        a = self.a; NQ = self.NQ; T = self.V_T
        for qb in range(NQ):
            S = self.V_S + 4*NQ*sp + 4*qb; M = self.V_TS+qb
            a('v_max3_f32 v%d, v%d, v%d, v%d', M, S, S+1, S+2); a('v_max_f32 v%d, v%d, v%d', M, M, S+3)
            for ins in ['v_permlane16_swap_b32', 'v_permlane32_swap_b32']:
                a('v_mov_b32 v%d, v%d', T, M); a('s_nop 1'); a('%s v%d, v%d', ins, T, M); a('v_max_f32 v%d, v%d, v%d', M, M, T)
            if self.W2: a('v_add_f32 v%d, 0x%x, v%d', M, f2u(float(self.cfg.get('thr', 40))), M)
            a('ds_write_b32 v%d, v%d offset:%d', self.V_XA, M, qb*512)
    def read_x(self, dst):
        a = self.a
        a('v_and_b32 v%d, 0xfffffffb, v%d', self.V_T, self.V_XA)
        for qb in range(self.NQ): a('ds_read_b64 %s, v%d offset:%d', vr(dst+2*qb,2), self.V_T, qb*512)
        a('s_waitcnt lgkmcnt(0)')
    def emit_flat(self, groups):
        for it in groups:
            for o in oplist(it): self.a(o.text)
            if it and not isinstance(it[0], Op) and it[0].startswith('v_exp'): pass
    def qk_path(self):
        a = self.a; NQ = self.NQ; cfg = self.cfg; T = self.V_T
        h_frag_addr(a, self.V_A, T)
        a('s_lshl_b32 s%d, s%d, 14', S_T2, S_J); a('v_add_u32 v%d, s%d, v%d', self.V_A, S_T2, self.V_A)
        QA = self.V_E
        a('v_add_u32 v%d, %d, v%d', QA, L_ST, self.V_L16); a('v_add_u32 v%d, %d, v%d', QA+1, L_ST+65536, self.V_L16)
        LA = min(self.RQ//2 - 1, cfg['laq'])
        def qread(g):
            qb, kk = self.pos(g, self.CH); off = qb*16384 + kk*1024
            return Op('ds_read_b128 %s, v%d offset:%d' % (self.R(4*(kk*NQ+qb),4), QA + off//65536, off % 65536), prod=('Q', g))
        PRE = 10
        ops = [self.kread(kk, 0) for kk in range(4 if self.CH == 4 else 2*LA)] + [qread(g) for g in range(PRE)]
        ops += ['s_lshl_b32 s%d, s%d, %d' % (S_T2, S_J, 9 if self.PL else 3), 's_add_u32 s%d, s%d, %d' % (S_T2, S_T2, L_P), 'v_lshl_add_u32 v%d, v0, %d, s%d' % (self.V_PA, 2 if self.PL else 4, S_T2)]
        ops += ['v_mov_b32 v%d, 0' % (self.V_L+q) for q in range(NQ)]
        ops += ['s_and_b32 s%d, s%d, 7' % (S_T2, S_QT), 's_lshl_b32 s%d, s%d, 11' % (S_T2, S_T2), 's_add_u32 s%d, s%d, %d' % (S_T2, S_T2, 32768*cfg.get('kpf', 0)), 'v_lshl_add_u32 v%d, v0, 5, s%d' % (self.V_PF, S_T2)]
        if cfg.get('wpl', 1):
            assert cfg.get('kpp', 1)
            ops += ['v_lshrrev_b32 v%d, 4, v0' % self.V_PF, 'v_min_u32 v%d, 2, v%d' % (self.V_PF, self.V_PF), 'v_lshlrev_b32 v%d, 7, v%d' % (self.V_PF, self.V_PF), 'v_add_u32 v%d, 0x%x, v%d' % (self.V_PF, WS_FLG + 128*FLG_W, self.V_PF)]
        g = 0; late = []
        for o in self.qk_body(0, first=True):
            if self.T1L and o.prod and o.prod[0] == 'K' and o.prod[1] == 1: late.append(o)
            elif o.text and o.text.startswith(MF):
                if g % 2 == 0: o.need = o.need + [('Q', g+1)]
                ops.append(o)
                if g + PRE < self.n: ops.append(qread(g+PRE))
                g += 1
            else: ops.append(o)
        resolve(a, oplist(ops), [])
        if cfg.get('stamp') and cfg.get('sthead') == 1: stamp_mid(a, 8)
        M = self.V_TS; X = self.V_S + 4*NQ
        a('v_and_b32 v%d, 0xfffffffb, v%d', T, self.V_XA)
        for qb in range(NQ):
            S = self.V_S + 4*qb
            a('v_max3_f32 v%d, v%d, v%d, v%d', M+qb, S, S+1, S+2); a('v_max_f32 v%d, v%d, v%d', M+qb, M+qb, S+3); a('v_mov_b32 v%d, v%d', X+qb, M+qb)
        for qb in range(NQ): a('v_permlane16_swap_b32 v%d, v%d', X+qb, M+qb)
        for qb in range(NQ): a('v_max_f32 v%d, v%d, v%d', M+qb, M+qb, X+qb); a('v_mov_b32 v%d, v%d', X+qb, M+qb)
        for qb in range(NQ): a('v_permlane32_swap_b32 v%d, v%d', X+qb, M+qb)
        for qb in range(NQ): a('v_max_f32 v%d, v%d, v%d', M+qb, M+qb, X+qb)
        for qb in range(NQ if self.W2 else 0): a('v_add_f32 v%d, 0x%x, v%d', M+qb, f2u(float(cfg.get('thr', 40))), M+qb)
        for qb in range(NQ): a('ds_write_b32 v%d, v%d offset:%d', self.V_XA, M+qb, qb*512)
        a('s_waitcnt lgkmcnt(0)'); a('s_barrier')
        for qb in range(NQ): a('ds_read_b64 %s, v%d offset:%d', vr(X+2*qb,2), T, qb*512)
        for o in late: a(o.text)
        for qb in range(NQ):
            N_ = self.V_NEGM+4*qb; S = self.V_S+4*qb
            a('s_waitcnt lgkmcnt(%d)', NQ-1-qb+len(late))
            a('v_min_f32 v%d, -v%d, -v%d', N_, X+2*qb, X+2*qb+1); a('v_mov_b32 v%d, v%d', N_+1, N_)
            a('v_pk_mov_b32 %s, %s, %s', vr(N_+2,2), vr(N_,2), vr(N_,2))
            for r in (0, 2): a('v_pk_add_f32 %s, %s, %s', vr(S+r,2), vr(S+r,2), vr(N_,2))
        a('s_waitcnt lgkmcnt(0)')
        if cfg.get('stamp'): stamp_mid(a, 9)
        a('s_mov_b32 s%d, 1', S_T)
        if self.WL: a('s_mov_b32 s%d, s%d', S_NR, S_N); a('s_mov_b32 s%d, %d', S_N, cfg.get('wlt', 57))
        b0 = self.qk_body(0); b1 = self.qk_body(1)
        a('.p2align 6') if cfg.get('align',1) else None
        for i in range(cfg.get('qsh', 0)): a('s_nop 0')
        a.label('L_qloop')
        resolve(a, b1, b0)
        a('s_cbranch_scc1 L_qfin0')
        resolve(a, b0, b1)
        a('s_cbranch_scc1 L_qloop')
        for par in (1, 0):
            a.label('L_qfin%d' % par)
            if self.WL and par == 1: a('s_cmp_lg_u32 s%d, s%d', S_T, S_NR); a('s_cbranch_scc1 L_qmid')
            a('s_nop 3')
            for it in self.softmax_groups(par ^ 1) + self.check_groups('f%d' % par):
                for o in oplist(it): a(o.text)
            a('s_waitcnt vmcnt(0) lgkmcnt(0)'); a('s_barrier')
            a(self.flag_read(par).text); a('s_waitcnt lgkmcnt(0)')
            a('v_cmp_eq_u32 vcc, s%d, v%d', S_T, self.V_F)
            a('s_cbranch_vccnz L_qrecf%d', par); a.label('L_qbackf%d' % par)
            if par == 1: a('s_branch L_qend')
        a.label('L_qend')
        if cfg.get('fuse3', 1): self.qk_tail()
        else: self.qk_tail_old()
        for tag in ['0', '1', 'f0', 'f1']:
            a.label('L_setflag%s' % tag)
            a('v_mov_b32 v%d, s%d', T, S_T); a('ds_write_b32 v%d, v%d', self.V_FA, T); a('s_waitcnt lgkmcnt(0)')
            a('s_branch L_flagset%s', tag)
        for par in (0, 1):
            sp = par ^ 1
            a.label('L_qrecf%d' % par); a('s_mov_b32 s%d, 1', S_RET); a('s_branch L_qrecx%d', par)
            a.label('L_qrec%d' % par); a('s_mov_b32 s%d, 0', S_RET)
            a.label('L_qrecx%d' % par)
            a('s_nop 15')
            self.rowmax_exchange(sp)
            a('s_waitcnt lgkmcnt(0)'); a('s_barrier')
            a('v_and_b32 v%d, 0xfffffffb, v%d', self.V_F, self.V_XA)
            for qb in range(NQ):
                E = self.V_E
                a('ds_read_b64 %s, v%d offset:%d', vr(E,2), self.V_F, qb*512); a('s_waitcnt lgkmcnt(0)')
                a('v_max3_f32 v%d, v%d, v%d, 0', T, E, E+1)
                a('v_sub_f32 v%d, 0, v%d', E, T); a('v_exp_f32 v%d, v%d', E, E)
                for r in range(4):
                    for base in (self.V_S, self.V_S+4*NQ, self.V_NEGM):
                        a('v_sub_f32 v%d, v%d, v%d', base+4*qb+r, base+4*qb+r, T)
                a('v_mul_f32 v%d, v%d, v%d', self.V_L+qb, self.V_L+qb, E)
            for it in self.softmax_groups(sp):
                for o in oplist(it): a(o.text)
            a('s_waitcnt lgkmcnt(0)'); a('s_barrier')
            a('s_cmp_eq_u32 s%d, 0', S_RET); a('s_cbranch_scc1 L_qback%d', par); a('s_branch L_qbackf%d', par)
    def pv_tail_old(self):
        a = self.a; NQ = self.NQ; cfg = self.cfg; T = self.V_T
        a('s_mul_i32 s%d, s%d, 500', S_T0, S_SP); a('s_add_u32 s%d, s%d, s%d', S_T0, S_T0, S_RB)
        a('s_lshl_b32 s%d, s%d, 14', S_T0, S_T0); a('s_lshl_b32 s%d, s%d, 13', S_T1, S_J)
        a('s_add_u32 s%d, s%d, s%d', S_T0, S_T0, S_T1); a('s_add_u32 s%d, s%d, %d', S_T0, S_T0, WS_PART)
        RBK = cfg.get('rb2', 0)
        if RBK: a('v_lshlrev_b32 v%d, 7, v0', self.V_F); a('s_mov_b32 s%d, s%d', S_T2, S_T0)
        for f in range(8*NQ):
            qb, k2 = f//8, f % 8
            if f < self.NFV: b = 32+8*f
            else:
                b = 12 + 8*(f & 1)
                for r in range(8): a('v_accvgpr_read_b32 v%d, %s', b+r, self.O(f, r))
            for r in range(4): a('v_cvt_pk_bf16_f32 v%d, v%d, v%d', b+r, b+2*r, b+2*r+1)
            if k2 == 4: a('s_add_u32 s%d, s%d, 4096', S_T0, S_T0)
            a('buffer_store_dwordx4 %s, v%d, s[%d:%d], s%d offen offset:%d%s', vr(b,4), self.V_L16, S_WS, S_WS+3, S_T0, (k2%4)*1024, ' sc1' if cfg.get('sc2', 1) else '')
            if k2 == 7: a('s_add_u32 s%d, s%d, %d', S_T0, S_T0, 16384-4096)
        if RBK:
            for qb in range(NQ):
                a('s_waitcnt vmcnt(%d)', 8*(NQ-1-qb) + qb)
                a('buffer_load_dword v%d, v%d, s[%d:%d], s%d offen', T, self.V_F, S_WS, S_WS+3, S_T2); a('s_add_u32 s%d, s%d, 16384', S_T2, S_T2)
        a('s_branch L_k2_fin')
    def qk_tail_old(self):
        a = self.a; NQ = self.NQ; cfg = self.cfg; T = self.V_T
        if cfg.get('pf3', 1):
            F = self.V_F; E = self.V_E
            a('v_lshlrev_b32 v%d, 7, v0', F)
            a('s_lshl_b32 s%d, s%d, 1', S_T0, S_SP); a('s_add_u32 s%d, s%d, s%d', S_T0, S_T0, S_J); a('s_mul_i32 s%d, s%d, 20480', S_T0, S_T0)
            a('s_lshl_b32 s%d, s%d, 14', S_T1, S_RB); a('s_add_u32 s%d, s%d, s%d', S_T0, S_T0, S_T1)
            a('s_lshr_b32 s%d, s2, 3', S_T1); a('s_lshl_b32 s%d, s%d, 1', S_T1, S_T1); a('s_add_u32 s%d, s%d, s%d', S_T1, S_T1, S_J)
            a('s_cmp_lt_u32 s%d, 32', S_T1); a('s_cselect_b32 s%d, s%d, 0x4000', S_T1, S_T1)
            a('s_lshl_b32 s%d, s%d, 14', S_T1, S_T1); a('s_add_u32 s%d, s%d, 0x%x', S_T1, S_T1, WS_WVOF)
            for i in range(2):
                a('buffer_load_dword v%d, v%d, s[%d:%d], s%d offen', E+i, F, S_WS, S_WS+3, S_T1); a('s_add_u32 s%d, s%d, 8192', S_T1, S_T1)
            for i in range(3):
                a('buffer_load_dword v%d, v%d, s[12:15], s%d offen', E+2+i, F, S_T0); a('s_add_u32 s%d, s%d, %d', S_T0, S_T0, 8192 if i == 0 else 4096)
        for qb in range(NQ):
            M = self.V_L+qb
            [a(x) for x in self.ladds(qb)]
            for ins in ['v_permlane16_swap_b32', 'v_permlane32_swap_b32']:
                a('v_mov_b32 v%d, v%d', T, M); a('s_nop 1'); a('%s v%d, v%d', ins, T, M); a('v_add_f32 v%d, v%d, v%d', M, M, T)
            a('ds_write_b32 v%d, v%d offset:%d', self.V_XA, M, qb*512)
        a('s_waitcnt lgkmcnt(0)'); a('s_barrier')
        if cfg.get('stamp'): stamp_mid(a, 10)
        a('s_cmp_lg_u32 s%d, 0', S_J); a('s_cbranch_scc1 L_k2_fin')
        X = self.V_S
        self.read_x(X)
        a('s_mul_i32 s%d, s%d, 500', S_T0, S_SP); a('s_add_u32 s%d, s%d, s%d', S_T0, S_T0, S_RB)
        a('s_lshl_b32 s%d, s%d, 7', S_T0, S_T0); a('s_add_u32 s%d, s%d, %d', S_T0, S_T0, WS_LSE)
        a('v_and_b32 v%d, 15, v0', self.V_F); a('v_lshlrev_b32 v%d, 3, v%d', self.V_F, self.V_F)
        for qb in range(NQ):
            a('v_add_f32 v%d, v%d, v%d', X+2*qb, X+2*qb, X+2*qb+1); a('v_mov_b32 v%d, v%d', X+2*qb+1, self.V_NEGM+4*qb)
            a('buffer_store_dwordx2 %s, v%d, s[%d:%d], s%d offen offset:%d', vr(X+2*qb,2), self.V_F, S_WS, S_WS+3, S_T0, qb*128)
        a('s_branch L_k2_fin')
    T_ST=10; T_CO=20; T_CP=25; T_A0=32; T_A1=112; T_BR=144; T_BF=176; T_R=216; T_PK=232; T_OT=240
    def wreg(self, kk, nb):
        if self.WL: kk = {8: 10, 9: 11, 10: 8, 11: 9}.get(kk, kk)
        return ar((96 + 16*kk + 4*nb) % 256, 4)
    def wload(self, kk):
        if self.WL:
            return ['s_add_u32 s%d, s%d, %d' % (S_WP+1, S_WP, (kk >> 2)*32768 + (kk & 3)*4096)] + \
                   [Op('buffer_load_dwordx4 %s, v%d, s[%d:%d], s%d offen offset:%d sc1' % (self.wreg(kk, nb), self.V_L16, S_WS, S_WS+3, S_WP+1, nb*1024), prod=('W', kk)) for nb in range(4)]
        r = [Op('buffer_load_dwordx4 %s, v%d, s[%d:%d], s%d offen offset:%d sc1' % (self.wreg(kk, nb), self.V_L16, S_WS, S_WS+3, S_WP+nb, (kk%4)*1024), prod=('W', kk)) for nb in range(4)]
        if kk % 4 == 3: r += ['s_add_u32 s%d, s%d, 4096' % (S_WP+nb, S_WP+nb) for nb in range(4)]
        return r
    def tail_sgprs(self):
        a = self.a
        a('s_lshl_b32 s%d, s%d, 2', S_T0, S_SP); a('s_add_u32 s%d, s%d, s%d', S_T0, S_T0, S_W)
        a('s_lshl_b32 s%d, s%d, 16', S_WP, S_T0); a('s_add_u32 s%d, s%d, 0x%x', S_WP, S_WP, WS_WVOF)
        if self.cfg.get('xp_now'): a('s_mov_b32 s%d, 0x%x', S_WP, WS_SIZE)
        if self.WL:
            assert not self.cfg.get('roles', 0)
            a('s_lshr_b32 s%d, s%d, 1', S_WP, S_T0); a('s_lshl_b32 s%d, s%d, 17', S_WP, S_WP); a('s_lshl_b32 s%d, s%d, 14', S_WB, S_J)
            a('s_add_u32 s%d, s%d, s%d', S_END, S_END, S_WB); a('s_add_u32 s%d, s%d, s%d', S_WP, S_WP, S_WB); a('s_add_u32 s%d, s%d, 0x%x', S_WP, S_WP, WS_WVOF)
            a('s_or_b32 s%d, s%d, 0x20000', S_WB, S_WP)
        for i in range(1, 1 if self.WL else 4): a('s_add_u32 s%d, s%d, %d', S_WP+i, S_WP, i*16384)
        a('s_lshl_b32 s%d, s%d, 14', S_T1, S_RB)
        a('s_lshl_b32 s%d, s%d, 7', S_OP, S_T0); a('s_add_u32 s%d, s%d, s%d', S_OP, S_OP, S_T1)
        CV2 = self.cfg.get('one', 1) and self.cfg.get('cv2', 1)
        if CV2: a('s_mul_i32 s%d, s%d, %d', S_T1, S_B, 53*81920)
        a('s_lshl_b32 s%d, s%d, 11', S_BS, S_T0); a('s_add_u32 s%d, s%d, s%d', S_BS, S_BS, S_T1); a('s_add_u32 s%d, s%d, 0x%x', S_BS, S_BS, WS_BASE)
        a('s_xor_b32 s%d, s%d, 1', S_T0, S_SP); a('s_mul_i32 s%d, s%d, 500', S_T0, S_T0); a('s_add_u32 s%d, s%d, s%d', S_T0, S_T0, S_RB)
        a('s_lshl_b32 s%d, s%d, 7', S_PS, S_T0); a('s_add_u32 s%d, s%d, 0x%x', S_PS, S_PS, WS_LSE)
        a('s_lshl_b32 s%d, s%d, 12', S_LP, S_W)
        a('s_lshl_b32 s%d, s%d, 14', S_PP, S_T0); a('s_add_u32 s%d, s%d, 0x%x', S_PP, S_PP, WS_PART); a('s_mov_b32 s%d, s%d', S_PP2, S_PP)
        a('s_lshl_b32 s%d, s3, 1', S_FO); a('s_add_u32 s%d, s%d, s%d', S_FO, S_FO, S_J); a('s_lshl_b32 s%d, s%d, 7', S_FO, S_FO); a('s_add_u32 s%d, s%d, 0x%x', S_FO, S_FO, WS_FLG)
        a('s_mov_b32 s%d, 0xffff0000', S_MK)
    def poll_load(self, va, tag): return Op('buffer_load_dword v%d, v%d, s[%d:%d], 0 offen sc1' % (self.V_F, va, S_WS, S_WS+3), prod=tag)
    def spin(self, name, va):
        a = self.a
        a.label('L_spin%s' % name); a('s_mov_b32 s%d, 0', S_SPIN)
        a.label('L_spin%s_l' % name)
        a(self.poll_load(va, None).text); a('s_waitcnt vmcnt(0)'); a('v_cmp_ne_u32 vcc, s7, v%d', self.V_F)
        a('s_cbranch_vccz L_ok%s', name)
        a('s_add_u32 s%d, s%d, 1', S_SPIN, S_SPIN); a('s_cmp_lt_u32 s%d, 0x40000', S_SPIN); a('s_cbranch_scc1 L_spin%s_l', name)
        a('s_branch L_ok%s', name)
    def read_stats(self):
        a = self.a; NQ = self.NQ; ST = self.T_ST
        a('v_and_b32 v%d, 0xfffffffb, v%d', self.V_T, self.V_XA)
        for qb in range(NQ):
            a('ds_read_b64 %s, v%d offset:%d', vr(ST+2*qb,2), self.V_T, qb*512); a('ds_read_b32 v%d, v%d offset:%d', self.T_CO+qb, self.V_T, L_X2-L_X + qb*512)
        a('s_waitcnt lgkmcnt(0)')
        for qb in range(NQ):
            a('v_add_f32 v%d, v%d, v%d', ST+2*qb, ST+2*qb, ST+2*qb+1); a('v_mov_b32 v%d, v%d', ST+2*qb+1, self.T_CO+qb)
    def qk_tail(self):
        a = self.a; NQ = self.NQ; cfg = self.cfg; T = self.V_T
        W1 = cfg.get('tw1', 8)
        if cfg.get('wpl', 1):
            WA = self.V_PF
            if not self.WL: a('v_cmp_ne_u32 vcc, s7, v%d', self.V_PF+1); a('s_cbranch_vccnz L_spinW'); a.label('L_okW')
            wq = []
            for kk in range(W1): wq += oplist(self.wload(kk))
            def pop(c):
                for i in range(c):
                    while wq and kind_of(wq[0]) == 'S': a(wq.pop(0).text)
                    if wq: a(wq.pop(0).text)
                    while wq and kind_of(wq[0]) == 'S': a(wq.pop(0).text)
            for qb in range(NQ):
                M = self.V_L+qb
                [a(x) for x in self.ladds(qb)]
                for ins in ['v_permlane16_swap_b32', 'v_permlane32_swap_b32']:
                    a('v_mov_b32 v%d, v%d', T, M); a('s_nop 0'); a('s_nop 0') if not wq else pop(2); a('%s v%d, v%d', ins, T, M); a('v_add_f32 v%d, v%d, v%d', M, M, T)
                a('ds_write_b32 v%d, v%d offset:%d', self.V_XA, M, qb*512)
                a('ds_write_b32 v%d, v%d offset:%d', self.V_XA, self.V_NEGM+4*qb, L_X2-L_X + qb*512)
                pop(2)
            pop(64)
        else:
            WA = self.V_E
            a('v_and_b32 v%d, 3, v0', WA); a('v_min_u32 v%d, %d, v%d', WA, 2 if cfg.get('lean', 1) else 1, WA); a('v_lshlrev_b32 v%d, 7, v%d', WA, WA); a('v_add_u32 v%d, 0x%x, v%d', WA, WS_FLG + 128*FLG_W, WA)
            a(self.poll_load(WA, None).text)
            for qb in range(NQ):
                M = self.V_L+qb
                [a(x) for x in self.ladds(qb)]
                for ins in ['v_permlane16_swap_b32', 'v_permlane32_swap_b32']:
                    a('v_mov_b32 v%d, v%d', T, M); a('s_nop 1'); a('%s v%d, v%d', ins, T, M); a('v_add_f32 v%d, v%d, v%d', M, M, T)
                a('ds_write_b32 v%d, v%d offset:%d', self.V_XA, M, qb*512)
                a('ds_write_b32 v%d, v%d offset:%d', self.V_XA, self.V_NEGM+4*qb, L_X2-L_X + qb*512)
            a('s_waitcnt vmcnt(0)'); a('v_cmp_ne_u32 vcc, s7, v%d', self.V_F); a('s_cbranch_vccnz L_spinW'); a.label('L_okW')
            W1 = cfg.get('tw1', 8)
            for kk in range(W1):
                for o in oplist(self.wload(kk)): a(o.text)
        a('s_waitcnt lgkmcnt(0)'); a('s_barrier')
        self.read_stats()
        a('s_barrier')
        if cfg.get('stamp') and not cfg.get('sthead'): stamp_mid(a, 1)
        a('s_cmp_lg_u32 s%d, 0', S_J); a('s_cbranch_scc1 L_qt1')
        a('s_mul_i32 s%d, s%d, 500', S_T0, S_SP); a('s_add_u32 s%d, s%d, s%d', S_T0, S_T0, S_RB)
        a('s_lshl_b32 s%d, s%d, 7', S_T0, S_T0); a('s_add_u32 s%d, s%d, %d', S_T0, S_T0, WS_LSE)
        a('v_and_b32 v%d, 15, v0', T); a('v_lshlrev_b32 v%d, 3, v%d', T, T)
        for qb in range(NQ): a('buffer_store_dwordx2 %s, v%d, s[%d:%d], s%d offen offset:%d sc1', vr(self.T_ST+2*qb,2), T, S_WS, S_WS+3, S_T0, qb*128)
        a.label('L_qt1')
        a('s_branch L_tailq')
        if self.WL:
            a.label('L_qmid'); a('v_cmp_ne_u32 vcc, s7, v%d', self.V_PF+1); a('s_mov_b32 s%d, s%d', S_N, S_NR); a('s_cbranch_vccnz L_spinW'); a.label('L_okW'); a('s_branch L_qloop')
        self.spin('W', WA)
        if cfg.get('ln2', 1): self.spin('X', 58)
        if cfg.get('one', 1) and cfg.get('q6', 1): self.spin('Q', 59)
    def pv_tail(self):
        a = self.a; NQ = self.NQ; cfg = self.cfg; T = self.V_T
        if self.WL:
            for i in range(3):
                a('s_add_u32 s%d, s%d, %d', S_T0, S_DST, (i+1)*32768); a('s_and_b32 s%d, s%d, 0x1ffff', S_T0, S_T0); a('v_add_u32 v%d, s%d, v%d', 10+i, S_T0, self.V_L16)
            wr = ['ds_read_b128 %s, v%d offset:%d' % (self.wreg(kk, nb), 10 + (kk >> 2), (kk & 3)*4096 + nb*1024) for kk in list(range(8)) + [10, 11] for nb in range(4)]
        WI = cfg.get('wi', 8) if self.WL else 0
        if self.WL and not WI:
            for i, x in enumerate(wr):
                if i == 32: a('s_waitcnt vmcnt(0)')
                a(x)
        if not WI:
            a('s_waitcnt vmcnt(0) lgkmcnt(0)'); a('s_barrier')
            if cfg.get('stamp') and not cfg.get('sthead'): stamp_mid(a, 1)
        a('s_mul_i32 s%d, s%d, 500', S_T0, S_SP); a('s_add_u32 s%d, s%d, s%d', S_T0, S_T0, S_RB)
        a('s_lshl_b32 s%d, s%d, 14', S_T0, S_T0); a('s_lshl_b32 s%d, s%d, 13', S_T1, S_J)
        a('s_add_u32 s%d, s%d, s%d', S_T0, S_T0, S_T1); a('s_add_u32 s%d, s%d, %d', S_RET, S_T0, WS_PART)
        a('v_add_u32 v2, s%d, v%d', S_T1, self.V_L16); a('v_add_u32 v3, 0x10000, v2')
        tr = self.tr = Trace(); o = []
        if self.WL: tr.run('w0', [Op('buffer_load w', prod=('W', kk)) for kk in list(range(8)) + [10, 11]] + [Op(None, need=['ALLV'])])
        wq = []
        for kk in range(self.TWP): wq += oplist(self.wload(kk))
        WD = cfg.get('twd', 0)
        safe = [10, 11, 12, 13] + list(range(18, 27))
        cand = safe + list(range(self.NFV, 8*NQ))
        H = cfg.get('thold', 0 if cfg.get('hyb', 1) else 8)
        held = set(cand[(i*len(cand))//H] for i in range(H)) if H else set()
        self.held = []; FAST = cfg.get('fast', 0)
        def pstore(f, reg):
            qb, k2 = f//8, f % 8
            return ['s_add_u32 s%d, s%d, %d' % (S_T3, S_RET, qb*16384 + (k2//4)*4096),
                    Op('buffer_store_dwordx4 %s, v%d, s[%d:%d], s%d offen offset:%d%s' % (vr(reg,4), self.V_L16, S_WS, S_WS+3, S_T3, (k2%4)*1024, cfg['xp_ps'] if 'xp_ps' in cfg else ('' if FAST else ' sc1')), prod=('PS', f))]
        TWO = self.TWO = cfg.get('hyb', 1) and cfg.get('two', 0); pend = []
        if TWO: held = set(range(16, 8*NQ)); slot = {f: 80+4*i for i, f in enumerate([16, 17, 27] + list(range(self.NFV, 8*NQ)))}
        for f in range(8*NQ):
            qb, k2 = f//8, f % 8
            if TWO:
                b = 32 + 8*(f if f < self.NFV else (f - self.NFV) % 6); d = slot.get(f, b)
                if f >= self.NFV:
                    for r in range(8): o.append('v_accvgpr_read_b32 v%d, %s' % (b+r, self.O(f, r)))
            elif f < self.NFV: b = d = 32 + 8*f
            else:
                b = 32 + 8*((f - self.NFV) % 8); d = 32 + 8*safe[f - self.NFV] + 4
                for r in range(8): o.append('v_accvgpr_read_b32 v%d, %s' % (b+r, self.O(f, r)))
            for r in range(4): o.append('v_cvt_pk_bf16_f32 v%d, v%d, v%d' % (d+r, b+2*r, b+2*r+1))
            off = qb*16384 + k2*1024
            dw = Op('ds_write_b128 v%d, %s offset:%d' % (2 + off//65536, vr(d,4), off % 65536), prod=('CVW', f))
            if f < WI:
                pend.append(dw); c = -(-40//WI); o += wr[c*f:c*f+c]
                if f == 0: o.append('s_waitcnt vmcnt(0)')
            else:
                if WI and f == WI: o += [Op('s_barrier', need=['ALLL'])] + ([stamp_op(1)] if (cfg.get('stamp') and not cfg.get('sthead')) else [])
                o.append(dw)
                if pend: o.append(pend.pop(0))
            if TWO and f == 17: o.append(Op('s_barrier', need=[('CVW', 15)]))
            if TWO and f < 16: pass
            elif f in held: self.held += pstore(f, d)
            elif not (cfg.get('xp_nost') and f >= cfg.get('xp_nost')): o += pstore(f, d)
            if self.EA and f == cfg.get('eaf', 26):
                o += ['v_min_u32 v30, 1, v0', 'v_lshlrev_b32 v30, 30, v30', 'v_mov_b32 v31, s7', 's_add_u32 s%d, s%d, %d' % (S_T3, S_FO, 128*FLG_B),
                      Op('buffer_store_dword v31, v30, s[%d:%d], s%d offen sc1' % (S_WS, S_WS+3, S_T3), need=[('PS', 8*self.EA-1)])]
            for rep in range(cfg.get('twr', 1 if TWO else 2)):
                if f >= WD and wq:
                    o.append(wq.pop(0))
                    while wq and kind_of(wq[0]) == 'S': o.append(wq.pop(0))
        o += wq
        tr.run('cv', o); tr.emit(a, 'cv')
        if not cfg.get('hyb', 1): self.read_stats()
    def tail(self):
        a = self.a; NQ = self.NQ; cfg = self.cfg; tr = self.tr; stamp = cfg.get('stamp') and not cfg.get('sthead')
        ST = self.T_ST; CO = self.T_CO; CP = self.T_CP; A0 = self.T_A0; A1 = self.T_A1; BR = self.T_BR; BF = self.T_BF; RR = self.T_R; PK = self.T_PK; OT = self.T_OT
        L16 = self.V_L16; F = self.V_F
        n = 320
        class FX:
            def __init__(s): s.fx = [[] for _ in range(n)]
            def putd(s, lst, g, step=4):
                fx = s.fx
                for x in oplist(lst):
                    if kind_of(x) == 'D':
                        g += 1
                        while (step > 2 and g % step != 2) or (step == 2 and g % 2 == 0) or any(kind_of(y) in ('R','D','B','V') for y in oplist(fx[g])): g += 1
                        fx[g].append(x); g += 1
                    else: fx[g].append(x)
                return g
            def check(s, g, tag, name):
                fx = s.fx
                while fx[g] or fx[g+2]: g += 1
                fx[g] += [Op('v_cmp_ne_u32 vcc, s7, v%d' % F, need=[tag])]; fx[g+2] += ['s_cbranch_vccnz L_spin%s' % name, 'L_ok%s:' % name]
                return g+2
        def rd1(i):
            G, qb, h = i//10, (i % 10)//2, i & 1; off = qb*16384 + (2*G+h)*1024
            return Op('ds_read_b128 %s, v%d offset:%d' % (vr(BR+4*(i % 8),4), 2 if off >= 65536 else L16, off % 65536), prod=('B1', i))
        t = Asm(); h_frag_addr(t, 6, 8)
        su = ['v_add_u32 v3, %d, v%d' % (L_PAR, L16), 'v_add_u32 v4, %d, v%d' % (L_PAR+65536, L16)] + t.lines
        su += ['v_add_u32 v6, s%d, v6' % S_LP, 'v_add_u32 v8, s%d, v%d' % (S_LP, L16),
               'v_lshrrev_b32 v7, 4, v0', 'v_sub_u32 v7, 0, v7', 'v_xor_b32 v7, v7, v0', 'v_and_b32 v7, 3, v7', 'v_lshlrev_b32 v7, 4, v7',
               'v_lshrrev_b32 v9, 2, v0', 'v_lshl_add_u32 v7, v9, 10, v7',
               's_xor_b32 s%d, s3, 2' % S_T1, 's_lshl_b32 s%d, s%d, 8' % (S_T1, S_T1), 's_add_u32 s%d, s%d, 0x%x' % (S_T1, S_T1, WS_FLG),
               'v_and_b32 v9, 1, v0', 'v_lshl_add_u32 v9, v9, 7, s%d' % S_T1,
               'v_and_b32 v252, 15, v0', 'v_lshlrev_b32 v252, 3, v252']
        suq = ['s_mul_i32 s%d, s%d, %d' % (S_T1, S_QT, 80*55189), 's_add_u32 s%d, s%d, %d' % (S_T2, S_T1, 79*55189),
               's_lshr_b32 s%d, s%d, 22' % (S_T1, S_T1), 's_lshr_b32 s%d, s%d, 22' % (S_T2, S_T2),
               'v_and_b32 v250, 3, v0', 'v_add_u32 v250, s%d, v250' % S_T1, 'v_min_u32 v250, s%d, v250' % S_T2,
               's_mul_i32 s%d, s%d, %d' % (S_T1, S_B, 53*128), 's_add_u32 s%d, s%d, 0x%x' % (S_T1, S_T1, WS_FLG + 128*FLG_C),
               'v_lshl_add_u32 v250, v250, 7, s%d' % S_T1, 's_lshl_b32 s%d, s%d, 13' % (S_T2, S_J), 's_add_u32 s%d, s%d, s%d' % (S_PP, S_PP, S_T2)]
        if cfg.get('xp_nodma'): suq.append('s_mov_b32 s%d, 0x%x' % (S_PP, WS_SIZE))
        CV2 = cfg.get('one', 1) and cfg.get('cv2', 1); sub = []; BAR = [249, 251, 253, 254, 255]
        if CV2:
            sub = ['s_mul_i32 s%d, s%d, 80' % (S_SPIN, S_QT), 'v_and_b32 v232, 15, v0', 'v_add_u32 v232, s%d, v232' % S_SPIN, 'v_lshrrev_b32 v233, 4, v0', 'v_lshlrev_b32 v233, 8, v233']
            for q in range(NQ):
                d = BAR[q]
                sub += ['v_add_u32 v234, %d, v232' % (16*q), 'v_mul_u32_u24 v235, 0xd795, v234', 'v_lshrrev_b32 v235, 22, v235', 'v_lshl_add_u32 v234, v235, 2, v234',
                        'v_and_b32 v235, 15, v234', 'v_lshl_add_u32 v235, v235, 4, v233', 'v_lshrrev_b32 v234, 4, v234', 'v_lshl_add_u32 v%d, v234, 14, v235' % d]
        ld = [Op('buffer_load_dwordx2 %s, v252, s[%d:%d], s%d offen offset:%d sc1' % (vr(RR+2*q,2), S_WS, S_WS+3, S_PS, q*128), prod='PST') for q in range(NQ)]
        GC = cfg.get('tgc', 36)
        def gemm1(role):
            X = FX(); o = []
            if role == 'q': o += su + suq + sub
            o += ['v_add_u32 v2, 0x10000, v%d' % L16, Op('s_barrier', need=['ALLL', 'ALLV'] if role == 'q' else ['ALLL'])]
            if stamp: o.append(stamp_op(2))
            o += [rd1(i) for i in range(6)]
            for i in range(6, 80): X.fx[4*(i-6)].append(rd1(i))
            if role == 'p':
                g = X.putd(self.held, 0, cfg.get('ths', 4))
                GF = self.GF = g + cfg.get('tgf', 30); GF += (-GF) % 4
                X.fx[GF-1] += [Op(None, need=['ALLV'])] + ([stamp_op(3)] if stamp else [])
                late = []
                for kk in range(cfg.get('twp', 6), 16): late += self.wload(kk)
                fl = 'buffer_store_dword v31, v30, s[%d:%d], s%d offen' % (S_WS, S_WS+3, S_FO)
                if cfg.get('fast', 0):
                    X.fx[GF-2].append('s_cmp_eq_u32 s%d, 0' % S_SAME)
                    self.flag_text = fl
                    fl = Op('buffer_x\ns_cbranch_scc1 L_rel\n%s%s\nL_rel_back:\ns_nop 0' % (fl, '' if cfg.get('fastflag', 1) else ' sc1'))
                else: fl += ' sc1'
                g = X.putd([fl] + late, GF-1, 2)
                g = X.putd([self.poll_load(9, 'PF')], max(g, cfg.get('tpp', 210)))
                X.fx[1] += ['v_min_u32 v30, 1, v0', 'v_lshlrev_b32 v30, 30, v30', 'v_mov_b32 v31, s7']
                g = X.check(g+GC, 'PF', 'P2')
                X.putd(ld, g, 2); X.fx[n-1].append(Op(None, need=['PST']))
                X.fx = spread(X.fx, su, n, 3, GF-2)
                X.fx = spread(X.fx, sub, n, GF+2, 208)
            else:
                late = []
                for kk in range(cfg.get('tw1', 8), 16): late += self.wload(kk)
                g = X.putd(late, 0, cfg.get('tqs', 2))
                g = X.putd([self.poll_load(9, 'PF')], max(g, self.GF + cfg.get('tgp', 30)))
                g = X.check(g+GC, 'PF', 'P')
                if stamp: X.fx[g].append(stamp_op(3))
                dm = []
                for q in range(NQ):
                    for k in range(8):
                        if k % 4 == 0: dm += ['s_add_u32 m0, s%d, %d' % (S_T2, L_PAR + q*16384 + k*1024), 's_add_u32 s%d, s%d, %d' % (S_T0, S_PP, q*16384 + k*1024)]
                        dm.append(Op('buffer_load_dwordx4 v%d, s[%d:%d], s%d offen offset:%d%s lds' % (L16, S_WS, S_WS+3, S_T0, (k%4)*1024, '' if cfg.get('xp_plainld') else ' sc1'), prod=('PD', q)))
                NP = cfg.get('tnp', 3); ST = cfg.get('tps', 4)
                g = X.putd(dm[:12], g+1, cfg.get('tps0', 2))
                g = X.putd(ld + [self.poll_load(250, 'CF')], g, 2)
                g = X.putd(dm[12:12*NP], g, ST)
                X.check(max(g, n-8), 'CF', 'C')
            for g in range(n):
                G, qb, nb, h = g//40, (g % 40)//8, (g % 8)//2, g & 1
                h ^= nb & self.SN
                i = 10*G + 2*qb + h; kk = 2*G + h; D = vr(A0 + 16*qb + 4*nb, 4)
                o.append(Op('%s %s, %s, %s, %s' % (MF, D, self.wreg(kk, nb), vr(BR+4*(i % 8),4), D if (G or g & 1) else '0'), need=[('B1', i | 1), ('W', kk | 1)]))
                o += oplist(X.fx[g])
                if stamp and cfg.get('stg1') and g in (80, 160, 240): o.append(stamp_op({80:7, 160:9, 240:10}[g]))
            return o
        tr.run('g1p', gemm1('p'))
        trq = Trace(tr.static); trq.run('x', [Op('buffer_load w', prod=('W', kk)) for kk in range(cfg.get('tw1', 8))] + ['ds_x']); trq.run('g1q', gemm1('q'))
        tr.lenient = ('PD',)
        o = []; X = FX(); putd = X.putd
        if stamp: o.append(stamp_op(4))
        o += ['s_add_u32 s%d, s%d, s%d' % (S_WP, S_PP2, S_LP), Op('s_barrier', need=[('PD', 1)])]
        if stamp: o.append(stamp_op(5))
        def rd2(i):
            off = (i//16)*16384 + (i % 16)*1024
            return Op('ds_read_b128 %s, v%d offset:%d' % (vr(BR+4*(i % 8),4), 4 if off >= 65536 else 3, off % 65536), prod=('B2', i))
        fx = X.fx
        o += [rd2(i) for i in range(6)]
        for i in range(6, 80): fx[4*(i-6)].append(rd2(i))
        NP = cfg.get('tnp', 3)
        if NP >= 3: fx[4*26-2].append(Op('s_barrier', need=[('PD', NP-1)]))
        for q in range(max(NP, 2), NQ): fx[4*(16*q-6)-2].append(Op('s_barrier', need=[('PE', q)]))
        bl = []
        for c in range(2*NQ):
            if CV2: bl.append(Op('buffer_load_dwordx4 %s, v%d, s[%d:%d], s%d offen offset:%d sc1' % (vr(BF+4*c,4), BAR[c >> 1], S_WS, S_WS+3, S_BS, (c & 1)*1024), prod=('BF', c)))
            else: bl += ['s_add_u32 s%d, s%d, %d' % (S_T0, S_BS, (c >> 1)*16384), Op('buffer_load_dwordx4 %s, v%d, s[%d:%d], s%d offen offset:%d sc1' % (vr(BF+4*c,4), L16, S_WS, S_WS+3, S_T0, (c & 1)*1024), prod=('BF', c))]
        def pe(q):
            return ['s_add_u32 m0, s%d, %d' % (S_LP, L_PAR + q*16384), 's_add_u32 s%d, s%d, %d' % (S_T0, S_WP, q*16384)] + \
                   [Op('buffer_load_dwordx4 v%d, s[%d:%d], s%d offen offset:%d sc1 lds' % (L16, S_WS, S_WS+3, S_T0, k*1024), prod=('PE', q)) for k in range(4)]
        if NP < NQ:
            assert CV2
            seq = bl[:2]
            for q in range(1, NQ):
                if NP+q-1 < NQ: seq = seq + pe(NP+q-1)
                seq = seq + bl[2*q:2*q+2]
            putd(seq, 0, cfg.get('tp2', 8))
        else: putd(bl, 0)
        wt = []
        for q in range(NQ):
            l0, m0, l1, m1, t0 = ST+2*q, ST+2*q+1, RR+2*q, RR+2*q+1, 248
            wt += [Op('v_min_f32 v%d, v%d, v%d' % (t0, m0, m1), need=['PST']), 'v_sub_f32 v%d, v%d, v%d' % (m0, t0, m0), 'v_sub_f32 v%d, v%d, v%d' % (m1, t0, m1),
                   'v_exp_f32 v%d, v%d' % (m0, m0), 'v_exp_f32 v%d, v%d' % (m1, m1), 'v_mul_f32 v%d, v%d, v%d' % (l0, l0, m0), 'v_fmac_f32 v%d, v%d, v%d' % (l0, l1, m1),
                   'v_rcp_f32 v%d, v%d' % (l0, l0), 's_nop 0', 'v_mul_f32 v%d, v%d, v%d' % (CO+q, m0, l0), 'v_mul_f32 v%d, v%d, v%d' % (CP+q, m1, l0)]
        def ep_a(q):
            r = []
            for p in range(2):
                for x in range(4):
                    r += [Op('v_lshlrev_b32 v%d, 16, v%d' % (RR+8*p+2*x, BF+8*q+4*p+x), need=[('BF', 2*q+p)]), 'v_and_b32 v%d, s%d, v%d' % (RR+8*p+2*x+1, S_MK, BF+8*q+4*p+x)]
            return r + ['v_fmac_f32 v%d, v%d, v%d' % (RR+x, A0+16*q+x, CO+q) for x in range(16)]
        def ep_b(q):
            r = []
            for p in range(2):
                r += ['v_fmac_f32 v%d, v%d, v%d' % (RR+8*p+x, A1+16*(q & 1)+8*p+x, CP+q) for x in range(8)]
                r += ['v_cvt_pk_bf16_f32 v%d, v%d, v%d' % (PK+4*p+x, RR+8*p+2*x, RR+8*p+2*x+1) for x in range(4)]
                r += ['ds_write_b128 v6, %s offset:%d' % (vr(PK+4*p,4), p*1024), Op('ds_read_b128 %s, v8 offset:%d' % (vr(OT+4*p,4), p*1024), prod=('OT', q, p))]
            return r
        def ep_c(q):
            return ['s_add_u32 s%d, s%d, %d' % (S_T1, S_OP, q*16384)] + [Op('buffer_store_dwordx4 %s, v7, s[16:19], s%d offen offset:%d%s' % (vr(OT+4*p,4), S_T1, p*64, ' sc1' if cfg.get('sc3', 0) else ''), need=[('OT', q, p)]) for p in range(2)]
        fx = spread(fx, wt, n, 2, 64)
        fx = spread(fx, ep_a(0) + ep_b(0) + ep_a(1) + ep_c(0), n, 64+1, 128)
        for q in range(1, NQ-1): fx = spread(fx, ep_b(q) + ep_a(q+1) + ep_c(q), n, 64*(q+1)+8, 64*(q+2))
        for g in range(n):
            qb, G, nb, h = g//64, (g % 64)//8, (g % 8)//2, g & 1
            h ^= nb & self.SN
            kk = 2*G + h; i = 16*qb + kk; D = vr(A1 + 16*(qb & 1) + 4*nb, 4)
            o.append(Op('%s %s, %s, %s, %s' % (MF, D, self.wreg(kk, nb), vr(BR+4*(i % 8),4), D if (G or g & 1) else '0'), need=[('B2', i | 1)]))
            o += oplist(fx[g])
            if stamp and g == 128: o.append(stamp_op(6))
        if stamp: o.append(stamp_op(8))
        o += ['s_nop 5'] + ep_b(NQ-1) + ep_c(NQ-1)
        tr.run('t', o); trq.run('t', o)
        if cfg.get('xp_nodma'): a('s_nop 0')
        tr.emit(a, 'g1p'); a.label('L_tail2'); tr.emit(a, 't')
        a('s_branch L_k2_fin')
        a.label('L_tailq'); tr.emit(a, 'g1q'); a('s_branch L_tail2')
        self.spin('P', 9); self.spin('P2', 9); self.spin('C', 250)
        if cfg.get('fast', 0):
            a.label('L_rel'); a('buffer_wbl2 sc1'); a('s_waitcnt vmcnt(0)'); a(self.flag_text + ' sc1'); a('s_branch L_rel_back')
    def tail2(self):
        a = self.a; NQ = self.NQ; cfg = self.cfg; tr = self.tr; stamp = cfg.get('stamp') and not cfg.get('sthead')
        ST = self.T_ST; CW = 20; A0 = self.T_A0; NH = cfg.get('nh', 3); PR = A0+16*NH; A1 = self.T_A1; BR = self.T_BR; BF = self.T_BF; RR = self.T_R; PK = self.T_PK; OT = self.T_OT
        L16 = self.V_L16; F = self.V_F; n1 = 64*NH; n = 320; L_PS = 155648; BAR = [249, 251, 253, 254, 255]
        ND = cfg.get('nd', 3 if self.EA else 2)
        class FX:
            def __init__(s, m): s.fx = [[] for _ in range(m)]
            def putd(s, lst, g, step=4):
                fx = s.fx
                for x in oplist(lst):
                    if kind_of(x) == 'D':
                        g += 1
                        while any(kind_of(y) in ('R','D','B','V','X') for y in oplist(fx[g])): g += 1
                        fx[g].append(x); g += step-1
                    else: fx[g].append(x)
                return g
            def check(s, g, tag, name):
                fx = s.fx
                while fx[g] or fx[g+2]: g += 1
                fx[g] += [Op('v_cmp_ne_u32 vcc, s7, v%d' % F, need=[tag])]; fx[g+2] += ['s_cbranch_vccnz L_spin%s' % name, 'L_ok%s:' % name]
                return g+2
        def rd1(i):
            G, qb, h = i//(2*NH), (i % (2*NH))//2, i & 1
            return Op('ds_read_b128 %s, v%d offset:%d' % (vr(BR+4*(i % 8),4), L16, qb*16384 + (2*G+h)*1024), prod=('B1', i))
        t = Asm(); h_frag_addr(t, 6, 8)
        su = ['v_add_u32 v2, 0x10000, v%d' % L16, 'v_add_u32 v3, %d, v%d' % (L_PAR, L16)] + t.lines
        su += ['v_add_u32 v6, s%d, v6' % S_LP, 'v_add_u32 v8, s%d, v%d' % (S_LP, L16), 'v_add_u32 v4, 0x10000, v8',
               'v_lshrrev_b32 v7, 4, v0', 'v_sub_u32 v7, 0, v7', 'v_xor_b32 v7, v7, v0', 'v_and_b32 v7, 3, v7', 'v_lshlrev_b32 v7, 4, v7',
               'v_lshrrev_b32 v9, 2, v0', 'v_lshl_add_u32 v7, v9, 10, v7',
               'v_and_b32 v252, 15, v0', 'v_lshlrev_b32 v252, 3, v252', 'v_add_u32 v252, %d, v252' % L_PS,
               's_mul_i32 s%d, s%d, %d' % (S_T1, S_QT, 80*55189), 's_add_u32 s%d, s%d, %d' % (S_T2, S_T1, 79*55189),
               's_lshr_b32 s%d, s%d, 22' % (S_T1, S_T1), 's_lshr_b32 s%d, s%d, 22' % (S_T2, S_T2),
               'v_and_b32 v250, 3, v0', 'v_add_u32 v250, s%d, v250' % S_T1, 'v_min_u32 v250, s%d, v250' % S_T2,
               's_mul_i32 s%d, s%d, %d' % (S_T1, S_B, 53*128), 's_add_u32 s%d, s%d, 0x%x' % (S_T1, S_T1, WS_FLG + 128*FLG_C),
               'v_lshl_add_u32 v250, v250, 7, s%d' % S_T1]
        suq = ['s_xor_b32 s%d, s3, 2' % S_T1, 's_lshl_b32 s%d, s%d, 8' % (S_T1, S_T1), 's_add_u32 s%d, s%d, 0x%x' % (S_T1, S_T1, WS_FLG),
               'v_and_b32 v9, 1, v0', 'v_lshl_add_u32 v9, v9, 7, s%d' % S_T1,
               's_lshl_b32 s%d, s%d, 13' % (S_T2, S_J), 's_add_u32 s%d, s%d, s%d' % (S_PP, S_PP, S_T2)]
        sub = ['s_mul_i32 s%d, s%d, 80' % (S_SPIN, S_QT), 'v_and_b32 v236, 15, v0', 'v_add_u32 v236, s%d, v236' % S_SPIN, 'v_lshrrev_b32 v237, 4, v0', 'v_lshlrev_b32 v237, 8, v237']
        for q in range(NQ):
            sub += ['v_add_u32 v238, %d, v236' % (16*q), 'v_mul_u32_u24 v239, 0xd795, v238', 'v_lshrrev_b32 v239, 22, v239', 'v_lshl_add_u32 v238, v239, 2, v238',
                    'v_and_b32 v239, 15, v238', 'v_lshl_add_u32 v239, v239, 4, v237', 'v_lshrrev_b32 v238, 4, v238', 'v_lshl_add_u32 v%d, v238, 14, v239' % BAR[q]]
        own = ['v_and_b32 v9, 0xfffffffb, v%d' % self.V_XA]
        for q in range(NQ): own += ['ds_read_b64 %s, v9 offset:%d' % (vr(ST+2*q,2), q*512), Op('ds_read_b32 v%d, v9 offset:%d' % (CW+q, L_X2-L_X + q*512), prod=('OS', q))]
        own2 = []
        for q in range(NQ): own2 += [Op('v_add_f32 v%d, v%d, v%d' % (ST+2*q, ST+2*q, ST+2*q+1), need=[('OS', q)]), 'v_mov_b32 v%d, v%d' % (ST+2*q+1, CW+q)]
        bls = lambda: [Op('buffer_load_dwordx4 %s, v%d, s[%d:%d], s%d offen offset:%d sc1' % (vr(BF+4*c,4), BAR[c >> 1], S_WS, S_WS+3, S_BS, (c & 1)*1024), prod=('BF', c)) for c in range(2*NQ)]
        def gemm1(role):
            X = FX(n1); o = []
            TWO = self.TWO; WQ = cfg.get('tw1', 8)
            fv = ['v_min_u32 v30, 1, v0', 'v_lshlrev_b32 v30, 30, v30', 'v_mov_b32 v31, s7']
            fl = 'buffer_store_dword v31, v30, s[%d:%d], s%d offen sc1' % (S_WS, S_WS+3, S_FO)
            if role == 'q':
                if TWO:
                    for kk in range(WQ, WQ + cfg.get('tw2', 2)): o += self.wload(kk)
                    WQ += cfg.get('tw2', 2)
                o += su + suq + sub
                if cfg.get('eb'): o += [Op('s_branch L_spinC', need=['ALLV']), 'L_okC:'] + (bls() if cfg.get('eb') == 1 else [])
                if TWO:
                    o += fv + ['s_mul_i32 s%d, s%d, 500' % (S_T0, S_SP), 's_add_u32 s%d, s%d, s%d' % (S_T0, S_T0, S_RB), 's_add_u32 s%d, s%d, s%d' % (S_T0, S_T0, S_J),
                               's_lshl_b32 s%d, s%d, 14' % (S_T0, S_T0), 's_add_u32 s%d, s%d, 0x%x' % (S_T0, S_T0, WS_PART),
                               's_lshl_b32 s%d, s%d, 14' % (S_T1, S_J), 'v_add_u32 v248, s%d, v%d' % (S_T1, L16), 's_barrier']
                    o += [Op('ds_read_b128 %s, v248 offset:%d' % (vr(32+4*k,4), k*1024), prod=('QR', k)) for k in range(16)]
                    for k in range(16):
                        o.append(Op('buffer_store_dwordx4 %s, v%d, s[%d:%d], s%d offen offset:%d sc1' % (vr(32+4*k,4), L16, S_WS, S_WS+3, S_T0, (k%4)*1024), need=[('QR', k)]))
                        if k % 4 == 3: o.append('s_add_u32 s%d, s%d, 4096' % (S_T0, S_T0))
            def pdm(q):
                dm = []
                for k in range(8):
                    if k % 4 == 0: dm += ['s_add_u32 m0, s%d, %d' % (S_T2, L_PAR + q*16384 + k*1024), 's_add_u32 s%d, s%d, %d' % (S_T0, S_PP, q*16384 + k*1024)]
                    dm.append(Op('buffer_load_dwordx4 v%d, s[%d:%d], s%d offen offset:%d%s lds' % (L16, S_WS, S_WS+3, S_T0, (k%4)*1024, cfg.get('xp_pl', ' sc1')), prod=('PD', q)))
                return dm
            if role == 'q' and self.EA:
                for kk in range(WQ, WQ + cfg.get('tw2', 2)): o += self.wload(kk)
                WQ += cfg.get('tw2', 2)
                o += ['v_add_u32 v248, %d, v9' % (128*FLG_B), Op('s_branch L_spinA', need=['ALLV']), 'L_okA:']
                for q in range(self.EA): o += pdm(q)
            o.append(Op('s_barrier', need=['ALLL', 'ALLV'] if (role == 'q' and not TWO and not self.EA) else ['ALLL']))
            if stamp: o.append(stamp_op(2))
            o += [rd1(i) for i in range(6)]
            for i in range(6, 16*NH): X.fx[4*(i-6)].append(rd1(i))
            late = []
            for kk in ((8, 9, 12, 13, 14, 15) if (role == 'p' and self.WL) else range(self.TWP if role == 'p' else WQ, 16)): late += self.wload(kk)
            if role == 'p' and TWO:
                X.fx[1] += fv
                g = X.putd(late, 1, 2)
                g = X.putd(self.held, g, cfg.get('ths', 4))
                GB = min(n1-4, g + cfg.get('tgb', 40)); GB -= GB % 4
                X.fx[GB-1] += ['s_add_u32 s%d, s%d, %d' % (S_FO, S_FO, 128*FLG_B), Op(None, need=['ALLV'])] + ([stamp_op(3)] if stamp else [])
                X.putd([fl], GB-1)
                X.fx = spread(X.fx, own + own2 + su + sub + suq[:5], n1, 2, n1, 3)
            elif role == 'p':
                X.fx[1] += ['v_min_u32 v30, 1, v0', 'v_lshlrev_b32 v30, 30, v30', 'v_mov_b32 v31, s7']
                g = X.putd(self.held, 1, cfg.get('ths', 2))
                GF = self.GF = g + cfg.get('tgf', 28); GF += (-GF) % 4
                X.fx[GF-1] += [Op(None, need=['ALLV'])] + ([stamp_op(3)] if stamp else [])
                g = X.putd(['buffer_store_dword v31, v30, s[%d:%d], s%d offen%s' % (S_WS, S_WS+3, S_FO, cfg.get('xp_fl', ' sc1'))] + late, GF-1, 2)
                if cfg.get('eb'):
                    X.putd(bls(), g, 2)
                    X.fx = spread(X.fx, sub, n1, 2, GF-1); X.fx = spread(X.fx, own + own2 + su, n1, GF+2, n1, 3)
                else:
                    X.fx = spread(X.fx, own, n1, 2, GF-1)
                    X.fx = spread(X.fx, own2 + su + sub, n1, GF+2, n1, 3)
            else:
                if TWO:
                    GA = cfg.get('tga', 24)
                    X.fx[GA-1].append(Op(None, need=['ALLV']))
                    nl = cfg.get('tnl', 14)
                    g = X.putd([fl] + late[:nl] + [self.poll_load(9, 'PF')], GA-1, 2)
                    X.putd(late[nl:], g, 2)
                else:
                    g = X.putd(late + (bls() if cfg.get('eb') == 2 else []), 0, 2)
                    g = X.putd([self.poll_load(9, 'PF')], max(g, self.GF + cfg.get('tgp', 20)))
                g = X.check(g + cfg.get('tgc', 28), 'PF', 'P')
                if stamp: X.fx[g].append(stamp_op(3))
                sd = ['s_mov_b32 m0, %d' % L_PS, Op('buffer_load_dwordx4 v%d, s[%d:%d], s%d offen sc1 lds' % (L16, S_WS, S_WS+3, S_PS), prod=('PD', 0))]
                g = X.putd((pdm(0) if not self.EA else []) + sd, g+1, cfg.get('tps0', 2))
                for q in range(max(1, self.EA), ND): g = X.putd(pdm(q), g, cfg.get('tps', 4))
            for g in range(n1):
                G, qb, nb, h = g//(8*NH), (g % (8*NH))//8, (g % 8)//2, g & 1
                h ^= nb & self.SN
                if self.S2 and (g//8) & 1: nb = 3-nb
                i = 2*NH*G + 2*qb + h; kk = 2*G + h; D = vr(A0 + 16*qb + 4*nb, 4)
                o.append(Op('%s %s, %s, %s, %s' % (MF, D, self.wreg(kk, nb), vr(BR+4*(i % 8),4), D if (G or g & 1) else '0'), need=[('B1', i | 1), ('W', kk | 1)]))
                o += oplist(X.fx[g])
            return o
        tr.run('g1p', gemm1('p'))
        trq = Trace(tr.static); trq.run('x', [Op('buffer_load w', prod=('W', kk)) for kk in range(cfg.get('tw1', 8))] + ['ds_x']); trq.run('g1q', gemm1('q'))
        tr.lenient = ('PD',)
        o = []; X = FX(n); fx = X.fx
        if stamp: o.append(stamp_op(4))
        o += ['s_add_u32 s%d, s%d, s%d' % (S_WP, S_PP2, S_LP), Op('s_barrier', need=[('PD', 0)])]
        if stamp: o.append(stamp_op(5))
        def rd2(i):
            q = i//16; off = q*16384 + (i % 16)*1024
            return Op('ds_read_b128 %s, v%d offset:%d' % (vr(BR+4*(i % 8),4), 3 if q < NH else (2 if off >= 65536 else L16), off % 65536), prod=('B2', i))
        o += [rd2(i) for i in range(6)]
        for i in range(6, 80): fx[4*(i-6)].append(rd2(i))
        for q in range(1, NQ): fx[4*(16*q-6)-2].append(Op('s_barrier', need=[('PD' if q < ND else ('PE' if q < NH else 'CW'), q)]))
        seq = []
        for q in range(ND, NH):
            seq += ['s_add_u32 m0, s%d, %d' % (S_LP, L_PAR + q*16384), 's_add_u32 s%d, s%d, %d' % (S_T0, S_WP, q*16384)]
            seq += [Op('buffer_load_dwordx4 v%d, s[%d:%d], s%d offen offset:%d%s lds' % (L16, S_WS, S_WS+3, S_T0, k*1024, cfg.get('xp_pl', ' sc1')), prod=('PE', q)) for k in range(4)]
        pr = lambda q: ['s_add_u32 s%d, s%d, %d' % (S_T0, S_WP, q*16384)] + [Op('buffer_load_dwordx4 %s, v%d, s[%d:%d], s%d offen offset:%d%s' % (vr(PR+16*(q-NH)+4*k,4), L16, S_WS, S_WS+3, S_T0, k*1024, cfg.get('xp_pl', ' sc1')), prod=('PR', q, k)) for k in range(4)]
        if self.TWO:
            fx[1].append('v_add_u32 v9, %d, v9' % (128*FLG_B))
            g = X.putd([self.poll_load(9, 'BFL')], cfg.get('tbp', 4))
            g = X.check(g + cfg.get('tbc', 28), 'BFL', 'B')
            g = X.putd(seq + pr(3) + pr(4), g+1, cfg.get('tp2', 4))
        else: g = X.putd({3: lambda: pr(3) + seq + pr(4), 4: lambda: pr(4) + seq, 2: lambda: pr(2) + seq + pr(3) + pr(4)}[NH](), 1, cfg.get('tp2', 6))
        if not cfg.get('eb'):
          g = X.putd([self.poll_load(250, 'CF')], max(g, cfg.get('tcp', 110)))
          g = X.check(g + cfg.get('tgc', 28), 'CF', 'C')
          X.putd([Op('buffer_load_dwordx4 %s, v%d, s[%d:%d], s%d offen offset:%d sc1' % (vr(BF+4*c,4), BAR[c >> 1], S_WS, S_WS+3, S_BS, (c & 1)*1024), prod=('BF', c)) for c in range(2*NQ)], g, cfg.get('tp3', 4))
        wt = [Op('ds_read_b64 %s, v252 offset:%d' % (vr(RR+2*q,2), q*128), prod=('PST', q)) for q in range(NQ)]
        for q in range(NQ):
            l0, m0, l1, m1, t0 = ST+2*q, ST+2*q+1, RR+2*q, RR+2*q+1, 248
            wt += [Op('v_min_f32 v%d, v%d, v%d' % (t0, m0, m1), need=[('PST', q)]), 'v_sub_f32 v%d, v%d, v%d' % (m0, t0, m0), 'v_sub_f32 v%d, v%d, v%d' % (m1, t0, m1),
                   'v_exp_f32 v%d, v%d' % (m0, m0), 'v_exp_f32 v%d, v%d' % (m1, m1), 'v_mul_f32 v%d, v%d, v%d' % (l0, l0, m0), 'v_fmac_f32 v%d, v%d, v%d' % (l0, l1, m1),
                   'v_rcp_f32 v%d, v%d' % (l0, l0), 's_nop 0', 'v_mul_f32 v%d, v%d, v%d' % (CW+2*q, m0, l0), 'v_mul_f32 v%d, v%d, v%d' % (CW+2*q+1, m1, l0)]
        unp = lambda d, s_, need=(): [Op('v_lshlrev_b32 v%d, 16, v%d' % (d, s_), need=list(need)), 'v_and_b32 v%d, s%d, v%d' % (d+1, S_MK, s_)]
        def mix(q):
            return ['v_mul_f32 v%d, v%d, v%d' % (A0+16*q+x, A0+16*q+x, CW+2*q) for x in range(16)] + \
                   ['v_fmac_f32 v%d, v%d, v%d' % (A0+16*q+x, A1+16*(q & 1)+x, CW+2*q+1) for x in range(16)]
        def comb(q):
            ad = lambda k: (4 if q == 4 else 8, (q*16384 + k*1024) % 65536)
            rd = lambda k: Op('ds_read_b128 %s, v%d offset:%d' % ((vr(OT+4*(k & 1),4),) + ad(k)), prod=('CO', q, k))
            r = [rd(0), rd(1)]; C = vr(CW+2*q, 2)
            for k in range(4):
                for x in range(4): r += unp(RR+8+2*x, PR+16*(q-NH)+4*k+x, [('PR', q, k)] if x == 0 else [])
                for x in range(4): r += unp(RR+2*x, OT+4*(k & 1)+x, [('CO', q, k)] if x == 0 else [])
                r += ['v_pk_mul_f32 %s, %s, %s op_sel:[0,1] op_sel_hi:[1,1]' % (vr(RR+8+2*x,2), vr(RR+8+2*x,2), C) for x in range(4)]
                r += ['v_pk_fma_f32 %s, %s, %s, %s op_sel_hi:[1,0,1]' % (vr(RR+2*x,2), vr(RR+2*x,2), C, vr(RR+8+2*x,2)) for x in range(4)]
                if k < 2: r.append(rd(k+2))
                r += ['v_cvt_pk_bf16_f32 v%d, v%d, v%d' % (PK+4*(k & 1)+x, RR+2*x, RR+2*x+1) for x in range(4)]
                r.append(Op('ds_write_b128 v%d, %s offset:%d' % (ad(k)[0], vr(PK+4*(k & 1),4), ad(k)[1]), prod=('CW', q)))
            return r
        def fin_a(q):
            r = []
            for p in range(2):
                for x in range(4): r += unp(RR+8*p+2*x, BF+8*q+4*p+x, [('BF', 2*q+p)] if x == 0 else [])
            return r
        def fin_b(q, pk=False):
            r = []; S = A0+16*q if q < NH else A1+16*(q & 1)
            for p in range(2):
                if pk: r += ['v_pk_add_f32 %s, %s, %s' % (vr(RR+8*p+x,2), vr(RR+8*p+x,2), vr(S+8*p+x,2)) for x in range(0, 8, 2)]
                else: r += ['v_add_f32 v%d, v%d, v%d' % (RR+8*p+x, RR+8*p+x, S+8*p+x) for x in range(8)]
                r += ['v_cvt_pk_bf16_f32 v%d, v%d, v%d' % (PK+4*p+x, RR+8*p+2*x, RR+8*p+2*x+1) for x in range(4)]
                r += ['ds_write_b128 v6, %s offset:%d' % (vr(PK+4*p,4), p*1024), Op('ds_read_b128 %s, v8 offset:%d' % (vr(OT+4*p,4), p*1024), prod=('OT', q, p))]
            return r
        def fin_c(q):
            return ['s_add_u32 s%d, s%d, %d' % (S_T1, S_OP, q*16384)] + [Op('buffer_store_dwordx4 %s, v7, s[16:19], s%d offen offset:%d%s' % (vr(OT+4*p,4), S_T1, p*64, cfg.get('opol', ' nt') if q < cfg.get('sc3', 5) else ''), need=[('OT', q, p)]) for p in range(2)]
        W0, W1, W2 = cfg.get('tw', (88, 160, 226) if self.TWO else (64, 140, 212))
        fa = lambda q: fin_a(q) + (fin_c(q-1) if q else []) + fin_b(q)
        if NH == 4:
            E0, E1, E2 = cfg.get('te', (56, 127, 170))
            fx = spread(fx, wt, n, 2, E0)
            fx = spread(fx, comb(4) + mix(0), n, E0, E1)
            fx = spread(fx, mix(1), n, 130, E2)
            fx = spread(fx, fa(0) + mix(2) + fa(1), n, E2, 256)
            fx = spread(fx, fa(2) + mix(3) + fa(3) + fin_a(4) + fin_c(3), n, 256, n)
        elif NH == 2:
            E0 = cfg.get('te', 40)
            fx = spread(fx, wt, n, 2, E0)
            fx = spread(fx, comb(2), n, E0, 100)
            fx = spread(fx, mix(0) + comb(3), n, 100, 164)
            fx = spread(fx, mix(1) + comb(4), n, 164, 226)
            fx = spread(fx, fin_a(2) + fin_b(2), n, 226, 256)
            fx = spread(fx, fin_a(0) + fin_c(2) + fin_b(0) + fa(1) + fin_a(3) + fin_c(1) + fin_b(3) + fin_a(4) + fin_c(3), n, 256, n)
        elif cfg.get('even', 1) and not self.TWO:
            sp_ = spread_dp if cfg.get('tdp', 1) else spread
            E0, E1, E2 = cfg.get('te', (56, 127, 191))
            fx = sp_(fx, wt, n, 2, E0)
            fx = sp_(fx, comb(3) + mix(0), n, E0, E1)
            fx = sp_(fx, comb(4) + mix(1), n, E1, E2)
            fx = sp_(fx, fin_a(0) + fin_b(0) + mix(2) + fin_c(0) + fin_a(1) + fin_b(1) + fin_a(2) + fin_c(1) + fin_b(2) + fin_a(3) + fin_c(2) + fin_b(3) + fin_a(4) + fin_c(3), n, E2, n)
        else:
            fx = spread(fx, wt, n, 2, 64)
            fx = spread(fx, mix(0) + comb(3), n, W0, W1)
            fx = spread(fx, mix(1) + comb(4), n, W1, W2)
            fx = spread(fx, mix(2) + fin_a(0) + fin_b(0), n, W2, 256)
            fx = spread(fx, fin_a(1) + fin_c(0) + fin_b(1) + fin_a(2) + fin_c(1) + fin_b(2) + fin_a(3) + fin_c(2) + fin_b(3) + fin_a(4) + fin_c(3), n, 256, n)
        where = lambda txt: [g for g in range(n) for y in oplist(fx[g]) if y.text == txt][0]
        for q in range(NH):
            m = mix(q); assert where(m[16]) >= 64*(q+1)+6 and where(m[-1]) < 64*(q+2), (q, where(m[16]), where(m[-1]))
        assert where(fin_b(3)[0]) >= 256+8
        for g in range(n):
            qb, G, nb, h = g//64, (g % 64)//8, (g % 8)//2, g & 1
            h ^= nb & self.SN
            if self.S2 and not G & 1: nb = 3-nb
            kk = 2*G + h; i = 16*qb + kk; D = vr(A1 + 16*(qb & 1) + 4*nb, 4)
            o.append(Op('%s %s, %s, %s, %s' % (MF, D, self.wreg(kk, nb), vr(BR+4*(i % 8),4), D if (G or g & 1) else '0'), need=[('B2', i | 1)]))
            o += oplist(fx[g])
            if stamp and g == 128: o.append(stamp_op(6))
        if stamp: o.append(stamp_op(8))
        if cfg.get('show'): print('gemm2 est', est_cycles([Op(y.text, need=y.need if kind_of(y) != 'M' else []) for y in oplist(o)]))
        o += ['s_nop 5'] + fin_b(NQ-1, True) + fin_c(NQ-1)
        tr.run('t', o); trq.run('t', o)
        tr.emit(a, 'g1p'); a.label('L_tail2'); tr.emit(a, 't')
        a('s_branch L_k2_fin')
        a.label('L_tailq'); tr.emit(a, 'g1q'); a('s_branch L_tail2')
        self.spin('P', 9)
        if self.TWO: self.spin('B', 9)
        if self.EA: self.spin('A', 248)
        if cfg.get('xp_noc'): a.label('L_spinC'); a('s_branch L_okC')
        else: self.spin('C', 250)
    def vread(self, db, par):
        return [Op('ds_read_b64_tr_b16 %s, v%d offset:%d' % (ar(self.A_RP+4*(db % self.RP)+2*jj,2), self.V_A2 if db & 1 else self.V_A, par*32768 + jj*16384 + (db >> 1)*1024), prod=('V', par, db)) for jj in range(2)]
    def preads(self, qb, par):
        if not self.PL: return [self.pread(qb, par)]
        o = 4*(par*self.NQ+qb)
        return [Op('ds_read2st64_b32 %s, v%d offset0:%d offset1:%d' % (ar(self.A_PP+4*self.NQ*par+4*qb+2*h,2), self.V_PA, o+2*h, o+2*h+1), prod=('P', par, qb)) for h in range(2)]
    def pread(self, qb, par):
        return Op('ds_read_b128 %s, v%d offset:%d' % (ar(self.A_PP+4*self.NQ*par+4*qb,4), self.V_PA, (par*self.NQ+qb)*1024), prod=('P', par, qb))
    def pv_body(self, par):
        NQ = self.NQ; n = self.n; cfg = self.cfg
        G = Gaps(n)
        LA = min(self.RP - 1, cfg['lap']); W = cfg['pw']; PP = cfg.get('kpf', 0) and cfg.get('kpp', 1)
        for db in range(16):
            d2 = db + LA; p2 = par
            if d2 >= 16: d2 -= 16; p2 ^= 1
            VD = cfg.get('vd', 1) if db < 15 else 1
            if d2 == 0 and par == 1: G.put(Task('V', 'v_xor_b32 v%d, 0x10000, v%d' % (self.V_A, self.V_A)), NQ*(db-1)+VD)
            if d2 == 1 and par == 1: G.put(Task('V', 'v_xor_b32 v%d, 0x10000, v%d' % (self.V_A2, self.V_A2)), NQ*(db-1)+VD)
            r = self.vread(d2, p2)
            G.put(Task('R', r[0]), NQ*db); G.put(Task('R', r[1]), NQ*db+VD)
            if (db+1) % W == 0 and db < 15:
                G.put(Task('S', Op(None, need=[('V', par, db+W)])), NQ*db)
        gb = n - cfg['bp']
        while not G.fits(gb, 'X'): gb -= 1
        assert gb > NQ*(15-LA)+1, (gb, LA)
        bar = G.put(Task('X', [Op(None, need=[('V', par, 15)], extra='vmcnt(%d)' % (cfg['dv'] + (1 if PP else 0)) if cfg['dq'] < 16 else ''), 's_barrier']), gb)
        prev = fr = G.asap(Task('R', self.flag_read(par), [(bar,1)]))
        for qb in range(NQ):
            for x in self.preads(qb, par ^ 1): prev = G.asap(Task('R', x, [(prev,1)]))
        fw = G.put(Task('SV', [Op(None, need=[('F', par)]), 'v_cmp_eq_u32 vcc, s%d, v%d' % (S_T, self.V_F)]), n-3)
        G.put(Task('SSS', ['s_add_u32 s%d, s%d, 1' % (S_T, S_T), ('s_cmp_lg_u32 s%d, s%d' if par else 's_cmp_eq_u32 s%d, s%d') % (S_T, S_N),
                           Op(None, need=[('P', par^1, NQ-1), ('V', par^1, W-1)])]), n-2)
        G.put(Task('B', ['s_cbranch_vccnz L_prec%d' % par, 'L_pback%d:' % par]), n-1)
        dd = self.place_dma_at(G, cfg['dq'], cfg['pd'], 0)() if 'pd' in cfg else self.place_dma(G, cfg['dq'], 16-cfg['dq'], cfg['dp0'], cfg['dpend'], False, (15-cfg['dq']-cfg['dv']+cfg.get('kpo', cfg['dv'])) if PP else None)
        assert all(t.gap < gb for t, _ in dd)
        if cfg.get('show'): print('PV', par, G.show())
        ops = []
        for g in range(n):
            if self.PV2:
                assert LA <= 6
                blk = g//(2*NQ); w = g % (2*NQ); qb = w//2; db = 2*blk + ((w & 1) ^ (qb & 1))
                if blk & 1: qb = NQ-1-qb
                need = [('V', par, db)] + ([('P', par, qb)] if blk == 0 else [])
            else:
                db, qb = g//NQ, g % NQ
                need = []
                if qb == 0: need.append(('V', par, db))
                if db & self.SN: qb = NQ-1-qb
                if g < NQ: need.append(('P', par, qb))
            D = self.O(8*qb + (db >> 1), 4*(db & 1), 4)
            ops.append(Op('%s %s, %s, %s, %s' % (MF, D, ar(self.A_RP+4*(db % self.RP),4), ar(self.A_PP+4*NQ*par+4*qb,4), D), need=need))
            ops += G.ops(g)
        return ops
    def pv_path(self):
        a = self.a; NQ = self.NQ; cfg = self.cfg; T = self.V_T
        b = Asm()
        if self.T1L:
            for pre, ins in self.dma(0, 16):
                for x in pre: b(x)
                b(ins)
            for it in self.dma_adv():
                for x in it: b(x)
        KP0 = cfg.get('kpf', 0)+1 if cfg.get('kpf', 0) else cfg.get('kp0', 0)
        if KP0:
            a('s_and_b32 s%d, s%d, 7', S_T2, S_QT); a('s_lshl_b32 s%d, s%d, 11', S_T2, S_T2); a('v_lshl_add_u32 v10, v0, 5, s%d', S_T2)
            a('v_add_u32 v22, %d, v10', 32768*cfg.get('kpf', 0))
            for i in range(KP0):
                b('s_add_u32 s%d, s%d, %d', S_T2, S_SRC, 32768*i); b('buffer_load_dword v11, v10, s[%d:%d], s%d offen', S_WS, S_WS+3, S_T2)
        for r in range(4): a('v_mov_b32 v%d, 0', 12+r)
        a('s_nop 1')
        z = ['v_mfma_f32_32x32x16_bf16 %s, v[12:15], v[12:15], 0' % self.O(f, 0, 16) for f in range(0, 8*NQ, 2)]
        for l in b.lines:
            if l.startswith('buffer') and z: a(z.pop(0))
            a(l)
        for l in z: a(l)
        F = self.V_F
        a('v_lshrrev_b32 v%d, 4, v0', T); a('v_sub_u32 v%d, 0, v%d', T, T); a('v_bfe_u32 v%d, v0, 1, 1', F)
        a('v_xor_b32 v%d, v%d, v%d', T, T, F); a('v_and_b32 v%d, 3, v%d', T, T); a('v_lshlrev_b32 v%d, 4, v%d', T, T)
        a('v_lshrrev_b32 v%d, 2, v0', F); a('v_lshl_add_u32 v%d, v%d, 6, v%d', T, F, T)
        a('v_and_b32 v%d, 1, v0', F); a('v_lshl_add_u32 v%d, v%d, 3, v%d', T, F, T)
        a('s_lshl_b32 s%d, s%d, 13', S_T2, S_J); a('v_add_u32 v%d, s%d, v%d', self.V_A, S_T2, T)
        a('v_xor_b32 v%d, 32, v%d', self.V_A2, self.V_A)
        a('v_lshlrev_b32 v%d, %d, v0', self.V_PA, 2 if self.PL else 4); a('v_add_u32 v%d, %d, v%d', self.V_PA, L_P, self.V_PA)
        if cfg.get('stamp') and cfg.get('sthead') == 1: stamp_mid(a, 8)
        if self.T1L: a('s_waitcnt vmcnt(%d)', KP0)
        a('s_barrier')
        for pre, ins in self.dma(0, 16):
            for x in pre: a(x)
            a(ins)
        for it in self.dma_adv():
            for x in it: a(x)
        for db in range(min(self.RP-1, cfg['lap'])):
            for o in self.vread(db, 0): a(o.text)
        a('s_waitcnt vmcnt(%d)', cfg['dv']); a('s_barrier')
        a(self.flag_read(0).text)
        for qb in range(NQ): [a(x.text) for x in self.preads(qb, 0)]
        if cfg.get('stamp'): stamp_mid(a, 9)
        a('s_mov_b32 s%d, 2', S_T); a('s_add_u32 s%d, s%d, 2', S_N, S_N)
        a('s_waitcnt lgkmcnt(0)')
        a('v_cmp_eq_u32 vcc, 1, v%d', self.V_F); a('s_cbranch_vccnz L_prec1')
        b0 = self.pv_body(0); b1 = self.pv_body(1)
        a('.p2align 6') if cfg.get('align',1) else None
        for i in range(cfg.get('psh', 0)): a('s_nop 0')
        a.label('L_ploop')
        resolve(a, b0, b1)
        a('s_cbranch_scc1 L_pend')
        resolve(a, b1, b0)
        a('s_cbranch_scc1 L_ploop')
        a.label('L_pend')
        if cfg.get('stamp'): stamp_mid(a, 10)
        if cfg.get('fuse3', 1): self.pv_tail(); (self.tail2 if cfg.get('hyb', 1) else self.tail)()
        else: self.pv_tail_old()
        a.label('L_prec0'); a('s_mov_b32 s%d, 0', S_RET); a('s_branch L_precx')
        a.label('L_prec1'); a('s_mov_b32 s%d, 1', S_RET)
        a.label('L_precx')
        a('s_waitcnt lgkmcnt(0)'); a('s_barrier')
        X = self.V_PX
        self.read_x(X)
        for qb in range(NQ):
            a('v_max3_f32 v%d, v%d, v%d, 0', X+2*qb, X+2*qb, X+2*qb+1)
            a('v_sub_f32 v%d, 0, v%d', X+2*qb, X+2*qb); a('v_exp_f32 v%d, v%d', X+2*qb, X+2*qb)
        a('s_nop 7')
        E = 24
        for f in range(8*NQ):
            qb = f//8
            if f < self.NFV:
                for r in range(8): a('v_mul_f32 %s, %s, v%d', self.O(f, r), self.O(f, r), X+2*qb)
            else:
                for r in range(8): a('v_accvgpr_read_b32 v%d, %s', E+r, self.O(f, r))
                for r in range(8): a('v_mul_f32 v%d, v%d, v%d', E+r, E+r, X+2*qb)
                for r in range(8): a('v_accvgpr_write_b32 %s, v%d', self.O(f, r), E+r)
        a('s_barrier')
        a('s_cmp_eq_u32 s%d, 0', S_RET); a('s_cbranch_scc0 L_precy')
        for qb in range(NQ): [a(x.text) for x in self.preads(qb, 1)]
        a('s_waitcnt lgkmcnt(0)'); a('s_cmp_eq_u32 s%d, s%d', S_T, S_N); a('s_branch L_pback0')
        a.label('L_precy')
        for qb in range(NQ): [a(x.text) for x in self.preads(qb, 0)]
        a('s_waitcnt lgkmcnt(0)'); a('s_cmp_lg_u32 s%d, s%d', S_T, S_N); a('s_branch L_pback1')
    def qprime(self):
        a = self.a; NQ = self.NQ; n = self.n; T = self.V_T
        assert NQ == 5
        RA = 64; DD = 16; PK = 8; BA = 2; WA = 56; S_AP = S_T3; S_X = S_T1
        ONE = self.cfg.get('one', 1)
        tr = self.tr0 if ONE else Trace(); ops = []
        LN2 = self.cfg.get('ln2', 1); KSC = ' sc1' if (LN2 and self.cfg.get('ksc', 1)) else ''
        Xs = [128+16*q for q in range(5)]
        if ONE: pass
        elif LN2:
            ops += ln_lane_addr(58, 59, S_W, 1)
            ops += ['s_lshl_b32 s%d, s%d, 14' % (S_X, S_RB), 's_lshl_b32 s%d, s%d, 9' % (S_T2, S_SP), 's_add_u32 s%d, s%d, s%d' % (S_T0, S_X, S_T2), 's_xor_b32 s%d, s%d, 512' % (S_T2, S_T0)]
            ops += ['s_mov_b32 s60, s%d' % S_T0, 's_mov_b32 s61, s%d' % S_T2, 'v_mov_b32 v55, v58']
            X0 = self.cfg.get('x0', 3) if self.cfg.get('lnb', 1) else 5
            xlate = []
            for q in range(5):
                l = [Op('buffer_load_dwordx4 %s, v55, s[12:15], s%d offen offset:%d' % (vr(Xs[q]+4*k,4), 61 if k & 2 else 60, (k & 1)*256), prod=(('X', q), k)) for k in range(4)]
                if q < 4: l += ['s_add_u32 s60, s60, 16384', 's_add_u32 s61, s61, 16384']
                if q < X0: ops += l
                else: xlate.append(l)
        else:
            ops += ['s_mul_i32 s%d, s%d, 20480' % (S_T2, S_W), 's_lshl_b32 s%d, s%d, 14' % (S_X, S_RB), 's_add_u32 s%d, s%d, s%d' % (S_X, S_X, S_T2)]
            for d in range(20):
                if d % 4 == 0: ops += ['s_add_u32 m0, s%d, %d' % (S_T2, L_ST + d*1024), 's_add_u32 s%d, s%d, %d' % (S_T0, S_X, d*1024)]
                ops.append(Op('buffer_load_dwordx4 v%d, s[%d:%d], s%d offen offset:%d lds' % (self.V_L16, S_WS, S_WS+3, S_T0, (d%4)*1024), prod='XS'))
        ops += ['s_mov_b32 s%d, s6' % S_AP] if ONE else ['s_lshl_b32 s%d, s%d, 17' % (S_AP, S_W), 's_add_u32 s%d, s%d, 0x%x' % (S_AP, S_AP, WS_MF)]
        RO = 16 if ONE else 0
        def aload(f):
            o = [Op('buffer_load_dwordx4 %s, v%d, s[%d:%d], s%d offen offset:%d%s' % (vr(RA+4*((f+RO) % 32),4), self.V_L16, S_WS, S_WS+3, S_AP, (f%4)*1024, ' sc1' if ONE else ''), prod=('A', f))]
            return o, (['s_add_u32 s%d, s%d, 4096' % (S_AP, S_AP)] if f % 4 == 3 else [])
        LNB = LN2 and self.cfg.get('lnb', 1)
        A0 = self.cfg.get('qa0', 0 if LNB else (16 if LN2 else 8))
        if ONE: A0 = self.cfg.get('qla', 16)
        for f in range(14 if ONE else 0, A0):
            o, s_ = aload(f); ops += o + s_
        if self.cfg.get('stamp') and self.cfg.get('sthead') == 1: ops.append(stamp_op(1))
        tr.run('pre', ops); tr.emit(a, 'pre')
        if self.cfg.get('fuse3', 1): self.tail_sgprs()
        h_frag_addr(a, BA, T); a('v_add_u32 v%d, %d, v%d', BA, L_ST, BA); a('v_add_u32 v%d, 0x10000, v%d', BA+1, BA)
        a('s_lshl_b32 s%d, s%d, 12', S_T2, S_W); a('s_add_u32 s%d, s%d, %d', S_T2, S_T2, L_ST)
        a('v_add_u32 v%d, s%d, v%d', WA, S_T2, self.V_L16); a('v_add_u32 v%d, 0x10000, v%d', WA+1, WA)
        a('v_mov_b32 v%d, -1', T); a('ds_write_b32 v%d, v%d', self.V_FA, T); a('s_waitcnt lgkmcnt(0)')
        a('s_lshl_b32 s%d, s%d, 14', S_T2, S_W); a('s_add_u32 s%d, s%d, s%d', S_X, S_SRC, S_T2)
        def pos(g):
            return self.pos(g)
        def bread(g):
            qb, kk = pos(g); off = qb*16384 + kk*1024
            return Op('ds_read_b128 %s, v%d offset:%d' % (self.R(4*(kk*NQ+qb),4), BA + off//65536, off % 65536), prod=('B', g))
        def ep(i):
            o = []
            for qb in range(NQ):
                D = DD + 20*(i & 1) + 4*qb; P = PK + 2*(qb % 4); off = qb*16384 + (i >> 1)*1024 + 8*(i & 1)
                o += ['v_cvt_pk_bf16_f32 v%d, v%d, v%d' % (P, D, D+1), 'v_cvt_pk_bf16_f32 v%d, v%d, v%d' % (P+1, D+2, D+3),
                      'ds_write_b64 v%d, %s offset:%d' % (WA + off//65536, vr(P,2), off % 65536)]
            return o
        PRE = 10
        ops = []
        if LN2 and not ONE:
            ops += ln_h_addr(58, 59, S_W) + ['s_lshl_b32 s%d, s%d, 13' % (S_T0, S_SP), 'v_add_u32 v58, s%d, v58' % S_T0, 'v_add_u32 v60, %d, v58' % L_ST, 'v_xor_b32 v61, 0x2000, v60',
                                             'v_add_u32 v62, 0x10000, v60', 'v_add_u32 v63, 0x10000, v61', 's_lshl_b32 s%d, s%d, 14' % (S_RET, S_RB)]
            def wr(q, k, reg):
                off = q*16384 + (k & 1)*4096
                r = ['ds_write_b128 v%d, %s offset:%d' % (60 + (k >> 1) + 2*(off//65536), vr(reg,4), off % 65536)]
                if k < 2 and not (self.cfg.get('noxst') and q): r += ['s_add_u32 s%d, s%d, %d' % (S_T0 if q & 1 else S_SPIN, S_RET, off), Op('buffer_store_dwordx4 %s, v58, s[%d:%d], s%d offen%s' % (vr(reg,4), S_WS, S_WS+3, S_T0 if q & 1 else S_SPIN, '' if self.cfg.get('xplain') else ' sc1'), prod='XST')]
                return r
            if LNB:
                cnt = self.cfg.get('lnx', [0, 0, 6, 5, 5]); ex = []
                for q in range(5):
                    e = xlate.pop(0) if xlate else []
                    for c in range(cnt[q]):
                        assert A0 < 16 + 4*q
                        o_, s_ = aload(A0); e += o_ + s_; A0 += 1
                    ex.append(e)
                ops += ln80b(Xs, 16, 48, 'X', S_MK, 54, wr, ex)
            else: ops += ln80(Xs, [16, 208], [48, 240], 'X', S_MK, wr)
            if self.cfg.get('stamp') and self.cfg.get('sthead'): ops.append(stamp_op(5))
        if LN2:
            ops += ['s_lshl_b32 s%d, s3, 7' % S_RET, 's_add_u32 s%d, s%d, 0x%x' % (S_RET, S_RET, WS_FLG + 128*FLG_X),
                    's_mul_i32 s%d, s%d, 50' % (S_T0, S_SP), 'v_min_u32 v58, 51, v0', 'v_add_u32 v58, s%d, v58' % S_T0, 'v_min_u32 v58, 0x63, v58',
                    'v_lshl_add_u32 v58, v58, 1, s%d' % S_B, 's_xor_b32 s%d, s3, 2' % S_T0, 'v_cmp_eq_u32 vcc, 63, v0', 'v_mov_b32 v59, s%d' % S_T0, 's_nop 0', 'v_cndmask_b32 v58, v58, v59, vcc', 'v_lshlrev_b32 v58, 7, v58', 'v_add_u32 v58, 0x%x, v58' % (WS_FLG + 128*FLG_X), 'v_min_u32 v60, 1, v0', 'v_lshlrev_b32 v60, 30, v60', 'v_mov_b32 v62, s7', 's_getreg_b32 s%d, hwreg(HW_REG_XCC_ID, 0, 4)' % S_SAME, 'v_mov_b32 v63, s%d' % S_SAME,
                    's_cmp_eq_u32 s%d, 0' % S_W, 's_cselect_b32 s%d, s%d, 0x%x' % (S_RET, S_RET, WS_SIZE)]
        ops += [Op('s_barrier', need=['ALLL'] if LN2 else ['XS'])] + [bread(g) for g in range(PRE)]
        QLA = self.cfg.get('qla', 16); assert A0 <= QLA
        for f in range(A0, QLA):
            o, s_ = aload(f); ops += o + s_
        for i in range(8):
            if self.cfg.get('stamp') and self.cfg.get('sthead') == 1 and i in (0,1,2,6): ops.append(stamp_op({0:2,1:3,2:4,6:6}[i]))
            if self.cfg.get('stamp') and self.cfg.get('sthead') == 2 and i == 1: ops.append(stamp_op(8))
            fx = [[] for _ in range(n)]
            for G in range(8):
                for h in range(2):
                    f = 16*i + QLA + 2*G + h; gp = 2*NQ*G + 5*h
                    if f < 128:
                        o, s_ = aload(f); fx[gp] += o; fx[gp+1] += s_
                    d = 16*(i-6) + 2*G + h - self.cfg.get('qd0', 12)
                    if 0 <= d < 16:
                        if d % 4 == 0: fx[gp+1] += ['s_add_u32 m0, s%d, %d' % (S_T2, d*1024), 's_add_u32 s%d, s%d, %d' % (S_T0, S_X, d*1024)]
                        fx[gp+2].append('buffer_load_dwordx4 v%d, s[%d:%d], s%d offen offset:%d%s lds' % (self.V_L16, S_WS, S_WS+3, S_T0, (d%4)*1024, KSC))
                nxt = 16*i + 2*G + 3
                if nxt < 128: fx[2*NQ*G + 8].append(Op(None, need=[('A', nxt)]))
            if i == 0:
                for g in range(n - PRE): fx[g].insert(0, bread(g+PRE))
            if i == 1: fx[2].append('s_barrier')
            if LN2 and i == self.cfg.get('xfb', 2):
                fx[72].append(Op('s_barrier', need=['XST'])); fx[73].append('buffer_store_dwordx2 v[62:63], v60, s[%d:%d], s%d offen sc1' % (S_WS, S_WS+3, S_RET))
            if LN2 and i == 5: fx[33].append(self.poll_load(58, 'XF'))
            if LN2 and i == 6:
                fx[1].append(Op('v_cmp_ne_u32 vcc, s7, v%d' % self.V_F, need=['XF'])); fx[3] += ['s_cbranch_vccnz L_spinX', 'L_okX:']
                fx[13].append(Op('buffer_load_dword v59, v58, s[%d:%d], 0 offen offset:4 sc1' % (S_WS, S_WS+3), prod='XC'))
            if i: fx = spread(fx, ep(i-1), n, 4)
            for g in range(n):
                qb, kk = pos(g); D = vr(DD + 20*(i & 1) + 4*qb, 4)
                need = [('A', 16*i+kk)] + ([('B', g | 1)] if i == 0 else [])
                ops.append(Op('%s %s, %s, %s, %s' % (MF, D, vr(RA+4*((16*i+kk+RO) % 32),4), self.R(4*(kk*NQ+qb),4), D if (g >= 2*NQ or g & 1) else '0'), need=need))
                ops += oplist(fx[g])
        ops += ep(7) + [Op('s_barrier', need=['ALLV', 'ALLL'])]
        if LN2: ops += ['v_readlane_b32 s%d, v59, 63' % S_T0, 's_nop 0', 's_cmp_eq_u32 s%d, s%d' % (S_T0, S_SAME), 's_cselect_b32 s%d, %d, 0' % (S_SAME, 0 if self.cfg.get('forceslow') else 1)]
        tr.run('main', ops); tr.emit(a, 'main')
    def qprime6(self):
        a = self.a; NQ = self.NQ; n = self.n; T = self.V_T; cfg = self.cfg
        RA = 64; DD = 16; BA = 2; WA = 56; WS0 = 8; S_AP = S_T3; S_X = S_T1; S_QO = 60; S_QI = 61; S_QL = 62; S_QF = 63; S_J1 = 44
        PKF = 64
        T1L = cfg.get('t1l', 1); ND = 8 if T1L else 16; QW = cfg.get('qw', 0); XM = cfg.get('xmrg', 0)
        NB = 6; NF = 16*NB; QLA = 16; st1 = cfg.get('stamp') and cfg.get('sthead') == 1; st2 = cfg.get('stamp') and cfg.get('sthead') == 2
        tr = self.tr0
        reg = lambda f: vr(128 + 4*(f % 16) if (f//16) % 2 == 0 or (f % 16) < 5 else 64 + 4*(f % 16), 4)
        def aload(f):
            o = [Op('buffer_load_dwordx4 %s, v%d, s[%d:%d], s%d offen offset:%d sc1' % (self.areg(f), self.V_L16, S_WS, S_WS+3, S_AP, (f%4)*1024), prod=('A', f))]
            if f == 31: return o, ['s_mov_b32 s%d, s%d' % (S_AP, S_J1)]
            return o, (['s_add_u32 s%d, s%d, 4096' % (S_AP, S_AP)] if f % 4 == 3 else [])
        self.areg = lambda f: vr(84 + 4*((f + 11) % 27), 4)
        ops = ['s_mov_b32 s%d, s6' % S_AP]
        for f in range(14, QLA):
            o, s_ = aload(f); ops += o + s_
        t = Asm(); h_frag_addr(t, BA, T); ops += t.lines + ['v_add_u32 v%d, %d, v%d' % (BA, L_ST, BA), 'v_add_u32 v%d, 0x10000, v%d' % (BA+1, BA)]
        def pos(g):
            return self.pos(g)
        def bread(g):
            qb, kk = pos(g); off = qb*16384 + kk*1024
            return Op('ds_read_b128 %s, v%d offset:%d' % (self.R(4*(kk*NQ+qb),4), BA + off//65536, off % 65536), prod=('B', g))
        PRE = 10
        ops += [Op('s_barrier', need=['ALLL'])] + [bread(g) for g in range(PRE)]
        t = Asm(); sv = self.a; self.a = t; self.tail_sgprs(); self.a = sv
        su = t.lines + ['s_lshl_b32 s%d, s%d, 17' % (S_J1, S_W), 's_add_u32 s%d, s%d, 0x%x' % (S_J1, S_J1, WS_MF + 32768),
              's_lshl_b32 s%d, s%d, 12' % (S_T2, S_W), 's_add_u32 s%d, s%d, %d' % (S_T2, S_T2, L_ST),
              'v_add_u32 v%d, s%d, v%d' % (WA, S_T2, self.V_L16), 'v_add_u32 v%d, 0x10000, v%d' % (WA+1, WA),
              's_mul_i32 s%d, s%d, 3072' % (S_T0, S_SP), 'v_add_u32 v%d, s%d, v%d' % (WS0, S_T0, WA), 'v_add_u32 v%d, s%d, v%d' % (WS0+1, S_T0, WA+1),
              's_sub_u32 s%d, s%d, s%d' % (S_QL, S_T2, S_T0), 's_add_u32 s%d, s%d, 3072' % (S_QL, S_QL),
              's_lshl_b32 s%d, s3, 2' % S_T0, 's_add_u32 s%d, s%d, s%d' % (S_T0, S_T0, S_W), 's_mul_i32 s%d, s%d, 5120' % (S_QO, S_T0), 's_add_u32 s%d, s%d, 0x%x' % (S_QO, S_QO, WS_QX),
              's_xor_b32 s%d, s%d, 8' % (S_T0, S_T0), 's_mul_i32 s%d, s%d, 5120' % (S_QI, S_T0), 's_add_u32 s%d, s%d, 0x%x' % (S_QI, S_QI, WS_QX),
              's_lshl_b32 s%d, s3, 7' % S_RET, 's_add_u32 s%d, s%d, 0x%x' % (S_QF, S_RET, WS_FLG + 128*FLG_Q), 's_add_u32 s%d, s%d, 0x%x' % (S_RET, S_RET, WS_FLG + 128*FLG_X),
              ] + (['s_lshl_b32 s%d, s3, 2' % S_QF, 's_add_u32 s%d, s%d, s%d' % (S_QF, S_QF, S_W), 's_lshl_b32 s%d, s%d, 7' % (S_QF, S_QF), 's_add_u32 s%d, s%d, 0x%x' % (S_QF, S_QF, WS_FLG + 128*FLG_QW),
                    'v_min_u32 v63, 1, v0', 'v_lshlrev_b32 v63, 30, v63'] if QW else []) + [
              's_xor_b32 s%d, s%d, %d' % (S_T0, S_QF, 1024 if QW else 256), 'v_mov_b32 v59, s%d' % S_T0,
              's_mul_i32 s%d, s%d, 50' % (S_T0, S_SP), 'v_min_u32 v58, 51, v0', 'v_add_u32 v58, s%d, v58' % S_T0, 'v_min_u32 v58, 0x63, v58',
              'v_lshl_add_u32 v58, v58, 1, s%d' % S_B, 'v_lshlrev_b32 v58, 7, v58', 'v_add_u32 v58, 0x%x, v58' % (WS_FLG + 128*FLG_X),
              'v_or_b32 v60, s%d, v0' % S_W, 'v_min_u32 v60, 1, v60', 'v_lshlrev_b32 v60, 30, v60', 'v_mov_b32 v61, s7', 'v_mov_b32 v62, -1',
              's_lshl_b32 s%d, s%d, %d' % (S_T2, S_W, 13 if T1L else 14), 's_add_u32 s%d, s%d, s%d' % (S_X, S_SRC, S_T2)]
        assert (WS_FLG + 128*FLG_Q) % 512 == 0
        ops += [x for x in su if x.startswith('s_') and False]
        def ep(i):
            o = []
            for qb in range(NQ):
                D = DD + 20*(i & 1) + 4*qb
                if i < 2: P = PKF + 4*qb + 2*i; off = qb*16384 + 8*i; wa = WS0
                else: P = 10 + 2*(qb % 3); off = qb*16384 + (i >> 1)*1024 + 8*(i & 1); wa = WA
                o += ['v_cvt_pk_bf16_f32 v%d, v%d, v%d' % (P, D, D+1), 'v_cvt_pk_bf16_f32 v%d, v%d, v%d' % (P+1, D+2, D+3),
                      'ds_write_b64 v%d, %s offset:%d' % (wa + off//65536, vr(P,2), off % 65536)]
                if i == 1:
                    if qb == 4: o.append('s_add_u32 s%d, s%d, 4096' % (S_QO, S_QO))
                    o.append(Op('buffer_store_dwordx4 %s, v%d, s[%d:%d], s%d offen offset:%d sc1' % (vr(PKF+4*qb,4), self.V_L16, S_WS, S_WS+3, S_QO, (qb % 4)*1024), prod='QST'))
            return o
        XB = cfg.get('q6x', (1, 72)); QB = cfg.get('q6q', (3, 22)); XP = cfg.get('q6xp', (3, 43)); XC = cfg.get('q6xc', (4, 1))
        QP = cfg.get('q6qp', (4, 33)); QC = cfg.get('q6qc', (5, 1)); D0 = cfg.get('q6d', 12 if T1L else 4)
        fl = lambda sreg: 'buffer_store_dword v61, v60, s[%d:%d], s%d offen sc1' % (S_WS, S_WS+3, sreg)
        nf = [QLA]
        for i in range(NB):
            if st1 and i in (0,1,2,4): ops.append(stamp_op({0:2,1:3,2:4,4:6}[i]))
            if st2 and i == 1: ops.append(stamp_op(8))
            fx = [[] for _ in range(n)]
            for G in range(8):
                for h in range(2):
                    gp = 2*NQ*G + 5*h
                    if nf[0] < NF:
                        o, s_ = aload(nf[0]); fx[gp] += o; fx[gp+1] += s_; nf[0] += 1
                    if i == 1 and h == 1 and G < cfg.get('q6r', 0):
                        o, s_ = aload(nf[0]); fx[gp+2] += o; fx[gp+3] += s_; nf[0] += 1
                    assert nf[0] - (16*i + 2*G) <= 27
                    d = 16*(i-4) + 2*G + h - D0
                    if 0 <= d < ND:
                        if d % 4 == 0: fx[gp+1] += ['s_add_u32 m0, s%d, %d' % (S_T2, d*1024), 's_add_u32 s%d, s%d, %d' % (S_T0, S_X, d*1024)]
                        fx[gp+2].append('buffer_load_dwordx4 v%d, s[%d:%d], s%d offen offset:%d sc1 lds' % (self.V_L16, S_WS, S_WS+3, S_T0, (d%4)*1024))
                nxt = 16*i + 2*G + 3
                if nxt < NF: fx[2*NQ*G + 8].append(Op(None, need=[('A', nxt)]))
            if i == 0:
                for g in range(n - PRE): fx[g].insert(0, bread(g+PRE))
            if i == 1:
                fx[2].append(Op('s_barrier', need=['XST'] if XM else [])); fx[3].append('ds_write_b32 v%d, v62' % self.V_FA)
                if XM: fx[4].append(fl(S_RET))
            if i == XB[0] and not XM: fx[XB[1]].append(Op('s_barrier', need=['XST'])); fx[XB[1]+1].append(fl(S_RET))
            if i == QB[0]:
                if QW: fx[QB[1]].append(Op(None, need=['QST'])); fx[QB[1]+1].append(fl(S_QF).replace('v60', 'v63'))
                else: fx[QB[1]].append(Op('s_barrier', need=['QST'])); fx[QB[1]+1].append(fl(S_QF))
            if i == XP[0]: fx[XP[1]].append(self.poll_load(58, 'XF'))
            if i == XC[0]: fx[XC[1]].append(Op('v_cmp_ne_u32 vcc, s7, v%d' % self.V_F, need=['XF'])); fx[XC[1]+2] += ['s_cbranch_vccnz L_spinX', 'L_okX:']
            if i == QP[0]: fx[QP[1]].append(self.poll_load(59, 'QF'))
            if i == QC[0]:
                fx[QC[1]].append(Op('v_cmp_ne_u32 vcc, s7, v%d' % self.V_F, need=['QF'])); fx[QC[1]+2] += ['s_cbranch_vccnz L_spinQ', 'L_okQ:']
                g0 = max(QC[1]+4, 5*(D0 + ND - 16*(i-4)))
                g0 += (-g0) % 5
                for qb in range(NQ):
                    fx[g0+5*qb-1] += ['s_add_u32 m0, s%d, %d' % (S_QL, qb*16384), 's_add_u32 s%d, s%d, %d' % (S_T0, S_QI, qb*1024)]
                    fx[g0+5*qb].append('buffer_load_dwordx4 v%d, s[%d:%d], s%d offen sc1 lds' % (self.V_L16, S_WS, S_WS+3, S_T0))
            fx = spread(fx, ep(i-1), n, 4) if i else spread(fx, su, n, 0, None, 2)
            for g in range(n):
                qb, kk = pos(g); D = vr(DD + 20*(i & 1) + 4*qb, 4)
                need = [('A', 16*i+kk)] + ([('B', g | 1)] if i == 0 else [])
                ops.append(Op('%s %s, %s, %s, %s' % (MF, D, self.areg(16*i+kk), self.R(4*(kk*NQ+qb),4), D if (g >= 2*NQ or g & 1) else '0'), need=need))
                ops += oplist(fx[g])
        ops += ep(NB-1) + [Op('s_barrier', need=['ALLV', 'ALLL'])]
        tr.run('main', ops); tr.emit(a, 'main')
    def gen_body(self):
        a = self.a; cfg = self.cfg; NQ = self.NQ; NS = self.NS; T = self.V_T
        a('s_and_b32 s%d, s3, 1', S_B); a('s_bfe_u32 s%d, s3, 0x10001', S_SP); a('s_lshr_b32 s%d, s3, 2', S_QT)
        a('s_mul_i32 s%d, s%d, %d', S_RB, S_QT, NQ); a('s_sub_u32 s%d, 249, s%d', S_NV, S_RB)
        a('s_mul_i32 s%d, s%d, 250', S_T0, S_B); a('s_add_u32 s%d, s%d, s%d', S_RB, S_RB, S_T0)
        per = cfg.get('per', 63)
        a('s_mul_i32 s%d, s%d, %d', S_T1, S_SP, per); a('s_sub_u32 s%d, 125, s%d', S_N, S_T1); a('s_min_u32 s%d, s%d, %d', S_N, S_N, per)
        a('s_mul_i32 s%d, s%d, 125', S_T0, S_B); a('s_add_u32 s%d, s%d, s%d', S_T1, S_T1, S_T0)
        a(('s_lshr_b32 s%d, s%d, 1' if cfg.get('roles', 0) else 's_and_b32 s%d, s%d, 1') % (S_J, S_W))
        a('s_lshl_b32 s%d, s%d, 15', S_SRC, S_T1); a('s_add_u32 s%d, s%d, s%d', S_T1, S_T1, S_N); a('s_lshl_b32 s%d, s%d, 15', S_END, S_T1)
        assert WS_XA == 0
        a('s_mov_b32 s%d, 0x%x', S_THR, 0x40004000 if self.W2 else f2u(2.0**cfg.get('thr', 40)))
        a('v_mov_b32 v%d, %d', self.V_FA, L_FLAG)
        a('s_lshl_b32 s%d, s%d, 2', S_T2, S_J); a('s_add_u32 s%d, s%d, %d', S_T2, S_T2, L_X); a('v_lshl_add_u32 v%d, v0, 3, s%d', self.V_XA, S_T2)
        if cfg.get('one', 1) and cfg.get('q6', 1): self.qprime6()
        else: self.qprime()
        if cfg.get('stamp'): stamp_mid(a, 7)
        self.T1L = cfg.get('one', 1) and cfg.get('q6', 1) and cfg.get('t1l', 1)
        a('s_lshl_b32 s%d, s%d, 14', S_DST, S_J); a('s_add_u32 s%d, s%d, %d', S_DST, S_DST, (1 if self.T1L else 2)*32768)
        a('s_add_u32 s%d, s%d, s%d', S_SRC, S_SRC, S_DST); a('s_mov_b32 s%d, s%d', S_SRCV, S_SRC)
        a('s_bitcmp1_b32 s%d, %d', S_W, 0 if cfg.get('roles', 0) else 1); a('s_cbranch_scc1 L_pv')
        sk = 65536 if self.T1L else 32768
        a('s_add_u32 s%d, s%d, %d', S_SRC, S_SRC, sk); a('s_add_u32 s%d, s%d, %d', S_DST, S_DST, sk); a('s_mov_b32 s%d, s%d', S_SRCV, S_SRC)
        self.qk_path()
        a.label('L_pv')
        self.pv_path()

DEFCFG = dict(NQ=5, NS=2, ringq=8, ringp=8, bq=4, fq=5, dq=6, bp=23, pw=2, dpend=48, laq=1, lap=6, dv=4, dp0=0, dqe=8, w32=0)
```
